```python
import torch

def _softmax(x, axis=-1):
    return torch.softmax(x, dim=axis)
def _gelu(x):
    return torch.nn.functional.gelu(x, approximate="tanh")
def _silu(x):
    return torch.nn.functional.silu(x)
def _sigmoid(x):
    return torch.sigmoid(x)
def _layernorm(x, axis=-1, eps=1e-5):
    m = x.mean(dim=axis, keepdim=True)
    v = x.var(dim=axis, keepdim=True, unbiased=False)
    return (x - m) / torch.sqrt(v + eps)
def _scatter_add(tgt, idx, src, axis=0):
    return tgt.clone().index_add_(axis, idx, src)
def _segment_sum(src, seg, n):
    out = torch.zeros((n,) + src.shape[1:], dtype=src.dtype)
    return out.index_add_(0, seg, src)
def _pad(x, pw):
    flat = tuple(v for pair in reversed(pw) for v in pair)
    return torch.nn.functional.pad(x, flat)

kernel_name = 'gated_mix__gqa_block_cached__glu_gated_glu__decode'

def setup_inputs():

    _w = (lambda a: (lambda t: t.to(torch.bfloat16) if t.is_floating_point() else t)(torch.as_tensor(a)))
    def _A_setup():
        B, Sq, D = 4, 1, 512
        Hq, Hkv, Sk, Dh = 32, 32, 4096, 128
        assert Hq % Hkv == 0, (Hq, Hkv)
        return {
            "x": _w((lambda *s: torch.randn(*s, dtype=torch.bfloat16) * 0.05)(B, Sq, D)),
            "k_cache": _w((lambda *s: torch.randn(*s, dtype=torch.bfloat16) * 6.4)(B, Hkv, Sk, Dh)),
            "v_cache": _w((lambda *s: torch.randn(*s, dtype=torch.bfloat16) * 0.4)(B, Hkv, Sk, Dh)),
            "wq": _w((lambda *s: torch.randn(*s, dtype=torch.bfloat16) * 6.4)(D, Hq * Dh) * (D ** -0.5)),
            "wo": _w((lambda *s: torch.randn(*s, dtype=torch.bfloat16) * 0.4)(Hq * Dh, D) * ((Hq * Dh) ** -0.5)),
        }
    _A_in = _A_setup()

    def _B_setup():
        B, S, D, F = 4, 1, 512, 1376
        return {
            "x": _w((lambda *s: torch.randn(*s, dtype=torch.bfloat16) * 0.05)(B, S, D)),
            "w_gate": _w((lambda *s: torch.randn(*s, dtype=torch.bfloat16) * 0.4)(D, F)),
            "w_up": _w((lambda *s: torch.randn(*s, dtype=torch.bfloat16) * 0.05)(D, F)),
            "w_down": _w((lambda *s: torch.randn(*s, dtype=torch.bfloat16) * 0.05)(F, D)),
        }
    _B_in = _B_setup()

    return {
        "A_x": _A_in["x"],
        "A_k_cache": _A_in["k_cache"],
        "A_v_cache": _A_in["v_cache"],
        "A_wq": _A_in["wq"],
        "A_wo": _A_in["wo"],
        "B_x": _B_in["x"],
        "B_w_gate": _B_in["w_gate"],
        "B_w_up": _B_in["w_up"],
        "B_w_down": _B_in["w_down"],
        "gate_w": _w((lambda *s: torch.randn(*s, dtype=torch.bfloat16) * 0.05)(512) * 16.0),
    }

def reference(A_x, A_k_cache, A_v_cache, A_wq, A_wo, B_x, B_w_gate, B_w_up, B_w_down, gate_w):
    def _A_ref(x, k_cache, v_cache, wq, wo):
        B, Sq, D = x.shape
        Hq, Dh = 32, 128
        Hkv = k_cache.shape[1]
        rep = Hq // Hkv
        q = (lambda x, *d: x.permute(*d))((x @ wq).reshape(B, Sq, Hq, Dh), 0, 2, 1, 3)
        k = (lambda x, n, axis: torch.repeat_interleave(x, n, dim=axis))(k_cache, rep, axis=1)
        v = (lambda x, n, axis: torch.repeat_interleave(x, n, dim=axis))(v_cache, rep, axis=1)
        scores = torch.einsum("bhqd,bhkd->bhqk", q, k) * (Dh ** -0.5)
        p = _softmax(scores, axis=-1)
        o = torch.einsum("bhqk,bhkd->bhqd", p, v)
        return (lambda x, *d: x.permute(*d))(o, 0, 2, 1, 3).reshape(B, Sq, Hq * Dh) @ wo

    def _B_ref(x, w_gate, w_up, w_down):
        g = torch.einsum("bsd,df->bsf", x, w_gate)
        u = torch.einsum("bsd,df->bsf", x, w_up)
        h = _sigmoid(g) * u
        return torch.einsum("bsf,fd->bsd", h, w_down)

    x = A_x
    g = _sigmoid((x * gate_w).sum(-1, keepdims=True))
    a = _A_ref(x, A_k_cache, A_v_cache, A_wq, A_wo)
    b = _B_ref(x, B_w_gate, B_w_up, B_w_down)
    return g * a + (1 - g) * b
```

```python
import re

TRANS = ("v_exp_f32", "v_log_f32", "v_rcp_f32", "v_rsq_f32", "v_sqrt_f32", "v_sin_f32", "v_cos_f32")


def _expand(tok):
    tok = tok.strip()
    tok = tok.lstrip("-")
    m = re.fullmatch(r"abs\((.*)\)", tok)
    if m:
        tok = m.group(1)
    m = re.fullmatch(r"([vs])(\d+)", tok)
    if m:
        return [(m.group(1), int(m.group(2)))]
    m = re.fullmatch(r"([vs])\[(\d+):(\d+)\]", tok)
    if m:
        return [(m.group(1), i) for i in range(int(m.group(2)), int(m.group(3)) + 1)]
    if tok == "vcc":
        return [("s", 106), ("s", 107)]
    return []


class Asm:
    def __init__(self):
        self.out = []
        self.reset()

    def reset(self):
        self.slot = 0
        self.hist = []

    def raw(self, s):
        self.out.append(s)

    def label(self, name):
        self.out.append(f"{name}:")
        self.reset()

    def comment(self, s):
        self.out.append(f"    ; {s}")

    def nop(self, n):
        while n > 0:
            k = min(n, 16)
            self.out.append(f"    s_nop {k-1}")
            self.slot += k
            n -= k

    def __call__(self, line):
        line = line.strip()
        code = line.split(";")[0].strip()
        m = re.match(r"(\S+)\s*(.*)", code)
        op, rest = m.group(1), m.group(2)
        ops = [o.strip() for o in rest.split(",")] if rest else []
        mods = ""
        if ops:
            joined = rest
            qp = re.search(r"quad_perm:\[[^\]]*\]", joined)
            if qp:
                joined = joined.replace(qp.group(0), "quad_perm:QP")
            ops = [o.strip() for o in joined.split(",")]
            last = ops[-1].split()
            ops[-1] = last[0] if last else ""
            mods = " ".join(last[1:])
        is_valu = op.startswith("v_")
        is_vmem = op.startswith("buffer_") or op.startswith("global_")
        is_ds = op.startswith("ds_")
        is_dpp = "_dpp" in op or "row_" in mods or "quad_perm" in mods
        is_perml = op.startswith("v_permlane")
        is_rl = op.startswith("v_readlane") or op.startswith("v_readfirstlane")
        is_trans = any(op.startswith(t) for t in TRANS)
        is_dot = op.startswith("v_dot")
        writes, reads = [], []
        if is_valu:
            if op.startswith("v_cmp"):
                writes = _expand(ops[0])
                for o in ops[1:]:
                    reads += _expand(o)
            elif is_perml:
                writes = _expand(ops[0]) + _expand(ops[1])
                reads = list(writes)
            else:
                writes = _expand(ops[0])
                for o in ops[1:]:
                    reads += _expand(o)
                if op.startswith(("v_fmac", "v_dot2c", "v_pk_fmac")) or (is_dpp and "bank_mask:0xf" not in mods):
                    reads += writes
                if op.startswith("v_cndmask_b32") and len(ops) == 3:
                    reads += _expand("vcc")
        elif is_vmem or is_ds:
            for o in ops:
                reads += _expand(o)
        need = 0
        for h in self.hist:
            dist = self.slot - h["slot"] - 1
            req = 0
            hw = set(h["writes"])
            if h["valu"]:
                vw = {r for r in hw if r[0] == "v"}
                sw = {r for r in hw if r[0] == "s"}
                if is_valu and is_dpp and len(ops) > 1 and vw & set(_expand(ops[1])):
                    req = max(req, 2)
                if is_perml and vw & set(reads):
                    req = max(req, 2)
                if is_rl and vw & set(_expand(ops[1])):
                    req = max(req, 1)
                if h["trans"] and is_valu and not is_trans and vw & set(reads):
                    req = max(req, 1)
                if h["dot"] and (is_valu or is_vmem or is_ds):
                    touched = set(reads) | set(writes)
                    if vw & touched:
                        same = op == h["op"]
                        as_c_only = same and len(ops) == 4 and not (vw & (set(_expand(ops[1])) | set(_expand(ops[2]))))
                        if not as_c_only:
                            req = max(req, 3)
                if sw:
                    if is_valu and sw & set(reads):
                        req = max(req, 4 if (is_rl and len(ops) == 3 and sw & set(_expand(ops[2]))) else 2)
                    if is_vmem and sw & set(reads):
                        req = max(req, 5)
            if h["widestore"] and is_valu and set(h["sdata"]) & set(writes):
                req = max(req, 2)
            need = max(need, req - dist)
        if need > 0:
            self.nop(need)
        self.out.append("    " + line)
        wide = is_vmem and "store" in op and ("x3" in op or "x4" in op)
        self.hist.append(dict(slot=self.slot, valu=is_valu, writes=writes, trans=is_trans, dot=is_dot, op=op,
                              widestore=wide, sdata=_expand(ops[0]) if wide else []))
        self.slot += 1
        self.hist = [h for h in self.hist if self.slot - h["slot"] <= 6]
        if op.startswith("s_cbranch") or op.startswith("s_branch"):
            pass

    def text(self):
        return "\n".join(self.out) + "\n"
```

```python
import sys, argparse
sys.path.insert(0, "work")
from asmlib import Asm

HEADER = open("gated_mix__gqa_block_cached__glu_gated_glu__decode.s.ref").read().split("; Override launch")[0]

WS_Y = 0
WS_STATS = 512 * 1024
WS_F = 1024 * 1024
NFFN = 86
L_QP = 0
L_OP = 4096
L_ST = 8192
L_QQ = 8448
L_Y = 12288
L_XT = 28672
L_G = 36864
LDS_A = 36864

LOG2E = 0x3FB8AA3B
SCALE = 0x3DB504F3


def round_bf16(a, v):
    a(f"v_cvt_pk_bf16_f32 {v}, {v}, {v}")
    a(f"v_and_b32 {v}, s42, {v}")


def gen(args):
    a = Asm()
    NT = 4
    nt = " nt" if args.nt else ""
    K0, V0, T0 = 40, 104, 24
    ACC = 8
    Q = 4
    P, M, L = 16, 17, 18
    VRED = 19

    def Kr(i): return f"v[{K0+4*i}:{K0+4*i+3}]"
    def Vr(i): return f"v[{V0+4*i}:{V0+4*i+3}]"

    a.raw(HEADER.rstrip("\n"))
    a.raw(f"; @launch kernel=attn_kernel grid=(256,1,1) block=(576,1,1) lds={LDS_A}")
    a.raw("; @launch kernel=fin_kernel grid=(64,1,1) block=(256,1,1) lds=2048")
    a.raw('.amdgcn_target "amdgcn-amd-amdhsa--gfx950"')
    a.raw(".text")
    a.raw(".globl attn_kernel\n.p2align 8\n.type attn_kernel,@function")
    a.label("attn_kernel")
    a("s_cmp_ge_u32 s2, 256")
    a("s_cbranch_scc1 LA_end")
    a("s_load_dwordx16 s[16:31], s[0:1], 0")
    a("s_load_dwordx8 s[32:39], s[0:1], 64")
    a("s_load_dwordx2 s[40:41], s[0:1], 96")
    a("v_lshrrev_b32 v1, 6, v0")
    a("v_and_b32 v0, 63, v0")
    a("v_readfirstlane_b32 s3, v1")
    a("s_and_b32 s4, s2, 7")
    a("s_lshr_b32 s5, s2, 3")
    a("s_and_b32 s6, s5, 3")
    a("s_lshl_b32 s4, s4, 2")
    a("s_add_u32 s6, s6, s4")
    a("s_lshr_b32 s5, s5, 2")
    a("s_lshr_b32 s7, s5, 1")
    a("s_and_b32 s8, s5, 1")
    a("s_mov_b32 s42, 0xffff0000")
    a(f"s_mov_b32 s68, {SCALE:#x}")
    a(f"s_mov_b32 s69, {LOG2E:#x}")
    a("s_mov_b32 s47, 0x20000")
    a("s_mov_b32 s51, 0x20000")
    a("s_mov_b32 s55, 0x20000")
    a("s_mov_b32 s59, 0x20000")
    a("s_mov_b32 s63, 0x20000")
    a("v_lshlrev_b32 v1, 4, v0")
    a("s_cmp_eq_u32 s3, 8")
    a("s_cbranch_scc1 LA_ffn")
    a("s_mov_b32 s64, 0xcccccccc")
    a("s_mov_b32 s65, 0xcccccccc")
    a("s_mov_b32 s66, 0xaaaaaaaa")
    a("s_mov_b32 s67, 0xaaaaaaaa")
    a("s_mov_b32 s70, 0x05040100")
    a("s_mov_b32 s71, 0x07060302")
    a("v_lshrrev_b32 v20, 4, v0")
    a("v_and_b32 v21, 15, v0")
    a("v_lshlrev_b32 v2, 13, v20")
    a("v_lshl_add_u32 v2, v21, 4, v2")
    a("v_lshl_add_u32 v3, v21, 2, v20")
    a("v_lshlrev_b32 v3, 1, v3")
    a("v_and_b32 v22, 1, v20")
    a("v_lshlrev_b32 v22, 1, v22")
    a("v_lshrrev_b32 v23, 1, v20")
    a("v_or_b32 v22, v22, v23")
    a("v_lshl_add_u32 v22, v21, 3, v22")
    a("v_lshlrev_b32 v22, 2, v22")
    a("s_lshl_b32 s4, s3, 9")
    a(f"v_add_u32 v{VRED}, s4, v22")
    a("s_lshl_b32 s4, s7, 5")
    a("s_add_u32 s4, s4, s6")
    a("s_lshl_b32 s10, s4, 20")
    a("s_lshl_b32 s4, s8, 19")
    a("s_add_u32 s10, s10, s4")
    wsh, step = (14, 1 << 17) if args.interleave else (16, 1 << 14)
    a(f"s_lshl_b32 s4, s3, {wsh}")
    a("s_add_u32 s10, s10, s4")
    a("s_mov_b32 s11, s10")
    a("s_lshl_b32 s4, s7, 10")
    a("s_lshl_b32 s5, s3, 7")
    a("s_add_u32 s4, s4, s5")
    a("s_lshl_b32 s5, s3, 19")
    a("s_lshl_b32 s12, s6, 8")
    a("s_add_u32 s5, s5, s12")
    a("s_mov_b32 s46, 0x08000000")
    a("s_mov_b32 s50, 0x08000000")
    a("s_mov_b32 s54, 0x00400000")
    a("s_mov_b32 s58, 4096")
    a(f"s_mov_b32 s62, {WS_STATS + 2048}")
    a("s_waitcnt lgkmcnt(0)")
    a("s_mov_b32 s44, s18")
    a("s_mov_b32 s45, s19")
    a("s_mov_b32 s48, s20")
    a("s_mov_b32 s49, s21")
    a("s_mov_b32 s52, s22")
    a("s_mov_b32 s53, s23")
    a("s_mov_b32 s56, s16")
    a("s_mov_b32 s57, s17")
    a("s_mov_b32 s60, s40")
    a("s_mov_b32 s61, s41")
    a(f"buffer_load_ushort v{P}, v3, s[56:59], s4 offen")
    for i in range(16):
        a(f"buffer_load_dwordx4 {Vr(i)}, v2, s[52:55], s5 offen")
        if i < 15:
            a("s_add_u32 s5, s5, 0x8000")
    a("s_add_u32 s13, s10, 4096")
    a("s_add_u32 s14, s10, 8192")
    a("s_add_u32 s15, s10, 12288")
    for i in range(16):
        so = ["s10", "s13", "s14", "s15"][i >> 2]
        a(f"buffer_load_dwordx4 {Kr(i)}, v1, s[44:47], {so} offen offset:{(i & 3) * 1024}{nt}")
    a(f"s_add_u32 s10, s10, {step}")
    for j in range(8):
        a(f"v_mov_b32 v{ACC+j}, 0")
    a("s_mov_b32 s9, 0")
    a("s_waitcnt vmcnt(32)")
    a(f"v_lshlrev_b32 v{P}, 16, v{P}")
    a.nop(2)
    a.label("LA_loop")
    a("s_add_u32 s13, s11, 4096")
    a("s_add_u32 s14, s11, 8192")
    a("s_add_u32 s15, s11, 12288")
    for i in range(16):
        tb = T0 + 8 * (i & 1)
        a("s_waitcnt vmcnt(31)")
        for d in range(4):
            a(f"v_lshlrev_b32 v{tb+2*d}, 16, v{V0+4*i+d}")
            a(f"v_and_b32 v{tb+2*d+1}, s42, v{V0+4*i+d}")
        so = ["s11", "s13", "s14", "s15"][i >> 2]
        a(f"buffer_load_dwordx4 {Vr(i)}, v1, s[48:51], {so} offen offset:{(i & 3) * 1024}{nt}")
        for e in range(8):
            a(f"v_fmac_f32_dpp v{ACC+e}, v{P}, v{tb+e} row_newbcast:{i} row_mask:0xf bank_mask:0xf")
    a(f"s_add_u32 s11, s11, {step}")
    a("s_cmp_eq_u32 s9, 0")
    a("s_cbranch_scc1 LA_qfin")
    a(f"s_cmp_eq_u32 s9, {NT}")
    a("s_cbranch_scc1 LA_tail")
    a.label("LA_qk")
    a("s_add_u32 s13, s10, 4096")
    a("s_add_u32 s14, s10, 8192")
    a("s_add_u32 s15, s10, 12288")
    for i in range(16):
        a("s_waitcnt vmcnt(31)")
        t = f"v{T0+i}"
        a(f"v_dot2_f32_bf16 {t}, v{K0+4*i}, v{Q}, 0")
        for d in range(1, 4):
            a(f"v_dot2_f32_bf16 {t}, v{K0+4*i+d}, v{Q+d}, {t}")
        so = ["s10", "s13", "s14", "s15"][i >> 2]
        a(f"buffer_load_dwordx4 {Kr(i)}, v1, s[44:47], {so} offen offset:{(i & 3) * 1024}{nt}")
    a(f"s_add_u32 s10, s10, {step}")
    for i in range(8):
        a(f"v_add_f32_dpp v{T0+i}, v{T0+i}, v{T0+i} row_ror:8 row_mask:0xf bank_mask:0x3")
        a(f"v_add_f32_dpp v{T0+i}, v{T0+i+8}, v{T0+i+8} row_ror:8 row_mask:0xf bank_mask:0xc")
    for i in range(4):
        a(f"v_add_f32_dpp v{T0+i}, v{T0+i}, v{T0+i} row_half_mirror row_mask:0xf bank_mask:0x5")
        a(f"v_add_f32_dpp v{T0+i}, v{T0+i+4}, v{T0+i+4} row_half_mirror row_mask:0xf bank_mask:0xa")
    for i in range(4):
        a(f"v_add_f32_dpp v{T0+8+i}, v{T0+i}, v{T0+i} quad_perm:[2,3,0,1] row_mask:0xf bank_mask:0xf")
    a(f"v_cndmask_b32 v{T0}, v{T0+8}, v{T0+10}, s[64:65]")
    a(f"v_cndmask_b32 v{T0+1}, v{T0+9}, v{T0+11}, s[64:65]")
    a(f"v_add_f32_dpp v{T0+8}, v{T0}, v{T0} quad_perm:[1,0,3,2] row_mask:0xf bank_mask:0xf")
    a(f"v_add_f32_dpp v{T0+9}, v{T0+1}, v{T0+1} quad_perm:[1,0,3,2] row_mask:0xf bank_mask:0xf")
    S = f"v{T0}"
    a(f"v_cndmask_b32 {S}, v{T0+8}, v{T0+9}, s[66:67]")
    round_bf16(a, S)
    a(f"v_mul_f32 {S}, s68, {S}")
    round_bf16(a, S)
    MX = f"v{T0+1}"
    a(f"v_max_f32_dpp {MX}, {S}, {S} row_ror:8 row_mask:0xf bank_mask:0xf")
    for r in (4, 2, 1):
        a(f"v_max_f32_dpp {MX}, {MX}, {MX} row_ror:{r} row_mask:0xf bank_mask:0xf")
    a(f"v_max_f32 {MX}, {MX}, v{M}")
    AL = f"v{T0+2}"
    a(f"v_sub_f32 {AL}, v{M}, {MX}")
    a(f"v_sub_f32 v{P}, {S}, {MX}")
    a(f"v_mul_f32 {AL}, s69, {AL}")
    a(f"v_mul_f32 v{P}, s69, v{P}")
    a(f"v_exp_f32 {AL}, {AL}")
    a(f"v_exp_f32 v{P}, v{P}")
    a(f"v_mov_b32 v{M}, {MX}")
    a(f"v_fma_f32 v{L}, v{L}, {AL}, v{P}")
    for j in range(8):
        a(f"v_mul_f32 v{ACC+j}, {AL}, v{ACC+j}")
    a("s_add_u32 s9, s9, 1")
    a(f"s_cmp_lt_u32 s9, {NT-1}")
    a("s_cbranch_scc1 LA_loop")
    a(f"s_cmp_eq_u32 s9, {NT}")
    a("s_cbranch_scc1 LA_last")
    a("s_mov_b32 s44, s24")
    a("s_mov_b32 s45, s25")
    a("s_mov_b32 s46, 0x00400000")
    a("s_lshl_b32 s10, s6, 17")
    a("s_lshl_b32 s4, s3, 14")
    a("s_add_u32 s10, s10, s4")
    a("s_branch LA_loop")
    a.label("LA_last")
    a("s_mov_b32 s50, 0")
    a("s_branch LA_loop")

    def cross_row_reduce8(base):
        for k in range(4):
            a(f"v_permlane32_swap_b32 v{base+2*k}, v{base+2*k+1}")
        for k in range(4):
            a(f"v_add_f32 v{base+2*k}, v{base+2*k}, v{base+2*k+1}")
        a(f"v_permlane16_swap_b32 v{base}, v{base+2}")
        a(f"v_permlane16_swap_b32 v{base+4}, v{base+6}")
        a(f"v_add_f32 v{base}, v{base}, v{base+2}")
        a(f"v_add_f32 v{base+4}, v{base+4}, v{base+6}")

    a.label("LA_qfin")
    a.nop(2)
    cross_row_reduce8(ACC)
    a(f"ds_write_b32 v{VRED}, v{ACC} offset:{L_QP}")
    a(f"ds_write_b32 v{VRED}, v{ACC+4} offset:{L_QP+16}")
    a("v_lshlrev_b32 v20, 3, v0")
    a("s_waitcnt lgkmcnt(0)")
    a("s_barrier")
    for w in range(8):
        a(f"ds_read_b64 v[{T0+2*w}:{T0+2*w+1}], v20 offset:{L_QP + 512*w}")
    a("s_lshl_b32 s4, s3, 8")
    a("v_lshlrev_b32 v21, 2, v0")
    a("v_add_u32 v21, s4, v21")
    a("v_and_b32 v22, 15, v0")
    a("v_lshlrev_b32 v22, 4, v22")
    a("v_add_u32 v22, s4, v22")
    a("s_waitcnt lgkmcnt(0)")
    for st in (1, 2, 4):
        for w in range(0, 8, 2 * st):
            a(f"v_add_f32 v{T0+2*w}, v{T0+2*w}, v{T0+2*(w+st)}")
            a(f"v_add_f32 v{T0+2*w+1}, v{T0+2*w+1}, v{T0+2*(w+st)+1}")
    a(f"v_cvt_pk_bf16_f32 v23, v{T0}, v{T0+1}")
    a(f"ds_write_b32 v21, v23 offset:{L_QQ}")
    a("s_waitcnt lgkmcnt(0)")
    a(f"ds_read_b128 v[{Q}:{Q+3}], v22 offset:{L_QQ}")
    for j in range(8):
        a(f"v_mov_b32 v{ACC+j}, 0")
    a(f"v_mov_b32 v{M}, 0xff800000")
    a(f"v_mov_b32 v{L}, 0")
    a("s_waitcnt lgkmcnt(0)")
    a("s_branch LA_qk")

    a.label("LA_tail")
    a.nop(2)
    for r in (8, 4, 2, 1):
        a(f"v_add_f32_dpp v{L}, v{L}, v{L} row_ror:{r} row_mask:0xf bank_mask:0xf")
    for g in range(4):
        a(f"v_readlane_b32 s{80+g}, v{M}, {16*g}")
    a("v_mov_b32 v20, s80")
    a("v_max_f32 v20, s81, v20")
    a("v_max_f32 v20, s82, v20")
    a("v_max_f32 v20, s83, v20")
    a(f"v_sub_f32 v22, v{M}, v20")
    a("v_mul_f32 v22, s69, v22")
    a("v_exp_f32 v22, v22")
    a(f"v_mul_f32 v{L}, v22, v{L}")
    for j in range(8):
        a(f"v_mul_f32 v{ACC+j}, v22, v{ACC+j}")
    for g in range(4):
        a(f"v_readlane_b32 s{80+g}, v{L}, {16*g}")
    cross_row_reduce8(ACC)
    a("v_mov_b32 v21, s80")
    a("v_add_f32 v21, s81, v21")
    a("v_add_f32 v21, s82, v21")
    a("v_add_f32 v21, s83, v21")
    a(f"ds_write_b32 v{VRED}, v{ACC} offset:{L_OP}")
    a(f"ds_write_b32 v{VRED}, v{ACC+4} offset:{L_OP+16}")
    a("s_lshl_b32 s4, s3, 3")
    a("v_mov_b32 v22, s4")
    a(f"ds_write_b64 v22, v[20:21] offset:{L_ST}")
    a("s_waitcnt vmcnt(0)")
    for j in range(8):
        for t in range(4):
            A_, B_ = K0 + 8 * j + t, K0 + 8 * j + 4 + t
            a(f"v_perm_b32 v{V0+4*j+t}, v{B_}, v{A_}, s70")
            a(f"v_perm_b32 v{B_}, v{B_}, v{A_}, s71")
    a("v_lshlrev_b32 v20, 3, v0")
    a("v_mov_b32 v21, 0")
    a("s_waitcnt lgkmcnt(0)")
    a("s_barrier")
    SB = V0 + 32
    for k in range(4):
        a(f"ds_read_b128 v[{SB+4*k}:{SB+4*k+3}], v21 offset:{L_ST + 16*k}")
    for w in range(8):
        a(f"ds_read_b64 v[{T0+2*w}:{T0+2*w+1}], v20 offset:{L_OP + 512*w}")
    a("s_lshl_b32 s4, s3, 3")
    a("s_waitcnt lgkmcnt(8)")
    a(f"v_max3_f32 v20, v{SB}, v{SB+2}, v{SB+4}")
    a(f"v_max3_f32 v20, v20, v{SB+6}, v{SB+8}")
    a(f"v_max3_f32 v20, v20, v{SB+10}, v{SB+12}")
    a(f"v_max_f32 v20, v20, v{SB+14}")
    for w in range(8):
        a(f"v_sub_f32 v{SB+2*w}, v{SB+2*w}, v20")
    for w in range(8):
        a(f"v_mul_f32 v{SB+2*w}, s69, v{SB+2*w}")
    for w in range(8):
        a(f"v_exp_f32 v{SB+2*w}, v{SB+2*w}")
    a(f"v_mul_f32 v21, v{SB}, v{SB+1}")
    for w in range(1, 8):
        a(f"v_fmac_f32 v21, v{SB+2*w}, v{SB+2*w+1}")
    a("v_rcp_f32 v22, v21")
    a("s_waitcnt lgkmcnt(0)")
    a(f"v_mul_f32 v2, v{SB}, v{T0}")
    a(f"v_mul_f32 v3, v{SB}, v{T0+1}")
    for w in range(1, 8):
        a(f"v_fmac_f32 v2, v{SB+2*w}, v{T0+2*w}")
        a(f"v_fmac_f32 v3, v{SB+2*w}, v{T0+2*w+1}")
    a("v_mul_f32 v2, v22, v2")
    a("v_mul_f32 v3, v22, v3")
    a("v_cvt_pk_bf16_f32 v2, v2, v3")
    for j in range(8):
        a(f"v_readlane_b32 s{72+j}, v2, s4")
        if j < 7:
            a("s_add_u32 s4, s4, 1")
    for j in range(8):
        for t in range(4):
            c = "0" if j == 0 else f"v{ACC+2*t}"
            a(f"v_dot2_f32_bf16 v{ACC+2*t}, v{V0+4*j+t}, s{72+j}, {c}")
            c = "0" if j == 0 else f"v{ACC+2*t+1}"
            a(f"v_dot2_f32_bf16 v{ACC+2*t+1}, v{K0+8*j+4+t}, s{72+j}, {c}")
    a("s_lshl_b32 s4, s3, 11")
    a("v_lshlrev_b32 v2, 5, v0")
    a("v_add_u32 v2, s4, v2")
    a(f"ds_write_b128 v2, v[{ACC}:{ACC+3}] offset:{L_Y}")
    a(f"ds_write_b128 v2, v[{ACC+4}:{ACC+7}] offset:{L_Y+16}")
    a("s_lshl_b32 s4, s3, 8")
    a("v_lshlrev_b32 v3, 2, v0")
    a("v_add_u32 v3, s4, v3")
    a("s_lshl_b32 s5, s7, 6")
    a("s_lshl_b32 s12, s6, 1")
    a("s_add_u32 s5, s5, s12")
    a("s_add_u32 s5, s5, s8")
    a("s_lshl_b32 s5, s5, 11")
    a("s_waitcnt lgkmcnt(0)")
    a("s_barrier")
    for w in range(8):
        a(f"ds_read_b32 v{T0+w}, v3 offset:{L_Y + 2048*w}")
    a("s_waitcnt lgkmcnt(0)")
    for st in (1, 2, 4):
        for w in range(0, 8, 2 * st):
            a(f"v_add_f32 v{T0+w}, v{T0+w}, v{T0+w+st}")
    a(f"buffer_store_dword v{T0}, v3, s[60:63], s5 offen")
    a("s_cmp_lg_u32 s3, 0")
    a("s_cbranch_scc1 LA_end")
    a("s_lshl_b32 s5, s7, 5")
    a("s_add_u32 s5, s5, s6")
    a("s_lshl_b32 s5, s5, 4")
    a("s_lshl_b32 s12, s8, 3")
    a("s_add_u32 s5, s5, s12")
    a(f"s_add_u32 s5, s5, {WS_STATS}")
    a("v_mov_b32 v2, 0")
    a("s_mov_b64 exec, 1")
    a("buffer_store_dwordx2 v[20:21], v2, s[60:63], s5 offen")
    a("s_endpgm")

    a.label("LA_ffn")
    a("s_and_b32 s4, s2, 7")
    a("s_lshr_b32 s5, s2, 3")
    a("s_lshr_b32 s6, s5, 2")
    a("s_lshl_b32 s6, s6, 3")
    a("s_add_u32 s6, s6, s4")
    a("s_lshl_b32 s6, s6, 2")
    a("s_and_b32 s5, s5, 3")
    a("s_add_u32 s6, s6, s5")
    a(f"s_cmp_ge_u32 s6, {NFFN}")
    a("s_cbranch_scc1 LA_end")
    FB = 104
    FA = 40
    FX = 72
    FU = 80
    FG = 88
    FH = 96
    def Fr(i): return f"v[{FB+4*i}:{FB+4*i+3}]"
    a("v_lshrrev_b32 v20, 1, v0")
    a("v_and_b32 v21, 1, v0")
    a("s_movk_i32 s4, 2752")
    a("v_mul_lo_u32 v2, v20, s4")
    a("v_lshl_add_u32 v2, v21, 4, v2")
    a("v_lshlrev_b32 v3, 4, v20")
    a("s_mov_b32 s46, 1409024")
    a("s_mov_b32 s50, 1409024")
    a("s_mov_b32 s58, 4096")
    a(f"s_mov_b32 s62, {NFFN*8192}")
    a("s_lshl_b32 s10, s6, 5")
    a("s_waitcnt lgkmcnt(0)")
    a("s_mov_b32 s44, s28")
    a("s_mov_b32 s45, s29")
    a("s_mov_b32 s48, s30")
    a("s_mov_b32 s49, s31")
    a("s_mov_b32 s56, s16")
    a("s_mov_b32 s57, s17")
    a(f"s_add_u32 s60, s40, {WS_F}")
    a("s_addc_u32 s61, s41, 0")
    for b in range(4):
        a(f"buffer_load_dwordx4 v[{4+4*b}:{7+4*b}], v1, s[56:59], 0 offen offset:{1024*b}")
    a("s_mov_b32 s11, s10")
    for i in range(16):
        a(f"buffer_load_dwordx4 {Fr(i)}, v2, s[44:47], s11 offen")
        if i < 15:
            a(f"s_add_u32 s11, s11, {32*2752}")
    a("s_waitcnt vmcnt(16)")
    for e in range(8):
        for b in range(4):
            src = f"v{4+4*b+(e>>1)}"
            if e & 1:
                a(f"v_and_b32 v{FA+4*e+b}, s42, {src}")
            else:
                a(f"v_lshlrev_b32 v{FA+4*e+b}, 16, {src}")
    a("v_lshlrev_b32 v20, 7, v0")
    for e in range(8):
        a(f"ds_write_b128 v20, v[{FA+4*e}:{FA+4*e+3}] offset:{L_XT + 16*e}")
    a("s_waitcnt lgkmcnt(0)")
    a("s_barrier")
    a("s_mov_b32 s9, 0")
    a("v_mov_b32 v22, v2")
    a(f"s_mov_b32 s12, {32*2752}")
    a.label("LF_pass")
    a("s_mov_b32 s11, s10")
    for k in range(32):
        a(f"v_mov_b32 v{FA+k}, 0")
    a(f"ds_read_b128 v[{FX}:{FX+3}], v3 offset:{L_XT}")
    for i in range(16):
        xb = FX + 4 * (i & 1)
        if i < 15:
            nb = FX + 4 * ((i + 1) & 1)
            a(f"ds_read_b128 v[{nb}:{nb+3}], v3 offset:{L_XT + 512*(i+1)}")
        a("s_waitcnt vmcnt(15)")
        for d in range(4):
            a(f"v_lshlrev_b32 v{FU+2*d}, 16, v{FB+4*i+d}")
            a(f"v_and_b32 v{FU+2*d+1}, s42, v{FB+4*i+d}")
        a(f"buffer_load_dwordx4 {Fr(i)}, v22, s[48:51], s11 offen")
        a("s_add_u32 s11, s11, s12")
        a(f"s_waitcnt lgkmcnt({1 if i < 15 else 0})")
        for b in range(4):
            for e in range(8):
                a(f"v_fmac_f32 v{FA+8*b+e}, v{xb+b}, v{FU+e}")
    for k in range(16):
        a(f"v_permlane32_swap_b32 v{FA+k}, v{FA+16+k}")
    for k in range(16):
        a(f"v_add_f32 v{FA+k}, v{FA+k}, v{FA+16+k}")
    for k in range(8):
        a(f"v_permlane16_swap_b32 v{FA+k}, v{FA+8+k}")
    for k in range(8):
        a(f"v_add_f32 v{FA+k}, v{FA+k}, v{FA+8+k}")
    for r in (2, 4, 8):
        for k in range(8):
            a(f"v_add_f32_dpp v{FA+k}, v{FA+k}, v{FA+k} row_ror:{r} row_mask:0xf bank_mask:0xf")
    for k in range(8):
        a(f"v_mov_b32 v{FG+k}, v{FH+k}")
        a(f"v_mov_b32 v{FH+k}, v{FA+k}")
    a("s_cmp_eq_u32 s9, 1")
    a("s_cbranch_scc1 LF_p2")
    a("s_mov_b32 s9, 1")
    a("s_mov_b32 s48, s32")
    a("s_mov_b32 s49, s33")
    a("v_mov_b32 v22, v1")
    a("s_movk_i32 s12, 1024")
    a("s_lshl_b32 s10, s6, 14")
    a("s_branch LF_pass")
    a.label("LF_p2")
    a.nop(2)
    for k in range(8):
        g, u = f"v{FG+k}", f"v{FH+k}"
        round_bf16(a, g)
        round_bf16(a, u)
        a(f"v_mul_f32 {g}, s69, {g}")
        a(f"v_exp_f32 {g}, -{g}")
        a(f"v_add_f32 {g}, 1.0, {g}")
        a(f"v_rcp_f32 {g}, {g}")
        round_bf16(a, g)
        a(f"v_mul_f32 {u}, {g}, {u}")
        round_bf16(a, u)
    for k in range(32):
        a(f"v_mov_b32 v{FA+k}, 0")
    for f in range(16):
        for b in range(4):
            a(f"v_readlane_b32 s{80+b}, v{FH+(f&7)}, {16*b + (f >> 3)}")
        a(f"s_waitcnt vmcnt({15-f})")
        for d in range(4):
            a(f"v_lshlrev_b32 v{FU+2*d}, 16, v{FB+4*f+d}")
            a(f"v_and_b32 v{FU+2*d+1}, s42, v{FB+4*f+d}")
        for b in range(4):
            for e in range(8):
                a(f"v_fmac_f32 v{FA+8*b+e}, s{80+b}, v{FU+e}")
    a("v_lshlrev_b32 v2, 5, v0")
    a("s_lshl_b32 s10, s6, 13")
    for b in range(4):
        a(f"buffer_store_dwordx4 v[{FA+8*b}:{FA+8*b+3}], v2, s[60:63], s10 offen offset:{2048*(b&1)}")
        a(f"buffer_store_dwordx4 v[{FA+8*b+4}:{FA+8*b+7}], v2, s[60:63], s10 offen offset:{2048*(b&1)+16}")
        if b == 1:
            a("s_add_u32 s10, s10, 4096")
    a.label("LA_end")
    a("s_endpgm")

    a.raw(".globl fin_kernel\n.p2align 8\n.type fin_kernel,@function")
    a.label("fin_kernel")
    a("s_cmp_ge_u32 s2, 64")
    a("s_cbranch_scc1 LB_end")
    a("s_load_dwordx2 s[16:17], s[0:1], 0")
    a("s_load_dwordx4 s[32:35], s[0:1], 72")
    a("s_load_dwordx2 s[40:41], s[0:1], 96")
    a("s_lshr_b32 s7, s2, 4")
    a("s_and_b32 s8, s2, 15")
    a("s_mov_b32 s42, 0xffff0000")
    a(f"s_mov_b32 s69, {LOG2E:#x}")
    for r in (47, 51, 55, 59, 63):
        a(f"s_mov_b32 s{r}, 0x20000")
    a(f"s_mov_b32 s46, {WS_STATS + 2048}")
    a(f"s_mov_b32 s50, {NFFN*8192}")
    a("s_mov_b32 s54, 4096")
    a("s_mov_b32 s58, 1024")
    a("s_mov_b32 s62, 4096")
    a("v_lshrrev_b32 v1, 3, v0")
    a("v_and_b32 v2, 7, v0")
    a("v_lshlrev_b32 v3, 11, v1")
    a("v_lshl_add_u32 v3, v2, 4, v3")
    a("v_lshrrev_b32 v4, 1, v1")
    a("v_lshlrev_b32 v4, 4, v4")
    a("v_lshlrev_b32 v5, 13, v1")
    a("v_lshl_add_u32 v5, v2, 4, v5")
    a("v_lshlrev_b32 v6, 2, v0")
    a("s_lshl_b32 s4, s7, 17")
    a("s_lshl_b32 s5, s8, 7")
    a("s_add_u32 s4, s4, s5")
    a("s_add_u32 s10, s4, 65536")
    a("s_lshl_b32 s11, s7, 9")
    a(f"s_add_u32 s11, s11, {WS_STATS}")
    a("s_lshl_b32 s12, s7, 11")
    a("s_add_u32 s12, s12, s5")
    a("s_add_u32 s13, s12, 0x40000")
    a("s_add_u32 s14, s12, 0x80000")
    a("s_lshl_b32 s15, s7, 10")
    a("s_waitcnt lgkmcnt(0)")
    a("s_mov_b32 s44, s40")
    a("s_mov_b32 s45, s41")
    a(f"s_add_u32 s48, s40, {WS_F}")
    a("s_addc_u32 s49, s41, 0")
    a("s_mov_b32 s52, s16")
    a("s_mov_b32 s53, s17")
    a("s_mov_b32 s56, s32")
    a("s_mov_b32 s57, s33")
    a("s_mov_b32 s60, s34")
    a("s_mov_b32 s61, s35")
    a("buffer_load_dwordx4 v[8:11], v4, s[44:47], s11 offen")
    a("buffer_load_dwordx4 v[12:15], v4, s[44:47], s11 offen offset:256")
    a("buffer_load_dword v36, v6, s[52:55], s15 offen")
    a("buffer_load_dword v37, v6, s[56:59], 0 offen")
    a("buffer_load_dwordx4 v[16:19], v3, s[44:47], s4 offen")
    a("buffer_load_dwordx4 v[20:23], v3, s[44:47], s10 offen")
    a("buffer_load_dwordx4 v[24:27], v5, s[48:51], s12 offen")
    a("buffer_load_dwordx4 v[28:31], v5, s[48:51], s13 offen")
    a("buffer_load_dwordx4 v[32:35], v5, s[48:51], s14 offen")
    a("v_and_b32 v7, 1, v1")
    a("v_cmp_eq_u32 vcc, 1, v7")
    a("s_waitcnt vmcnt(7)")
    for k, sb in enumerate((8, 12)):
        w = f"v{38+k}"
        a(f"v_max_f32 v40, v{sb}, v{sb+2}")
        a(f"v_sub_f32 v{sb}, v{sb}, v40")
        a(f"v_sub_f32 v{sb+2}, v{sb+2}, v40")
        a(f"v_mul_f32 v{sb}, s69, v{sb}")
        a(f"v_mul_f32 v{sb+2}, s69, v{sb+2}")
        a(f"v_exp_f32 v{sb}, v{sb}")
        a(f"v_exp_f32 v{sb+2}, v{sb+2}")
        a(f"v_mul_f32 v{sb}, v{sb}, v{sb+1}")
        a(f"v_mul_f32 v{sb+2}, v{sb+2}, v{sb+3}")
        a(f"v_add_f32 v40, v{sb}, v{sb+2}")
        a("v_rcp_f32 v40, v40")
        a(f"v_cndmask_b32 {w}, v{sb}, v{sb+2}, vcc")
        a(f"v_mul_f32 {w}, {w}, v40")
    a("s_waitcnt vmcnt(5)")
    a("v_lshlrev_b32 v40, 16, v36")
    a("v_and_b32 v41, s42, v36")
    a("v_lshlrev_b32 v42, 16, v37")
    a("v_and_b32 v43, s42, v37")
    a("v_mul_f32 v40, v40, v42")
    a("v_mul_f32 v41, v41, v43")
    round_bf16(a, "v40")
    round_bf16(a, "v41")
    a("v_add_f32 v40, v40, v41")
    for r in (1, 2, 4, 8):
        a(f"v_add_f32_dpp v40, v40, v40 row_ror:{r} row_mask:0xf bank_mask:0xf")
    for g in range(4):
        a(f"v_readlane_b32 s{80+g}, v40, {16*g}")
    a("v_mov_b32 v40, s80")
    a("v_add_f32 v40, s81, v40")
    a("v_add_f32 v40, s82, v40")
    a("v_add_f32 v40, s83, v40")
    a("v_lshrrev_b32 v41, 6, v0")
    a("v_lshlrev_b32 v42, 2, v41")
    a("ds_write_b32 v42, v40 offset:1024")
    a("s_waitcnt vmcnt(3)")
    for k in range(4):
        a(f"v_mul_f32 v{16+k}, v38, v{16+k}")
        a(f"v_fmac_f32 v{16+k}, v39, v{20+k}")
    a("s_waitcnt vmcnt(0)")
    for k in range(4):
        a(f"v_add_f32 v{24+k}, v{24+k}, v{28+k}")
        a(f"v_add_f32 v{24+k}, v{24+k}, v{32+k}")
    for k in range(4):
        a(f"v_permlane32_swap_b32 v{16+k}, v{24+k}")
    for k in range(4):
        a(f"v_add_f32 v{16+k}, v{16+k}, v{24+k}")
    a("v_permlane16_swap_b32 v16, v17")
    a("v_permlane16_swap_b32 v18, v19")
    a("v_add_f32 v16, v16, v17")
    a("v_add_f32 v18, v18, v19")
    a("v_add_f32_dpp v16, v16, v16 row_ror:8 row_mask:0xf bank_mask:0xf")
    a("v_add_f32_dpp v18, v18, v18 row_ror:8 row_mask:0xf bank_mask:0xf")
    a("v_bfe_u32 v43, v0, 5, 1")
    a("v_lshlrev_b32 v43, 7, v43")
    a("v_lshl_add_u32 v43, v41, 8, v43")
    a("v_lshl_add_u32 v43, v2, 4, v43")
    a("v_bfe_u32 v44, v0, 4, 1")
    a("v_lshl_add_u32 v43, v44, 2, v43")
    a("ds_write_b32 v43, v16")
    a("ds_write_b32 v43, v18 offset:8")
    a("s_waitcnt lgkmcnt(0)")
    a("s_barrier")
    a("v_cmp_gt_u32 vcc, 32, v0")
    a("s_and_saveexec_b64 s[84:85], vcc")
    a("s_cbranch_execz LB_end")
    a("v_mov_b32 v1, 0")
    for w in range(4):
        a(f"ds_read_b32 v{8+w}, v6 offset:{256*w}")
        a(f"ds_read_b32 v{12+w}, v6 offset:{256*w+128}")
    a("ds_read_b128 v[16:19], v1 offset:1024")
    a("s_waitcnt lgkmcnt(0)")
    a("v_add_f32 v8, v8, v9")
    a("v_add_f32 v10, v10, v11")
    a("v_add_f32 v12, v12, v13")
    a("v_add_f32 v14, v14, v15")
    a("v_add_f32 v16, v16, v17")
    a("v_add_f32 v18, v18, v19")
    a("v_add_f32 v8, v8, v10")
    a("v_add_f32 v12, v12, v14")
    a("v_add_f32 v16, v16, v18")
    round_bf16(a, "v8")
    round_bf16(a, "v12")
    round_bf16(a, "v16")
    a("v_mul_f32 v16, s69, v16")
    a("v_exp_f32 v16, -v16")
    a("v_add_f32 v16, 1.0, v16")
    a("v_rcp_f32 v16, v16")
    round_bf16(a, "v16")
    a("v_sub_f32 v17, 1.0, v16")
    round_bf16(a, "v17")
    a("v_mul_f32 v8, v16, v8")
    a("v_mul_f32 v12, v17, v12")
    round_bf16(a, "v8")
    round_bf16(a, "v12")
    a("v_add_f32 v8, v8, v12")
    a("v_cvt_pk_bf16_f32 v8, v8, v8")
    a("v_lshlrev_b32 v1, 1, v0")
    a("s_lshl_b32 s4, s7, 10")
    a("s_lshl_b32 s5, s8, 6")
    a("s_add_u32 s4, s4, s5")
    a("buffer_store_short v8, v1, s[60:63], s4 offen")
    a.label("LB_end")
    a("s_endpgm")

    for name, vg in (("attn_kernel", 168), ("fin_kernel", 48)):
        a.raw(f""".section .rodata,"a"
.p2align 6
.amdhsa_kernel {name}
  .amdhsa_next_free_vgpr {vg}
  .amdhsa_next_free_sgpr 96
  .amdhsa_accum_offset {vg}
  .amdhsa_group_segment_fixed_size 0
  .amdhsa_kernarg_size 104
  .amdhsa_user_sgpr_count 2
  .amdhsa_user_sgpr_kernarg_segment_ptr 1
  .amdhsa_system_sgpr_workgroup_id_x 1
.end_amdhsa_kernel""")
    return a.text()


if __name__ == "__main__":
    ap = argparse.ArgumentParser()
    ap.add_argument("-o", default="gated_mix__gqa_block_cached__glu_gated_glu__decode.s")
    ap.add_argument("--nt", type=int, default=1)
    ap.add_argument("--interleave", type=int, default=1)
    args = ap.parse_args()
    open(args.o, "w").write(gen(args))
```

```python
import sys, argparse
sys.path.insert(0, "work")
from asmlib import Asm

HEADER = open("gated_mix__gqa_block_cached__glu_gated_glu__decode.s.ref").read().split("; Override launch")[0]

WS_Y = 0
WS_STATS = 512 * 1024
WS_F = 1024 * 1024
NFFN = 86
L_QP = 0
L_OP = 4096
L_ST = 8192
L_QQ = 8448
L_Y = 12288
L_XT = 28672
L_G = 36864
LDS_A = 36864

LOG2E = 0x3FB8AA3B
SCALE = 0x3DB504F3


def round_bf16(a, v):
    a(f"v_cvt_pk_bf16_f32 {v}, {v}, {v}")
    a(f"v_and_b32 {v}, s42, {v}")


def gen(args):
    a = Asm()
    NT = 4
    nt = " nt" if args.nt else ""
    K0, V0, T0 = 40, 104, 24
    R0 = V0
    def Rr(i): return f"v[{R0+4*i}:{R0+4*i+3}]"
    ACC = 8
    Q = 4
    P, M, L = 16, 17, 18
    VRED = 19

    def Kr(i): return f"v[{K0+4*i}:{K0+4*i+3}]"
    def Vr(i): return f"v[{V0+4*i}:{V0+4*i+3}]"

    def stamp(k):
        if args.ts:
            a(f"s_memrealtime s[{84+2*k}:{85+2*k}]")
    def stamp_store():
        if args.ts:
            a("s_mov_b64 exec, 1")
            a("s_mul_i32 s4, s2, 9")
            a("s_add_u32 s4, s4, s3")
            a("s_lshl_b32 s4, s4, 6")
            a(f"s_add_u32 s60, s40, {4<<20}")
            a("s_addc_u32 s61, s41, 0")
            a("s_mov_b32 s62, 0x100000")
            a("v_mov_b32 v2, 0")
            a("s_waitcnt lgkmcnt(0)")
            for k in range(6):
                a(f"v_mov_b32 v4, s{84+2*k}")
                a(f"v_mov_b32 v5, s{85+2*k}")
                a(f"buffer_store_dwordx2 v[4:5], v2, s[60:63], s4 offen offset:{8*k}")
                a.nop(2)
    a.raw(HEADER.rstrip("\n"))
    a.raw(f"; @launch kernel=attn_kernel grid=(256,1,1) block=(576,1,1) lds={LDS_A}")
    a.raw("; @launch kernel=fin_kernel grid=(64,1,1) block=(256,1,1) lds=2048")
    a.raw('.amdgcn_target "amdgcn-amd-amdhsa--gfx950"')
    a.raw(".text")
    a.raw(".globl attn_kernel\n.p2align 8\n.type attn_kernel,@function")
    a.label("attn_kernel")
    a("s_cmp_ge_u32 s2, 256")
    a("s_cbranch_scc1 LA_end")
    stamp(0)
    a("s_load_dwordx16 s[16:31], s[0:1], 0")
    a("s_load_dwordx8 s[32:39], s[0:1], 64")
    a("s_load_dwordx2 s[40:41], s[0:1], 96")
    a("v_lshrrev_b32 v1, 6, v0")
    a("v_and_b32 v0, 63, v0")
    a("v_readfirstlane_b32 s3, v1")
    a("s_and_b32 s4, s2, 7")
    a("s_lshr_b32 s5, s2, 3")
    a("s_and_b32 s6, s5, 3")
    a("s_lshl_b32 s4, s4, 2")
    a("s_add_u32 s6, s6, s4")
    a("s_lshr_b32 s5, s5, 2")
    a("s_lshr_b32 s7, s5, 1")
    a("s_and_b32 s8, s5, 1")
    a("s_mov_b32 s42, 0xffff0000")
    a(f"s_mov_b32 s68, {SCALE:#x}")
    a(f"s_mov_b32 s69, {LOG2E:#x}")
    a("s_mov_b32 s47, 0x20000")
    a("s_mov_b32 s51, 0x20000")
    a("s_mov_b32 s55, 0x20000")
    a("s_mov_b32 s59, 0x20000")
    a("s_mov_b32 s63, 0x20000")
    a("v_lshlrev_b32 v1, 4, v0")
    a("s_cmp_eq_u32 s3, 8")
    a("s_cbranch_scc1 LA_ffn")
    a("s_mov_b32 s64, 0xcccccccc")
    a("s_mov_b32 s65, 0xcccccccc")
    a("s_mov_b32 s66, 0xaaaaaaaa")
    a("s_mov_b32 s67, 0xaaaaaaaa")
    a("s_mov_b32 s70, 0x05040100")
    a("s_mov_b32 s71, 0x07060302")
    a("v_lshrrev_b32 v20, 4, v0")
    a("v_and_b32 v21, 15, v0")
    a("v_lshlrev_b32 v2, 13, v20")
    a("v_lshl_add_u32 v2, v21, 4, v2")
    a("v_lshl_add_u32 v3, v21, 2, v20")
    a("v_lshlrev_b32 v3, 1, v3")
    a("v_and_b32 v22, 1, v20")
    a("v_lshlrev_b32 v22, 1, v22")
    a("v_lshrrev_b32 v23, 1, v20")
    a("v_or_b32 v22, v22, v23")
    a("v_lshl_add_u32 v22, v21, 3, v22")
    a("v_lshlrev_b32 v22, 2, v22")
    a("s_lshl_b32 s4, s3, 9")
    a(f"v_add_u32 v{VRED}, s4, v22")
    D = args.depth
    assert 1 <= D <= 16
    a("s_lshl_b32 s4, s7, 5")
    a("s_add_u32 s4, s4, s6")
    a("s_lshl_b32 s10, s4, 20")
    a("s_lshl_b32 s4, s8, 19")
    a("s_add_u32 s10, s10, s4")
    wsh, step = (14, 1 << 17) if args.interleave else (16, 1 << 14)
    a(f"s_lshl_b32 s4, s3, {wsh}")
    a("s_add_u32 s10, s10, s4")
    a("s_mov_b32 s43, s10")
    a("s_lshl_b32 s4, s7, 10")
    a("s_lshl_b32 s5, s3, 7")
    a("s_add_u32 s4, s4, s5")
    a("s_lshl_b32 s11, s3, 19")
    a("s_lshl_b32 s12, s6, 8")
    a("s_add_u32 s11, s11, s12")
    a("s_mov_b32 s12, 0x8000")
    a("s_movk_i32 s13, 1024")
    a("s_mov_b32 s46, 0x08000000")
    a("s_mov_b32 s50, 0x00400000")
    a("s_mov_b32 s54, 0x00400000")
    a("s_mov_b32 s58, 4096")
    a(f"s_mov_b32 s62, {WS_STATS + 2048}")
    a("s_waitcnt lgkmcnt(0)")
    a("s_mov_b32 s44, s18")
    a("s_mov_b32 s45, s19")
    a("s_mov_b32 s48, s22")
    a("s_mov_b32 s49, s23")
    a("s_mov_b32 s52, s24")
    a("s_mov_b32 s53, s25")
    a("s_mov_b32 s56, s16")
    a("s_mov_b32 s57, s17")
    a("s_mov_b32 s60, s40")
    a("s_mov_b32 s61, s41")
    a(f"buffer_load_ushort v{P}, v3, s[56:59], s4 offen")

    def issueV(slot):
        a(f"buffer_load_dwordx4 {Rr(slot)}, v2, s[48:51], s11 offen{nt}")
        a("s_add_u32 s11, s11, s12")

    def issueK(slot):
        a(f"buffer_load_dwordx4 {Rr(slot)}, v1, s[44:47], s10 offen{nt}")
        a("s_add_u32 s10, s10, s13")

    for i in range(D):
        issueV(i)
    for j in range(8):
        a(f"v_mov_b32 v{ACC+j}, 0")
    a("s_mov_b32 s9, 0")
    a(f"s_waitcnt vmcnt({D})")
    a(f"v_lshlrev_b32 v{P}, 16, v{P}")
    a.nop(2)
    a.label("LA_loop")
    for i in range(16):
        tb = T0 + 8 * (i & 1)
        a(f"s_waitcnt vmcnt({D-1})")
        for d in range(4):
            a(f"v_lshlrev_b32 v{tb+2*d}, 16, v{R0+4*i+d}")
            a(f"v_and_b32 v{tb+2*d+1}, s42, v{R0+4*i+d}")
        if i + D < 16:
            issueV(i + D)
        else:
            issueK(i + D - 16)
        for e in range(8):
            a(f"v_fmac_f32_dpp v{ACC+e}, v{P}, v{tb+e} row_newbcast:{i} row_mask:0xf bank_mask:0xf")
    a(f"s_add_u32 s11, s11, {step - 16384}")
    a("s_cmp_eq_u32 s9, 0")
    a("s_cbranch_scc1 LA_qfin")
    a(f"s_cmp_eq_u32 s9, {NT}")
    a("s_cbranch_scc1 LA_tail")
    a.label("LA_qk")
    for i in range(16):
        a(f"s_waitcnt vmcnt({D-1})")
        t = f"v{T0+i}"
        a(f"v_dot2_f32_bf16 {t}, v{R0+4*i}, v{Q}, 0")
        for d in range(1, 4):
            a(f"v_dot2_f32_bf16 {t}, v{R0+4*i+d}, v{Q+d}, {t}")
        if i + D < 16:
            issueK(i + D)
        else:
            issueV(i + D - 16)
    a(f"s_add_u32 s10, s10, {step - 16384}")
    for i in range(8):
        a(f"v_add_f32_dpp v{T0+i}, v{T0+i}, v{T0+i} row_ror:8 row_mask:0xf bank_mask:0x3")
        a(f"v_add_f32_dpp v{T0+i}, v{T0+i+8}, v{T0+i+8} row_ror:8 row_mask:0xf bank_mask:0xc")
    for i in range(4):
        a(f"v_add_f32_dpp v{T0+i}, v{T0+i}, v{T0+i} row_half_mirror row_mask:0xf bank_mask:0x5")
        a(f"v_add_f32_dpp v{T0+i}, v{T0+i+4}, v{T0+i+4} row_half_mirror row_mask:0xf bank_mask:0xa")
    for i in range(4):
        a(f"v_add_f32_dpp v{T0+8+i}, v{T0+i}, v{T0+i} quad_perm:[2,3,0,1] row_mask:0xf bank_mask:0xf")
    a(f"v_cndmask_b32 v{T0}, v{T0+8}, v{T0+10}, s[64:65]")
    a(f"v_cndmask_b32 v{T0+1}, v{T0+9}, v{T0+11}, s[64:65]")
    a(f"v_add_f32_dpp v{T0+8}, v{T0}, v{T0} quad_perm:[1,0,3,2] row_mask:0xf bank_mask:0xf")
    a(f"v_add_f32_dpp v{T0+9}, v{T0+1}, v{T0+1} quad_perm:[1,0,3,2] row_mask:0xf bank_mask:0xf")
    S = f"v{T0}"
    a(f"v_cndmask_b32 {S}, v{T0+8}, v{T0+9}, s[66:67]")
    round_bf16(a, S)
    a(f"v_mul_f32 {S}, s68, {S}")
    round_bf16(a, S)
    MX = f"v{T0+1}"
    a(f"v_max_f32_dpp {MX}, {S}, {S} row_ror:8 row_mask:0xf bank_mask:0xf")
    for r in (4, 2, 1):
        a(f"v_max_f32_dpp {MX}, {MX}, {MX} row_ror:{r} row_mask:0xf bank_mask:0xf")
    a(f"v_max_f32 {MX}, {MX}, v{M}")
    AL = f"v{T0+2}"
    a(f"v_sub_f32 {AL}, v{M}, {MX}")
    a(f"v_sub_f32 v{P}, {S}, {MX}")
    a(f"v_mul_f32 {AL}, s69, {AL}")
    a(f"v_mul_f32 v{P}, s69, v{P}")
    a(f"v_exp_f32 {AL}, {AL}")
    a(f"v_exp_f32 v{P}, v{P}")
    a(f"v_mov_b32 v{M}, {MX}")
    a(f"v_fma_f32 v{L}, v{L}, {AL}, v{P}")
    for j in range(8):
        a(f"v_mul_f32 v{ACC+j}, {AL}, v{ACC+j}")
    a("s_add_u32 s9, s9, 1")
    a(f"s_cmp_lt_u32 s9, {NT}")
    a("s_cbranch_scc1 LA_loop")
    a("s_mov_b32 s46, 0")
    stamp(2)
    a("s_branch LA_loop")

    def cross_row_reduce8(base):
        for k in range(4):
            a(f"v_permlane32_swap_b32 v{base+2*k}, v{base+2*k+1}")
        for k in range(4):
            a(f"v_add_f32 v{base+2*k}, v{base+2*k}, v{base+2*k+1}")
        a(f"v_permlane16_swap_b32 v{base}, v{base+2}")
        a(f"v_permlane16_swap_b32 v{base+4}, v{base+6}")
        a(f"v_add_f32 v{base}, v{base}, v{base+2}")
        a(f"v_add_f32 v{base+4}, v{base+4}, v{base+6}")

    a.label("LA_qfin")
    a("s_mov_b32 s48, s20")
    a("s_mov_b32 s49, s21")
    a("s_mov_b32 s50, 0x08000000")
    a("s_mov_b32 s11, s43")
    a("s_movk_i32 s12, 1024")
    a("v_mov_b32 v2, v1")
    a("s_lshl_b32 s4, s6, 17")
    a("s_lshl_b32 s5, s3, 14")
    a("s_add_u32 s4, s4, s5")
    for i in range(16):
        a(f"buffer_load_dwordx4 {Kr(i)}, v1, s[52:55], s4 offen offset:{(i & 3) * 1024}")
        if (i & 3) == 3 and i < 15:
            a("s_add_u32 s4, s4, 4096")
    cross_row_reduce8(ACC)
    a(f"ds_write_b32 v{VRED}, v{ACC} offset:{L_QP}")
    a(f"ds_write_b32 v{VRED}, v{ACC+4} offset:{L_QP+16}")
    a("v_lshlrev_b32 v20, 3, v0")
    a("s_waitcnt lgkmcnt(0)")
    a("s_barrier")
    for w in range(8):
        a(f"ds_read_b64 v[{T0+2*w}:{T0+2*w+1}], v20 offset:{L_QP + 512*w}")
    a("s_lshl_b32 s4, s3, 8")
    a("v_lshlrev_b32 v21, 2, v0")
    a("v_add_u32 v21, s4, v21")
    a("v_and_b32 v22, 15, v0")
    a("v_lshlrev_b32 v22, 4, v22")
    a("v_add_u32 v22, s4, v22")
    a("s_waitcnt lgkmcnt(0)")
    for st in (1, 2, 4):
        for w in range(0, 8, 2 * st):
            a(f"v_add_f32 v{T0+2*w}, v{T0+2*w}, v{T0+2*(w+st)}")
            a(f"v_add_f32 v{T0+2*w+1}, v{T0+2*w+1}, v{T0+2*(w+st)+1}")
    a(f"v_cvt_pk_bf16_f32 v23, v{T0}, v{T0+1}")
    a(f"ds_write_b32 v21, v23 offset:{L_QQ}")
    a("s_waitcnt lgkmcnt(0)")
    a(f"ds_read_b128 v[{Q}:{Q+3}], v22 offset:{L_QQ}")
    for j in range(8):
        a(f"v_mov_b32 v{ACC+j}, 0")
    a(f"v_mov_b32 v{M}, 0xff800000")
    a(f"v_mov_b32 v{L}, 0")
    a("s_waitcnt lgkmcnt(0)")
    stamp(1)
    a("s_branch LA_qk")

    a.label("LA_tail")
    a.nop(2)
    stamp(3)
    for r in (8, 4, 2, 1):
        a(f"v_add_f32_dpp v{L}, v{L}, v{L} row_ror:{r} row_mask:0xf bank_mask:0xf")
    for g in range(4):
        a(f"v_readlane_b32 s{80+g}, v{M}, {16*g}")
    a("v_mov_b32 v20, s80")
    a("v_max_f32 v20, s81, v20")
    a("v_max_f32 v20, s82, v20")
    a("v_max_f32 v20, s83, v20")
    a(f"v_sub_f32 v22, v{M}, v20")
    a("v_mul_f32 v22, s69, v22")
    a("v_exp_f32 v22, v22")
    a(f"v_mul_f32 v{L}, v22, v{L}")
    for j in range(8):
        a(f"v_mul_f32 v{ACC+j}, v22, v{ACC+j}")
    for g in range(4):
        a(f"v_readlane_b32 s{80+g}, v{L}, {16*g}")
    cross_row_reduce8(ACC)
    a("v_mov_b32 v21, s80")
    a("v_add_f32 v21, s81, v21")
    a("v_add_f32 v21, s82, v21")
    a("v_add_f32 v21, s83, v21")
    a(f"ds_write_b32 v{VRED}, v{ACC} offset:{L_OP}")
    a(f"ds_write_b32 v{VRED}, v{ACC+4} offset:{L_OP+16}")
    a("s_lshl_b32 s4, s3, 3")
    a("v_mov_b32 v22, s4")
    a(f"ds_write_b64 v22, v[20:21] offset:{L_ST}")
    a("s_waitcnt vmcnt(0)")
    for j in range(8):
        for t in range(4):
            A_, B_ = K0 + 8 * j + t, K0 + 8 * j + 4 + t
            a(f"v_perm_b32 v{V0+4*j+t}, v{B_}, v{A_}, s70")
            a(f"v_perm_b32 v{B_}, v{B_}, v{A_}, s71")
    a("v_lshlrev_b32 v20, 3, v0")
    a("v_mov_b32 v21, 0")
    a("s_waitcnt lgkmcnt(0)")
    a("s_barrier")
    stamp(4)
    SB = V0 + 32
    for k in range(4):
        a(f"ds_read_b128 v[{SB+4*k}:{SB+4*k+3}], v21 offset:{L_ST + 16*k}")
    for w in range(8):
        a(f"ds_read_b64 v[{T0+2*w}:{T0+2*w+1}], v20 offset:{L_OP + 512*w}")
    a("s_lshl_b32 s4, s3, 3")
    a("s_waitcnt lgkmcnt(8)")
    a(f"v_max3_f32 v20, v{SB}, v{SB+2}, v{SB+4}")
    a(f"v_max3_f32 v20, v20, v{SB+6}, v{SB+8}")
    a(f"v_max3_f32 v20, v20, v{SB+10}, v{SB+12}")
    a(f"v_max_f32 v20, v20, v{SB+14}")
    for w in range(8):
        a(f"v_sub_f32 v{SB+2*w}, v{SB+2*w}, v20")
    for w in range(8):
        a(f"v_mul_f32 v{SB+2*w}, s69, v{SB+2*w}")
    for w in range(8):
        a(f"v_exp_f32 v{SB+2*w}, v{SB+2*w}")
    a(f"v_mul_f32 v21, v{SB}, v{SB+1}")
    for w in range(1, 8):
        a(f"v_fmac_f32 v21, v{SB+2*w}, v{SB+2*w+1}")
    a("v_rcp_f32 v22, v21")
    a("s_waitcnt lgkmcnt(0)")
    a(f"v_mul_f32 v2, v{SB}, v{T0}")
    a(f"v_mul_f32 v3, v{SB}, v{T0+1}")
    for w in range(1, 8):
        a(f"v_fmac_f32 v2, v{SB+2*w}, v{T0+2*w}")
        a(f"v_fmac_f32 v3, v{SB+2*w}, v{T0+2*w+1}")
    a("v_mul_f32 v2, v22, v2")
    a("v_mul_f32 v3, v22, v3")
    a("v_cvt_pk_bf16_f32 v2, v2, v3")
    for j in range(8):
        a(f"v_readlane_b32 s{72+j}, v2, s4")
        if j < 7:
            a("s_add_u32 s4, s4, 1")
    for j in range(8):
        for t in range(4):
            c = "0" if j == 0 else f"v{ACC+2*t}"
            a(f"v_dot2_f32_bf16 v{ACC+2*t}, v{V0+4*j+t}, s{72+j}, {c}")
            c = "0" if j == 0 else f"v{ACC+2*t+1}"
            a(f"v_dot2_f32_bf16 v{ACC+2*t+1}, v{K0+8*j+4+t}, s{72+j}, {c}")
    a("s_lshl_b32 s4, s3, 11")
    a("v_lshlrev_b32 v2, 5, v0")
    a("v_add_u32 v2, s4, v2")
    a(f"ds_write_b128 v2, v[{ACC}:{ACC+3}] offset:{L_Y}")
    a(f"ds_write_b128 v2, v[{ACC+4}:{ACC+7}] offset:{L_Y+16}")
    a("s_lshl_b32 s4, s3, 8")
    a("v_lshlrev_b32 v3, 2, v0")
    a("v_add_u32 v3, s4, v3")
    a("s_lshl_b32 s5, s7, 6")
    a("s_lshl_b32 s12, s6, 1")
    a("s_add_u32 s5, s5, s12")
    a("s_add_u32 s5, s5, s8")
    a("s_lshl_b32 s5, s5, 11")
    a("s_waitcnt lgkmcnt(0)")
    a("s_barrier")
    for w in range(8):
        a(f"ds_read_b32 v{T0+w}, v3 offset:{L_Y + 2048*w}")
    a("s_waitcnt lgkmcnt(0)")
    for st in (1, 2, 4):
        for w in range(0, 8, 2 * st):
            a(f"v_add_f32 v{T0+w}, v{T0+w}, v{T0+w+st}")
    a(f"buffer_store_dword v{T0}, v3, s[60:63], s5 offen")
    stamp(5)
    a("s_cmp_lg_u32 s3, 0")
    a("s_cbranch_scc1 LA_end2")
    a("s_lshl_b32 s5, s7, 5")
    a("s_add_u32 s5, s5, s6")
    a("s_lshl_b32 s5, s5, 4")
    a("s_lshl_b32 s12, s8, 3")
    a("s_add_u32 s5, s5, s12")
    a(f"s_add_u32 s5, s5, {WS_STATS}")
    a("v_mov_b32 v2, 0")
    a("s_mov_b64 exec, 1")
    a("buffer_store_dwordx2 v[20:21], v2, s[60:63], s5 offen")
    a.label("LA_end2")
    stamp_store()
    a("s_endpgm")

    a.label("LA_ffn")
    a("s_and_b32 s4, s2, 7")
    a("s_lshr_b32 s5, s2, 3")
    a("s_lshr_b32 s6, s5, 2")
    a("s_lshl_b32 s6, s6, 3")
    a("s_add_u32 s6, s6, s4")
    a("s_lshl_b32 s6, s6, 2")
    a("s_and_b32 s5, s5, 3")
    a("s_add_u32 s6, s6, s5")
    a(f"s_cmp_ge_u32 s6, {NFFN}")
    a("s_cbranch_scc1 LA_end")
    FB = 104
    FA = 40
    FX = 72
    FU = 80
    FG = 88
    FH = 96
    def Fr(i): return f"v[{FB+4*i}:{FB+4*i+3}]"
    a("v_lshrrev_b32 v20, 1, v0")
    a("v_and_b32 v21, 1, v0")
    a("s_movk_i32 s4, 2752")
    a("v_mul_lo_u32 v2, v20, s4")
    a("v_lshl_add_u32 v2, v21, 4, v2")
    a("v_lshlrev_b32 v3, 4, v20")
    a("s_mov_b32 s46, 1409024")
    a("s_mov_b32 s50, 1409024")
    a("s_mov_b32 s58, 4096")
    a(f"s_mov_b32 s62, {NFFN*8192}")
    a("s_lshl_b32 s10, s6, 5")
    a("s_waitcnt lgkmcnt(0)")
    a("s_mov_b32 s44, s28")
    a("s_mov_b32 s45, s29")
    a("s_mov_b32 s48, s30")
    a("s_mov_b32 s49, s31")
    a("s_mov_b32 s56, s16")
    a("s_mov_b32 s57, s17")
    a(f"s_add_u32 s60, s40, {WS_F}")
    a("s_addc_u32 s61, s41, 0")
    for b in range(4):
        a(f"buffer_load_dwordx4 v[{4+4*b}:{7+4*b}], v1, s[56:59], 0 offen offset:{1024*b}")
    a("s_mov_b32 s11, s10")
    for i in range(16):
        a(f"buffer_load_dwordx4 {Fr(i)}, v2, s[44:47], s11 offen")
        if i < 15:
            a(f"s_add_u32 s11, s11, {32*2752}")
    a("s_waitcnt vmcnt(16)")
    for e in range(8):
        for b in range(4):
            src = f"v{4+4*b+(e>>1)}"
            if e & 1:
                a(f"v_and_b32 v{FA+4*e+b}, s42, {src}")
            else:
                a(f"v_lshlrev_b32 v{FA+4*e+b}, 16, {src}")
    a("v_lshlrev_b32 v20, 7, v0")
    for e in range(8):
        a(f"ds_write_b128 v20, v[{FA+4*e}:{FA+4*e+3}] offset:{L_XT + 16*e}")
    a("s_waitcnt lgkmcnt(0)")
    a("s_barrier")
    a("s_mov_b32 s9, 0")
    a("v_mov_b32 v22, v2")
    a(f"s_mov_b32 s12, {32*2752}")
    a.label("LF_pass")
    a("s_mov_b32 s11, s10")
    for k in range(32):
        a(f"v_mov_b32 v{FA+k}, 0")
    a(f"ds_read_b128 v[{FX}:{FX+3}], v3 offset:{L_XT}")
    for i in range(16):
        xb = FX + 4 * (i & 1)
        if i < 15:
            nb = FX + 4 * ((i + 1) & 1)
            a(f"ds_read_b128 v[{nb}:{nb+3}], v3 offset:{L_XT + 512*(i+1)}")
        a("s_waitcnt vmcnt(15)")
        for d in range(4):
            a(f"v_lshlrev_b32 v{FU+2*d}, 16, v{FB+4*i+d}")
            a(f"v_and_b32 v{FU+2*d+1}, s42, v{FB+4*i+d}")
        a(f"buffer_load_dwordx4 {Fr(i)}, v22, s[48:51], s11 offen")
        a("s_add_u32 s11, s11, s12")
        a(f"s_waitcnt lgkmcnt({1 if i < 15 else 0})")
        for b in range(4):
            for e in range(8):
                a(f"v_fmac_f32 v{FA+8*b+e}, v{xb+b}, v{FU+e}")
    for k in range(16):
        a(f"v_permlane32_swap_b32 v{FA+k}, v{FA+16+k}")
    for k in range(16):
        a(f"v_add_f32 v{FA+k}, v{FA+k}, v{FA+16+k}")
    for k in range(8):
        a(f"v_permlane16_swap_b32 v{FA+k}, v{FA+8+k}")
    for k in range(8):
        a(f"v_add_f32 v{FA+k}, v{FA+k}, v{FA+8+k}")
    for r in (2, 4, 8):
        for k in range(8):
            a(f"v_add_f32_dpp v{FA+k}, v{FA+k}, v{FA+k} row_ror:{r} row_mask:0xf bank_mask:0xf")
    for k in range(8):
        a(f"v_mov_b32 v{FG+k}, v{FH+k}")
        a(f"v_mov_b32 v{FH+k}, v{FA+k}")
    a("s_cmp_eq_u32 s9, 1")
    a("s_cbranch_scc1 LF_p2")
    a("s_mov_b32 s9, 1")
    a("s_mov_b32 s48, s32")
    a("s_mov_b32 s49, s33")
    a("v_mov_b32 v22, v1")
    a("s_movk_i32 s12, 1024")
    a("s_lshl_b32 s10, s6, 14")
    a("s_branch LF_pass")
    a.label("LF_p2")
    a.nop(2)
    for k in range(8):
        g, u = f"v{FG+k}", f"v{FH+k}"
        round_bf16(a, g)
        round_bf16(a, u)
        a(f"v_mul_f32 {g}, s69, {g}")
        a(f"v_exp_f32 {g}, -{g}")
        a(f"v_add_f32 {g}, 1.0, {g}")
        a(f"v_rcp_f32 {g}, {g}")
        round_bf16(a, g)
        a(f"v_mul_f32 {u}, {g}, {u}")
        round_bf16(a, u)
    for k in range(32):
        a(f"v_mov_b32 v{FA+k}, 0")
    for f in range(16):
        for b in range(4):
            a(f"v_readlane_b32 s{80+b}, v{FH+(f&7)}, {16*b + (f >> 3)}")
        a(f"s_waitcnt vmcnt({15-f})")
        for d in range(4):
            a(f"v_lshlrev_b32 v{FU+2*d}, 16, v{FB+4*f+d}")
            a(f"v_and_b32 v{FU+2*d+1}, s42, v{FB+4*f+d}")
        for b in range(4):
            for e in range(8):
                a(f"v_fmac_f32 v{FA+8*b+e}, s{80+b}, v{FU+e}")
    a("v_lshlrev_b32 v2, 5, v0")
    a("s_lshl_b32 s10, s6, 13")
    for b in range(4):
        a(f"buffer_store_dwordx4 v[{FA+8*b}:{FA+8*b+3}], v2, s[60:63], s10 offen offset:{2048*(b&1)}")
        a(f"buffer_store_dwordx4 v[{FA+8*b+4}:{FA+8*b+7}], v2, s[60:63], s10 offen offset:{2048*(b&1)+16}")
        if b == 1:
            a("s_add_u32 s10, s10, 4096")
    stamp(5)
    a("s_branch LA_end2")
    a.label("LA_end")
    a("s_endpgm")

    a.raw(".globl fin_kernel\n.p2align 8\n.type fin_kernel,@function")
    a.label("fin_kernel")
    a("s_cmp_ge_u32 s2, 64")
    a("s_cbranch_scc1 LB_end")
    a("s_load_dwordx2 s[16:17], s[0:1], 0")
    a("s_load_dwordx4 s[32:35], s[0:1], 72")
    a("s_load_dwordx2 s[40:41], s[0:1], 96")
    a("s_lshr_b32 s7, s2, 4")
    a("s_and_b32 s8, s2, 15")
    a("s_mov_b32 s42, 0xffff0000")
    a(f"s_mov_b32 s69, {LOG2E:#x}")
    for r in (47, 51, 55, 59, 63):
        a(f"s_mov_b32 s{r}, 0x20000")
    a(f"s_mov_b32 s46, {WS_STATS + 2048}")
    a(f"s_mov_b32 s50, {NFFN*8192}")
    a("s_mov_b32 s54, 4096")
    a("s_mov_b32 s58, 1024")
    a("s_mov_b32 s62, 4096")
    a("v_lshrrev_b32 v1, 3, v0")
    a("v_and_b32 v2, 7, v0")
    a("v_lshlrev_b32 v3, 11, v1")
    a("v_lshl_add_u32 v3, v2, 4, v3")
    a("v_lshrrev_b32 v4, 1, v1")
    a("v_lshlrev_b32 v4, 4, v4")
    a("v_lshlrev_b32 v5, 13, v1")
    a("v_lshl_add_u32 v5, v2, 4, v5")
    a("v_lshlrev_b32 v6, 2, v0")
    a("s_lshl_b32 s4, s7, 17")
    a("s_lshl_b32 s5, s8, 7")
    a("s_add_u32 s4, s4, s5")
    a("s_add_u32 s10, s4, 65536")
    a("s_lshl_b32 s11, s7, 9")
    a(f"s_add_u32 s11, s11, {WS_STATS}")
    a("s_lshl_b32 s12, s7, 11")
    a("s_add_u32 s12, s12, s5")
    a("s_add_u32 s13, s12, 0x40000")
    a("s_add_u32 s14, s12, 0x80000")
    a("s_lshl_b32 s15, s7, 10")
    a("s_waitcnt lgkmcnt(0)")
    a("s_mov_b32 s44, s40")
    a("s_mov_b32 s45, s41")
    a(f"s_add_u32 s48, s40, {WS_F}")
    a("s_addc_u32 s49, s41, 0")
    a("s_mov_b32 s52, s16")
    a("s_mov_b32 s53, s17")
    a("s_mov_b32 s56, s32")
    a("s_mov_b32 s57, s33")
    a("s_mov_b32 s60, s34")
    a("s_mov_b32 s61, s35")
    a("buffer_load_dwordx4 v[8:11], v4, s[44:47], s11 offen")
    a("buffer_load_dwordx4 v[12:15], v4, s[44:47], s11 offen offset:256")
    a("buffer_load_dword v36, v6, s[52:55], s15 offen")
    a("buffer_load_dword v37, v6, s[56:59], 0 offen")
    a("buffer_load_dwordx4 v[16:19], v3, s[44:47], s4 offen")
    a("buffer_load_dwordx4 v[20:23], v3, s[44:47], s10 offen")
    a("buffer_load_dwordx4 v[24:27], v5, s[48:51], s12 offen")
    a("buffer_load_dwordx4 v[28:31], v5, s[48:51], s13 offen")
    a("buffer_load_dwordx4 v[32:35], v5, s[48:51], s14 offen")
    a("v_and_b32 v7, 1, v1")
    a("v_cmp_eq_u32 vcc, 1, v7")
    a("s_waitcnt vmcnt(7)")
    for k, sb in enumerate((8, 12)):
        w = f"v{38+k}"
        a(f"v_max_f32 v40, v{sb}, v{sb+2}")
        a(f"v_sub_f32 v{sb}, v{sb}, v40")
        a(f"v_sub_f32 v{sb+2}, v{sb+2}, v40")
        a(f"v_mul_f32 v{sb}, s69, v{sb}")
        a(f"v_mul_f32 v{sb+2}, s69, v{sb+2}")
        a(f"v_exp_f32 v{sb}, v{sb}")
        a(f"v_exp_f32 v{sb+2}, v{sb+2}")
        a(f"v_mul_f32 v{sb}, v{sb}, v{sb+1}")
        a(f"v_mul_f32 v{sb+2}, v{sb+2}, v{sb+3}")
        a(f"v_add_f32 v40, v{sb}, v{sb+2}")
        a("v_rcp_f32 v40, v40")
        a(f"v_cndmask_b32 {w}, v{sb}, v{sb+2}, vcc")
        a(f"v_mul_f32 {w}, {w}, v40")
    a("s_waitcnt vmcnt(5)")
    a("v_lshlrev_b32 v40, 16, v36")
    a("v_and_b32 v41, s42, v36")
    a("v_lshlrev_b32 v42, 16, v37")
    a("v_and_b32 v43, s42, v37")
    a("v_mul_f32 v40, v40, v42")
    a("v_mul_f32 v41, v41, v43")
    round_bf16(a, "v40")
    round_bf16(a, "v41")
    a("v_add_f32 v40, v40, v41")
    for r in (1, 2, 4, 8):
        a(f"v_add_f32_dpp v40, v40, v40 row_ror:{r} row_mask:0xf bank_mask:0xf")
    for g in range(4):
        a(f"v_readlane_b32 s{80+g}, v40, {16*g}")
    a("v_mov_b32 v40, s80")
    a("v_add_f32 v40, s81, v40")
    a("v_add_f32 v40, s82, v40")
    a("v_add_f32 v40, s83, v40")
    a("v_lshrrev_b32 v41, 6, v0")
    a("v_lshlrev_b32 v42, 2, v41")
    a("ds_write_b32 v42, v40 offset:1024")
    a("s_waitcnt vmcnt(3)")
    for k in range(4):
        a(f"v_mul_f32 v{16+k}, v38, v{16+k}")
        a(f"v_fmac_f32 v{16+k}, v39, v{20+k}")
    a("s_waitcnt vmcnt(0)")
    for k in range(4):
        a(f"v_add_f32 v{24+k}, v{24+k}, v{28+k}")
        a(f"v_add_f32 v{24+k}, v{24+k}, v{32+k}")
    for k in range(4):
        a(f"v_permlane32_swap_b32 v{16+k}, v{24+k}")
    for k in range(4):
        a(f"v_add_f32 v{16+k}, v{16+k}, v{24+k}")
    a("v_permlane16_swap_b32 v16, v17")
    a("v_permlane16_swap_b32 v18, v19")
    a("v_add_f32 v16, v16, v17")
    a("v_add_f32 v18, v18, v19")
    a("v_add_f32_dpp v16, v16, v16 row_ror:8 row_mask:0xf bank_mask:0xf")
    a("v_add_f32_dpp v18, v18, v18 row_ror:8 row_mask:0xf bank_mask:0xf")
    a("v_bfe_u32 v43, v0, 5, 1")
    a("v_lshlrev_b32 v43, 7, v43")
    a("v_lshl_add_u32 v43, v41, 8, v43")
    a("v_lshl_add_u32 v43, v2, 4, v43")
    a("v_bfe_u32 v44, v0, 4, 1")
    a("v_lshl_add_u32 v43, v44, 2, v43")
    a("ds_write_b32 v43, v16")
    a("ds_write_b32 v43, v18 offset:8")
    a("s_waitcnt lgkmcnt(0)")
    a("s_barrier")
    a("v_cmp_gt_u32 vcc, 32, v0")
    a("s_and_saveexec_b64 s[84:85], vcc")
    a("s_cbranch_execz LB_end")
    a("v_mov_b32 v1, 0")
    for w in range(4):
        a(f"ds_read_b32 v{8+w}, v6 offset:{256*w}")
        a(f"ds_read_b32 v{12+w}, v6 offset:{256*w+128}")
    a("ds_read_b128 v[16:19], v1 offset:1024")
    a("s_waitcnt lgkmcnt(0)")
    a("v_add_f32 v8, v8, v9")
    a("v_add_f32 v10, v10, v11")
    a("v_add_f32 v12, v12, v13")
    a("v_add_f32 v14, v14, v15")
    a("v_add_f32 v16, v16, v17")
    a("v_add_f32 v18, v18, v19")
    a("v_add_f32 v8, v8, v10")
    a("v_add_f32 v12, v12, v14")
    a("v_add_f32 v16, v16, v18")
    round_bf16(a, "v8")
    round_bf16(a, "v12")
    round_bf16(a, "v16")
    a("v_mul_f32 v16, s69, v16")
    a("v_exp_f32 v16, -v16")
    a("v_add_f32 v16, 1.0, v16")
    a("v_rcp_f32 v16, v16")
    round_bf16(a, "v16")
    a("v_sub_f32 v17, 1.0, v16")
    round_bf16(a, "v17")
    a("v_mul_f32 v8, v16, v8")
    a("v_mul_f32 v12, v17, v12")
    round_bf16(a, "v8")
    round_bf16(a, "v12")
    a("v_add_f32 v8, v8, v12")
    a("v_cvt_pk_bf16_f32 v8, v8, v8")
    a("v_lshlrev_b32 v1, 1, v0")
    a("s_lshl_b32 s4, s7, 10")
    a("s_lshl_b32 s5, s8, 6")
    a("s_add_u32 s4, s4, s5")
    a("buffer_store_short v8, v1, s[60:63], s4 offen")
    a.label("LB_end")
    a("s_endpgm")

    for name, vg in (("attn_kernel", 168), ("fin_kernel", 48)):
        a.raw(f""".section .rodata,"a"
.p2align 6
.amdhsa_kernel {name}
  .amdhsa_next_free_vgpr {vg}
  .amdhsa_next_free_sgpr 96
  .amdhsa_accum_offset {vg}
  .amdhsa_group_segment_fixed_size 0
  .amdhsa_kernarg_size 104
  .amdhsa_user_sgpr_count 2
  .amdhsa_user_sgpr_kernarg_segment_ptr 1
  .amdhsa_system_sgpr_workgroup_id_x 1
.end_amdhsa_kernel""")
    return a.text()


if __name__ == "__main__":
    ap = argparse.ArgumentParser()
    ap.add_argument("-o", default="gated_mix__gqa_block_cached__glu_gated_glu__decode.s")
    ap.add_argument("--nt", type=int, default=1)
    ap.add_argument("--depth", type=int, default=8)
    ap.add_argument("--ts", type=int, default=0)
    ap.add_argument("--interleave", type=int, default=1)
    args = ap.parse_args()
    open(args.o, "w").write(gen(args))
```

```python
import re

TRANS = ("v_exp_f32", "v_log_f32", "v_rcp_f32", "v_rsq_f32", "v_sqrt_f32", "v_sin_f32", "v_cos_f32")


def _expand(tok):
    tok = tok.strip()
    tok = tok.lstrip("-")
    m = re.fullmatch(r"abs\((.*)\)", tok)
    if m:
        tok = m.group(1)
    m = re.fullmatch(r"([vs])(\d+)", tok)
    if m:
        return [(m.group(1), int(m.group(2)))]
    m = re.fullmatch(r"([vs])\[(\d+):(\d+)\]", tok)
    if m:
        return [(m.group(1), i) for i in range(int(m.group(2)), int(m.group(3)) + 1)]
    if tok == "vcc":
        return [("s", 106), ("s", 107)]
    return []


def _norm(op):
    for suf in ("_dpp", "_e32", "_e64"):
        if op.endswith(suf):
            op = op[: -len(suf)]
    return op


class Asm:
    def __init__(self):
        self.out = []
        self.reset()

    def reset(self):
        self.slot = 0
        self.hist = []

    def raw(self, s):
        self.out.append(s)

    def label(self, name):
        self.out.append(f"{name}:")
        self.reset()

    def comment(self, s):
        self.out.append(f"    ; {s}")

    def nop(self, n):
        while n > 0:
            k = min(n, 16)
            self.out.append(f"    s_nop {k-1}")
            self.slot += k
            n -= k

    def __call__(self, line):
        line = line.strip()
        code = line.split(";")[0].strip()
        m = re.match(r"(\S+)\s*(.*)", code)
        op, rest = m.group(1), m.group(2)
        ops = [o.strip() for o in rest.split(",")] if rest else []
        mods = ""
        if ops:
            joined = rest
            qp = re.search(r"quad_perm:\[[^\]]*\]", joined)
            if qp:
                joined = joined.replace(qp.group(0), "quad_perm:QP")
            ops = [o.strip() for o in joined.split(",")]
            last = ops[-1].split()
            ops[-1] = last[0] if last else ""
            mods = " ".join(last[1:])
        is_valu = op.startswith("v_")
        is_vmem = op.startswith("buffer_") or op.startswith("global_")
        is_ds = op.startswith("ds_")
        is_dpp = "_dpp" in op or "row_" in mods or "quad_perm" in mods
        is_perml = op.startswith("v_permlane")
        is_rl = op.startswith("v_readlane") or op.startswith("v_readfirstlane")
        is_trans = any(op.startswith(t) for t in TRANS)
        is_dot = op.startswith("v_dot")
        writes, reads = [], []
        if is_valu:
            if op.startswith("v_cmp"):
                writes = _expand(ops[0])
                for o in ops[1:]:
                    reads += _expand(o)
            elif is_perml:
                writes = _expand(ops[0]) + _expand(ops[1])
                reads = list(writes)
            else:
                writes = _expand(ops[0])
                for o in ops[1:]:
                    reads += _expand(o)
                if op.startswith(("v_fmac", "v_dot2c", "v_pk_fmac")) or (is_dpp and "bank_mask:0xf" not in mods):
                    reads += writes
                if op.startswith("v_cndmask_b32") and len(ops) == 3:
                    reads += _expand("vcc")
        elif is_vmem or is_ds:
            for o in ops:
                reads += _expand(o)
        need = 0
        for h in self.hist:
            dist = self.slot - h["slot"] - 1
            req = 0
            hw = set(h["writes"])
            if h["valu"]:
                vw = {r for r in hw if r[0] == "v"}
                sw = {r for r in hw if r[0] == "s"}
                if is_valu and is_dpp and len(ops) > 1 and vw & set(_expand(ops[1])):
                    req = max(req, 2)
                if is_perml and vw & set(reads):
                    req = max(req, 2)
                if is_rl and vw & set(_expand(ops[1])):
                    req = max(req, 1)
                if h["trans"] and is_valu and not is_trans and vw & set(reads):
                    req = max(req, 1)
                if h["dot"] and (is_valu or is_vmem or is_ds):
                    touched = set(reads) | set(writes)
                    if vw & touched:
                        same = _norm(op) == _norm(h["op"])
                        as_c_only = same and (len(ops) == 4 or op.startswith("v_dot2c")) and not (vw & (set(_expand(ops[1])) | set(_expand(ops[2]))))
                        if not as_c_only:
                            req = max(req, 3)
                if sw:
                    if is_valu and sw & set(reads):
                        req = max(req, 4 if (is_rl and len(ops) == 3 and sw & set(_expand(ops[2]))) else 2)
                    if is_vmem and sw & set(reads):
                        req = max(req, 5)
            if h["widestore"] and is_valu and set(h["sdata"]) & set(writes):
                req = max(req, 2)
            if h["m0"] and is_vmem and re.search(r"\blds\b", mods):
                req = max(req, 1)
            need = max(need, req - dist)
        if need > 0:
            self.nop(need)
        self.out.append("    " + line)
        wide = is_vmem and "store" in op and ("x3" in op or "x4" in op)
        self.hist.append(dict(slot=self.slot, valu=is_valu, writes=writes, trans=is_trans, dot=is_dot, op=op,
                              widestore=wide, sdata=_expand(ops[0]) if wide else [],
                              m0=(op.startswith("s_") and bool(ops) and ops[0] == "m0")))
        self.slot += 1
        self.hist = [h for h in self.hist if self.slot - h["slot"] <= 6]
        if op.startswith("s_cbranch") or op.startswith("s_branch"):
            pass

    def text(self):
        return "\n".join(self.out) + "\n"
```

```python
import sys, argparse
sys.path.insert(0, "work")
from asmlib import Asm

HEADER = open("gated_mix__gqa_block_cached__glu_gated_glu__decode.s.ref").read().split("; Override launch")[0]

WS_Y = 0
WS_STATS = 512 * 1024
WS_F = 1024 * 1024
NFFN = 86

LOG2E = 0x3FB8AA3B
SCALE = 0x3DB504F3


def round_bf16(a, v):
    a(f"v_cvt_pk_bf16_f32 {v}, {v}, {v}")
    a(f"v_and_b32 {v}, s42, {v}")


def gen(args):
    a = Asm()
    NS = args.slots
    NJ = 128
    INF = args.inflight
    RING = NS * 8192
    C_LANDED = RING
    C_DONE = RING + 4
    C_BAR = RING + 64
    L_QP = RING + 256
    L_OP = L_QP + 4096
    L_ST = L_OP + 4096
    L_QQ = L_ST + 256
    L_XT = L_QQ + 2048
    LDS_A = L_XT + 8192
    L_Y = 0
    assert LDS_A <= 163840
    W0, KB, VB, T0 = 40, 104, 120, 24
    ACC, Q = 8, 4
    P, M, L = 16, 17, 18
    VRED = 19
    VZ = 136
    VBASE = 137
    VDONE = 138
    VCNT = 139

    def Wr(i): return f"v[{W0+4*i}:{W0+4*i+3}]"

    def stamp(k):
        if args.ts:
            a(f"s_memrealtime s[{84+2*k}:{85+2*k}]")

    def stamp_store():
        if args.ts:
            a("s_mov_b64 exec, 1")
            a("s_mul_i32 s4, s2, 10")
            a("s_add_u32 s4, s4, s3")
            a("s_lshl_b32 s4, s4, 6")
            a(f"s_add_u32 s60, s40, {4<<20}")
            a("s_addc_u32 s61, s41, 0")
            a("s_mov_b32 s62, 0x100000")
            a("s_mov_b32 s63, 0x20000")
            a("v_mov_b32 v2, 0")
            a("s_getreg_b32 s96, hwreg(HW_REG_XCC_ID)")
            a("s_mov_b32 s97, 0")
            a("s_waitcnt lgkmcnt(0)")
            for k in range(7):
                a(f"v_mov_b32 v4, s{84+2*k}")
                a(f"v_mov_b32 v5, s{85+2*k}")
                a(f"buffer_store_dwordx2 v[4:5], v2, s[60:63], s4 offen offset:{8*k}")
                a.nop(2)

    def lds_barrier(k, tag):
        a("s_waitcnt lgkmcnt(0)")
        a("s_mov_b64 exec, 1")
        a(f"ds_add_u32 v{VZ}, v{VCNT} offset:{C_BAR - RING + 4*k}")
        a("s_mov_b64 exec, -1")
        a.label(f"LB_spin{tag}")
        a(f"ds_read_b32 v23, v{VZ} offset:{C_BAR - RING + 4*k}")
        a("s_waitcnt lgkmcnt(0)")
        a("v_readfirstlane_b32 s14, v23")
        a("s_cmp_lt_u32 s14, 8")
        a(f"s_cbranch_scc1 LB_spin{tag}")

    a.raw(HEADER.rstrip("\n"))
    a.raw(f"; @launch kernel=attn_kernel grid=(256,1,1) block=(640,1,1) lds={LDS_A}")
    a.raw("; @launch kernel=fin_kernel grid=(64,1,1) block=(256,1,1) lds=2048")
    a.raw('.amdgcn_target "amdgcn-amd-amdhsa--gfx950"')
    a.raw(".text")
    a.raw(".globl attn_kernel\n.p2align 8\n.type attn_kernel,@function")
    a.label("attn_kernel")
    a("s_cmp_ge_u32 s2, 256")
    a("s_cbranch_scc1 LA_end")
    a("s_load_dwordx16 s[16:31], s[0:1], 0")
    a("s_load_dwordx8 s[32:39], s[0:1], 64")
    a("s_load_dwordx2 s[40:41], s[0:1], 96")
    stamp(0)
    a("v_lshrrev_b32 v1, 6, v0")
    a("v_and_b32 v0, 63, v0")
    a("v_readfirstlane_b32 s3, v1")
    a("v_lshlrev_b32 v3, 2, v0")
    a("v_mov_b32 v2, 0")
    a(f"v_add_u32 v3, {RING}, v3")
    a("ds_write_b32 v3, v2")
    a("s_lshr_b32 s4, s2, 1")
    a("s_and_b32 s5, s4, 3")
    a("s_lshl_b32 s5, s5, 3")
    a("s_bfe_u32 s6, s4, 0x30002")
    a("s_add_u32 s6, s6, s5")
    a("s_lshr_b32 s7, s4, 5")
    a("s_and_b32 s8, s2, 1")
    a("v_lshlrev_b32 v1, 4, v0")
    a("s_mov_b32 s47, 0x20000")
    a("s_mov_b32 s51, 0x20000")
    a("s_waitcnt lgkmcnt(0)")
    a("s_barrier")
    a("s_cmp_lg_u32 s3, 0")
    a("s_cbranch_scc1 LA_cons")
    a("s_setprio 3")
    a("s_lshl_b32 s4, s7, 5")
    a("s_add_u32 s4, s4, s6")
    a("s_lshl_b32 s10, s4, 20")
    a("s_lshl_b32 s4, s8, 19")
    a("s_add_u32 s10, s10, s4")
    a("s_mov_b32 s44, s18")
    a("s_mov_b32 s45, s19")
    a("s_mov_b32 s46, 0x08000000")
    a("s_mov_b32 s48, s20")
    a("s_mov_b32 s49, s21")
    a("s_mov_b32 s50, 0x08000000")
    a("s_mov_b32 s12, 0")
    a("s_mov_b32 s13, 0")
    a("s_mov_b32 s9, 0")
    a(f"v_mov_b32 v4, {C_LANDED}")
    a(f"s_movk_i32 s15, {NS}")
    a.label("LL_loop")
    a("s_mov_b32 m0, s12")
    a("s_add_u32 s14, s12, 4096")
    for i in range(4):
        a(f"buffer_load_dwordx4 v1, s[44:47], s10 offen offset:{1024*i} nt lds")
    a("s_mov_b32 m0, s14")
    a("s_add_u32 s12, s12, 8192")
    for i in range(4):
        a(f"buffer_load_dwordx4 v1, s[48:51], s10 offen offset:{1024*i} nt lds")
    a(f"s_cmp_eq_u32 s12, {RING}")
    a("s_cselect_b32 s12, 0, s12")
    a("s_add_u32 s10, s10, 4096")
    a("s_add_u32 s13, s13, 1")
    a(f"s_sub_u32 s14, s13, {NS}")
    a("s_and_b32 s5, s14, 7")
    a("s_lshl_b32 s5, s5, 2")
    a(f"s_add_u32 s5, s5, {C_DONE}")
    a("v_mov_b32 v5, s5")
    a(f"s_sub_u32 s4, s13, {INF//8 - 1}")
    a("s_max_i32 s9, s9, s4")
    a("v_mov_b32 v6, s9")
    a("ds_read_b32 v7, v5")
    a(f"s_waitcnt vmcnt({INF-8})")
    a("ds_write_b32 v4, v6")
    a(f"s_cmp_ge_u32 s13, {NJ}")
    a("s_cbranch_scc1 LL_fin")
    a("s_cmp_lt_u32 s13, s15")
    a("s_cbranch_scc1 LL_loop")
    a("s_lshr_b32 s14, s14, 3")
    a("s_waitcnt lgkmcnt(0)")
    a("v_readfirstlane_b32 s4, v7")
    a("s_cmp_gt_u32 s4, s14")
    a("s_cbranch_scc1 LL_loop")
    a("s_mov_b32 s9, s13")
    a("v_mov_b32 v6, s13")
    a("s_waitcnt vmcnt(0)")
    a("ds_write_b32 v4, v6")
    a.label("LL_spin")
    a("s_sleep 1")
    a("ds_read_b32 v7, v5")
    a("s_waitcnt lgkmcnt(0)")
    a("v_readfirstlane_b32 s4, v7")
    a("s_cmp_gt_u32 s4, s14")
    a("s_cbranch_scc1 LL_loop")
    a("s_branch LL_spin")
    a.label("LL_fin")
    for k in range(INF // 8 - 2, -1, -1):
        a(f"v_mov_b32 v6, {NJ - k}")
        a(f"s_waitcnt vmcnt({8*k})")
        a("ds_write_b32 v4, v6")
    stamp(5)
    a("s_branch LA_end2")

    a.label("LA_cons")
    a("s_mov_b32 s42, 0xffff0000")
    a(f"s_mov_b32 s69, {LOG2E:#x}")
    a("s_mov_b32 s55, 0x20000")
    a("s_mov_b32 s59, 0x20000")
    a("s_mov_b32 s63, 0x20000")
    a("s_cmp_eq_u32 s3, 9")
    a("s_cbranch_scc1 LA_ffn")
    a("s_sub_u32 s9, s3, 1")
    a("v_lshrrev_b32 v20, 4, v0")
    a("v_and_b32 v21, 15, v0")
    a("v_lshlrev_b32 v2, 14, v20")
    a("v_lshl_add_u32 v2, v21, 4, v2")
    a("v_lshlrev_b32 v3, 2, v20")
    a("v_lshl_add_u32 v3, v21, 4, v3")
    a("s_lshl_b32 s4, s7, 10")
    a("s_lshl_b32 s5, s9, 7")
    a("s_add_u32 s4, s4, s5")
    a("s_lshl_b32 s11, s9, 19")
    a("s_lshl_b32 s12, s6, 8")
    a("s_add_u32 s11, s11, s12")
    a("s_mov_b32 s48, s22")
    a("s_mov_b32 s49, s23")
    a("s_mov_b32 s50, 0x00400000")
    a("s_mov_b32 s56, s16")
    a("s_mov_b32 s57, s17")
    a("s_mov_b32 s58, 4096")
    a(f"buffer_load_dword v{P}, v3, s[56:59], s4 offen")
    for k in range(8):
        a(f"buffer_load_dwordx4 {Wr(2*k)}, v2, s[48:51], s11 offen")
        a("s_add_u32 s12, s11, 8192")
        a(f"buffer_load_dwordx4 {Wr(2*k+1)}, v2, s[48:51], s12 offen")
        if k < 7:
            a("s_add_u32 s11, s11, 65536")
    a(f"s_mov_b32 s68, {SCALE:#x}")
    a("s_mov_b32 s70, 0x05040100")
    a("s_mov_b32 s71, 0x07060302")
    a("s_mov_b32 s52, s24")
    a("s_mov_b32 s53, s25")
    a("s_mov_b32 s54, 0x00400000")
    a("s_mov_b32 s60, s40")
    a("s_mov_b32 s61, s41")
    a(f"s_mov_b32 s62, {WS_STATS + 2048}")
    a("v_and_b32 v22, 1, v20")
    a("v_lshlrev_b32 v22, 1, v22")
    a("v_lshrrev_b32 v23, 1, v20")
    a("v_or_b32 v22, v22, v23")
    a("v_lshl_add_u32 v22, v21, 3, v22")
    a("v_lshlrev_b32 v22, 2, v22")
    a("s_lshl_b32 s4, s9, 9")
    a(f"s_add_u32 s4, s4, {L_QP}")
    a(f"v_add_u32 v{VRED}, s4, v22")
    a(f"v_mov_b32 v{VZ}, {RING}")
    a(f"v_mov_b32 v{VCNT}, 1")
    a("s_lshl_b32 s4, s9, 13")
    a(f"v_add_u32 v{VBASE}, s4, v1")
    a("s_lshl_b32 s4, s9, 2")
    a(f"s_add_u32 s4, s4, {C_DONE}")
    a(f"v_mov_b32 v{VDONE}, s4")
    for j in range(8):
        a(f"v_mov_b32 v{ACC+j}, 0")
    for k in range(8):
        tb = T0 + 8 * (k & 1)
        a(f"s_waitcnt vmcnt({14 - 2*k})")
        for d in range(4):
            A_, B_ = W0 + 8 * k + d, W0 + 8 * k + 4 + d
            a(f"v_perm_b32 v{tb+2*d}, v{B_}, v{A_}, s70")
            a(f"v_perm_b32 v{tb+2*d+1}, v{B_}, v{A_}, s71")
        for e in range(8):
            a(f"v_dot2c_f32_bf16_dpp v{ACC+e}, v{P}, v{tb+e} row_newbcast:{k} row_mask:0xf bank_mask:0xf")

    def cross_row_reduce8(base):
        for k in range(4):
            a(f"v_permlane32_swap_b32 v{base+2*k}, v{base+2*k+1}")
        for k in range(4):
            a(f"v_add_f32 v{base+2*k}, v{base+2*k}, v{base+2*k+1}")
        a(f"v_permlane16_swap_b32 v{base}, v{base+2}")
        a(f"v_permlane16_swap_b32 v{base+4}, v{base+6}")
        a(f"v_add_f32 v{base}, v{base}, v{base+2}")
        a(f"v_add_f32 v{base+4}, v{base+4}, v{base+6}")

    cross_row_reduce8(ACC)
    a(f"ds_write_b32 v{VRED}, v{ACC}")
    a(f"ds_write_b32 v{VRED}, v{ACC+4} offset:16")
    a("v_lshlrev_b32 v20, 3, v0")
    a(f"v_add_u32 v20, {L_QP}, v20")
    lds_barrier(0, "q")
    for w in range(8):
        a(f"ds_read_b64 v[{T0+2*w}:{T0+2*w+1}], v20 offset:{512*w}")
    a("s_lshl_b32 s4, s9, 8")
    a(f"s_add_u32 s4, s4, {L_QQ}")
    a("v_lshlrev_b32 v21, 2, v0")
    a("v_add_u32 v21, s4, v21")
    a("v_and_b32 v22, 15, v0")
    a("v_lshlrev_b32 v22, 4, v22")
    a("v_add_u32 v22, s4, v22")
    a("s_waitcnt lgkmcnt(0)")
    for st in (1, 2, 4):
        for w in range(0, 8, 2 * st):
            a(f"v_add_f32 v{T0+2*w}, v{T0+2*w}, v{T0+2*(w+st)}")
            a(f"v_add_f32 v{T0+2*w+1}, v{T0+2*w+1}, v{T0+2*(w+st)+1}")
    a(f"v_cvt_pk_bf16_f32 v23, v{T0}, v{T0+1}")
    a("ds_write_b32 v21, v23")
    a("s_waitcnt lgkmcnt(0)")
    a(f"ds_read_b128 v[{Q}:{Q+3}], v22")
    for j in range(8):
        a(f"v_mov_b32 v{ACC+j}, 0")
    a(f"v_mov_b32 v{M}, 0xff800000")
    a(f"v_mov_b32 v{L}, 0")
    a("s_mov_b32 s13, s9")
    a("s_mov_b32 s15, 0")
    a(f"v_mov_b32 v{VCNT+1}, 0")
    stamp(1)
    a.label("LC_poll")
    a(f"ds_read_b32 v20, v{VZ}")
    a("s_waitcnt lgkmcnt(0)")
    a("v_readfirstlane_b32 s14, v20")
    a("s_cmp_gt_u32 s14, s13")
    a("s_cbranch_scc1 LC_go")
    a("s_sleep 1")
    a("s_branch LC_poll")
    a.label("LC_go")
    for i in range(4):
        a(f"ds_read_b128 v[{KB+4*i}:{KB+4*i+3}], v{VBASE} offset:{1024*i}")
    for i in range(4):
        a(f"ds_read_b128 v[{VB+4*i}:{VB+4*i+3}], v{VBASE} offset:{4096+1024*i}")
    a("s_add_u32 s15, s15, 1")
    a("s_add_u32 s13, s13, 8")
    a(f"v_add_u32 v{VCNT+1}, 1, v{VCNT+1}")
    if NS == 16:
        a(f"v_xor_b32 v{VBASE}, 0x10000, v{VBASE}")
    else:
        a(f"v_add_u32 v{VBASE}, 0x10000, v{VBASE}")
        a(f"v_subrev_u32 v21, {RING}, v{VBASE}")
        a(f"v_min_u32 v{VBASE}, v21, v{VBASE}")
    a("s_waitcnt lgkmcnt(4)")
    for d in range(4):
        for i in range(4):
            t = f"v{T0+i}"
            c = "0" if d == 0 else t
            a(f"v_dot2_f32_bf16 {t}, v{KB+4*i+d}, v{Q+d}, {c}")
    a("s_waitcnt lgkmcnt(0)")
    a(f"ds_write_b32 v{VDONE}, v{VCNT+1}")
    for i in range(2):
        a(f"v_add_f32_dpp v{T0+i}, v{T0+i}, v{T0+i} row_ror:8 row_mask:0xf bank_mask:0x3")
        a(f"v_add_f32_dpp v{T0+i}, v{T0+i+2}, v{T0+i+2} row_ror:8 row_mask:0xf bank_mask:0xc")
    PV1, PV2 = T0 + 8, KB
    for d in range(2):
        a(f"v_perm_b32 v{PV1+2*d}, v{VB+4+d}, v{VB+d}, s70")
        a(f"v_perm_b32 v{PV1+2*d+1}, v{VB+4+d}, v{VB+d}, s71")
    a(f"v_add_f32_dpp v{T0}, v{T0}, v{T0} row_half_mirror row_mask:0xf bank_mask:0x5")
    a(f"v_add_f32_dpp v{T0}, v{T0+1}, v{T0+1} row_half_mirror row_mask:0xf bank_mask:0xa")
    for d in range(2, 4):
        a(f"v_perm_b32 v{PV1+2*d}, v{VB+4+d}, v{VB+d}, s70")
        a(f"v_perm_b32 v{PV1+2*d+1}, v{VB+4+d}, v{VB+d}, s71")
    S = f"v{T0}"
    a(f"v_add_f32_dpp {S}, {S}, {S} quad_perm:[1,0,3,2] row_mask:0xf bank_mask:0xf")
    a(f"v_perm_b32 v{PV2}, v{VB+12}, v{VB+8}, s70")
    a(f"v_perm_b32 v{PV2+1}, v{VB+12}, v{VB+8}, s71")
    a(f"v_add_f32_dpp {S}, {S}, {S} quad_perm:[2,3,0,1] row_mask:0xf bank_mask:0xf")
    round_bf16(a, S)
    a(f"v_mul_f32 {S}, s68, {S}")
    round_bf16(a, S)
    MX = f"v{T0+1}"
    a(f"v_perm_b32 v{PV2+2}, v{VB+13}, v{VB+9}, s70")
    a(f"v_perm_b32 v{PV2+3}, v{VB+13}, v{VB+9}, s71")
    a(f"v_max_f32_dpp {MX}, {S}, {S} row_ror:8 row_mask:0xf bank_mask:0xf")
    a(f"v_perm_b32 v{PV2+4}, v{VB+14}, v{VB+10}, s70")
    a(f"v_perm_b32 v{PV2+5}, v{VB+14}, v{VB+10}, s71")
    a(f"v_max_f32_dpp {MX}, {MX}, {MX} row_ror:4 row_mask:0xf bank_mask:0xf")
    a(f"v_perm_b32 v{PV2+6}, v{VB+15}, v{VB+11}, s70")
    a(f"v_perm_b32 v{PV2+7}, v{VB+15}, v{VB+11}, s71")
    a(f"v_max_f32 {MX}, {MX}, v{M}")
    AL = f"v{T0+2}"
    a(f"v_sub_f32 {AL}, v{M}, {MX}")
    a(f"v_sub_f32 v{P}, {S}, {MX}")
    a(f"v_mul_f32 {AL}, s69, {AL}")
    a(f"v_mul_f32 v{P}, s69, v{P}")
    a(f"v_exp_f32 {AL}, {AL}")
    a(f"v_exp_f32 v{P}, v{P}")
    a(f"v_mov_b32 v{M}, {MX}")
    a(f"v_fma_f32 v{L}, v{L}, {AL}, v{P}")
    a(f"v_mul_f32 v{ACC}, {AL}, v{ACC}")
    a(f"v_mov_b32_dpp v{T0+3}, v{P} row_shl:4 row_mask:0xf bank_mask:0xf")
    for j in range(1, 8):
        a(f"v_mul_f32 v{ACC+j}, {AL}, v{ACC+j}")
        if j == 1:
            a(f"v_cvt_pk_bf16_f32 v{P}, v{P}, v{T0+3}")
    for e in range(8):
        a(f"v_dot2c_f32_bf16_dpp v{ACC+e}, v{P}, v{PV1+e} row_newbcast:0 row_mask:0xf bank_mask:0xf")
    for e in range(8):
        a(f"v_dot2c_f32_bf16_dpp v{ACC+e}, v{P}, v{PV2+e} row_newbcast:8 row_mask:0xf bank_mask:0xf")
    a(f"s_cmp_eq_u32 s15, {args.wo_at}")
    a("s_cbranch_scc1 LC_wo")
    a(f"s_cmp_lt_u32 s15, {NJ//8}")
    a("s_cbranch_scc1 LC_poll")
    a("s_branch LA_tail")
    a.label("LC_wo")
    a("s_lshl_b32 s4, s6, 17")
    a("s_lshl_b32 s5, s9, 14")
    a("s_add_u32 s4, s4, s5")
    for i in range(16):
        a(f"buffer_load_dwordx4 {Wr(i)}, v1, s[52:55], s4 offen offset:{(i & 3) * 1024}")
        if (i & 3) == 3 and i < 15:
            a("s_add_u32 s4, s4, 4096")
    a("s_branch LC_poll")

    a.label("LA_tail")
    a.nop(3)
    stamp(3)
    for r in (8, 4):
        a(f"v_add_f32_dpp v{L}, v{L}, v{L} row_ror:{r} row_mask:0xf bank_mask:0xf")
    for g in range(4):
        a(f"v_readlane_b32 s{80+g}, v{M}, {16*g}")
    a("v_mov_b32 v20, s80")
    a("v_max_f32 v20, s81, v20")
    a("v_max_f32 v20, s82, v20")
    a("v_max_f32 v20, s83, v20")
    a(f"v_sub_f32 v22, v{M}, v20")
    a("v_mul_f32 v22, s69, v22")
    a("v_exp_f32 v22, v22")
    a(f"v_mul_f32 v{L}, v22, v{L}")
    for j in range(8):
        a(f"v_mul_f32 v{ACC+j}, v22, v{ACC+j}")
    for g in range(4):
        a(f"v_readlane_b32 s{80+g}, v{L}, {16*g}")
    cross_row_reduce8(ACC)
    a("v_mov_b32 v21, s80")
    a("v_add_f32 v21, s81, v21")
    a("v_add_f32 v21, s82, v21")
    a("v_add_f32 v21, s83, v21")
    a(f"ds_write_b32 v{VRED}, v{ACC} offset:{L_OP - L_QP}")
    a(f"ds_write_b32 v{VRED}, v{ACC+4} offset:{L_OP - L_QP + 16}")
    a("s_lshl_b32 s4, s9, 3")
    a(f"s_add_u32 s4, s4, {L_ST}")
    a("v_mov_b32 v22, s4")
    a("ds_write_b64 v22, v[20:21]")
    LO = 104
    a("s_waitcnt vmcnt(0)")
    for j in range(8):
        for t in range(4):
            A_, B_ = W0 + 8 * j + t, W0 + 8 * j + 4 + t
            a(f"v_perm_b32 v{LO+4*j+t}, v{B_}, v{A_}, s70")
            a(f"v_perm_b32 v{B_}, v{B_}, v{A_}, s71")
    a("v_lshlrev_b32 v20, 3, v0")
    a(f"v_add_u32 v20, {L_OP}, v20")
    a(f"v_mov_b32 v21, {L_ST}")
    lds_barrier(1, "t1")
    stamp(4)
    SB = 140
    for k in range(4):
        a(f"ds_read_b128 v[{SB+4*k}:{SB+4*k+3}], v21 offset:{16*k}")
    for w in range(8):
        a(f"ds_read_b64 v[{T0+2*w}:{T0+2*w+1}], v20 offset:{512*w}")
    a("s_lshl_b32 s4, s9, 3")
    a("s_waitcnt lgkmcnt(8)")
    a(f"v_max3_f32 v20, v{SB}, v{SB+2}, v{SB+4}")
    a(f"v_max3_f32 v20, v20, v{SB+6}, v{SB+8}")
    a(f"v_max3_f32 v20, v20, v{SB+10}, v{SB+12}")
    a(f"v_max_f32 v20, v20, v{SB+14}")
    for w in range(8):
        a(f"v_sub_f32 v{SB+2*w}, v{SB+2*w}, v20")
    for w in range(8):
        a(f"v_mul_f32 v{SB+2*w}, s69, v{SB+2*w}")
    for w in range(8):
        a(f"v_exp_f32 v{SB+2*w}, v{SB+2*w}")
    a(f"v_mul_f32 v21, v{SB}, v{SB+1}")
    for w in range(1, 8):
        a(f"v_fmac_f32 v21, v{SB+2*w}, v{SB+2*w+1}")
    a("v_rcp_f32 v22, v21")
    a("s_waitcnt lgkmcnt(0)")
    a(f"v_mul_f32 v2, v{SB}, v{T0}")
    a(f"v_mul_f32 v3, v{SB}, v{T0+1}")
    for w in range(1, 8):
        a(f"v_fmac_f32 v2, v{SB+2*w}, v{T0+2*w}")
        a(f"v_fmac_f32 v3, v{SB+2*w}, v{T0+2*w+1}")
    a("v_mul_f32 v2, v22, v2")
    a("v_mul_f32 v3, v22, v3")
    a("v_cvt_pk_bf16_f32 v2, v2, v3")
    for j in range(8):
        a(f"v_readlane_b32 s{72+j}, v2, s4")
        if j < 7:
            a("s_add_u32 s4, s4, 1")
    for j in range(8):
        for t in range(4):
            c = "0" if j == 0 else f"v{ACC+2*t}"
            a(f"v_dot2_f32_bf16 v{ACC+2*t}, v{LO+4*j+t}, s{72+j}, {c}")
            c = "0" if j == 0 else f"v{ACC+2*t+1}"
            a(f"v_dot2_f32_bf16 v{ACC+2*t+1}, v{W0+8*j+4+t}, s{72+j}, {c}")
    a("s_lshl_b32 s4, s9, 11")
    a("v_lshlrev_b32 v2, 5, v0")
    a("v_add_u32 v2, s4, v2")
    a(f"ds_write_b128 v2, v[{ACC}:{ACC+3}] offset:{L_Y}")
    a(f"ds_write_b128 v2, v[{ACC+4}:{ACC+7}] offset:{L_Y+16}")
    a("s_lshl_b32 s4, s9, 8")
    a("v_lshlrev_b32 v3, 2, v0")
    a("v_add_u32 v3, s4, v3")
    a("s_lshl_b32 s5, s7, 6")
    a("s_lshl_b32 s12, s6, 1")
    a("s_add_u32 s5, s5, s12")
    a("s_add_u32 s5, s5, s8")
    a("s_lshl_b32 s5, s5, 11")
    lds_barrier(2, "t2")
    for w in range(8):
        a(f"ds_read_b32 v{T0+w}, v3 offset:{L_Y + 2048*w}")
    a("s_waitcnt lgkmcnt(0)")
    for st in (1, 2, 4):
        for w in range(0, 8, 2 * st):
            a(f"v_add_f32 v{T0+w}, v{T0+w}, v{T0+w+st}")
    a(f"buffer_store_dword v{T0}, v3, s[60:63], s5 offen")
    stamp(5)
    a("s_cmp_lg_u32 s9, 0")
    a("s_cbranch_scc1 LA_end2")
    a("s_lshl_b32 s5, s7, 5")
    a("s_add_u32 s5, s5, s6")
    a("s_lshl_b32 s5, s5, 4")
    a("s_lshl_b32 s12, s8, 3")
    a("s_add_u32 s5, s5, s12")
    a(f"s_add_u32 s5, s5, {WS_STATS}")
    a("v_mov_b32 v2, 0")
    a("s_mov_b64 exec, 1")
    a("buffer_store_dwordx2 v[20:21], v2, s[60:63], s5 offen")
    a.label("LA_end2")
    stamp_store()
    a("s_endpgm")

    a.label("LA_ffn")
    a("s_and_b32 s4, s2, 7")
    a("s_lshr_b32 s5, s2, 3")
    a("s_lshr_b32 s6, s5, 2")
    a("s_lshl_b32 s6, s6, 3")
    a("s_add_u32 s6, s6, s4")
    a("s_lshl_b32 s6, s6, 2")
    a("s_and_b32 s5, s5, 3")
    a("s_add_u32 s6, s6, s5")
    a(f"s_cmp_ge_u32 s6, {NFFN}")
    a("s_cbranch_scc1 LA_end")
    FB = 104
    FA = 40
    FX = 72
    FU = 80
    FG = 88
    FH = 96
    def Fr(i): return f"v[{FB+4*i}:{FB+4*i+3}]"
    a("v_lshrrev_b32 v20, 1, v0")
    a("v_and_b32 v21, 1, v0")
    a("s_movk_i32 s4, 2752")
    a("v_mul_lo_u32 v2, v20, s4")
    a("v_lshl_add_u32 v2, v21, 4, v2")
    a("v_lshlrev_b32 v3, 4, v20")
    a(f"v_add_u32 v3, {L_XT}, v3")
    a("s_mov_b32 s46, 1409024")
    a("s_mov_b32 s50, 1409024")
    a("s_mov_b32 s58, 4096")
    a(f"s_mov_b32 s62, {NFFN*8192}")
    a("s_lshl_b32 s10, s6, 5")
    a("s_mov_b32 s44, s28")
    a("s_mov_b32 s45, s29")
    a("s_mov_b32 s48, s30")
    a("s_mov_b32 s49, s31")
    a("s_mov_b32 s56, s16")
    a("s_mov_b32 s57, s17")
    a(f"s_add_u32 s60, s40, {WS_F}")
    a("s_addc_u32 s61, s41, 0")
    for b in range(4):
        a(f"buffer_load_dwordx4 v[{4+4*b}:{7+4*b}], v1, s[56:59], 0 offen offset:{1024*b}")
    a("s_mov_b32 s11, s10")
    for i in range(16):
        a(f"buffer_load_dwordx4 {Fr(i)}, v2, s[44:47], s11 offen")
        if i < 15:
            a(f"s_add_u32 s11, s11, {32*2752}")
    a("s_waitcnt vmcnt(16)")
    for e in range(8):
        for b in range(4):
            src = f"v{4+4*b+(e>>1)}"
            if e & 1:
                a(f"v_and_b32 v{FA+4*e+b}, s42, {src}")
            else:
                a(f"v_lshlrev_b32 v{FA+4*e+b}, 16, {src}")
    a("v_lshlrev_b32 v20, 7, v0")
    a(f"v_add_u32 v20, {L_XT}, v20")
    for e in range(8):
        a(f"ds_write_b128 v20, v[{FA+4*e}:{FA+4*e+3}] offset:{16*e}")
    a("s_waitcnt lgkmcnt(0)")
    a("s_mov_b32 s9, 0")
    a("v_mov_b32 v22, v2")
    a(f"s_mov_b32 s12, {32*2752}")
    a.label("LF_pass")
    a("s_mov_b32 s11, s10")
    for k in range(32):
        a(f"v_mov_b32 v{FA+k}, 0")
    a(f"ds_read_b128 v[{FX}:{FX+3}], v3")
    for i in range(16):
        xb = FX + 4 * (i & 1)
        if i < 15:
            nb = FX + 4 * ((i + 1) & 1)
            a(f"ds_read_b128 v[{nb}:{nb+3}], v3 offset:{512*(i+1)}")
        a("s_waitcnt vmcnt(15)")
        for d in range(4):
            a(f"v_lshlrev_b32 v{FU+2*d}, 16, v{FB+4*i+d}")
            a(f"v_and_b32 v{FU+2*d+1}, s42, v{FB+4*i+d}")
        a(f"buffer_load_dwordx4 {Fr(i)}, v22, s[48:51], s11 offen")
        a("s_add_u32 s11, s11, s12")
        a(f"s_waitcnt lgkmcnt({1 if i < 15 else 0})")
        for b in range(4):
            for e in range(8):
                a(f"v_fmac_f32 v{FA+8*b+e}, v{xb+b}, v{FU+e}")
    for k in range(16):
        a(f"v_permlane32_swap_b32 v{FA+k}, v{FA+16+k}")
    for k in range(16):
        a(f"v_add_f32 v{FA+k}, v{FA+k}, v{FA+16+k}")
    for k in range(8):
        a(f"v_permlane16_swap_b32 v{FA+k}, v{FA+8+k}")
    for k in range(8):
        a(f"v_add_f32 v{FA+k}, v{FA+k}, v{FA+8+k}")
    for r in (2, 4, 8):
        for k in range(8):
            a(f"v_add_f32_dpp v{FA+k}, v{FA+k}, v{FA+k} row_ror:{r} row_mask:0xf bank_mask:0xf")
    for k in range(8):
        a(f"v_mov_b32 v{FG+k}, v{FH+k}")
        a(f"v_mov_b32 v{FH+k}, v{FA+k}")
    a("s_cmp_eq_u32 s9, 1")
    a("s_cbranch_scc1 LF_p2")
    a("s_mov_b32 s9, 1")
    a("s_mov_b32 s48, s32")
    a("s_mov_b32 s49, s33")
    a("v_mov_b32 v22, v1")
    a("s_movk_i32 s12, 1024")
    a("s_lshl_b32 s10, s6, 14")
    a("s_branch LF_pass")
    a.label("LF_p2")
    a.nop(2)
    for k in range(8):
        g, u = f"v{FG+k}", f"v{FH+k}"
        round_bf16(a, g)
        round_bf16(a, u)
        a(f"v_mul_f32 {g}, s69, {g}")
        a(f"v_exp_f32 {g}, -{g}")
        a(f"v_add_f32 {g}, 1.0, {g}")
        a(f"v_rcp_f32 {g}, {g}")
        round_bf16(a, g)
        a(f"v_mul_f32 {u}, {g}, {u}")
        round_bf16(a, u)
    for k in range(32):
        a(f"v_mov_b32 v{FA+k}, 0")
    for f in range(16):
        for b in range(4):
            a(f"v_readlane_b32 s{80+b}, v{FH+(f&7)}, {16*b + (f >> 3)}")
        a(f"s_waitcnt vmcnt({15-f})")
        for d in range(4):
            a(f"v_lshlrev_b32 v{FU+2*d}, 16, v{FB+4*f+d}")
            a(f"v_and_b32 v{FU+2*d+1}, s42, v{FB+4*f+d}")
        for b in range(4):
            for e in range(8):
                a(f"v_fmac_f32 v{FA+8*b+e}, s{80+b}, v{FU+e}")
    a("v_lshlrev_b32 v2, 5, v0")
    a("s_lshl_b32 s10, s6, 13")
    for b in range(4):
        a(f"buffer_store_dwordx4 v[{FA+8*b}:{FA+8*b+3}], v2, s[60:63], s10 offen offset:{2048*(b&1)}")
        a(f"buffer_store_dwordx4 v[{FA+8*b+4}:{FA+8*b+7}], v2, s[60:63], s10 offen offset:{2048*(b&1)+16}")
        if b == 1:
            a("s_add_u32 s10, s10, 4096")
    stamp(5)
    a("s_branch LA_end2")
    a.label("LA_end")
    a("s_endpgm")

    fin_kernel(a)

    for name, vg in (("attn_kernel", 168), ("fin_kernel", 48)):
        a.raw(f""".section .rodata,"a"
.p2align 6
.amdhsa_kernel {name}
  .amdhsa_next_free_vgpr {vg}
  .amdhsa_next_free_sgpr 100
  .amdhsa_accum_offset {vg}
  .amdhsa_group_segment_fixed_size 0
  .amdhsa_kernarg_size 104
  .amdhsa_user_sgpr_count 2
  .amdhsa_user_sgpr_kernarg_segment_ptr 1
  .amdhsa_system_sgpr_workgroup_id_x 1
.end_amdhsa_kernel""")
    return a.text()


def fin_kernel(a):
    a.raw(".globl fin_kernel\n.p2align 8\n.type fin_kernel,@function")
    a.label("fin_kernel")
    a("s_cmp_ge_u32 s2, 64")
    a("s_cbranch_scc1 LB_end")
    a("s_load_dwordx2 s[16:17], s[0:1], 0")
    a("s_load_dwordx4 s[32:35], s[0:1], 72")
    a("s_load_dwordx2 s[40:41], s[0:1], 96")
    a("s_lshr_b32 s7, s2, 4")
    a("s_and_b32 s8, s2, 15")
    a("s_mov_b32 s42, 0xffff0000")
    a(f"s_mov_b32 s69, {LOG2E:#x}")
    for r in (47, 51, 55, 59, 63):
        a(f"s_mov_b32 s{r}, 0x20000")
    a(f"s_mov_b32 s46, {WS_STATS + 2048}")
    a(f"s_mov_b32 s50, {NFFN*8192}")
    a("s_mov_b32 s54, 4096")
    a("s_mov_b32 s58, 1024")
    a("s_mov_b32 s62, 4096")
    a("v_lshrrev_b32 v1, 3, v0")
    a("v_and_b32 v2, 7, v0")
    a("v_lshlrev_b32 v3, 11, v1")
    a("v_lshl_add_u32 v3, v2, 4, v3")
    a("v_lshrrev_b32 v4, 1, v1")
    a("v_lshlrev_b32 v4, 4, v4")
    a("v_lshlrev_b32 v5, 13, v1")
    a("v_lshl_add_u32 v5, v2, 4, v5")
    a("v_lshlrev_b32 v6, 2, v0")
    a("s_lshl_b32 s4, s7, 17")
    a("s_lshl_b32 s5, s8, 7")
    a("s_add_u32 s4, s4, s5")
    a("s_add_u32 s10, s4, 65536")
    a("s_lshl_b32 s11, s7, 9")
    a(f"s_add_u32 s11, s11, {WS_STATS}")
    a("s_lshl_b32 s12, s7, 11")
    a("s_add_u32 s12, s12, s5")
    a("s_add_u32 s13, s12, 0x40000")
    a("s_add_u32 s14, s12, 0x80000")
    a("s_lshl_b32 s15, s7, 10")
    a("s_waitcnt lgkmcnt(0)")
    a("s_mov_b32 s44, s40")
    a("s_mov_b32 s45, s41")
    a(f"s_add_u32 s48, s40, {WS_F}")
    a("s_addc_u32 s49, s41, 0")
    a("s_mov_b32 s52, s16")
    a("s_mov_b32 s53, s17")
    a("s_mov_b32 s56, s32")
    a("s_mov_b32 s57, s33")
    a("s_mov_b32 s60, s34")
    a("s_mov_b32 s61, s35")
    a("buffer_load_dwordx4 v[8:11], v4, s[44:47], s11 offen")
    a("buffer_load_dwordx4 v[12:15], v4, s[44:47], s11 offen offset:256")
    a("buffer_load_dword v36, v6, s[52:55], s15 offen")
    a("buffer_load_dword v37, v6, s[56:59], 0 offen")
    a("buffer_load_dwordx4 v[16:19], v3, s[44:47], s4 offen")
    a("buffer_load_dwordx4 v[20:23], v3, s[44:47], s10 offen")
    a("buffer_load_dwordx4 v[24:27], v5, s[48:51], s12 offen")
    a("buffer_load_dwordx4 v[28:31], v5, s[48:51], s13 offen")
    a("buffer_load_dwordx4 v[32:35], v5, s[48:51], s14 offen")
    a("v_and_b32 v7, 1, v1")
    a("v_cmp_eq_u32 vcc, 1, v7")
    a("s_waitcnt vmcnt(7)")
    for k, sb in enumerate((8, 12)):
        w = f"v{38+k}"
        a(f"v_max_f32 v40, v{sb}, v{sb+2}")
        a(f"v_sub_f32 v{sb}, v{sb}, v40")
        a(f"v_sub_f32 v{sb+2}, v{sb+2}, v40")
        a(f"v_mul_f32 v{sb}, s69, v{sb}")
        a(f"v_mul_f32 v{sb+2}, s69, v{sb+2}")
        a(f"v_exp_f32 v{sb}, v{sb}")
        a(f"v_exp_f32 v{sb+2}, v{sb+2}")
        a(f"v_mul_f32 v{sb}, v{sb}, v{sb+1}")
        a(f"v_mul_f32 v{sb+2}, v{sb+2}, v{sb+3}")
        a(f"v_add_f32 v40, v{sb}, v{sb+2}")
        a("v_rcp_f32 v40, v40")
        a(f"v_cndmask_b32 {w}, v{sb}, v{sb+2}, vcc")
        a(f"v_mul_f32 {w}, {w}, v40")
    a("s_waitcnt vmcnt(5)")
    a("v_lshlrev_b32 v40, 16, v36")
    a("v_and_b32 v41, s42, v36")
    a("v_lshlrev_b32 v42, 16, v37")
    a("v_and_b32 v43, s42, v37")
    a("v_mul_f32 v40, v40, v42")
    a("v_mul_f32 v41, v41, v43")
    round_bf16(a, "v40")
    round_bf16(a, "v41")
    a("v_add_f32 v40, v40, v41")
    for r in (1, 2, 4, 8):
        a(f"v_add_f32_dpp v40, v40, v40 row_ror:{r} row_mask:0xf bank_mask:0xf")
    for g in range(4):
        a(f"v_readlane_b32 s{80+g}, v40, {16*g}")
    a("v_mov_b32 v40, s80")
    a("v_add_f32 v40, s81, v40")
    a("v_add_f32 v40, s82, v40")
    a("v_add_f32 v40, s83, v40")
    a("v_lshrrev_b32 v41, 6, v0")
    a("v_lshlrev_b32 v42, 2, v41")
    a("ds_write_b32 v42, v40 offset:1024")
    a("s_waitcnt vmcnt(3)")
    for k in range(4):
        a(f"v_mul_f32 v{16+k}, v38, v{16+k}")
        a(f"v_fmac_f32 v{16+k}, v39, v{20+k}")
    a("s_waitcnt vmcnt(0)")
    for k in range(4):
        a(f"v_add_f32 v{24+k}, v{24+k}, v{28+k}")
        a(f"v_add_f32 v{24+k}, v{24+k}, v{32+k}")
    for k in range(4):
        a(f"v_permlane32_swap_b32 v{16+k}, v{24+k}")
    for k in range(4):
        a(f"v_add_f32 v{16+k}, v{16+k}, v{24+k}")
    a("v_permlane16_swap_b32 v16, v17")
    a("v_permlane16_swap_b32 v18, v19")
    a("v_add_f32 v16, v16, v17")
    a("v_add_f32 v18, v18, v19")
    a("v_add_f32_dpp v16, v16, v16 row_ror:8 row_mask:0xf bank_mask:0xf")
    a("v_add_f32_dpp v18, v18, v18 row_ror:8 row_mask:0xf bank_mask:0xf")
    a("v_bfe_u32 v43, v0, 5, 1")
    a("v_lshlrev_b32 v43, 7, v43")
    a("v_lshl_add_u32 v43, v41, 8, v43")
    a("v_lshl_add_u32 v43, v2, 4, v43")
    a("v_bfe_u32 v44, v0, 4, 1")
    a("v_lshl_add_u32 v43, v44, 2, v43")
    a("ds_write_b32 v43, v16")
    a("ds_write_b32 v43, v18 offset:8")
    a("s_waitcnt lgkmcnt(0)")
    a("s_barrier")
    a("v_cmp_gt_u32 vcc, 32, v0")
    a("s_and_saveexec_b64 s[84:85], vcc")
    a("s_cbranch_execz LB_end")
    a("v_mov_b32 v1, 0")
    for w in range(4):
        a(f"ds_read_b32 v{8+w}, v6 offset:{256*w}")
        a(f"ds_read_b32 v{12+w}, v6 offset:{256*w+128}")
    a("ds_read_b128 v[16:19], v1 offset:1024")
    a("s_waitcnt lgkmcnt(0)")
    a("v_add_f32 v8, v8, v9")
    a("v_add_f32 v10, v10, v11")
    a("v_add_f32 v12, v12, v13")
    a("v_add_f32 v14, v14, v15")
    a("v_add_f32 v16, v16, v17")
    a("v_add_f32 v18, v18, v19")
    a("v_add_f32 v8, v8, v10")
    a("v_add_f32 v12, v12, v14")
    a("v_add_f32 v16, v16, v18")
    round_bf16(a, "v8")
    round_bf16(a, "v12")
    round_bf16(a, "v16")
    a("v_mul_f32 v16, s69, v16")
    a("v_exp_f32 v16, -v16")
    a("v_add_f32 v16, 1.0, v16")
    a("v_rcp_f32 v16, v16")
    round_bf16(a, "v16")
    a("v_sub_f32 v17, 1.0, v16")
    round_bf16(a, "v17")
    a("v_mul_f32 v8, v16, v8")
    a("v_mul_f32 v12, v17, v12")
    round_bf16(a, "v8")
    round_bf16(a, "v12")
    a("v_add_f32 v8, v8, v12")
    a("v_cvt_pk_bf16_f32 v8, v8, v8")
    a("v_lshlrev_b32 v1, 1, v0")
    a("s_lshl_b32 s4, s7, 10")
    a("s_lshl_b32 s5, s8, 6")
    a("s_add_u32 s4, s4, s5")
    a("buffer_store_short v8, v1, s[60:63], s4 offen")
    a.label("LB_end")
    a("s_endpgm")


if __name__ == "__main__":
    ap = argparse.ArgumentParser()
    ap.add_argument("-o", default="v2.s")
    ap.add_argument("--ts", type=int, default=0)
    ap.add_argument("--slots", type=int, default=16)
    ap.add_argument("--inflight", type=int, default=24)
    ap.add_argument("--wo_at", type=int, default=3)
    args = ap.parse_args()
    open(args.o, "w").write(gen(args))
```

```python
import re

TRANS = ("v_exp_f32", "v_log_f32", "v_rcp_f32", "v_rsq_f32", "v_sqrt_f32", "v_sin_f32", "v_cos_f32")


def _expand(tok):
    tok = tok.strip()
    tok = tok.lstrip("-")
    m = re.fullmatch(r"abs\((.*)\)", tok)
    if m:
        tok = m.group(1)
    m = re.fullmatch(r"([vs])(\d+)", tok)
    if m:
        return [(m.group(1), int(m.group(2)))]
    m = re.fullmatch(r"([vs])\[(\d+):(\d+)\]", tok)
    if m:
        return [(m.group(1), i) for i in range(int(m.group(2)), int(m.group(3)) + 1)]
    if tok == "vcc":
        return [("s", 106), ("s", 107)]
    return []


def _norm(op):
    for suf in ("_dpp", "_e32", "_e64"):
        if op.endswith(suf):
            op = op[: -len(suf)]
    return op


class Asm:
    def __init__(self):
        self.out = []
        self.hop = None
        self.reset()

    def hop_begin(self, name, n):
        self.hop = dict(name=name, n=n, cnt=0, k=0)
        self._pad()

    def _pad(self):
        h = self.hop
        self.out.append(f"{h['name']}_{h['k']}:")
        self.out.append(f"    s_cbranch_execz {h['name']}_{h['k']+1}")
        self.slot += 1
        h["k"] += 1
        h["cnt"] = 0

    def hop_end(self, target):
        h = self.hop
        self.out.append(f"{h['name']}_{h['k']}:")
        self.out.append(f"    s_cbranch_execz {target}")
        self.slot += 1
        self.hop = None

    def reset(self):
        self.slot = 0
        self.hist = []

    def raw(self, s):
        self.out.append(s)

    def label(self, name):
        self.out.append(f"{name}:")
        self.reset()

    def comment(self, s):
        self.out.append(f"    ; {s}")

    def nop(self, n):
        while n > 0:
            k = min(n, 16)
            self.out.append(f"    s_nop {k-1}")
            self.slot += k
            n -= k

    def __call__(self, line):
        line = line.strip()
        code = line.split(";")[0].strip()
        m = re.match(r"(\S+)\s*(.*)", code)
        op, rest = m.group(1), m.group(2)
        ops = [o.strip() for o in rest.split(",")] if rest else []
        mods = ""
        if ops:
            joined = rest
            qp = re.search(r"quad_perm:\[[^\]]*\]", joined)
            if qp:
                joined = joined.replace(qp.group(0), "quad_perm:QP")
            ops = [o.strip() for o in joined.split(",")]
            last = ops[-1].split()
            ops[-1] = last[0] if last else ""
            mods = " ".join(last[1:])
        is_valu = op.startswith("v_")
        is_vmem = op.startswith("buffer_") or op.startswith("global_")
        is_ds = op.startswith("ds_")
        is_dpp = "_dpp" in op or "row_" in mods or "quad_perm" in mods
        is_perml = op.startswith("v_permlane")
        is_rl = op.startswith("v_readlane") or op.startswith("v_readfirstlane")
        is_trans = any(op.startswith(t) for t in TRANS)
        is_dot = op.startswith("v_dot")
        writes, reads = [], []
        if is_valu:
            if op.startswith("v_cmp"):
                writes = _expand(ops[0])
                for o in ops[1:]:
                    reads += _expand(o)
            elif is_perml:
                writes = _expand(ops[0]) + _expand(ops[1])
                reads = list(writes)
            else:
                writes = _expand(ops[0])
                for o in ops[1:]:
                    reads += _expand(o)
                if op.startswith(("v_fmac", "v_dot2c", "v_pk_fmac")) or (is_dpp and "bank_mask:0xf" not in mods):
                    reads += writes
                if op.startswith("v_cndmask_b32") and len(ops) == 3:
                    reads += _expand("vcc")
        elif is_vmem or is_ds:
            for o in ops:
                reads += _expand(o)
        need = 0
        for h in self.hist:
            dist = self.slot - h["slot"] - 1
            req = 0
            hw = set(h["writes"])
            if h["valu"]:
                vw = {r for r in hw if r[0] == "v"}
                sw = {r for r in hw if r[0] == "s"}
                if is_valu and is_dpp and len(ops) > 1 and vw & set(_expand(ops[1])):
                    req = max(req, 2)
                if is_perml and vw & set(reads):
                    req = max(req, 2)
                if is_rl and vw & set(_expand(ops[1])):
                    req = max(req, 1)
                if h["trans"] and is_valu and not is_trans and vw & set(reads):
                    req = max(req, 1)
                if h["dot"] and (is_valu or is_vmem or is_ds):
                    touched = set(reads) | set(writes)
                    if vw & touched:
                        same = _norm(op) == _norm(h["op"])
                        as_c_only = same and (len(ops) == 4 or op.startswith("v_dot2c")) and not (vw & (set(_expand(ops[1])) | set(_expand(ops[2]))))
                        if not as_c_only:
                            req = max(req, 3)
                if sw:
                    if is_valu and sw & set(reads):
                        req = max(req, 4 if (is_rl and len(ops) == 3 and sw & set(_expand(ops[2]))) else 2)
                    if is_vmem and sw & set(reads):
                        req = max(req, 5)
            if h["widestore"] and is_valu and set(h["sdata"]) & set(writes):
                req = max(req, 2)
            if h["m0"] and is_vmem and re.search(r"\blds\b", mods):
                req = max(req, 1)
            need = max(need, req - dist)
        if need > 0:
            self.nop(need)
        self.out.append("    " + line)
        wide = is_vmem and "store" in op and ("x3" in op or "x4" in op)
        self.hist.append(dict(slot=self.slot, valu=is_valu, writes=writes, trans=is_trans, dot=is_dot, op=op,
                              widestore=wide, sdata=_expand(ops[0]) if wide else [],
                              m0=(op.startswith("s_") and bool(ops) and ops[0] == "m0")))
        self.slot += 1
        self.hist = [h for h in self.hist if self.slot - h["slot"] <= 6]
        if self.hop is not None:
            self.hop["cnt"] += 1
            if self.hop["cnt"] >= self.hop["n"] and not op.startswith(("s_cmp", "s_branch", "s_cbranch", "v_cmp")):
                self._pad()
        if op.startswith("s_cbranch") or op.startswith("s_branch"):
            pass

    def text(self):
        return "\n".join(self.out) + "\n"
```

```python
import sys, argparse
sys.path.insert(0, "work")
from asmlib import Asm

HEADER = open("gated_mix__gqa_block_cached__glu_gated_glu__decode.s.ref").read().split("; Override launch")[0]

WS_Y = 0
WS_STATS = 512 * 1024
WS_F = 1024 * 1024
NFFN = 86

LOG2E = 0x3FB8AA3B
SCALE = 0x3DB504F3


def round_bf16(a, v):
    a(f"v_cvt_pk_bf16_f32 {v}, {v}, {v}")
    a(f"v_and_b32 {v}, s42, {v}")


def gen(args):
    a = Asm()
    NS = args.slots
    NJ = 128
    wnt = " nt" if args.wnt else ""
    cnt = " nt" if args.cnt else ""
    DS = args.dshift
    INF = args.inflight
    RING = NS * 8192
    C_LANDED = RING
    C_DONE = RING + 4
    C_BAR = RING + 64
    L_QP = RING + 256
    L_OP = L_QP
    L_ST = L_OP + 4096
    L_QQ = L_ST + 256
    L_XT = L_QQ + 2048
    LDS_A = L_XT + 8192
    L_Y = 0
    assert LDS_A <= 163840
    W0, KB, VB, T0 = 40, 104, 120, 24
    ACC, Q = 8, 4
    P, M, L = 16, 17, 18
    VRED = 19
    VZ = 136
    VBASE = 137
    VDONE = 138
    VCNT = 139

    def Wr(i): return f"v[{W0+4*i}:{W0+4*i+3}]"

    def stamp(k, mode=1):
        if args.ts and (mode == args.ts or k in (0, 1, 5)):
            a(f"s_memrealtime s[{84+2*k}:{85+2*k}]")

    def stamp_store():
        if args.ts:
            a("s_mov_b64 exec, 1")
            a("s_mul_i32 s4, s2, 10")
            a("s_add_u32 s4, s4, s3")
            a("s_lshl_b32 s4, s4, 6")
            a(f"s_add_u32 s60, s40, {4<<20}")
            a("s_addc_u32 s61, s41, 0")
            a("s_mov_b32 s62, 0x100000")
            a("s_mov_b32 s63, 0x20000")
            a("v_mov_b32 v2, 0")
            a("s_getreg_b32 s96, hwreg(HW_REG_XCC_ID)")
            a("s_mov_b32 s97, 0")
            a("s_waitcnt lgkmcnt(0)")
            for k in range(7):
                a(f"v_mov_b32 v4, s{84+2*k}")
                a(f"v_mov_b32 v5, s{85+2*k}")
                a(f"buffer_store_dwordx2 v[4:5], v2, s[60:63], s4 offen offset:{8*k}")
                a.nop(2)

    def lds_barrier(k, tag):
        a("s_waitcnt lgkmcnt(0)")
        a("s_mov_b64 exec, 1")
        a(f"ds_add_u32 v{VZ}, v{VCNT} offset:{C_BAR - RING + 4*k}")
        a("s_mov_b64 exec, -1")
        a.label(f"LB_spin{tag}")
        a(f"ds_read_b32 v23, v{VZ} offset:{C_BAR - RING + 4*k}")
        a("s_waitcnt lgkmcnt(0)")
        a("v_readfirstlane_b32 s14, v23")
        a("s_cmp_lt_u32 s14, 8")
        a(f"s_cbranch_scc1 LB_spin{tag}")

    a.raw(HEADER.rstrip("\n"))
    a.raw(f"; @launch kernel=attn_kernel grid=(256,1,1) block=(640,1,1) lds={LDS_A}")
    a.raw("; @launch kernel=fin_kernel grid=(64,1,1) block=(256,1,1) lds=2048")
    a.raw('.amdgcn_target "amdgcn-amd-amdhsa--gfx950"')
    a.raw(".text")
    a.raw(".globl attn_kernel\n.p2align 8\n.type attn_kernel,@function")
    a.label("attn_kernel")
    a("s_cmp_ge_u32 s2, 256")
    a("s_cbranch_scc1 LA_end")
    a("s_load_dwordx16 s[16:31], s[0:1], 0")
    a("s_load_dwordx8 s[32:39], s[0:1], 64")
    a("s_load_dwordx2 s[40:41], s[0:1], 96")
    stamp(0)
    if args.pf:
        a("s_getpc_b64 s[64:65]")
        a.label("LA_pc")
        a("s_mov_b32 s66, LB_end-LA_pc")
        a("s_mov_b32 s67, 0x20000")
        a("v_lshlrev_b32 v2, 6, v0")
        a("buffer_load_dword v39, v2, s[64:67], 0 offen")
    a("v_lshrrev_b32 v1, 6, v0")
    a("v_and_b32 v0, 63, v0")
    a("v_readfirstlane_b32 s3, v1")
    a("v_lshlrev_b32 v3, 2, v0")
    a("v_mov_b32 v2, 0")
    a(f"v_add_u32 v3, {RING}, v3")
    a("ds_write_b32 v3, v2")
    if args.map == "pair":
        a("s_lshr_b32 s4, s2, 1")
        a("s_and_b32 s5, s4, 3")
        a("s_lshl_b32 s5, s5, 3")
        a("s_bfe_u32 s6, s4, 0x30002")
        a("s_add_u32 s6, s6, s5")
        a("s_lshr_b32 s7, s4, 5")
        a("s_and_b32 s8, s2, 1")
    else:
        a("s_and_b32 s4, s2, 7")
        a("s_bfe_u32 s6, s2, 0x20003")
        a("s_lshl_b32 s4, s4, 2")
        a("s_add_u32 s6, s6, s4")
        a("s_lshr_b32 s7, s2, 6")
        a("s_bfe_u32 s8, s2, 0x10005")
    a("s_lshl_b32 s5, s7, 5")
    a("s_add_u32 s5, s5, s6")
    a(f"s_cmp_lt_u32 s5, {NFFN}")
    a(f"s_cselect_b32 s4, {DS}, 0")
    a(f"s_sub_u32 s78, {NJ}, s4")
    a(f"s_add_u32 s79, s4, {NJ}")
    a("s_cmp_eq_u32 s8, 0")
    a("s_cselect_b32 s79, s78, s79")
    a("s_cselect_b32 s78, 0, s78")
    a("v_lshlrev_b32 v1, 4, v0")
    a("s_mov_b32 s47, 0x20000")
    a("s_mov_b32 s51, 0x20000")
    a("s_waitcnt lgkmcnt(0)")
    a("s_barrier")
    stamp(2, 2)
    a("s_cmp_lg_u32 s3, 0")
    a("s_cbranch_scc1 LA_cons")
    a("s_setprio 3")
    a("s_lshl_b32 s10, s5, 20")
    a("s_lshl_b32 s4, s78, 12")
    a("s_add_u32 s10, s10, s4")
    a("s_mov_b32 s44, s18")
    a("s_mov_b32 s45, s19")
    a("s_mov_b32 s46, 0x08000000")
    a("s_mov_b32 s48, s20")
    a("s_mov_b32 s49, s21")
    a("s_mov_b32 s50, 0x08000000")
    a("s_mov_b32 s12, 0")
    a("s_mov_b32 s13, 0")
    a("s_mov_b32 s9, 0")
    a(f"v_mov_b32 v4, {C_LANDED}")
    a(f"s_movk_i32 s15, {NS}")
    a.label("LL_loop")
    a("s_mov_b32 m0, s12")
    a("s_add_u32 s14, s12, 4096")
    for i in range(4):
        a(f"buffer_load_dwordx4 v1, s[44:47], s10 offen offset:{1024*i} nt lds")
    a("s_mov_b32 m0, s14")
    a("s_add_u32 s12, s12, 8192")
    for i in range(4):
        a(f"buffer_load_dwordx4 v1, s[48:51], s10 offen offset:{1024*i} nt lds")
    a(f"s_cmp_eq_u32 s12, {RING}")
    a("s_cselect_b32 s12, 0, s12")
    a("s_add_u32 s10, s10, 4096")
    a("s_add_u32 s13, s13, 1")
    if args.ts == 3:
        for k, x in ((1, 16), (2, 32), (3, 64), (4, 96)):
            a(f"s_cmp_lg_u32 s13, {x}")
            a(f"s_cbranch_scc1 LL_ns{k}")
            a(f"s_memrealtime s[{84+2*k}:{85+2*k}]")
            a.label(f"LL_ns{k}")
    a(f"s_sub_u32 s14, s13, {NS}")
    a("s_and_b32 s5, s14, 7")
    a("s_lshl_b32 s5, s5, 2")
    a(f"s_add_u32 s5, s5, {C_DONE}")
    a("v_mov_b32 v5, s5")
    a(f"s_sub_u32 s4, s13, {INF//8 - 1}")
    a("s_max_i32 s9, s9, s4")
    a("v_mov_b32 v6, s9")
    a("ds_read_b32 v7, v5")
    a(f"s_waitcnt vmcnt({INF-8})")
    a("ds_write_b32 v4, v6")
    a("s_cmp_ge_u32 s13, s79")
    a("s_cbranch_scc1 LL_fin")
    a("s_cmp_lt_u32 s13, s15")
    a("s_cbranch_scc1 LL_loop")
    a("s_lshr_b32 s14, s14, 3")
    a("s_waitcnt lgkmcnt(0)")
    a("v_readfirstlane_b32 s4, v7")
    a("s_cmp_gt_u32 s4, s14")
    a("s_cbranch_scc1 LL_loop")
    a("s_mov_b32 s9, s13")
    a("v_mov_b32 v6, s13")
    a("s_waitcnt vmcnt(0)")
    a("ds_write_b32 v4, v6")
    a.label("LL_spin")
    a("s_sleep 1")
    a("ds_read_b32 v7, v5")
    a("s_waitcnt lgkmcnt(0)")
    a("v_readfirstlane_b32 s4, v7")
    a("s_cmp_gt_u32 s4, s14")
    a("s_cbranch_scc1 LL_loop")
    a("s_branch LL_spin")
    a.label("LL_fin")
    for k in range(INF // 8 - 2, -1, -1):
        a(f"s_sub_u32 s4, s79, {k}")
        a("v_mov_b32 v6, s4")
        a(f"s_waitcnt vmcnt({8*k})")
        a("ds_write_b32 v4, v6")
    stamp(5)
    a("s_branch LA_end2")

    a.label("LA_cons")
    a("s_mov_b32 s42, 0xffff0000")
    a(f"s_mov_b32 s69, {LOG2E:#x}")
    a("s_mov_b32 s55, 0x20000")
    a("s_mov_b32 s59, 0x20000")
    a("s_mov_b32 s63, 0x20000")
    a("s_cmp_eq_u32 s3, 9")
    a("s_cbranch_scc1 LA_ffn")
    a("s_sub_u32 s9, s3, 1")
    a("v_lshrrev_b32 v20, 4, v0")
    a("v_and_b32 v21, 15, v0")
    a("v_lshlrev_b32 v2, 14, v20")
    a("v_lshl_add_u32 v2, v21, 4, v2")
    a("v_lshlrev_b32 v3, 2, v20")
    a("v_lshl_add_u32 v3, v21, 4, v3")
    a("s_lshl_b32 s4, s7, 10")
    a("s_lshl_b32 s5, s9, 7")
    a("s_add_u32 s4, s4, s5")
    a("s_lshl_b32 s11, s9, 19")
    a("s_lshl_b32 s12, s6, 8")
    a("s_add_u32 s11, s11, s12")
    a("s_mov_b32 s48, s22")
    a("s_mov_b32 s49, s23")
    a("s_mov_b32 s50, 0x00400000")
    a("s_mov_b32 s56, s16")
    a("s_mov_b32 s57, s17")
    a("s_mov_b32 s58, 4096")
    a(f"buffer_load_dword v{P}, v3, s[56:59], s4 offen")
    if args.coop:
        a("v_lshrrev_b32 v22, 3, v0")
        a("v_lshlrev_b32 v22, 13, v22")
        a("v_and_b32 v23, 7, v0")
        a("v_lshl_add_u32 v22, v23, 5, v22")
        a("s_lshr_b32 s4, s2, 5")
        a("s_lshl_b32 s4, s4, 19")
        a("s_lshl_b32 s5, s9, 16")
        a("s_add_u32 s4, s4, s5")
        a("s_add_u32 s4, s4, s12")
        a(f"buffer_load_dword v38, v22, s[48:51], s4 offen{cnt}")
        a("s_waitcnt vmcnt(0)")
        if args.coop > 1:
            a(f"s_sleep {args.coop}")
    for k in range(8):
        a(f"buffer_load_dwordx4 {Wr(2*k)}, v2, s[48:51], s11 offen{wnt}")
        a("s_add_u32 s12, s11, 8192")
        a(f"buffer_load_dwordx4 {Wr(2*k+1)}, v2, s[48:51], s12 offen{wnt}")
        if k < 7:
            a("s_add_u32 s11, s11, 65536")
    a(f"s_mov_b32 s68, {SCALE:#x}")
    a("s_mov_b32 s70, 0x05040100")
    a("s_mov_b32 s71, 0x07060302")
    a("s_mov_b32 s52, s24")
    a("s_mov_b32 s53, s25")
    a("s_mov_b32 s54, 0x00400000")
    a("s_mov_b32 s60, s40")
    a("s_mov_b32 s61, s41")
    a(f"s_mov_b32 s62, {WS_STATS + 2048}")
    a("v_and_b32 v22, 1, v20")
    a("v_lshlrev_b32 v22, 1, v22")
    a("v_lshrrev_b32 v23, 1, v20")
    a("v_or_b32 v22, v22, v23")
    a("v_lshl_add_u32 v22, v21, 3, v22")
    a("v_lshlrev_b32 v22, 2, v22")
    a("s_lshl_b32 s4, s9, 9")
    a(f"s_add_u32 s4, s4, {L_QP}")
    a(f"v_add_u32 v{VRED}, s4, v22")
    a(f"v_mov_b32 v{VZ}, {RING}")
    a(f"v_mov_b32 v{VCNT}, 1")
    a("s_lshl_b32 s4, s9, 13")
    a(f"v_add_u32 v{VBASE}, s4, v1")
    a("s_lshl_b32 s4, s9, 2")
    a(f"s_add_u32 s4, s4, {C_DONE}")
    a(f"v_mov_b32 v{VDONE}, s4")
    for j in range(8):
        a(f"v_mov_b32 v{ACC+j}, 0")
    for k in range(8):
        tb = T0 + 8 * (k & 1)
        a(f"s_waitcnt vmcnt({14 - 2*k})")
        if k == 0:
            stamp(3, 2)
        for d in range(4):
            A_, B_ = W0 + 8 * k + d, W0 + 8 * k + 4 + d
            a(f"v_perm_b32 v{tb+2*d}, v{B_}, v{A_}, s70")
            a(f"v_perm_b32 v{tb+2*d+1}, v{B_}, v{A_}, s71")
        for e in range(8):
            a(f"v_dot2c_f32_bf16_dpp v{ACC+e}, v{P}, v{tb+e} row_newbcast:{k} row_mask:0xf bank_mask:0xf")

    def cross_row_reduce8(base):
        for k in range(4):
            a(f"v_permlane32_swap_b32 v{base+2*k}, v{base+2*k+1}")
        for k in range(4):
            a(f"v_add_f32 v{base+2*k}, v{base+2*k}, v{base+2*k+1}")
        a(f"v_permlane16_swap_b32 v{base}, v{base+2}")
        a(f"v_permlane16_swap_b32 v{base+4}, v{base+6}")
        a(f"v_add_f32 v{base}, v{base}, v{base+2}")
        a(f"v_add_f32 v{base+4}, v{base+4}, v{base+6}")

    cross_row_reduce8(ACC)
    a(f"ds_write_b32 v{VRED}, v{ACC}")
    a(f"ds_write_b32 v{VRED}, v{ACC+4} offset:16")
    a("v_lshlrev_b32 v20, 3, v0")
    a(f"v_add_u32 v20, {L_QP}, v20")
    stamp(4, 2)
    lds_barrier(0, "q")
    for w in range(8):
        a(f"ds_read_b64 v[{T0+2*w}:{T0+2*w+1}], v20 offset:{512*w}")
    a("s_lshl_b32 s4, s9, 8")
    a(f"s_add_u32 s4, s4, {L_QQ}")
    a("v_lshlrev_b32 v21, 2, v0")
    a("v_add_u32 v21, s4, v21")
    a("v_and_b32 v22, 15, v0")
    a("v_lshlrev_b32 v22, 4, v22")
    a("v_add_u32 v22, s4, v22")
    a("s_waitcnt lgkmcnt(0)")
    for st in (1, 2, 4):
        for w in range(0, 8, 2 * st):
            a(f"v_add_f32 v{T0+2*w}, v{T0+2*w}, v{T0+2*(w+st)}")
            a(f"v_add_f32 v{T0+2*w+1}, v{T0+2*w+1}, v{T0+2*(w+st)+1}")
    a(f"v_cvt_pk_bf16_f32 v23, v{T0}, v{T0+1}")
    a("ds_write_b32 v21, v23")
    a("s_waitcnt lgkmcnt(0)")
    a(f"ds_read_b128 v[{Q}:{Q+3}], v22")
    for j in range(8):
        a(f"v_mov_b32 v{ACC+j}, 0")
    a(f"v_mov_b32 v{M}, 0xff800000")
    a(f"v_mov_b32 v{L}, 0")
    if args.coop:
        a("s_lshl_b32 s4, s6, 17")
        a("s_lshr_b32 s5, s2, 5")
        a("s_lshl_b32 s5, s5, 14")
        a("s_add_u32 s4, s4, s5")
        a("s_lshl_b32 s5, s9, 11")
        a("s_add_u32 s4, s4, s5")
        a("v_lshlrev_b32 v22, 5, v0")
        a(f"buffer_load_dword v141, v22, s[52:55], s4 offen{cnt}")
    a("s_lshl_b32 s43, s6, 17")
    a("s_lshl_b32 s5, s9, 14")
    a("s_add_u32 s43, s43, s5")
    a("s_mov_b32 s13, s9")
    a("s_mov_b32 s15, 0")
    a(f"v_mov_b32 v{VCNT+1}, 0")
    stamp(1)
    a.label("LC_poll")
    a(f"ds_read_b32 v20, v{VZ}")
    a("s_waitcnt lgkmcnt(0)")
    a("v_readfirstlane_b32 s14, v20")
    a("s_cmp_gt_u32 s14, s13")
    a("s_cbranch_scc1 LC_go")
    a("s_sleep 1")
    a("s_branch LC_poll")
    a.label("LC_go")
    for i in range(4):
        a(f"ds_read_b128 v[{KB+4*i}:{KB+4*i+3}], v{VBASE} offset:{1024*i}")
    for i in range(4):
        a(f"ds_read_b128 v[{VB+4*i}:{VB+4*i+3}], v{VBASE} offset:{4096+1024*i}")
    a("s_add_u32 s15, s15, 1")
    a("s_add_u32 s13, s13, 8")
    a(f"v_add_u32 v{VCNT+1}, 1, v{VCNT+1}")
    if NS == 16:
        a(f"v_xor_b32 v{VBASE}, 0x10000, v{VBASE}")
    else:
        a(f"v_add_u32 v{VBASE}, 0x10000, v{VBASE}")
        a(f"v_subrev_u32 v21, {RING}, v{VBASE}")
        a(f"v_min_u32 v{VBASE}, v21, v{VBASE}")
    a("s_waitcnt lgkmcnt(4)")
    for d in range(4):
        for i in range(4):
            t = f"v{T0+i}"
            c = "0" if d == 0 else t
            a(f"v_dot2_f32_bf16 {t}, v{KB+4*i+d}, v{Q+d}, {c}")
    a("s_waitcnt lgkmcnt(0)")
    a(f"ds_write_b32 v{VDONE}, v{VCNT+1}")
    for i in range(2):
        a(f"v_add_f32_dpp v{T0+i}, v{T0+i}, v{T0+i} row_ror:8 row_mask:0xf bank_mask:0x3")
        a(f"v_add_f32_dpp v{T0+i}, v{T0+i+2}, v{T0+i+2} row_ror:8 row_mask:0xf bank_mask:0xc")
    PV1, PV2 = T0 + 8, KB
    for d in range(2):
        a(f"v_perm_b32 v{PV1+2*d}, v{VB+4+d}, v{VB+d}, s70")
        a(f"v_perm_b32 v{PV1+2*d+1}, v{VB+4+d}, v{VB+d}, s71")
    a(f"v_add_f32_dpp v{T0}, v{T0}, v{T0} row_half_mirror row_mask:0xf bank_mask:0x5")
    a(f"v_add_f32_dpp v{T0}, v{T0+1}, v{T0+1} row_half_mirror row_mask:0xf bank_mask:0xa")
    for d in range(2, 4):
        a(f"v_perm_b32 v{PV1+2*d}, v{VB+4+d}, v{VB+d}, s70")
        a(f"v_perm_b32 v{PV1+2*d+1}, v{VB+4+d}, v{VB+d}, s71")
    S = f"v{T0}"
    a(f"v_add_f32_dpp {S}, {S}, {S} quad_perm:[1,0,3,2] row_mask:0xf bank_mask:0xf")
    a(f"v_perm_b32 v{PV2}, v{VB+12}, v{VB+8}, s70")
    a(f"v_perm_b32 v{PV2+1}, v{VB+12}, v{VB+8}, s71")
    a(f"v_add_f32_dpp {S}, {S}, {S} quad_perm:[2,3,0,1] row_mask:0xf bank_mask:0xf")
    round_bf16(a, S)
    a(f"v_mul_f32 {S}, s68, {S}")
    round_bf16(a, S)
    MX = f"v{T0+1}"
    a(f"v_perm_b32 v{PV2+2}, v{VB+13}, v{VB+9}, s70")
    a(f"v_perm_b32 v{PV2+3}, v{VB+13}, v{VB+9}, s71")
    a(f"v_max_f32_dpp {MX}, {S}, {S} row_ror:8 row_mask:0xf bank_mask:0xf")
    a(f"v_perm_b32 v{PV2+4}, v{VB+14}, v{VB+10}, s70")
    a(f"v_perm_b32 v{PV2+5}, v{VB+14}, v{VB+10}, s71")
    a(f"v_max_f32_dpp {MX}, {MX}, {MX} row_ror:4 row_mask:0xf bank_mask:0xf")
    a(f"v_perm_b32 v{PV2+6}, v{VB+15}, v{VB+11}, s70")
    a(f"v_perm_b32 v{PV2+7}, v{VB+15}, v{VB+11}, s71")
    a(f"v_max_f32 {MX}, {MX}, v{M}")
    AL = f"v{T0+2}"
    a(f"v_sub_f32 {AL}, v{M}, {MX}")
    a(f"v_sub_f32 v{P}, {S}, {MX}")
    a(f"v_mul_f32 {AL}, s69, {AL}")
    a(f"v_mul_f32 v{P}, s69, v{P}")
    a(f"v_exp_f32 {AL}, {AL}")
    a(f"v_exp_f32 v{P}, v{P}")
    a(f"v_mov_b32 v{M}, {MX}")
    a(f"v_fma_f32 v{L}, v{L}, {AL}, v{P}")
    a(f"v_mul_f32 v{ACC}, {AL}, v{ACC}")
    a(f"v_mov_b32_dpp v{T0+3}, v{P} row_shl:4 row_mask:0xf bank_mask:0xf")
    for j in range(1, 8):
        a(f"v_mul_f32 v{ACC+j}, {AL}, v{ACC+j}")
        if j == 1:
            a(f"v_cvt_pk_bf16_f32 v{P}, v{P}, v{T0+3}")
    for e in range(8):
        a(f"v_dot2c_f32_bf16_dpp v{ACC+e}, v{P}, v{PV1+e} row_newbcast:0 row_mask:0xf bank_mask:0xf")
    for e in range(8):
        a(f"v_dot2c_f32_bf16_dpp v{ACC+e}, v{P}, v{PV2+e} row_newbcast:8 row_mask:0xf bank_mask:0xf")
    NPJ = args.wo_npj
    NB = 16 // NPJ
    a(f"s_cmp_le_u32 s15, {args.wo_at + NB - 1}")
    a("s_cbranch_scc1 LC_wo")
    a(f"s_cmp_eq_u32 s15, {args.prep_at}")
    a("s_cbranch_scc1 LC_prep")
    a("s_cmp_lt_u32 s13, s79")
    a("s_cbranch_scc1 LC_poll")
    a("s_branch LA_tail")
    a.label("LC_wo")
    for k in range(NB):
        a(f"s_cmp_lg_u32 s15, {args.wo_at + k}")
        a(f"s_cbranch_scc1 {'LC_wo%d' % (k+1) if k < NB-1 else 'LC_poll'}")
        for i in range(NPJ * k, NPJ * (k + 1)):
            if i % 4 == 0 or i == NPJ * k:
                a(f"s_add_u32 s4, s43, {(i >> 2) * 4096}")
            a(f"buffer_load_dwordx4 {Wr(i)}, v1, s[52:55], s4 offen offset:{(i & 3) * 1024}{wnt}")
        a("s_branch LC_poll")
        if k < NB - 1:
            a.label(f"LC_wo{k+1}")

    a.label("LC_prep")
    a("s_waitcnt vmcnt(0)")
    LOr = {}
    prev = 141
    for j in range(8):
        for t in range(4):
            A_, B_ = W0 + 8 * j + t, W0 + 8 * j + 4 + t
            a(f"v_perm_b32 v{prev}, v{B_}, v{A_}, s70")
            a(f"v_perm_b32 v{B_}, v{B_}, v{A_}, s71")
            LOr[(j, t)] = prev
            prev = A_
    if args.warm:
        a("s_mov_b64 exec, 0")
        a("s_branch LW_0")
        a.label("LC_warmret")
        a("s_mov_b64 exec, -1")
    a("s_branch LC_poll")

    a.label("LA_tail")
    if args.warm:
        a.hop_begin("LW", args.warm)
    a.nop(3)
    stamp(3)
    for r in (8, 4):
        a(f"v_add_f32_dpp v{L}, v{L}, v{L} row_ror:{r} row_mask:0xf bank_mask:0xf")
    for g in range(4):
        a(f"v_readlane_b32 s{80+g}, v{M}, {16*g}")
    a("v_mov_b32 v20, s80")
    a("v_max_f32 v20, s81, v20")
    a("v_max_f32 v20, s82, v20")
    a("v_max_f32 v20, s83, v20")
    a(f"v_sub_f32 v22, v{M}, v20")
    a("v_mul_f32 v22, s69, v22")
    a("v_exp_f32 v22, v22")
    a(f"v_mul_f32 v{L}, v22, v{L}")
    for j in range(8):
        a(f"v_mul_f32 v{ACC+j}, v22, v{ACC+j}")
    for g in range(4):
        a(f"v_readlane_b32 s{80+g}, v{L}, {16*g}")
    cross_row_reduce8(ACC)
    a("v_mov_b32 v21, s80")
    a("v_add_f32 v21, s81, v21")
    a("v_add_f32 v21, s82, v21")
    a("v_add_f32 v21, s83, v21")
    a(f"ds_write_b32 v{VRED}, v{ACC} offset:{L_OP - L_QP}")
    a(f"ds_write_b32 v{VRED}, v{ACC+4} offset:{L_OP - L_QP + 16}")
    a("s_lshl_b32 s4, s9, 3")
    a(f"s_add_u32 s4, s4, {L_ST}")
    a("v_mov_b32 v22, s4")
    a("ds_write_b64 v22, v[20:21]")
    a("v_lshlrev_b32 v20, 3, v0")
    a(f"v_add_u32 v20, {L_OP}, v20")
    a(f"v_mov_b32 v21, {L_ST}")
    lds_barrier(1, "t1")
    stamp(4)
    SB = 104
    for k in range(4):
        a(f"ds_read_b128 v[{SB+4*k}:{SB+4*k+3}], v21 offset:{16*k}")
    for w in range(8):
        a(f"ds_read_b64 v[{T0+2*w}:{T0+2*w+1}], v20 offset:{512*w}")
    a("s_lshl_b32 s4, s9, 3")
    a("s_waitcnt lgkmcnt(8)")
    a(f"v_max3_f32 v20, v{SB}, v{SB+2}, v{SB+4}")
    a(f"v_max3_f32 v20, v20, v{SB+6}, v{SB+8}")
    a(f"v_max3_f32 v20, v20, v{SB+10}, v{SB+12}")
    a(f"v_max_f32 v20, v20, v{SB+14}")
    for w in range(8):
        a(f"v_sub_f32 v{SB+2*w}, v{SB+2*w}, v20")
    for w in range(8):
        a(f"v_mul_f32 v{SB+2*w}, s69, v{SB+2*w}")
    for w in range(8):
        a(f"v_exp_f32 v{SB+2*w}, v{SB+2*w}")
    a(f"v_mul_f32 v21, v{SB}, v{SB+1}")
    for w in range(1, 8):
        a(f"v_fmac_f32 v21, v{SB+2*w}, v{SB+2*w+1}")
    a("v_rcp_f32 v22, v21")
    a("s_waitcnt lgkmcnt(0)")
    a(f"v_mul_f32 v2, v{SB}, v{T0}")
    a(f"v_mul_f32 v3, v{SB}, v{T0+1}")
    for w in range(1, 8):
        a(f"v_fmac_f32 v2, v{SB+2*w}, v{T0+2*w}")
        a(f"v_fmac_f32 v3, v{SB+2*w}, v{T0+2*w+1}")
    a("v_mul_f32 v2, v22, v2")
    a("v_mul_f32 v3, v22, v3")
    a("v_cvt_pk_bf16_f32 v2, v2, v3")
    for j in range(8):
        a(f"v_readlane_b32 s{72+j}, v2, s4")
        if j < 7:
            a("s_add_u32 s4, s4, 1")
    for j in range(8):
        for t in range(4):
            c = "0" if j == 0 else f"v{ACC+2*t}"
            a(f"v_dot2_f32_bf16 v{ACC+2*t}, v{LOr[(j, t)]}, s{72+j}, {c}")
            c = "0" if j == 0 else f"v{ACC+2*t+1}"
            a(f"v_dot2_f32_bf16 v{ACC+2*t+1}, v{W0+8*j+4+t}, s{72+j}, {c}")
    a("s_lshl_b32 s4, s9, 11")
    a("v_lshlrev_b32 v2, 5, v0")
    a("v_add_u32 v2, s4, v2")
    a(f"ds_write_b128 v2, v[{ACC}:{ACC+3}] offset:{L_Y}")
    a(f"ds_write_b128 v2, v[{ACC+4}:{ACC+7}] offset:{L_Y+16}")
    a("s_lshl_b32 s4, s9, 8")
    a("v_lshlrev_b32 v3, 2, v0")
    a("v_add_u32 v3, s4, v3")
    a("s_lshl_b32 s5, s7, 6")
    a("s_lshl_b32 s12, s6, 1")
    a("s_add_u32 s5, s5, s12")
    a("s_add_u32 s5, s5, s8")
    a("s_lshl_b32 s5, s5, 11")
    lds_barrier(2, "t2")
    for w in range(8):
        a(f"ds_read_b32 v{T0+w}, v3 offset:{L_Y + 2048*w}")
    a("s_waitcnt lgkmcnt(0)")
    for st in (1, 2, 4):
        for w in range(0, 8, 2 * st):
            a(f"v_add_f32 v{T0+w}, v{T0+w}, v{T0+w+st}")
    if args.warm:
        a.hop_end("LC_warmret")
    a(f"buffer_store_dword v{T0}, v3, s[60:63], s5 offen")
    stamp(5)
    a("s_cmp_lg_u32 s9, 0")
    a("s_cbranch_scc1 LA_end2")
    a("s_lshl_b32 s5, s7, 5")
    a("s_add_u32 s5, s5, s6")
    a("s_lshl_b32 s5, s5, 4")
    a("s_lshl_b32 s12, s8, 3")
    a("s_add_u32 s5, s5, s12")
    a(f"s_add_u32 s5, s5, {WS_STATS}")
    a("v_mov_b32 v2, 0")
    a("s_mov_b64 exec, 1")
    a("buffer_store_dwordx2 v[20:21], v2, s[60:63], s5 offen")
    a.label("LA_end2")
    stamp_store()
    a("s_endpgm")

    a.label("LA_ffn")
    a("s_mov_b32 s6, s5")
    a(f"s_cmp_ge_u32 s6, {NFFN}")
    a("s_cbranch_scc1 LA_end")
    a("s_cmp_lg_u32 s8, 0")
    a("s_cbranch_scc1 LA_end")
    if args.ffn_wait:
        a(f"v_mov_b32 v4, {C_DONE}")
        a.label("LF_wait")
        a("s_sleep 8")
        a("ds_read_b32 v5, v4")
        a("s_waitcnt lgkmcnt(0)")
        a("v_readfirstlane_b32 s4, v5")
        a(f"s_cmp_lt_u32 s4, {args.ffn_wait}")
        a("s_cbranch_scc1 LF_wait")
    FB = 104
    FA = 40
    FX = 72
    FU = 80
    FG = 88
    FH = 96
    def Fr(i): return f"v[{FB+4*i}:{FB+4*i+3}]"
    a("v_lshrrev_b32 v20, 1, v0")
    a("v_and_b32 v21, 1, v0")
    a("s_movk_i32 s4, 2752")
    a("v_mul_lo_u32 v2, v20, s4")
    a("v_lshl_add_u32 v2, v21, 4, v2")
    a("v_lshlrev_b32 v3, 4, v20")
    a(f"v_add_u32 v3, {L_XT}, v3")
    a("s_mov_b32 s46, 1409024")
    a("s_mov_b32 s50, 1409024")
    a("s_mov_b32 s58, 4096")
    a(f"s_mov_b32 s62, {NFFN*8192}")
    a("s_lshl_b32 s10, s6, 5")
    a("s_mov_b32 s44, s28")
    a("s_mov_b32 s45, s29")
    a("s_mov_b32 s48, s30")
    a("s_mov_b32 s49, s31")
    a("s_mov_b32 s56, s16")
    a("s_mov_b32 s57, s17")
    a(f"s_add_u32 s60, s40, {WS_F}")
    a("s_addc_u32 s61, s41, 0")
    for b in range(4):
        a(f"buffer_load_dwordx4 v[{4+4*b}:{7+4*b}], v1, s[56:59], 0 offen offset:{1024*b}")
    FD = args.fd
    a("s_mov_b32 s11, s10")
    for i in range(FD):
        a(f"buffer_load_dwordx4 {Fr(i)}, v2, s[44:47], s11 offen{wnt}")
        a(f"s_add_u32 s11, s11, {32*2752}")
    a(f"s_waitcnt vmcnt({FD})")
    for e in range(8):
        for b in range(4):
            src = f"v{4+4*b+(e>>1)}"
            if e & 1:
                a(f"v_and_b32 v{FA+4*e+b}, s42, {src}")
            else:
                a(f"v_lshlrev_b32 v{FA+4*e+b}, 16, {src}")
    a("v_lshlrev_b32 v20, 7, v0")
    a(f"v_add_u32 v20, {L_XT}, v20")
    for e in range(8):
        a(f"ds_write_b128 v20, v[{FA+4*e}:{FA+4*e+3}] offset:{16*e}")
    a("s_waitcnt lgkmcnt(0)")
    a("s_mov_b32 s9, 0")
    a("v_mov_b32 v22, v2")
    a(f"s_mov_b32 s12, {32*2752}")
    a.label("LF_pass")
    for k in range(32):
        a(f"v_mov_b32 v{FA+k}, 0")
    a(f"ds_read_b128 v[{FX}:{FX+3}], v3")
    for i in range(16):
        xb = FX + 4 * (i & 1)
        if i < 15:
            nb = FX + 4 * ((i + 1) & 1)
            a(f"ds_read_b128 v[{nb}:{nb+3}], v3 offset:{512*(i+1)}")
        a(f"s_waitcnt vmcnt({FD-1})")
        for d in range(4):
            a(f"v_lshlrev_b32 v{FU+2*d}, 16, v{FB+4*i+d}")
            a(f"v_and_b32 v{FU+2*d+1}, s42, v{FB+4*i+d}")
        if i + FD < 16:
            a(f"buffer_load_dwordx4 {Fr(i+FD)}, v2, s[44:47], s11 offen{wnt}")
            a(f"s_add_u32 s11, s11, {32*2752}")
        else:
            if i + FD == 16:
                a("s_mov_b32 s11, s10")
            a(f"buffer_load_dwordx4 {Fr(i+FD-16)}, v22, s[48:51], s11 offen{wnt}")
            a("s_add_u32 s11, s11, s12")
        a(f"s_waitcnt lgkmcnt({1 if i < 15 else 0})")
        for b in range(4):
            for e in range(8):
                a(f"v_fmac_f32 v{FA+8*b+e}, v{xb+b}, v{FU+e}")
    for k in range(16):
        a(f"v_permlane32_swap_b32 v{FA+k}, v{FA+16+k}")
    for k in range(16):
        a(f"v_add_f32 v{FA+k}, v{FA+k}, v{FA+16+k}")
    for k in range(8):
        a(f"v_permlane16_swap_b32 v{FA+k}, v{FA+8+k}")
    for k in range(8):
        a(f"v_add_f32 v{FA+k}, v{FA+k}, v{FA+8+k}")
    for r in (2, 4, 8):
        for k in range(8):
            a(f"v_add_f32_dpp v{FA+k}, v{FA+k}, v{FA+k} row_ror:{r} row_mask:0xf bank_mask:0xf")
    for k in range(8):
        a(f"v_mov_b32 v{FG+k}, v{FH+k}")
        a(f"v_mov_b32 v{FH+k}, v{FA+k}")
    a("s_cmp_eq_u32 s9, 1")
    a("s_cbranch_scc1 LF_p2")
    a("s_mov_b32 s9, 1")
    a("s_mov_b32 s44, s48")
    a("s_mov_b32 s45, s49")
    a("s_mov_b32 s48, s32")
    a("s_mov_b32 s49, s33")
    a("v_mov_b32 v22, v1")
    a("s_movk_i32 s12, 1024")
    a("s_lshl_b32 s10, s6, 14")
    a("s_branch LF_pass")
    a.label("LF_p2")
    a.nop(2)
    for k in range(8):
        g, u = f"v{FG+k}", f"v{FH+k}"
        round_bf16(a, g)
        round_bf16(a, u)
        a(f"v_mul_f32 {g}, s69, {g}")
        a(f"v_exp_f32 {g}, -{g}")
        a(f"v_add_f32 {g}, 1.0, {g}")
        a(f"v_rcp_f32 {g}, {g}")
        round_bf16(a, g)
        a(f"v_mul_f32 {u}, {g}, {u}")
        round_bf16(a, u)
    for k in range(32):
        a(f"v_mov_b32 v{FA+k}, 0")
    for f in range(16):
        for b in range(4):
            a(f"v_readlane_b32 s{80+b}, v{FH+(f&7)}, {16*b + (f >> 3)}")
        a(f"s_waitcnt vmcnt({min(FD-1, 15-f)})")
        for d in range(4):
            a(f"v_lshlrev_b32 v{FU+2*d}, 16, v{FB+4*f+d}")
            a(f"v_and_b32 v{FU+2*d+1}, s42, v{FB+4*f+d}")
        if f + FD < 16:
            a(f"buffer_load_dwordx4 {Fr(f+FD)}, v22, s[48:51], s11 offen{wnt}")
            a("s_add_u32 s11, s11, s12")
        for b in range(4):
            for e in range(8):
                a(f"v_fmac_f32 v{FA+8*b+e}, s{80+b}, v{FU+e}")
    a("v_lshlrev_b32 v2, 5, v0")
    a("s_lshl_b32 s10, s6, 13")
    for b in range(4):
        a(f"buffer_store_dwordx4 v[{FA+8*b}:{FA+8*b+3}], v2, s[60:63], s10 offen offset:{2048*(b&1)}")
        a(f"buffer_store_dwordx4 v[{FA+8*b+4}:{FA+8*b+7}], v2, s[60:63], s10 offen offset:{2048*(b&1)+16}")
        if b == 1:
            a("s_add_u32 s10, s10, 4096")
    stamp(5)
    a("s_branch LA_end2")
    a.label("LA_end")
    a("s_endpgm")

    fin_kernel(a)

    for name, vg in (("attn_kernel", 168), ("fin_kernel", 48)):
        a.raw(f""".section .rodata,"a"
.p2align 6
.amdhsa_kernel {name}
  .amdhsa_next_free_vgpr {vg}
  .amdhsa_next_free_sgpr 100
  .amdhsa_accum_offset {vg}
  .amdhsa_group_segment_fixed_size 0
  .amdhsa_kernarg_size 104
  .amdhsa_user_sgpr_count 2
  .amdhsa_user_sgpr_kernarg_segment_ptr 1
  .amdhsa_system_sgpr_workgroup_id_x 1
.end_amdhsa_kernel""")
    return a.text()


def fin_kernel(a):
    a.raw(".globl fin_kernel\n.p2align 8\n.type fin_kernel,@function")
    a.label("fin_kernel")
    a("s_cmp_ge_u32 s2, 64")
    a("s_cbranch_scc1 LB_end")
    a("s_load_dwordx2 s[16:17], s[0:1], 0")
    a("s_load_dwordx4 s[32:35], s[0:1], 72")
    a("s_load_dwordx2 s[40:41], s[0:1], 96")
    a("s_lshr_b32 s7, s2, 4")
    a("s_and_b32 s8, s2, 15")
    a("s_mov_b32 s42, 0xffff0000")
    a(f"s_mov_b32 s69, {LOG2E:#x}")
    for r in (47, 51, 55, 59, 63):
        a(f"s_mov_b32 s{r}, 0x20000")
    a(f"s_mov_b32 s46, {WS_STATS + 2048}")
    a(f"s_mov_b32 s50, {NFFN*8192}")
    a("s_mov_b32 s54, 4096")
    a("s_mov_b32 s58, 1024")
    a("s_mov_b32 s62, 4096")
    a("v_lshrrev_b32 v1, 3, v0")
    a("v_and_b32 v2, 7, v0")
    a("v_lshlrev_b32 v3, 11, v1")
    a("v_lshl_add_u32 v3, v2, 4, v3")
    a("v_lshrrev_b32 v4, 1, v1")
    a("v_lshlrev_b32 v4, 4, v4")
    a("v_lshlrev_b32 v5, 13, v1")
    a("v_lshl_add_u32 v5, v2, 4, v5")
    a("v_lshlrev_b32 v6, 2, v0")
    a("s_lshl_b32 s4, s7, 17")
    a("s_lshl_b32 s5, s8, 7")
    a("s_add_u32 s4, s4, s5")
    a("s_add_u32 s10, s4, 65536")
    a("s_lshl_b32 s11, s7, 9")
    a(f"s_add_u32 s11, s11, {WS_STATS}")
    a("s_lshl_b32 s12, s7, 11")
    a("s_add_u32 s12, s12, s5")
    a("s_add_u32 s13, s12, 0x40000")
    a("s_add_u32 s14, s12, 0x80000")
    a("s_lshl_b32 s15, s7, 10")
    a("s_waitcnt lgkmcnt(0)")
    a("s_mov_b32 s44, s40")
    a("s_mov_b32 s45, s41")
    a(f"s_add_u32 s48, s40, {WS_F}")
    a("s_addc_u32 s49, s41, 0")
    a("s_mov_b32 s52, s16")
    a("s_mov_b32 s53, s17")
    a("s_mov_b32 s56, s32")
    a("s_mov_b32 s57, s33")
    a("s_mov_b32 s60, s34")
    a("s_mov_b32 s61, s35")
    a("buffer_load_dwordx4 v[8:11], v4, s[44:47], s11 offen")
    a("buffer_load_dwordx4 v[12:15], v4, s[44:47], s11 offen offset:256")
    a("buffer_load_dword v36, v6, s[52:55], s15 offen")
    a("buffer_load_dword v37, v6, s[56:59], 0 offen")
    a("buffer_load_dwordx4 v[16:19], v3, s[44:47], s4 offen")
    a("buffer_load_dwordx4 v[20:23], v3, s[44:47], s10 offen")
    a("buffer_load_dwordx4 v[24:27], v5, s[48:51], s12 offen")
    a("buffer_load_dwordx4 v[28:31], v5, s[48:51], s13 offen")
    a("buffer_load_dwordx4 v[32:35], v5, s[48:51], s14 offen")
    a("v_and_b32 v7, 1, v1")
    a("v_cmp_eq_u32 vcc, 1, v7")
    a("s_waitcnt vmcnt(7)")
    for k, sb in enumerate((8, 12)):
        w = f"v{38+k}"
        a(f"v_max_f32 v40, v{sb}, v{sb+2}")
        a(f"v_sub_f32 v{sb}, v{sb}, v40")
        a(f"v_sub_f32 v{sb+2}, v{sb+2}, v40")
        a(f"v_mul_f32 v{sb}, s69, v{sb}")
        a(f"v_mul_f32 v{sb+2}, s69, v{sb+2}")
        a(f"v_exp_f32 v{sb}, v{sb}")
        a(f"v_exp_f32 v{sb+2}, v{sb+2}")
        a(f"v_mul_f32 v{sb}, v{sb}, v{sb+1}")
        a(f"v_mul_f32 v{sb+2}, v{sb+2}, v{sb+3}")
        a(f"v_add_f32 v40, v{sb}, v{sb+2}")
        a("v_rcp_f32 v40, v40")
        a(f"v_cndmask_b32 {w}, v{sb}, v{sb+2}, vcc")
        a(f"v_mul_f32 {w}, {w}, v40")
    a("s_waitcnt vmcnt(5)")
    a("v_lshlrev_b32 v40, 16, v36")
    a("v_and_b32 v41, s42, v36")
    a("v_lshlrev_b32 v42, 16, v37")
    a("v_and_b32 v43, s42, v37")
    a("v_mul_f32 v40, v40, v42")
    a("v_mul_f32 v41, v41, v43")
    round_bf16(a, "v40")
    round_bf16(a, "v41")
    a("v_add_f32 v40, v40, v41")
    for r in (1, 2, 4, 8):
        a(f"v_add_f32_dpp v40, v40, v40 row_ror:{r} row_mask:0xf bank_mask:0xf")
    for g in range(4):
        a(f"v_readlane_b32 s{80+g}, v40, {16*g}")
    a("v_mov_b32 v40, s80")
    a("v_add_f32 v40, s81, v40")
    a("v_add_f32 v40, s82, v40")
    a("v_add_f32 v40, s83, v40")
    a("v_lshrrev_b32 v41, 6, v0")
    a("v_lshlrev_b32 v42, 2, v41")
    a("ds_write_b32 v42, v40 offset:1024")
    a("s_waitcnt vmcnt(3)")
    for k in range(4):
        a(f"v_mul_f32 v{16+k}, v38, v{16+k}")
        a(f"v_fmac_f32 v{16+k}, v39, v{20+k}")
    a("s_waitcnt vmcnt(0)")
    for k in range(4):
        a(f"v_add_f32 v{24+k}, v{24+k}, v{28+k}")
        a(f"v_add_f32 v{24+k}, v{24+k}, v{32+k}")
    for k in range(4):
        a(f"v_permlane32_swap_b32 v{16+k}, v{24+k}")
    for k in range(4):
        a(f"v_add_f32 v{16+k}, v{16+k}, v{24+k}")
    a("v_permlane16_swap_b32 v16, v17")
    a("v_permlane16_swap_b32 v18, v19")
    a("v_add_f32 v16, v16, v17")
    a("v_add_f32 v18, v18, v19")
    a("v_add_f32_dpp v16, v16, v16 row_ror:8 row_mask:0xf bank_mask:0xf")
    a("v_add_f32_dpp v18, v18, v18 row_ror:8 row_mask:0xf bank_mask:0xf")
    a("v_bfe_u32 v43, v0, 5, 1")
    a("v_lshlrev_b32 v43, 7, v43")
    a("v_lshl_add_u32 v43, v41, 8, v43")
    a("v_lshl_add_u32 v43, v2, 4, v43")
    a("v_bfe_u32 v44, v0, 4, 1")
    a("v_lshl_add_u32 v43, v44, 2, v43")
    a("ds_write_b32 v43, v16")
    a("ds_write_b32 v43, v18 offset:8")
    a("s_waitcnt lgkmcnt(0)")
    a("s_barrier")
    a("v_cmp_gt_u32 vcc, 32, v0")
    a("s_and_saveexec_b64 s[84:85], vcc")
    a("s_cbranch_execz LB_end")
    a("v_mov_b32 v1, 0")
    for w in range(4):
        a(f"ds_read_b32 v{8+w}, v6 offset:{256*w}")
        a(f"ds_read_b32 v{12+w}, v6 offset:{256*w+128}")
    a("ds_read_b128 v[16:19], v1 offset:1024")
    a("s_waitcnt lgkmcnt(0)")
    a("v_add_f32 v8, v8, v9")
    a("v_add_f32 v10, v10, v11")
    a("v_add_f32 v12, v12, v13")
    a("v_add_f32 v14, v14, v15")
    a("v_add_f32 v16, v16, v17")
    a("v_add_f32 v18, v18, v19")
    a("v_add_f32 v8, v8, v10")
    a("v_add_f32 v12, v12, v14")
    a("v_add_f32 v16, v16, v18")
    round_bf16(a, "v8")
    round_bf16(a, "v12")
    round_bf16(a, "v16")
    a("v_mul_f32 v16, s69, v16")
    a("v_exp_f32 v16, -v16")
    a("v_add_f32 v16, 1.0, v16")
    a("v_rcp_f32 v16, v16")
    round_bf16(a, "v16")
    a("v_sub_f32 v17, 1.0, v16")
    round_bf16(a, "v17")
    a("v_mul_f32 v8, v16, v8")
    a("v_mul_f32 v12, v17, v12")
    round_bf16(a, "v8")
    round_bf16(a, "v12")
    a("v_add_f32 v8, v8, v12")
    a("v_cvt_pk_bf16_f32 v8, v8, v8")
    a("v_lshlrev_b32 v1, 1, v0")
    a("s_lshl_b32 s4, s7, 10")
    a("s_lshl_b32 s5, s8, 6")
    a("s_add_u32 s4, s4, s5")
    a("buffer_store_short v8, v1, s[60:63], s4 offen")
    a.label("LB_end")
    a("s_endpgm")


if __name__ == "__main__":
    ap = argparse.ArgumentParser()
    ap.add_argument("-o", default="v2.s")
    ap.add_argument("--ts", type=int, default=0)
    ap.add_argument("--slots", type=int, default=16)
    ap.add_argument("--inflight", type=int, default=24)
    ap.add_argument("--wo_at", type=int, default=1)
    ap.add_argument("--wo_npj", type=int, default=2)
    ap.add_argument("--fd", type=int, default=2)
    ap.add_argument("--pf", type=int, default=1)
    ap.add_argument("--coop", type=int, default=0)
    ap.add_argument("--wnt", type=int, default=1)
    ap.add_argument("--cnt", type=int, default=1)
    ap.add_argument("--dshift", type=int, default=4)
    ap.add_argument("--prep_at", type=int, default=11)
    ap.add_argument("--warm", type=int, default=12)
    ap.add_argument("--map", default="xcd")
    ap.add_argument("--ffn_wait", type=int, default=1)
    args = ap.parse_args()
    open(args.o, "w").write(gen(args))
```

```python
import sys, argparse
sys.path.insert(0, "work")
from asmlib import Asm

HEADER = open("gated_mix__gqa_block_cached__glu_gated_glu__decode.s.ref").read().split("; Override launch")[0]

WS_Y = 0
WS_STATS = 512 * 1024
WS_F = 1024 * 1024
NFFN = 86

LOG2E = 0x3FB8AA3B
SCALE = 0x3DB504F3


def round_bf16(a, v):
    a(f"v_cvt_pk_bf16_f32 {v}, {v}, {v}")
    a(f"v_and_b32 {v}, s42, {v}")


def gen(args):
    a = Asm()
    NS = args.slots
    NJ = 128
    wnt = " nt" if args.wnt else ""
    cnt = " nt" if args.cnt else ""
    DS = args.dshift
    INF = args.inflight
    RING = NS * 8192
    C_LANDED = RING
    C_DONE = RING + 4
    C_BAR = RING + 64
    L_QP = RING + 256
    L_OP = L_QP
    L_ST = L_OP + 4096
    C_TK = L_ST + 128
    L_QQ = L_ST + 256
    L_XT = L_QQ + 2048
    LDS_A = L_XT + 8192
    L_Y = 0
    assert LDS_A <= 163840
    W0, KB, VB, T0 = 40, 104, 120, 24
    ACC, Q = 8, 4
    P, M, L = 16, 17, 18
    VRED = 19
    VZ = 136
    VBASE = 137
    VDONE = 138
    VCNT = 139

    def Wr(i): return f"v[{W0+4*i}:{W0+4*i+3}]"

    def stamp(k, mode=1):
        if args.ts and (mode == args.ts or k in (0, 1, 5)):
            a(f"s_memrealtime s[{84+2*k}:{85+2*k}]")

    def stamp_store():
        if args.ts:
            a("s_mov_b64 exec, 1")
            a("s_mul_i32 s4, s2, 10")
            a("s_add_u32 s4, s4, s3")
            a("s_lshl_b32 s4, s4, 6")
            a(f"s_add_u32 s60, s40, {4<<20}")
            a("s_addc_u32 s61, s41, 0")
            a("s_mov_b32 s62, 0x100000")
            a("s_mov_b32 s63, 0x20000")
            a("v_mov_b32 v2, 0")
            a("s_getreg_b32 s96, hwreg(HW_REG_XCC_ID)")
            a("s_mov_b32 s97, 0")
            a("s_waitcnt lgkmcnt(0)")
            for k in range(7):
                a(f"v_mov_b32 v4, s{84+2*k}")
                a(f"v_mov_b32 v5, s{85+2*k}")
                a(f"buffer_store_dwordx2 v[4:5], v2, s[60:63], s4 offen offset:{8*k}")
                a.nop(2)

    def lds_barrier(k, tag):
        a("s_waitcnt lgkmcnt(0)")
        a("s_mov_b64 exec, 1")
        a(f"ds_add_u32 v{VZ}, v{VCNT} offset:{C_BAR - RING + 4*k}")
        a("s_mov_b64 exec, -1")
        a.label(f"LB_spin{tag}")
        a(f"ds_read_b32 v23, v{VZ} offset:{C_BAR - RING + 4*k}")
        a("s_waitcnt lgkmcnt(0)")
        a("v_readfirstlane_b32 s14, v23")
        a("s_cmp_lt_u32 s14, 8")
        a(f"s_cbranch_scc1 LB_spin{tag}")

    a.raw(HEADER.rstrip("\n"))
    a.raw(f"; @launch kernel=attn_kernel grid=(256,1,1) block=(640,1,1) lds={LDS_A}")
    a.raw("; @launch kernel=fin_kernel grid=(64,1,1) block=(256,1,1) lds=2048")
    a.raw('.amdgcn_target "amdgcn-amd-amdhsa--gfx950"')
    a.raw(".text")
    a.raw(".globl attn_kernel\n.p2align 8\n.type attn_kernel,@function")
    a.label("attn_kernel")
    a("s_cmp_ge_u32 s2, 256")
    a("s_cbranch_scc1 LA_end")
    a("s_load_dwordx16 s[16:31], s[0:1], 0")
    a("s_load_dwordx8 s[32:39], s[0:1], 64")
    a("s_load_dwordx2 s[40:41], s[0:1], 96")
    stamp(0)
    a("v_lshrrev_b32 v1, 6, v0")
    a("v_readfirstlane_b32 s3, v1")
    if args.tk:
        a("s_cmp_eq_u32 s3, 0")
        a("s_cbranch_scc1 LA_tk")
    if args.pf:
        a("s_getpc_b64 s[64:65]")
        a.label("LA_pc")
        a("s_mov_b32 s66, LB_end-LA_pc")
        a("s_mov_b32 s67, 0x20000")
        a("v_lshlrev_b32 v2, 6, v0")
        a("buffer_load_dword v39, v2, s[64:67], 0 offen")
    a("v_and_b32 v0, 63, v0")
    a("v_lshlrev_b32 v3, 2, v0")
    a("v_mov_b32 v2, 0")
    a(f"v_add_u32 v3, {RING}, v3")
    a("ds_write_b32 v3, v2")
    if args.tk:
        a(f"v_mov_b32 v4, {C_TK}")
        a("s_waitcnt lgkmcnt(0)")
        a("s_barrier")
        a("ds_read_b32 v5, v4")
        a("s_waitcnt lgkmcnt(0)")
        a("v_readfirstlane_b32 s2, v5")
        a("s_branch LA_tk_done")
        a.label("LA_tk")
        a("s_getreg_b32 s4, hwreg(HW_REG_XCC_ID)")
        a("s_and_b32 s4, s4, 7")
        a("s_movk_i32 s62, 256")
        a("s_mov_b32 s63, 0x20000")
        a("s_mov_b32 s9, 0")
        a(f"v_mov_b32 v6, {C_TK}")
        a("s_mov_b64 exec, 1")
        a("s_waitcnt lgkmcnt(0)")
        a("s_mov_b32 s60, s38")
        a("s_mov_b32 s61, s39")
        a.label("LA_tk_loop")
        a("s_lshl_b32 s5, s4, 5")
        a("v_mov_b32 v4, 1")
        a("v_mov_b32 v5, s5")
        a("buffer_atomic_add v4, v5, s[60:63], 0 offen sc0")
        a("s_waitcnt vmcnt(0)")
        a("v_readfirstlane_b32 s5, v4")
        a("s_cmp_lt_u32 s5, 32")
        a("s_cbranch_scc1 LA_tk_got")
        a("s_add_u32 s4, s4, 1")
        a("s_and_b32 s4, s4, 7")
        a("s_add_u32 s9, s9, 1")
        a("s_cmp_lt_u32 s9, 8")
        a("s_cbranch_scc1 LA_tk_loop")
        a("s_movk_i32 s5, 64")
        a.label("LA_tk_got")
        a("s_and_b32 s2, s5, 3")
        a("s_lshl_b32 s2, s2, 3")
        a("s_or_b32 s2, s2, s4")
        a("s_bfe_u32 s4, s5, 0x10004")
        a("s_lshl_b32 s4, s4, 5")
        a("s_or_b32 s2, s2, s4")
        a("s_bfe_u32 s4, s5, 0x20002")
        a("s_lshl_b32 s4, s4, 6")
        a("s_or_b32 s2, s2, s4")
        a("s_and_b32 s4, s5, 64")
        a("s_lshl_b32 s4, s4, 2")
        a("s_or_b32 s2, s2, s4")
        a("v_mov_b32 v4, s2")
        a("ds_write_b32 v6, v4")
        a("s_mov_b64 exec, -1")
        a("s_waitcnt lgkmcnt(0)")
        a("s_barrier")
        a.label("LA_tk_done")
        a("s_cmp_ge_u32 s2, 256")
        a("s_cbranch_scc1 LA_end")
    if args.map == "pair":
        a("s_lshr_b32 s4, s2, 1")
        a("s_and_b32 s5, s4, 3")
        a("s_lshl_b32 s5, s5, 3")
        a("s_bfe_u32 s6, s4, 0x30002")
        a("s_add_u32 s6, s6, s5")
        a("s_lshr_b32 s7, s4, 5")
        a("s_and_b32 s8, s2, 1")
    else:
        a("s_and_b32 s4, s2, 7")
        a("s_bfe_u32 s6, s2, 0x20003")
        a("s_lshl_b32 s4, s4, 2")
        a("s_add_u32 s6, s6, s4")
        a("s_lshr_b32 s7, s2, 6")
        a("s_bfe_u32 s8, s2, 0x10005")
    a("s_lshl_b32 s5, s7, 5")
    a("s_add_u32 s5, s5, s6")
    a(f"s_cmp_lt_u32 s5, {NFFN}")
    a(f"s_cselect_b32 s4, {DS}, 0")
    a(f"s_sub_u32 s78, {NJ}, s4")
    a(f"s_add_u32 s79, s4, {NJ}")
    a("s_cmp_eq_u32 s8, 0")
    a("s_cselect_b32 s79, s78, s79")
    a("s_cselect_b32 s78, 0, s78")
    a("v_lshlrev_b32 v1, 4, v0")
    a("s_mov_b32 s47, 0x20000")
    a("s_mov_b32 s51, 0x20000")
    if not args.tk:
        a("s_waitcnt lgkmcnt(0)")
        a("s_barrier")
    stamp(2, 2)
    a("s_cmp_lg_u32 s3, 0")
    a("s_cbranch_scc1 LA_cons")
    a("s_setprio 3")
    a("s_lshl_b32 s10, s5, 20")
    a("s_lshl_b32 s4, s78, 12")
    a("s_add_u32 s10, s10, s4")
    a("s_mov_b32 s44, s18")
    a("s_mov_b32 s45, s19")
    a("s_mov_b32 s46, 0x08000000")
    a("s_mov_b32 s48, s20")
    a("s_mov_b32 s49, s21")
    a("s_mov_b32 s50, 0x08000000")
    a("s_mov_b32 s12, 0")
    a("s_mov_b32 s13, 0")
    a("s_mov_b32 s9, 0")
    a(f"v_mov_b32 v4, {C_LANDED}")
    a(f"s_movk_i32 s15, {NS}")
    a.label("LL_loop")
    a("s_mov_b32 m0, s12")
    a("s_add_u32 s14, s12, 4096")
    for i in range(4):
        a(f"buffer_load_dwordx4 v1, s[44:47], s10 offen offset:{1024*i} nt lds")
    a("s_mov_b32 m0, s14")
    a("s_add_u32 s12, s12, 8192")
    for i in range(4):
        a(f"buffer_load_dwordx4 v1, s[48:51], s10 offen offset:{1024*i} nt lds")
    a(f"s_cmp_eq_u32 s12, {RING}")
    a("s_cselect_b32 s12, 0, s12")
    a("s_add_u32 s10, s10, 4096")
    a("s_add_u32 s13, s13, 1")
    if args.ts == 3:
        for k, x in ((1, 16), (2, 32), (3, 64), (4, 96)):
            a(f"s_cmp_lg_u32 s13, {x}")
            a(f"s_cbranch_scc1 LL_ns{k}")
            a(f"s_memrealtime s[{84+2*k}:{85+2*k}]")
            a.label(f"LL_ns{k}")
    a(f"s_sub_u32 s14, s13, {NS}")
    a("s_and_b32 s5, s14, 7")
    a("s_lshl_b32 s5, s5, 2")
    a(f"s_add_u32 s5, s5, {C_DONE}")
    a("v_mov_b32 v5, s5")
    a(f"s_sub_u32 s4, s13, {INF//8 - 1}")
    a("s_max_i32 s9, s9, s4")
    a("v_mov_b32 v6, s9")
    a("ds_read_b32 v7, v5")
    a(f"s_waitcnt vmcnt({INF-8})")
    a("ds_write_b32 v4, v6")
    a("s_cmp_ge_u32 s13, s79")
    a("s_cbranch_scc1 LL_fin")
    a("s_cmp_lt_u32 s13, s15")
    a("s_cbranch_scc1 LL_loop")
    a("s_lshr_b32 s14, s14, 3")
    a("s_waitcnt lgkmcnt(0)")
    a("v_readfirstlane_b32 s4, v7")
    a("s_cmp_gt_u32 s4, s14")
    a("s_cbranch_scc1 LL_loop")
    a("s_mov_b32 s9, s13")
    a("v_mov_b32 v6, s13")
    a("s_waitcnt vmcnt(0)")
    a("ds_write_b32 v4, v6")
    a.label("LL_spin")
    a("s_sleep 1")
    a("ds_read_b32 v7, v5")
    a("s_waitcnt lgkmcnt(0)")
    a("v_readfirstlane_b32 s4, v7")
    a("s_cmp_gt_u32 s4, s14")
    a("s_cbranch_scc1 LL_loop")
    a("s_branch LL_spin")
    a.label("LL_fin")
    for k in range(INF // 8 - 2, -1, -1):
        a(f"s_sub_u32 s4, s79, {k}")
        a("v_mov_b32 v6, s4")
        a(f"s_waitcnt vmcnt({8*k})")
        a("ds_write_b32 v4, v6")
    stamp(5)
    a("s_branch LA_end2")

    a.label("LA_cons")
    a("s_mov_b32 s42, 0xffff0000")
    a(f"s_mov_b32 s69, {LOG2E:#x}")
    a("s_mov_b32 s55, 0x20000")
    a("s_mov_b32 s59, 0x20000")
    a("s_mov_b32 s63, 0x20000")
    a("s_cmp_eq_u32 s3, 9")
    a("s_cbranch_scc1 LA_ffn")
    a("s_sub_u32 s9, s3, 1")
    a("v_lshrrev_b32 v20, 4, v0")
    a("v_and_b32 v21, 15, v0")
    a("v_lshlrev_b32 v2, 14, v20")
    a("v_lshl_add_u32 v2, v21, 4, v2")
    a("v_lshlrev_b32 v3, 2, v20")
    a("v_lshl_add_u32 v3, v21, 4, v3")
    a("s_lshl_b32 s4, s7, 10")
    a("s_lshl_b32 s5, s9, 7")
    a("s_add_u32 s4, s4, s5")
    a("s_lshl_b32 s11, s9, 19")
    a("s_lshl_b32 s12, s6, 8")
    a("s_add_u32 s11, s11, s12")
    a("s_mov_b32 s48, s22")
    a("s_mov_b32 s49, s23")
    a("s_mov_b32 s50, 0x00400000")
    a("s_mov_b32 s56, s16")
    a("s_mov_b32 s57, s17")
    a("s_mov_b32 s58, 4096")
    a(f"buffer_load_dword v{P}, v3, s[56:59], s4 offen")
    if args.coop:
        a("v_lshrrev_b32 v22, 3, v0")
        a("v_lshlrev_b32 v22, 13, v22")
        a("v_and_b32 v23, 7, v0")
        a("v_lshl_add_u32 v22, v23, 5, v22")
        a("s_lshr_b32 s4, s2, 5")
        a("s_lshl_b32 s4, s4, 19")
        a("s_lshl_b32 s5, s9, 16")
        a("s_add_u32 s4, s4, s5")
        a("s_add_u32 s4, s4, s12")
        a(f"buffer_load_dword v38, v22, s[48:51], s4 offen{cnt}")
        a("s_waitcnt vmcnt(0)")
        if args.coop > 1:
            a(f"s_sleep {args.coop}")
    for k in range(8):
        a(f"buffer_load_dwordx4 {Wr(2*k)}, v2, s[48:51], s11 offen{wnt}")
        a("s_add_u32 s12, s11, 8192")
        a(f"buffer_load_dwordx4 {Wr(2*k+1)}, v2, s[48:51], s12 offen{wnt}")
        if k < 7:
            a("s_add_u32 s11, s11, 65536")
    a(f"s_mov_b32 s68, {SCALE:#x}")
    a("s_mov_b32 s70, 0x05040100")
    a("s_mov_b32 s71, 0x07060302")
    a("s_mov_b32 s52, s24")
    a("s_mov_b32 s53, s25")
    a("s_mov_b32 s54, 0x00400000")
    a("s_mov_b32 s60, s40")
    a("s_mov_b32 s61, s41")
    a(f"s_mov_b32 s62, {WS_STATS + 2048}")
    a("v_and_b32 v22, 1, v20")
    a("v_lshlrev_b32 v22, 1, v22")
    a("v_lshrrev_b32 v23, 1, v20")
    a("v_or_b32 v22, v22, v23")
    a("v_lshl_add_u32 v22, v21, 3, v22")
    a("v_lshlrev_b32 v22, 2, v22")
    a("s_lshl_b32 s4, s9, 9")
    a(f"s_add_u32 s4, s4, {L_QP}")
    a(f"v_add_u32 v{VRED}, s4, v22")
    a(f"v_mov_b32 v{VZ}, {RING}")
    a(f"v_mov_b32 v{VCNT}, 1")
    a("s_lshl_b32 s4, s9, 13")
    a(f"v_add_u32 v{VBASE}, s4, v1")
    a("s_lshl_b32 s4, s9, 2")
    a(f"s_add_u32 s4, s4, {C_DONE}")
    a(f"v_mov_b32 v{VDONE}, s4")
    for j in range(8):
        a(f"v_mov_b32 v{ACC+j}, 0")
    for k in range(8):
        tb = T0 + 8 * (k & 1)
        a(f"s_waitcnt vmcnt({14 - 2*k})")
        if k == 0:
            stamp(3, 2)
        for d in range(4):
            A_, B_ = W0 + 8 * k + d, W0 + 8 * k + 4 + d
            a(f"v_perm_b32 v{tb+2*d}, v{B_}, v{A_}, s70")
            a(f"v_perm_b32 v{tb+2*d+1}, v{B_}, v{A_}, s71")
        for e in range(8):
            a(f"v_dot2c_f32_bf16_dpp v{ACC+e}, v{P}, v{tb+e} row_newbcast:{k} row_mask:0xf bank_mask:0xf")

    def cross_row_reduce8(base):
        for k in range(4):
            a(f"v_permlane32_swap_b32 v{base+2*k}, v{base+2*k+1}")
        for k in range(4):
            a(f"v_add_f32 v{base+2*k}, v{base+2*k}, v{base+2*k+1}")
        a(f"v_permlane16_swap_b32 v{base}, v{base+2}")
        a(f"v_permlane16_swap_b32 v{base+4}, v{base+6}")
        a(f"v_add_f32 v{base}, v{base}, v{base+2}")
        a(f"v_add_f32 v{base+4}, v{base+4}, v{base+6}")

    cross_row_reduce8(ACC)
    a(f"ds_write_b32 v{VRED}, v{ACC}")
    a(f"ds_write_b32 v{VRED}, v{ACC+4} offset:16")
    a("v_lshlrev_b32 v20, 3, v0")
    a(f"v_add_u32 v20, {L_QP}, v20")
    stamp(4, 2)
    lds_barrier(0, "q")
    for w in range(8):
        a(f"ds_read_b64 v[{T0+2*w}:{T0+2*w+1}], v20 offset:{512*w}")
    a("s_lshl_b32 s4, s9, 8")
    a(f"s_add_u32 s4, s4, {L_QQ}")
    a("v_lshlrev_b32 v21, 2, v0")
    a("v_add_u32 v21, s4, v21")
    a("v_and_b32 v22, 15, v0")
    a("v_lshlrev_b32 v22, 4, v22")
    a("v_add_u32 v22, s4, v22")
    a("s_waitcnt lgkmcnt(0)")
    for st in (1, 2, 4):
        for w in range(0, 8, 2 * st):
            a(f"v_add_f32 v{T0+2*w}, v{T0+2*w}, v{T0+2*(w+st)}")
            a(f"v_add_f32 v{T0+2*w+1}, v{T0+2*w+1}, v{T0+2*(w+st)+1}")
    a(f"v_cvt_pk_bf16_f32 v23, v{T0}, v{T0+1}")
    a("ds_write_b32 v21, v23")
    a("s_waitcnt lgkmcnt(0)")
    a(f"ds_read_b128 v[{Q}:{Q+3}], v22")
    for j in range(8):
        a(f"v_mov_b32 v{ACC+j}, 0")
    a(f"v_mov_b32 v{M}, 0xff800000")
    a(f"v_mov_b32 v{L}, 0")
    if args.coop:
        a("s_lshl_b32 s4, s6, 17")
        a("s_lshr_b32 s5, s2, 5")
        a("s_lshl_b32 s5, s5, 14")
        a("s_add_u32 s4, s4, s5")
        a("s_lshl_b32 s5, s9, 11")
        a("s_add_u32 s4, s4, s5")
        a("v_lshlrev_b32 v22, 5, v0")
        a(f"buffer_load_dword v141, v22, s[52:55], s4 offen{cnt}")
    a("s_lshl_b32 s43, s6, 17")
    a("s_lshl_b32 s5, s9, 14")
    a("s_add_u32 s43, s43, s5")
    a("s_mov_b32 s13, s9")
    a("s_mov_b32 s15, 0")
    a(f"v_mov_b32 v{VCNT+1}, 0")
    stamp(1)
    a.label("LC_poll")
    a(f"ds_read_b32 v20, v{VZ}")
    a("s_waitcnt lgkmcnt(0)")
    a("v_readfirstlane_b32 s14, v20")
    a("s_cmp_gt_u32 s14, s13")
    a("s_cbranch_scc1 LC_go")
    a("s_sleep 1")
    a("s_branch LC_poll")
    a.label("LC_go")
    for i in range(4):
        a(f"ds_read_b128 v[{KB+4*i}:{KB+4*i+3}], v{VBASE} offset:{1024*i}")
    for i in range(4):
        a(f"ds_read_b128 v[{VB+4*i}:{VB+4*i+3}], v{VBASE} offset:{4096+1024*i}")
    a("s_add_u32 s15, s15, 1")
    a("s_add_u32 s13, s13, 8")
    a(f"v_add_u32 v{VCNT+1}, 1, v{VCNT+1}")
    if NS == 16:
        a(f"v_xor_b32 v{VBASE}, 0x10000, v{VBASE}")
    else:
        a(f"v_add_u32 v{VBASE}, 0x10000, v{VBASE}")
        a(f"v_subrev_u32 v21, {RING}, v{VBASE}")
        a(f"v_min_u32 v{VBASE}, v21, v{VBASE}")
    a("s_waitcnt lgkmcnt(4)")
    for d in range(4):
        for i in range(4):
            t = f"v{T0+i}"
            c = "0" if d == 0 else t
            a(f"v_dot2_f32_bf16 {t}, v{KB+4*i+d}, v{Q+d}, {c}")
    a("s_waitcnt lgkmcnt(0)")
    a(f"ds_write_b32 v{VDONE}, v{VCNT+1}")
    for i in range(2):
        a(f"v_add_f32_dpp v{T0+i}, v{T0+i}, v{T0+i} row_ror:8 row_mask:0xf bank_mask:0x3")
        a(f"v_add_f32_dpp v{T0+i}, v{T0+i+2}, v{T0+i+2} row_ror:8 row_mask:0xf bank_mask:0xc")
    PV1, PV2 = T0 + 8, KB
    for d in range(2):
        a(f"v_perm_b32 v{PV1+2*d}, v{VB+4+d}, v{VB+d}, s70")
        a(f"v_perm_b32 v{PV1+2*d+1}, v{VB+4+d}, v{VB+d}, s71")
    a(f"v_add_f32_dpp v{T0}, v{T0}, v{T0} row_half_mirror row_mask:0xf bank_mask:0x5")
    a(f"v_add_f32_dpp v{T0}, v{T0+1}, v{T0+1} row_half_mirror row_mask:0xf bank_mask:0xa")
    for d in range(2, 4):
        a(f"v_perm_b32 v{PV1+2*d}, v{VB+4+d}, v{VB+d}, s70")
        a(f"v_perm_b32 v{PV1+2*d+1}, v{VB+4+d}, v{VB+d}, s71")
    S = f"v{T0}"
    a(f"v_add_f32_dpp {S}, {S}, {S} quad_perm:[1,0,3,2] row_mask:0xf bank_mask:0xf")
    a(f"v_perm_b32 v{PV2}, v{VB+12}, v{VB+8}, s70")
    a(f"v_perm_b32 v{PV2+1}, v{VB+12}, v{VB+8}, s71")
    a(f"v_add_f32_dpp {S}, {S}, {S} quad_perm:[2,3,0,1] row_mask:0xf bank_mask:0xf")
    round_bf16(a, S)
    a(f"v_mul_f32 {S}, s68, {S}")
    round_bf16(a, S)
    MX = f"v{T0+1}"
    a(f"v_perm_b32 v{PV2+2}, v{VB+13}, v{VB+9}, s70")
    a(f"v_perm_b32 v{PV2+3}, v{VB+13}, v{VB+9}, s71")
    a(f"v_max_f32_dpp {MX}, {S}, {S} row_ror:8 row_mask:0xf bank_mask:0xf")
    a(f"v_perm_b32 v{PV2+4}, v{VB+14}, v{VB+10}, s70")
    a(f"v_perm_b32 v{PV2+5}, v{VB+14}, v{VB+10}, s71")
    a(f"v_max_f32_dpp {MX}, {MX}, {MX} row_ror:4 row_mask:0xf bank_mask:0xf")
    a(f"v_perm_b32 v{PV2+6}, v{VB+15}, v{VB+11}, s70")
    a(f"v_perm_b32 v{PV2+7}, v{VB+15}, v{VB+11}, s71")
    a(f"v_max_f32 {MX}, {MX}, v{M}")
    AL = f"v{T0+2}"
    a(f"v_sub_f32 {AL}, v{M}, {MX}")
    a(f"v_sub_f32 v{P}, {S}, {MX}")
    a(f"v_mul_f32 {AL}, s69, {AL}")
    a(f"v_mul_f32 v{P}, s69, v{P}")
    a(f"v_exp_f32 {AL}, {AL}")
    a(f"v_exp_f32 v{P}, v{P}")
    a(f"v_mov_b32 v{M}, {MX}")
    a(f"v_fma_f32 v{L}, v{L}, {AL}, v{P}")
    a(f"v_mul_f32 v{ACC}, {AL}, v{ACC}")
    a(f"v_mov_b32_dpp v{T0+3}, v{P} row_shl:4 row_mask:0xf bank_mask:0xf")
    for j in range(1, 8):
        a(f"v_mul_f32 v{ACC+j}, {AL}, v{ACC+j}")
        if j == 1:
            a(f"v_cvt_pk_bf16_f32 v{P}, v{P}, v{T0+3}")
    for e in range(8):
        a(f"v_dot2c_f32_bf16_dpp v{ACC+e}, v{P}, v{PV1+e} row_newbcast:0 row_mask:0xf bank_mask:0xf")
    for e in range(8):
        a(f"v_dot2c_f32_bf16_dpp v{ACC+e}, v{P}, v{PV2+e} row_newbcast:8 row_mask:0xf bank_mask:0xf")
    NPJ = args.wo_npj
    NB = 16 // NPJ
    a(f"s_cmp_le_u32 s15, {args.wo_at + NB - 1}")
    a("s_cbranch_scc1 LC_wo")
    a(f"s_cmp_eq_u32 s15, {args.prep_at}")
    a("s_cbranch_scc1 LC_prep")
    a("s_cmp_lt_u32 s13, s79")
    a("s_cbranch_scc1 LC_poll")
    a("s_branch LA_tail")
    a.label("LC_wo")
    for k in range(NB):
        a(f"s_cmp_lg_u32 s15, {args.wo_at + k}")
        a(f"s_cbranch_scc1 {'LC_wo%d' % (k+1) if k < NB-1 else 'LC_poll'}")
        for i in range(NPJ * k, NPJ * (k + 1)):
            if i % 4 == 0 or i == NPJ * k:
                a(f"s_add_u32 s4, s43, {(i >> 2) * 4096}")
            a(f"buffer_load_dwordx4 {Wr(i)}, v1, s[52:55], s4 offen offset:{(i & 3) * 1024}{wnt}")
        a("s_branch LC_poll")
        if k < NB - 1:
            a.label(f"LC_wo{k+1}")

    a.label("LC_prep")
    a("s_waitcnt vmcnt(0)")
    LOr = {}
    prev = 141
    for j in range(8):
        for t in range(4):
            A_, B_ = W0 + 8 * j + t, W0 + 8 * j + 4 + t
            a(f"v_perm_b32 v{prev}, v{B_}, v{A_}, s70")
            a(f"v_perm_b32 v{B_}, v{B_}, v{A_}, s71")
            LOr[(j, t)] = prev
            prev = A_
    if args.warm:
        a("s_mov_b64 exec, 0")
        a("s_branch LW_0")
        a.label("LC_warmret")
        a("s_mov_b64 exec, -1")
    a("s_branch LC_poll")

    a.label("LA_tail")
    if args.warm:
        a.hop_begin("LW", args.warm)
    a.nop(3)
    stamp(3)
    for r in (8, 4):
        a(f"v_add_f32_dpp v{L}, v{L}, v{L} row_ror:{r} row_mask:0xf bank_mask:0xf")
    for g in range(4):
        a(f"v_readlane_b32 s{80+g}, v{M}, {16*g}")
    a("v_mov_b32 v20, s80")
    a("v_max_f32 v20, s81, v20")
    a("v_max_f32 v20, s82, v20")
    a("v_max_f32 v20, s83, v20")
    a(f"v_sub_f32 v22, v{M}, v20")
    a("v_mul_f32 v22, s69, v22")
    a("v_exp_f32 v22, v22")
    a(f"v_mul_f32 v{L}, v22, v{L}")
    for j in range(8):
        a(f"v_mul_f32 v{ACC+j}, v22, v{ACC+j}")
    for g in range(4):
        a(f"v_readlane_b32 s{80+g}, v{L}, {16*g}")
    cross_row_reduce8(ACC)
    a("v_mov_b32 v21, s80")
    a("v_add_f32 v21, s81, v21")
    a("v_add_f32 v21, s82, v21")
    a("v_add_f32 v21, s83, v21")
    a(f"ds_write_b32 v{VRED}, v{ACC} offset:{L_OP - L_QP}")
    a(f"ds_write_b32 v{VRED}, v{ACC+4} offset:{L_OP - L_QP + 16}")
    a("s_lshl_b32 s4, s9, 3")
    a(f"s_add_u32 s4, s4, {L_ST}")
    a("v_mov_b32 v22, s4")
    a("ds_write_b64 v22, v[20:21]")
    a("v_lshlrev_b32 v20, 3, v0")
    a(f"v_add_u32 v20, {L_OP}, v20")
    a(f"v_mov_b32 v21, {L_ST}")
    lds_barrier(1, "t1")
    stamp(4)
    SB = 104
    for k in range(4):
        a(f"ds_read_b128 v[{SB+4*k}:{SB+4*k+3}], v21 offset:{16*k}")
    for w in range(8):
        a(f"ds_read_b64 v[{T0+2*w}:{T0+2*w+1}], v20 offset:{512*w}")
    a("s_lshl_b32 s4, s9, 3")
    a("s_waitcnt lgkmcnt(8)")
    a(f"v_max3_f32 v20, v{SB}, v{SB+2}, v{SB+4}")
    a(f"v_max3_f32 v20, v20, v{SB+6}, v{SB+8}")
    a(f"v_max3_f32 v20, v20, v{SB+10}, v{SB+12}")
    a(f"v_max_f32 v20, v20, v{SB+14}")
    for w in range(8):
        a(f"v_sub_f32 v{SB+2*w}, v{SB+2*w}, v20")
    for w in range(8):
        a(f"v_mul_f32 v{SB+2*w}, s69, v{SB+2*w}")
    for w in range(8):
        a(f"v_exp_f32 v{SB+2*w}, v{SB+2*w}")
    a(f"v_mul_f32 v21, v{SB}, v{SB+1}")
    for w in range(1, 8):
        a(f"v_fmac_f32 v21, v{SB+2*w}, v{SB+2*w+1}")
    a("v_rcp_f32 v22, v21")
    a("s_waitcnt lgkmcnt(0)")
    a(f"v_mul_f32 v2, v{SB}, v{T0}")
    a(f"v_mul_f32 v3, v{SB}, v{T0+1}")
    for w in range(1, 8):
        a(f"v_fmac_f32 v2, v{SB+2*w}, v{T0+2*w}")
        a(f"v_fmac_f32 v3, v{SB+2*w}, v{T0+2*w+1}")
    a("v_mul_f32 v2, v22, v2")
    a("v_mul_f32 v3, v22, v3")
    a("v_cvt_pk_bf16_f32 v2, v2, v3")
    for j in range(8):
        a(f"v_readlane_b32 s{72+j}, v2, s4")
        if j < 7:
            a("s_add_u32 s4, s4, 1")
    for j in range(8):
        for t in range(4):
            c = "0" if j == 0 else f"v{ACC+2*t}"
            a(f"v_dot2_f32_bf16 v{ACC+2*t}, v{LOr[(j, t)]}, s{72+j}, {c}")
            c = "0" if j == 0 else f"v{ACC+2*t+1}"
            a(f"v_dot2_f32_bf16 v{ACC+2*t+1}, v{W0+8*j+4+t}, s{72+j}, {c}")
    a("s_lshl_b32 s4, s9, 11")
    a("v_lshlrev_b32 v2, 5, v0")
    a("v_add_u32 v2, s4, v2")
    a(f"ds_write_b128 v2, v[{ACC}:{ACC+3}] offset:{L_Y}")
    a(f"ds_write_b128 v2, v[{ACC+4}:{ACC+7}] offset:{L_Y+16}")
    a("s_lshl_b32 s4, s9, 8")
    a("v_lshlrev_b32 v3, 2, v0")
    a("v_add_u32 v3, s4, v3")
    a("s_lshl_b32 s5, s7, 6")
    a("s_lshl_b32 s12, s6, 1")
    a("s_add_u32 s5, s5, s12")
    a("s_add_u32 s5, s5, s8")
    a("s_lshl_b32 s5, s5, 11")
    lds_barrier(2, "t2")
    for w in range(8):
        a(f"ds_read_b32 v{T0+w}, v3 offset:{L_Y + 2048*w}")
    a("s_waitcnt lgkmcnt(0)")
    for st in (1, 2, 4):
        for w in range(0, 8, 2 * st):
            a(f"v_add_f32 v{T0+w}, v{T0+w}, v{T0+w+st}")
    if args.warm:
        a.hop_end("LC_warmret")
    a(f"buffer_store_dword v{T0}, v3, s[60:63], s5 offen")
    stamp(5)
    a("s_cmp_lg_u32 s9, 0")
    a("s_cbranch_scc1 LA_end2")
    a("s_lshl_b32 s5, s7, 5")
    a("s_add_u32 s5, s5, s6")
    a("s_lshl_b32 s5, s5, 4")
    a("s_lshl_b32 s12, s8, 3")
    a("s_add_u32 s5, s5, s12")
    a(f"s_add_u32 s5, s5, {WS_STATS}")
    a("v_mov_b32 v2, 0")
    a("s_mov_b64 exec, 1")
    a("buffer_store_dwordx2 v[20:21], v2, s[60:63], s5 offen")
    a.label("LA_end2")
    stamp_store()
    a("s_endpgm")

    a.label("LA_ffn")
    a("s_mov_b32 s6, s5")
    a(f"s_cmp_ge_u32 s6, {NFFN}")
    a("s_cbranch_scc1 LA_end")
    a("s_cmp_lg_u32 s8, 0")
    a("s_cbranch_scc1 LA_end")
    if args.ffn_wait:
        a(f"v_mov_b32 v4, {C_DONE}")
        a.label("LF_wait")
        a("s_sleep 8")
        a("ds_read_b32 v5, v4")
        a("s_waitcnt lgkmcnt(0)")
        a("v_readfirstlane_b32 s4, v5")
        a(f"s_cmp_lt_u32 s4, {args.ffn_wait}")
        a("s_cbranch_scc1 LF_wait")
    FB = 104
    FA = 40
    FX = 72
    FU = 80
    FG = 88
    FH = 96
    def Fr(i): return f"v[{FB+4*i}:{FB+4*i+3}]"
    a("v_lshrrev_b32 v20, 1, v0")
    a("v_and_b32 v21, 1, v0")
    a("s_movk_i32 s4, 2752")
    a("v_mul_lo_u32 v2, v20, s4")
    a("v_lshl_add_u32 v2, v21, 4, v2")
    a("v_lshlrev_b32 v3, 4, v20")
    a(f"v_add_u32 v3, {L_XT}, v3")
    a("s_mov_b32 s46, 1409024")
    a("s_mov_b32 s50, 1409024")
    a("s_mov_b32 s58, 4096")
    a(f"s_mov_b32 s62, {NFFN*8192}")
    a("s_lshl_b32 s10, s6, 5")
    a("s_mov_b32 s44, s28")
    a("s_mov_b32 s45, s29")
    a("s_mov_b32 s48, s30")
    a("s_mov_b32 s49, s31")
    a("s_mov_b32 s56, s16")
    a("s_mov_b32 s57, s17")
    a(f"s_add_u32 s60, s40, {WS_F}")
    a("s_addc_u32 s61, s41, 0")
    for b in range(4):
        a(f"buffer_load_dwordx4 v[{4+4*b}:{7+4*b}], v1, s[56:59], 0 offen offset:{1024*b}")
    FD = args.fd
    a("s_mov_b32 s11, s10")
    for i in range(FD):
        a(f"buffer_load_dwordx4 {Fr(i)}, v2, s[44:47], s11 offen{wnt}")
        a(f"s_add_u32 s11, s11, {32*2752}")
    a(f"s_waitcnt vmcnt({FD})")
    for e in range(8):
        for b in range(4):
            src = f"v{4+4*b+(e>>1)}"
            if e & 1:
                a(f"v_and_b32 v{FA+4*e+b}, s42, {src}")
            else:
                a(f"v_lshlrev_b32 v{FA+4*e+b}, 16, {src}")
    a("v_lshlrev_b32 v20, 7, v0")
    a(f"v_add_u32 v20, {L_XT}, v20")
    for e in range(8):
        a(f"ds_write_b128 v20, v[{FA+4*e}:{FA+4*e+3}] offset:{16*e}")
    a("s_waitcnt lgkmcnt(0)")
    a("s_mov_b32 s9, 0")
    a("v_mov_b32 v22, v2")
    a(f"s_mov_b32 s12, {32*2752}")
    a.label("LF_pass")
    for k in range(32):
        a(f"v_mov_b32 v{FA+k}, 0")
    a(f"ds_read_b128 v[{FX}:{FX+3}], v3")
    for i in range(16):
        xb = FX + 4 * (i & 1)
        if i < 15:
            nb = FX + 4 * ((i + 1) & 1)
            a(f"ds_read_b128 v[{nb}:{nb+3}], v3 offset:{512*(i+1)}")
        a(f"s_waitcnt vmcnt({FD-1})")
        for d in range(4):
            a(f"v_lshlrev_b32 v{FU+2*d}, 16, v{FB+4*i+d}")
            a(f"v_and_b32 v{FU+2*d+1}, s42, v{FB+4*i+d}")
        if i + FD < 16:
            a(f"buffer_load_dwordx4 {Fr(i+FD)}, v2, s[44:47], s11 offen{wnt}")
            a(f"s_add_u32 s11, s11, {32*2752}")
        else:
            if i + FD == 16:
                a("s_mov_b32 s11, s10")
            a(f"buffer_load_dwordx4 {Fr(i+FD-16)}, v22, s[48:51], s11 offen{wnt}")
            a("s_add_u32 s11, s11, s12")
        a(f"s_waitcnt lgkmcnt({1 if i < 15 else 0})")
        for b in range(4):
            for e in range(8):
                a(f"v_fmac_f32 v{FA+8*b+e}, v{xb+b}, v{FU+e}")
    for k in range(16):
        a(f"v_permlane32_swap_b32 v{FA+k}, v{FA+16+k}")
    for k in range(16):
        a(f"v_add_f32 v{FA+k}, v{FA+k}, v{FA+16+k}")
    for k in range(8):
        a(f"v_permlane16_swap_b32 v{FA+k}, v{FA+8+k}")
    for k in range(8):
        a(f"v_add_f32 v{FA+k}, v{FA+k}, v{FA+8+k}")
    for r in (2, 4, 8):
        for k in range(8):
            a(f"v_add_f32_dpp v{FA+k}, v{FA+k}, v{FA+k} row_ror:{r} row_mask:0xf bank_mask:0xf")
    for k in range(8):
        a(f"v_mov_b32 v{FG+k}, v{FH+k}")
        a(f"v_mov_b32 v{FH+k}, v{FA+k}")
    a("s_cmp_eq_u32 s9, 1")
    a("s_cbranch_scc1 LF_p2")
    a("s_mov_b32 s9, 1")
    a("s_mov_b32 s44, s48")
    a("s_mov_b32 s45, s49")
    a("s_mov_b32 s48, s32")
    a("s_mov_b32 s49, s33")
    a("v_mov_b32 v22, v1")
    a("s_movk_i32 s12, 1024")
    a("s_lshl_b32 s10, s6, 14")
    a("s_branch LF_pass")
    a.label("LF_p2")
    a.nop(2)
    for k in range(8):
        g, u = f"v{FG+k}", f"v{FH+k}"
        round_bf16(a, g)
        round_bf16(a, u)
        a(f"v_mul_f32 {g}, s69, {g}")
        a(f"v_exp_f32 {g}, -{g}")
        a(f"v_add_f32 {g}, 1.0, {g}")
        a(f"v_rcp_f32 {g}, {g}")
        round_bf16(a, g)
        a(f"v_mul_f32 {u}, {g}, {u}")
        round_bf16(a, u)
    for k in range(32):
        a(f"v_mov_b32 v{FA+k}, 0")
    for f in range(16):
        for b in range(4):
            a(f"v_readlane_b32 s{80+b}, v{FH+(f&7)}, {16*b + (f >> 3)}")
        a(f"s_waitcnt vmcnt({min(FD-1, 15-f)})")
        for d in range(4):
            a(f"v_lshlrev_b32 v{FU+2*d}, 16, v{FB+4*f+d}")
            a(f"v_and_b32 v{FU+2*d+1}, s42, v{FB+4*f+d}")
        if f + FD < 16:
            a(f"buffer_load_dwordx4 {Fr(f+FD)}, v22, s[48:51], s11 offen{wnt}")
            a("s_add_u32 s11, s11, s12")
        for b in range(4):
            for e in range(8):
                a(f"v_fmac_f32 v{FA+8*b+e}, s{80+b}, v{FU+e}")
    a("v_lshlrev_b32 v2, 5, v0")
    a("s_lshl_b32 s10, s6, 13")
    for b in range(4):
        a(f"buffer_store_dwordx4 v[{FA+8*b}:{FA+8*b+3}], v2, s[60:63], s10 offen offset:{2048*(b&1)}")
        a(f"buffer_store_dwordx4 v[{FA+8*b+4}:{FA+8*b+7}], v2, s[60:63], s10 offen offset:{2048*(b&1)+16}")
        if b == 1:
            a("s_add_u32 s10, s10, 4096")
    stamp(5)
    a("s_branch LA_end2")
    a.label("LA_end")
    a("s_endpgm")

    fin_kernel(a)

    for name, vg in (("attn_kernel", 168), ("fin_kernel", 48)):
        a.raw(f""".section .rodata,"a"
.p2align 6
.amdhsa_kernel {name}
  .amdhsa_next_free_vgpr {vg}
  .amdhsa_next_free_sgpr 100
  .amdhsa_accum_offset {vg}
  .amdhsa_group_segment_fixed_size 0
  .amdhsa_kernarg_size 104
  .amdhsa_user_sgpr_count 2
  .amdhsa_user_sgpr_kernarg_segment_ptr 1
  .amdhsa_system_sgpr_workgroup_id_x 1
.end_amdhsa_kernel""")
    return a.text()


def fin_kernel(a):
    a.raw(".globl fin_kernel\n.p2align 8\n.type fin_kernel,@function")
    a.label("fin_kernel")
    a("s_cmp_ge_u32 s2, 64")
    a("s_cbranch_scc1 LB_end")
    a("s_load_dwordx2 s[16:17], s[0:1], 0")
    a("s_load_dwordx4 s[32:35], s[0:1], 72")
    a("s_load_dwordx2 s[40:41], s[0:1], 96")
    a("s_lshr_b32 s7, s2, 4")
    a("s_and_b32 s8, s2, 15")
    a("s_mov_b32 s42, 0xffff0000")
    a(f"s_mov_b32 s69, {LOG2E:#x}")
    for r in (47, 51, 55, 59, 63):
        a(f"s_mov_b32 s{r}, 0x20000")
    a(f"s_mov_b32 s46, {WS_STATS + 2048}")
    a(f"s_mov_b32 s50, {NFFN*8192}")
    a("s_mov_b32 s54, 4096")
    a("s_mov_b32 s58, 1024")
    a("s_mov_b32 s62, 4096")
    a("v_lshrrev_b32 v1, 3, v0")
    a("v_and_b32 v2, 7, v0")
    a("v_lshlrev_b32 v3, 11, v1")
    a("v_lshl_add_u32 v3, v2, 4, v3")
    a("v_lshrrev_b32 v4, 1, v1")
    a("v_lshlrev_b32 v4, 4, v4")
    a("v_lshlrev_b32 v5, 13, v1")
    a("v_lshl_add_u32 v5, v2, 4, v5")
    a("v_lshlrev_b32 v6, 2, v0")
    a("s_lshl_b32 s4, s7, 17")
    a("s_lshl_b32 s5, s8, 7")
    a("s_add_u32 s4, s4, s5")
    a("s_add_u32 s10, s4, 65536")
    a("s_lshl_b32 s11, s7, 9")
    a(f"s_add_u32 s11, s11, {WS_STATS}")
    a("s_lshl_b32 s12, s7, 11")
    a("s_add_u32 s12, s12, s5")
    a("s_add_u32 s13, s12, 0x40000")
    a("s_add_u32 s14, s12, 0x80000")
    a("s_lshl_b32 s15, s7, 10")
    a("s_waitcnt lgkmcnt(0)")
    a("s_mov_b32 s44, s40")
    a("s_mov_b32 s45, s41")
    a(f"s_add_u32 s48, s40, {WS_F}")
    a("s_addc_u32 s49, s41, 0")
    a("s_mov_b32 s52, s16")
    a("s_mov_b32 s53, s17")
    a("s_mov_b32 s56, s32")
    a("s_mov_b32 s57, s33")
    a("s_mov_b32 s60, s34")
    a("s_mov_b32 s61, s35")
    a("buffer_load_dwordx4 v[8:11], v4, s[44:47], s11 offen")
    a("buffer_load_dwordx4 v[12:15], v4, s[44:47], s11 offen offset:256")
    a("buffer_load_dword v36, v6, s[52:55], s15 offen")
    a("buffer_load_dword v37, v6, s[56:59], 0 offen")
    a("buffer_load_dwordx4 v[16:19], v3, s[44:47], s4 offen")
    a("buffer_load_dwordx4 v[20:23], v3, s[44:47], s10 offen")
    a("buffer_load_dwordx4 v[24:27], v5, s[48:51], s12 offen")
    a("buffer_load_dwordx4 v[28:31], v5, s[48:51], s13 offen")
    a("buffer_load_dwordx4 v[32:35], v5, s[48:51], s14 offen")
    a("v_and_b32 v7, 1, v1")
    a("v_cmp_eq_u32 vcc, 1, v7")
    a("s_waitcnt vmcnt(7)")
    for k, sb in enumerate((8, 12)):
        w = f"v{38+k}"
        a(f"v_max_f32 v40, v{sb}, v{sb+2}")
        a(f"v_sub_f32 v{sb}, v{sb}, v40")
        a(f"v_sub_f32 v{sb+2}, v{sb+2}, v40")
        a(f"v_mul_f32 v{sb}, s69, v{sb}")
        a(f"v_mul_f32 v{sb+2}, s69, v{sb+2}")
        a(f"v_exp_f32 v{sb}, v{sb}")
        a(f"v_exp_f32 v{sb+2}, v{sb+2}")
        a(f"v_mul_f32 v{sb}, v{sb}, v{sb+1}")
        a(f"v_mul_f32 v{sb+2}, v{sb+2}, v{sb+3}")
        a(f"v_add_f32 v40, v{sb}, v{sb+2}")
        a("v_rcp_f32 v40, v40")
        a(f"v_cndmask_b32 {w}, v{sb}, v{sb+2}, vcc")
        a(f"v_mul_f32 {w}, {w}, v40")
    a("s_waitcnt vmcnt(5)")
    a("v_lshlrev_b32 v40, 16, v36")
    a("v_and_b32 v41, s42, v36")
    a("v_lshlrev_b32 v42, 16, v37")
    a("v_and_b32 v43, s42, v37")
    a("v_mul_f32 v40, v40, v42")
    a("v_mul_f32 v41, v41, v43")
    round_bf16(a, "v40")
    round_bf16(a, "v41")
    a("v_add_f32 v40, v40, v41")
    for r in (1, 2, 4, 8):
        a(f"v_add_f32_dpp v40, v40, v40 row_ror:{r} row_mask:0xf bank_mask:0xf")
    for g in range(4):
        a(f"v_readlane_b32 s{80+g}, v40, {16*g}")
    a("v_mov_b32 v40, s80")
    a("v_add_f32 v40, s81, v40")
    a("v_add_f32 v40, s82, v40")
    a("v_add_f32 v40, s83, v40")
    a("v_lshrrev_b32 v41, 6, v0")
    a("v_lshlrev_b32 v42, 2, v41")
    a("ds_write_b32 v42, v40 offset:1024")
    a("s_waitcnt vmcnt(3)")
    for k in range(4):
        a(f"v_mul_f32 v{16+k}, v38, v{16+k}")
        a(f"v_fmac_f32 v{16+k}, v39, v{20+k}")
    a("s_waitcnt vmcnt(0)")
    for k in range(4):
        a(f"v_add_f32 v{24+k}, v{24+k}, v{28+k}")
        a(f"v_add_f32 v{24+k}, v{24+k}, v{32+k}")
    for k in range(4):
        a(f"v_permlane32_swap_b32 v{16+k}, v{24+k}")
    for k in range(4):
        a(f"v_add_f32 v{16+k}, v{16+k}, v{24+k}")
    a("v_permlane16_swap_b32 v16, v17")
    a("v_permlane16_swap_b32 v18, v19")
    a("v_add_f32 v16, v16, v17")
    a("v_add_f32 v18, v18, v19")
    a("v_add_f32_dpp v16, v16, v16 row_ror:8 row_mask:0xf bank_mask:0xf")
    a("v_add_f32_dpp v18, v18, v18 row_ror:8 row_mask:0xf bank_mask:0xf")
    a("v_bfe_u32 v43, v0, 5, 1")
    a("v_lshlrev_b32 v43, 7, v43")
    a("v_lshl_add_u32 v43, v41, 8, v43")
    a("v_lshl_add_u32 v43, v2, 4, v43")
    a("v_bfe_u32 v44, v0, 4, 1")
    a("v_lshl_add_u32 v43, v44, 2, v43")
    a("ds_write_b32 v43, v16")
    a("ds_write_b32 v43, v18 offset:8")
    a("s_waitcnt lgkmcnt(0)")
    a("s_barrier")
    a("v_cmp_gt_u32 vcc, 32, v0")
    a("s_and_saveexec_b64 s[84:85], vcc")
    a("s_cbranch_execz LB_end")
    a("v_mov_b32 v1, 0")
    for w in range(4):
        a(f"ds_read_b32 v{8+w}, v6 offset:{256*w}")
        a(f"ds_read_b32 v{12+w}, v6 offset:{256*w+128}")
    a("ds_read_b128 v[16:19], v1 offset:1024")
    a("s_waitcnt lgkmcnt(0)")
    a("v_add_f32 v8, v8, v9")
    a("v_add_f32 v10, v10, v11")
    a("v_add_f32 v12, v12, v13")
    a("v_add_f32 v14, v14, v15")
    a("v_add_f32 v16, v16, v17")
    a("v_add_f32 v18, v18, v19")
    a("v_add_f32 v8, v8, v10")
    a("v_add_f32 v12, v12, v14")
    a("v_add_f32 v16, v16, v18")
    round_bf16(a, "v8")
    round_bf16(a, "v12")
    round_bf16(a, "v16")
    a("v_mul_f32 v16, s69, v16")
    a("v_exp_f32 v16, -v16")
    a("v_add_f32 v16, 1.0, v16")
    a("v_rcp_f32 v16, v16")
    round_bf16(a, "v16")
    a("v_sub_f32 v17, 1.0, v16")
    round_bf16(a, "v17")
    a("v_mul_f32 v8, v16, v8")
    a("v_mul_f32 v12, v17, v12")
    round_bf16(a, "v8")
    round_bf16(a, "v12")
    a("v_add_f32 v8, v8, v12")
    a("v_cvt_pk_bf16_f32 v8, v8, v8")
    a("v_lshlrev_b32 v1, 1, v0")
    a("s_lshl_b32 s4, s7, 10")
    a("s_lshl_b32 s5, s8, 6")
    a("s_add_u32 s4, s4, s5")
    a("buffer_store_short v8, v1, s[60:63], s4 offen")
    a.label("LB_end")
    a("s_endpgm")


if __name__ == "__main__":
    ap = argparse.ArgumentParser()
    ap.add_argument("-o", default="v2.s")
    ap.add_argument("--ts", type=int, default=0)
    ap.add_argument("--slots", type=int, default=16)
    ap.add_argument("--inflight", type=int, default=24)
    ap.add_argument("--wo_at", type=int, default=1)
    ap.add_argument("--wo_npj", type=int, default=2)
    ap.add_argument("--fd", type=int, default=2)
    ap.add_argument("--pf", type=int, default=1)
    ap.add_argument("--coop", type=int, default=0)
    ap.add_argument("--wnt", type=int, default=1)
    ap.add_argument("--cnt", type=int, default=1)
    ap.add_argument("--dshift", type=int, default=4)
    ap.add_argument("--prep_at", type=int, default=11)
    ap.add_argument("--warm", type=int, default=12)
    ap.add_argument("--map", default="xcd")
    ap.add_argument("--ffn_wait", type=int, default=1)
    ap.add_argument("--tk", type=int, default=1)
    args = ap.parse_args()
    open(args.o, "w").write(gen(args))
```

```python
import sys, argparse
sys.path.insert(0, "work")
from asmlib import Asm

HEADER = open("gated_mix__gqa_block_cached__glu_gated_glu__decode.s.ref").read().split("; Override launch")[0]

WS_Y = 0
WS_STATS = 512 * 1024
WS_F = 1024 * 1024
NFFN = 86
WS_BOARD = 2 * 1024 * 1024

LOG2E = 0x3FB8AA3B
SCALE = 0x3DB504F3


def round_bf16(a, v):
    a(f"v_cvt_pk_bf16_f32 {v}, {v}, {v}")
    a(f"v_and_b32 {v}, s42, {v}")


def gen(args):
    a = Asm()
    NS = args.slots
    NJ = 128
    wnt = " nt" if args.wnt else ""
    cnt = " nt" if args.cnt else ""
    DS = args.dshift
    INF = args.inflight
    INF2 = args.inf2 or INF
    RING = NS * 8192
    LV = [int(x) for x in args.lv.split(",")]
    TH = [float(x) for x in args.th.split(",")]
    C_LANDED = RING
    C_DONE = RING + 4
    C_BAR = RING + 64
    C_DEPTH = RING + 128
    L_QP = RING + 256
    L_OP = L_QP
    L_ST = L_OP + 4096
    C_TK = L_ST + 128
    L_QQ = L_ST + 256
    L_XT = L_QQ + 2048
    LDS_A = L_XT + 8192
    L_Y = 0
    assert LDS_A <= 163840
    W0, KB, VB, T0 = 40, 104, 120, 24
    ACC, Q = 8, 4
    P, M, L = 16, 17, 18
    VRED = 19
    VZ = 136
    VBASE = 137
    VDONE = 138
    VCNT = 139

    def Wr(i): return f"v[{W0+4*i}:{W0+4*i+3}]"

    def stamp(k, mode=1):
        if args.ts and (mode == args.ts or k in (0, 1, 5)):
            a(f"s_memrealtime s[{84+2*k}:{85+2*k}]")

    def stamp_store():
        if args.ts:
            a("s_mov_b64 exec, 1")
            a("s_mul_i32 s4, s2, 10")
            a("s_add_u32 s4, s4, s3")
            a("s_lshl_b32 s4, s4, 6")
            a(f"s_add_u32 s60, s40, {4<<20}")
            a("s_addc_u32 s61, s41, 0")
            a("s_mov_b32 s62, 0x100000")
            a("s_mov_b32 s63, 0x20000")
            a("v_mov_b32 v2, 0")
            a("s_getreg_b32 s96, hwreg(HW_REG_XCC_ID)")
            a("s_getreg_b32 s97, hwreg(HW_REG_HW_ID)")
            a("s_waitcnt lgkmcnt(0)")
            for k in range(7):
                a(f"v_mov_b32 v4, s{84+2*k}")
                a(f"v_mov_b32 v5, s{85+2*k}")
                a(f"buffer_store_dwordx2 v[4:5], v2, s[60:63], s4 offen offset:{8*k}")
                a.nop(2)

    def lds_barrier(k, tag):
        a("s_waitcnt lgkmcnt(0)")
        a("s_mov_b64 exec, 1")
        a(f"ds_add_u32 v{VZ}, v{VCNT} offset:{C_BAR - RING + 4*k}")
        a("s_mov_b64 exec, -1")
        a.label(f"LB_spin{tag}")
        a(f"ds_read_b32 v23, v{VZ} offset:{C_BAR - RING + 4*k}")
        a("s_waitcnt lgkmcnt(0)")
        a("v_readfirstlane_b32 s14, v23")
        a("s_cmp_lt_u32 s14, 8")
        a(f"s_cbranch_scc1 LB_spin{tag}")

    a.raw(HEADER.rstrip("\n"))
    a.raw(f"; @launch kernel=attn_kernel grid=(256,1,1) block=({704 if args.mon else 640},1,1) lds={LDS_A}")
    a.raw("; @launch kernel=fin_kernel grid=(64,1,1) block=(256,1,1) lds=2048")
    a.raw('.amdgcn_target "amdgcn-amd-amdhsa--gfx950"')
    a.raw(".text")
    a.raw(".globl attn_kernel\n.p2align 8\n.type attn_kernel,@function")
    a.label("attn_kernel")
    a("s_cmp_ge_u32 s2, 256")
    a("s_cbranch_scc1 LA_end")
    a("s_load_dwordx16 s[16:31], s[0:1], 0")
    a("s_load_dwordx8 s[32:39], s[0:1], 64")
    a("s_load_dwordx2 s[40:41], s[0:1], 96")
    stamp(0)
    a("v_lshrrev_b32 v1, 6, v0")
    a("v_readfirstlane_b32 s3, v1")
    if args.tk:
        a("s_cmp_eq_u32 s3, 0")
        a("s_cbranch_scc1 LA_tk")
    if args.pf:
        a("s_getpc_b64 s[64:65]")
        a.label("LA_pc")
        a("s_mov_b32 s66, LB_end-LA_pc")
        a("s_mov_b32 s67, 0x20000")
        a("v_lshlrev_b32 v2, 6, v0")
        a("buffer_load_dword v39, v2, s[64:67], 0 offen")
    a("v_and_b32 v0, 63, v0")
    a("v_lshlrev_b32 v3, 2, v0")
    a("v_mov_b32 v2, 0")
    a(f"v_add_u32 v3, {RING}, v3")
    a("ds_write_b32 v3, v2")
    if args.tk:
        a(f"v_mov_b32 v4, {C_TK}")
        a("s_waitcnt lgkmcnt(0)")
        a("s_barrier")
        a("ds_read_b32 v5, v4")
        a("s_waitcnt lgkmcnt(0)")
        a("v_readfirstlane_b32 s2, v5")
        a("s_branch LA_tk_done")
        a.label("LA_tk")
        a("s_getreg_b32 s4, hwreg(HW_REG_XCC_ID)")
        a("s_and_b32 s4, s4, 7")
        a("s_movk_i32 s62, 256")
        a("s_mov_b32 s63, 0x20000")
        a("s_mov_b32 s9, 0")
        a(f"v_mov_b32 v6, {C_TK}")
        a("s_mov_b64 exec, 1")
        a("s_waitcnt lgkmcnt(0)")
        a("s_mov_b32 s60, s38")
        a("s_mov_b32 s61, s39")
        a.label("LA_tk_loop")
        a("s_lshl_b32 s5, s4, 5")
        a("v_mov_b32 v4, 1")
        a("v_mov_b32 v5, s5")
        a("buffer_atomic_add v4, v5, s[60:63], 0 offen sc0")
        a("s_waitcnt vmcnt(0)")
        a("v_readfirstlane_b32 s5, v4")
        a("s_cmp_lt_u32 s5, 32")
        a("s_cbranch_scc1 LA_tk_got")
        a("s_add_u32 s4, s4, 1")
        a("s_and_b32 s4, s4, 7")
        a("s_add_u32 s9, s9, 1")
        a("s_cmp_lt_u32 s9, 8")
        a("s_cbranch_scc1 LA_tk_loop")
        a("s_movk_i32 s5, 64")
        a.label("LA_tk_got")
        a("s_and_b32 s2, s5, 3")
        a(f"s_lshl_b32 s2, s2, {6 if args.tkmap else 3}")
        a("s_or_b32 s2, s2, s4")
        a("s_bfe_u32 s4, s5, 0x10004")
        a("s_lshl_b32 s4, s4, 5")
        a("s_or_b32 s2, s2, s4")
        a("s_bfe_u32 s4, s5, 0x20002")
        a(f"s_lshl_b32 s4, s4, {3 if args.tkmap else 6}")
        a("s_or_b32 s2, s2, s4")
        a("s_and_b32 s4, s5, 64")
        a("s_lshl_b32 s4, s4, 2")
        a("s_or_b32 s2, s2, s4")
        a("v_mov_b32 v4, s2")
        a("ds_write_b32 v6, v4")
        a("s_mov_b64 exec, -1")
        a("s_waitcnt lgkmcnt(0)")
        a("s_barrier")
        a.label("LA_tk_done")
        a("s_cmp_ge_u32 s2, 256")
        a("s_cbranch_scc1 LA_end")
    if args.map == "pair":
        a("s_lshr_b32 s4, s2, 1")
        a("s_and_b32 s5, s4, 3")
        a("s_lshl_b32 s5, s5, 3")
        a("s_bfe_u32 s6, s4, 0x30002")
        a("s_add_u32 s6, s6, s5")
        a("s_lshr_b32 s7, s4, 5")
        a("s_and_b32 s8, s2, 1")
    else:
        a("s_and_b32 s4, s2, 7")
        a("s_bfe_u32 s6, s2, 0x20003")
        a("s_lshl_b32 s4, s4, 2")
        a("s_add_u32 s6, s6, s4")
        a("s_lshr_b32 s7, s2, 6")
        a("s_bfe_u32 s8, s2, 0x10005")
    a("s_lshl_b32 s5, s7, 5")
    a("s_add_u32 s5, s5, s6")
    a(f"s_cmp_lt_u32 s5, {NFFN}")
    a(f"s_cselect_b32 s4, {DS}, 0")
    a(f"s_sub_u32 s78, {NJ}, s4")
    a(f"s_add_u32 s79, s4, {NJ}")
    a("s_cmp_eq_u32 s8, 0")
    a("s_cselect_b32 s79, s78, s79")
    a("s_cselect_b32 s78, 0, s78")
    a("v_lshlrev_b32 v1, 4, v0")
    a("s_mov_b32 s47, 0x20000")
    a("s_mov_b32 s51, 0x20000")
    if not args.tk:
        a("s_waitcnt lgkmcnt(0)")
        a("s_barrier")
    stamp(2, 2)
    a("s_cmp_lg_u32 s3, 0")
    a("s_cbranch_scc1 LA_cons")
    a("s_setprio 3")
    a("s_lshl_b32 s10, s5, 20")
    a("s_lshl_b32 s4, s78, 12")
    a("s_add_u32 s10, s10, s4")
    a("s_mov_b32 s44, s18")
    a("s_mov_b32 s45, s19")
    a("s_mov_b32 s46, 0x08000000")
    a("s_mov_b32 s48, s20")
    a("s_mov_b32 s49, s21")
    a("s_mov_b32 s50, 0x08000000")
    a("s_mov_b32 s12, 0")
    a("s_mov_b32 s13, 0")
    a("s_mov_b32 s9, 0")
    a(f"v_mov_b32 v4, {C_LANDED}")
    a(f"s_movk_i32 s15, {NS}")
    a(f"s_sub_u32 s11, s79, {args.deep_at}")
    a("s_mov_b32 s64, 0")
    if args.deepcls:
        a("s_bfe_u32 s4, s2, 0x20003")
        a("s_cmp_eq_u32 s4, 1")
        a("s_cselect_b32 s11, 0, s11")
    a.label("LL_loop")
    a("s_mov_b32 m0, s12")
    a("s_add_u32 s14, s12, 4096")
    for i in range(4):
        a(f"buffer_load_dwordx4 v1, s[44:47], s10 offen offset:{1024*i} nt lds")
    a("s_mov_b32 m0, s14")
    a("s_add_u32 s12, s12, 8192")
    for i in range(4):
        a(f"buffer_load_dwordx4 v1, s[48:51], s10 offen offset:{1024*i} nt lds")
    a(f"s_cmp_eq_u32 s12, {RING}")
    a("s_cselect_b32 s12, 0, s12")
    a("s_add_u32 s10, s10, 4096")
    a("s_add_u32 s13, s13, 1")
    if args.ts == 3:
        for k, x in ((1, 16), (2, 32), (3, 64), (4, 96)):
            a(f"s_cmp_lg_u32 s13, {x}")
            a(f"s_cbranch_scc1 LL_ns{k}")
            a(f"s_memrealtime s[{84+2*k}:{85+2*k}]")
            a.label(f"LL_ns{k}")
    a(f"s_sub_u32 s14, s13, {NS}")
    a("s_and_b32 s5, s14, 7")
    a("s_lshl_b32 s5, s5, 2")
    a(f"s_add_u32 s5, s5, {C_DONE}")
    a("v_mov_b32 v5, s5")
    if args.mon:
        a("ds_read_b32 v7, v5")
        a(f"ds_read_b32 v8, v4 offset:{C_DEPTH - C_LANDED}")
        if args.deep_at:
            a("s_cmp_ge_u32 s13, s11")
            a(f"s_cselect_b32 s4, {args.end_code}, 0")
            a("s_max_u32 s64, s64, s4")
        order = list(range(len(LV)))
        for n, code in enumerate(order):
            N = LV[code]
            if n < len(order) - 1:
                a(f"s_cmp_lg_u32 s64, {code}")
                a(f"s_cbranch_scc1 LL_lv{n+1}")
            a(f"s_sub_u32 s4, s13, {(N + 7)//8}")
            a("s_max_i32 s9, s9, s4")
            a("v_mov_b32 v6, s9")
            a(f"s_waitcnt vmcnt({N})")
            if n < len(order) - 1:
                a("s_branch LL_pub")
                a.label(f"LL_lv{n+1}")
        a.label("LL_pub")
        a("s_waitcnt lgkmcnt(0)")
        a("v_readfirstlane_b32 s64, v8")
    else:
        if INF2 != INF:
            a("s_cmp_ge_u32 s13, s11")
            a("s_cbranch_scc1 LL_deep")
        a(f"s_sub_u32 s4, s13, {INF//8 - 1}")
        a("s_max_i32 s9, s9, s4")
        a("v_mov_b32 v6, s9")
        a("ds_read_b32 v7, v5")
        a(f"s_waitcnt vmcnt({INF-8})")
        if INF2 != INF:
            a("s_branch LL_pub")
            a.label("LL_deep")
            a(f"s_sub_u32 s4, s13, {INF2//8 - 1}")
            a("s_max_i32 s9, s9, s4")
            a("v_mov_b32 v6, s9")
            a("ds_read_b32 v7, v5")
            a(f"s_waitcnt vmcnt({INF2-8})")
            a.label("LL_pub")
    a("ds_write_b32 v4, v6")
    a("s_cmp_ge_u32 s13, s79")
    a("s_cbranch_scc1 LL_fin")
    a("s_cmp_lt_u32 s13, s15")
    a("s_cbranch_scc1 LL_loop")
    a("s_lshr_b32 s14, s14, 3")
    if not args.mon:
        a("s_waitcnt lgkmcnt(0)")
    a("v_readfirstlane_b32 s4, v7")
    a("s_cmp_gt_u32 s4, s14")
    a("s_cbranch_scc1 LL_loop")
    a("s_mov_b32 s9, s13")
    a("v_mov_b32 v6, s13")
    a("s_waitcnt vmcnt(0)")
    a("ds_write_b32 v4, v6")
    a.label("LL_spin")
    a("s_sleep 1")
    a("ds_read_b32 v7, v5")
    a("s_waitcnt lgkmcnt(0)")
    a("v_readfirstlane_b32 s4, v7")
    a("s_cmp_gt_u32 s4, s14")
    a("s_cbranch_scc1 LL_loop")
    a("s_branch LL_spin")
    a.label("LL_fin")
    for k in range(((max(LV) + 7) // 8 - 1) if args.mon else (INF2 // 8 - 2), -1, -1):
        a(f"s_sub_u32 s4, s79, {k}")
        a("s_max_i32 s9, s9, s4")
        a("v_mov_b32 v6, s9")
        a(f"s_waitcnt vmcnt({8*k})")
        a("ds_write_b32 v4, v6")
    stamp(5)
    a("s_branch LA_end2")

    a.label("LA_cons")
    a("s_mov_b32 s42, 0xffff0000")
    a(f"s_mov_b32 s69, {LOG2E:#x}")
    a("s_mov_b32 s55, 0x20000")
    a("s_mov_b32 s59, 0x20000")
    a("s_mov_b32 s63, 0x20000")
    a("s_cmp_eq_u32 s3, 9")
    a("s_cbranch_scc1 LA_ffn")
    if args.mon:
        a("s_cmp_eq_u32 s3, 10")
        a("s_cbranch_scc1 LA_mon")
    a("s_sub_u32 s9, s3, 1")
    a("v_lshrrev_b32 v20, 4, v0")
    a("v_and_b32 v21, 15, v0")
    a("v_lshlrev_b32 v2, 14, v20")
    a("v_lshl_add_u32 v2, v21, 4, v2")
    a("v_lshlrev_b32 v3, 2, v20")
    a("v_lshl_add_u32 v3, v21, 4, v3")
    a("s_lshl_b32 s4, s7, 10")
    a("s_lshl_b32 s5, s9, 7")
    a("s_add_u32 s4, s4, s5")
    a("s_lshl_b32 s11, s9, 19")
    a("s_lshl_b32 s12, s6, 8")
    a("s_add_u32 s11, s11, s12")
    a("s_mov_b32 s48, s22")
    a("s_mov_b32 s49, s23")
    a("s_mov_b32 s50, 0x00400000")
    a("s_mov_b32 s56, s16")
    a("s_mov_b32 s57, s17")
    a("s_mov_b32 s58, 4096")
    a(f"buffer_load_dword v{P}, v3, s[56:59], s4 offen")
    if args.coop:
        a("v_lshrrev_b32 v22, 3, v0")
        a("v_lshlrev_b32 v22, 13, v22")
        a("v_and_b32 v23, 7, v0")
        a("v_lshl_add_u32 v22, v23, 5, v22")
        a("s_lshr_b32 s4, s2, 5")
        a("s_lshl_b32 s4, s4, 19")
        a("s_lshl_b32 s5, s9, 16")
        a("s_add_u32 s4, s4, s5")
        a("s_add_u32 s4, s4, s12")
        a(f"buffer_load_dword v38, v22, s[48:51], s4 offen{cnt}")
        a("s_waitcnt vmcnt(0)")
        if args.coop > 1:
            a(f"s_sleep {args.coop}")
    for k in range(8):
        a(f"buffer_load_dwordx4 {Wr(2*k)}, v2, s[48:51], s11 offen{wnt}")
        a("s_add_u32 s12, s11, 8192")
        a(f"buffer_load_dwordx4 {Wr(2*k+1)}, v2, s[48:51], s12 offen{wnt}")
        if k < 7:
            a("s_add_u32 s11, s11, 65536")
    a(f"s_mov_b32 s68, {SCALE:#x}")
    a("s_mov_b32 s70, 0x05040100")
    a("s_mov_b32 s71, 0x07060302")
    a("s_mov_b32 s52, s24")
    a("s_mov_b32 s53, s25")
    a("s_mov_b32 s54, 0x00400000")
    a("s_mov_b32 s60, s40")
    a("s_mov_b32 s61, s41")
    a(f"s_mov_b32 s62, {WS_STATS + 2048}")
    a("v_and_b32 v22, 1, v20")
    a("v_lshlrev_b32 v22, 1, v22")
    a("v_lshrrev_b32 v23, 1, v20")
    a("v_or_b32 v22, v22, v23")
    a("v_lshl_add_u32 v22, v21, 3, v22")
    a("v_lshlrev_b32 v22, 2, v22")
    a("s_lshl_b32 s4, s9, 9")
    a(f"s_add_u32 s4, s4, {L_QP}")
    a(f"v_add_u32 v{VRED}, s4, v22")
    a(f"v_mov_b32 v{VZ}, {RING}")
    a(f"v_mov_b32 v{VCNT}, 1")
    a("s_lshl_b32 s4, s9, 13")
    a(f"v_add_u32 v{VBASE}, s4, v1")
    a("s_lshl_b32 s4, s9, 2")
    a(f"s_add_u32 s4, s4, {C_DONE}")
    a(f"v_mov_b32 v{VDONE}, s4")
    for j in range(8):
        a(f"v_mov_b32 v{ACC+j}, 0")
    for k in range(8):
        tb = T0 + 8 * (k & 1)
        a(f"s_waitcnt vmcnt({14 - 2*k})")
        if k == 0:
            stamp(3, 2)
        for d in range(4):
            A_, B_ = W0 + 8 * k + d, W0 + 8 * k + 4 + d
            a(f"v_perm_b32 v{tb+2*d}, v{B_}, v{A_}, s70")
            a(f"v_perm_b32 v{tb+2*d+1}, v{B_}, v{A_}, s71")
        for e in range(8):
            a(f"v_dot2c_f32_bf16_dpp v{ACC+e}, v{P}, v{tb+e} row_newbcast:{k} row_mask:0xf bank_mask:0xf")

    def cross_row_reduce8(base):
        for k in range(4):
            a(f"v_permlane32_swap_b32 v{base+2*k}, v{base+2*k+1}")
        for k in range(4):
            a(f"v_add_f32 v{base+2*k}, v{base+2*k}, v{base+2*k+1}")
        a(f"v_permlane16_swap_b32 v{base}, v{base+2}")
        a(f"v_permlane16_swap_b32 v{base+4}, v{base+6}")
        a(f"v_add_f32 v{base}, v{base}, v{base+2}")
        a(f"v_add_f32 v{base+4}, v{base+4}, v{base+6}")

    cross_row_reduce8(ACC)
    a(f"ds_write_b32 v{VRED}, v{ACC}")
    a(f"ds_write_b32 v{VRED}, v{ACC+4} offset:16")
    a("v_lshlrev_b32 v20, 3, v0")
    a(f"v_add_u32 v20, {L_QP}, v20")
    stamp(4, 2)
    lds_barrier(0, "q")
    for w in range(8):
        a(f"ds_read_b64 v[{T0+2*w}:{T0+2*w+1}], v20 offset:{512*w}")
    a("s_lshl_b32 s4, s9, 8")
    a(f"s_add_u32 s4, s4, {L_QQ}")
    a("v_lshlrev_b32 v21, 2, v0")
    a("v_add_u32 v21, s4, v21")
    a("v_and_b32 v22, 15, v0")
    a("v_lshlrev_b32 v22, 4, v22")
    a("v_add_u32 v22, s4, v22")
    a("s_waitcnt lgkmcnt(0)")
    for st in (1, 2, 4):
        for w in range(0, 8, 2 * st):
            a(f"v_add_f32 v{T0+2*w}, v{T0+2*w}, v{T0+2*(w+st)}")
            a(f"v_add_f32 v{T0+2*w+1}, v{T0+2*w+1}, v{T0+2*(w+st)+1}")
    a(f"v_cvt_pk_bf16_f32 v23, v{T0}, v{T0+1}")
    a("ds_write_b32 v21, v23")
    a("s_waitcnt lgkmcnt(0)")
    a(f"ds_read_b128 v[{Q}:{Q+3}], v22")
    for j in range(8):
        a(f"v_mov_b32 v{ACC+j}, 0")
    a(f"v_mov_b32 v{M}, 0xff800000")
    a(f"v_mov_b32 v{L}, 0")
    if args.coop:
        a("s_lshl_b32 s4, s6, 17")
        a("s_lshr_b32 s5, s2, 5")
        a("s_lshl_b32 s5, s5, 14")
        a("s_add_u32 s4, s4, s5")
        a("s_lshl_b32 s5, s9, 11")
        a("s_add_u32 s4, s4, s5")
        a("v_lshlrev_b32 v22, 5, v0")
        a(f"buffer_load_dword v141, v22, s[52:55], s4 offen{cnt}")
    a("s_lshl_b32 s43, s6, 17")
    a("s_lshl_b32 s5, s9, 14")
    a("s_add_u32 s43, s43, s5")
    a("s_mov_b32 s13, s9")
    a("s_mov_b32 s15, 0")
    a(f"v_mov_b32 v{VCNT+1}, 0")
    stamp(1)
    a.label("LC_poll")
    a(f"ds_read_b32 v20, v{VZ}")
    a("s_waitcnt lgkmcnt(0)")
    a("v_readfirstlane_b32 s14, v20")
    a("s_cmp_gt_u32 s14, s13")
    a("s_cbranch_scc1 LC_go")
    a("s_sleep 1")
    a("s_branch LC_poll")
    a.label("LC_go")
    for i in range(4):
        a(f"ds_read_b128 v[{KB+4*i}:{KB+4*i+3}], v{VBASE} offset:{1024*i}")
    for i in range(4):
        a(f"ds_read_b128 v[{VB+4*i}:{VB+4*i+3}], v{VBASE} offset:{4096+1024*i}")
    a("s_add_u32 s15, s15, 1")
    a("s_add_u32 s13, s13, 8")
    a(f"v_add_u32 v{VCNT+1}, 1, v{VCNT+1}")
    if NS == 16:
        a(f"v_xor_b32 v{VBASE}, 0x10000, v{VBASE}")
    else:
        a(f"v_add_u32 v{VBASE}, 0x10000, v{VBASE}")
        a(f"v_subrev_u32 v21, {RING}, v{VBASE}")
        a(f"v_min_u32 v{VBASE}, v21, v{VBASE}")
    a("s_waitcnt lgkmcnt(4)")
    for d in range(4):
        for i in range(4):
            t = f"v{T0+i}"
            c = "0" if d == 0 else t
            a(f"v_dot2_f32_bf16 {t}, v{KB+4*i+d}, v{Q+d}, {c}")
    a("s_waitcnt lgkmcnt(0)")
    a(f"ds_write_b32 v{VDONE}, v{VCNT+1}")
    for i in range(2):
        a(f"v_add_f32_dpp v{T0+i}, v{T0+i}, v{T0+i} row_ror:8 row_mask:0xf bank_mask:0x3")
        a(f"v_add_f32_dpp v{T0+i}, v{T0+i+2}, v{T0+i+2} row_ror:8 row_mask:0xf bank_mask:0xc")
    PV1, PV2 = T0 + 8, KB
    for d in range(2):
        a(f"v_perm_b32 v{PV1+2*d}, v{VB+4+d}, v{VB+d}, s70")
        a(f"v_perm_b32 v{PV1+2*d+1}, v{VB+4+d}, v{VB+d}, s71")
    a(f"v_add_f32_dpp v{T0}, v{T0}, v{T0} row_half_mirror row_mask:0xf bank_mask:0x5")
    a(f"v_add_f32_dpp v{T0}, v{T0+1}, v{T0+1} row_half_mirror row_mask:0xf bank_mask:0xa")
    for d in range(2, 4):
        a(f"v_perm_b32 v{PV1+2*d}, v{VB+4+d}, v{VB+d}, s70")
        a(f"v_perm_b32 v{PV1+2*d+1}, v{VB+4+d}, v{VB+d}, s71")
    S = f"v{T0}"
    a(f"v_add_f32_dpp {S}, {S}, {S} quad_perm:[1,0,3,2] row_mask:0xf bank_mask:0xf")
    a(f"v_perm_b32 v{PV2}, v{VB+12}, v{VB+8}, s70")
    a(f"v_perm_b32 v{PV2+1}, v{VB+12}, v{VB+8}, s71")
    a(f"v_add_f32_dpp {S}, {S}, {S} quad_perm:[2,3,0,1] row_mask:0xf bank_mask:0xf")
    round_bf16(a, S)
    a(f"v_mul_f32 {S}, s68, {S}")
    round_bf16(a, S)
    MX = f"v{T0+1}"
    a(f"v_perm_b32 v{PV2+2}, v{VB+13}, v{VB+9}, s70")
    a(f"v_perm_b32 v{PV2+3}, v{VB+13}, v{VB+9}, s71")
    a(f"v_max_f32_dpp {MX}, {S}, {S} row_ror:8 row_mask:0xf bank_mask:0xf")
    a(f"v_perm_b32 v{PV2+4}, v{VB+14}, v{VB+10}, s70")
    a(f"v_perm_b32 v{PV2+5}, v{VB+14}, v{VB+10}, s71")
    a(f"v_max_f32_dpp {MX}, {MX}, {MX} row_ror:4 row_mask:0xf bank_mask:0xf")
    a(f"v_perm_b32 v{PV2+6}, v{VB+15}, v{VB+11}, s70")
    a(f"v_perm_b32 v{PV2+7}, v{VB+15}, v{VB+11}, s71")
    a(f"v_max_f32 {MX}, {MX}, v{M}")
    AL = f"v{T0+2}"
    a(f"v_sub_f32 {AL}, v{M}, {MX}")
    a(f"v_sub_f32 v{P}, {S}, {MX}")
    a(f"v_mul_f32 {AL}, s69, {AL}")
    a(f"v_mul_f32 v{P}, s69, v{P}")
    a(f"v_exp_f32 {AL}, {AL}")
    a(f"v_exp_f32 v{P}, v{P}")
    a(f"v_mov_b32 v{M}, {MX}")
    a(f"v_fma_f32 v{L}, v{L}, {AL}, v{P}")
    a(f"v_mul_f32 v{ACC}, {AL}, v{ACC}")
    a(f"v_mov_b32_dpp v{T0+3}, v{P} row_shl:4 row_mask:0xf bank_mask:0xf")
    for j in range(1, 8):
        a(f"v_mul_f32 v{ACC+j}, {AL}, v{ACC+j}")
        if j == 1:
            a(f"v_cvt_pk_bf16_f32 v{P}, v{P}, v{T0+3}")
    for e in range(8):
        a(f"v_dot2c_f32_bf16_dpp v{ACC+e}, v{P}, v{PV1+e} row_newbcast:0 row_mask:0xf bank_mask:0xf")
    for e in range(8):
        a(f"v_dot2c_f32_bf16_dpp v{ACC+e}, v{P}, v{PV2+e} row_newbcast:8 row_mask:0xf bank_mask:0xf")
    NPJ = args.wo_npj
    NB = 16 // NPJ
    a(f"s_cmp_le_u32 s15, {args.wo_at + NB - 1}")
    a("s_cbranch_scc1 LC_wo")
    a(f"s_cmp_eq_u32 s15, {args.prep_at}")
    a("s_cbranch_scc1 LC_prep")
    a("s_cmp_lt_u32 s13, s79")
    a("s_cbranch_scc1 LC_poll")
    a("s_branch LA_tail")
    a.label("LC_wo")
    for k in range(NB):
        a(f"s_cmp_lg_u32 s15, {args.wo_at + k}")
        a(f"s_cbranch_scc1 {'LC_wo%d' % (k+1) if k < NB-1 else 'LC_poll'}")
        for i in range(NPJ * k, NPJ * (k + 1)):
            if i % 4 == 0 or i == NPJ * k:
                a(f"s_add_u32 s4, s43, {(i >> 2) * 4096}")
            a(f"buffer_load_dwordx4 {Wr(i)}, v1, s[52:55], s4 offen offset:{(i & 3) * 1024}{wnt}")
        a("s_branch LC_poll")
        if k < NB - 1:
            a.label(f"LC_wo{k+1}")

    a.label("LC_prep")
    a("s_waitcnt vmcnt(0)")
    LOr = {}
    prev = 141
    for j in range(8):
        for t in range(4):
            A_, B_ = W0 + 8 * j + t, W0 + 8 * j + 4 + t
            a(f"v_perm_b32 v{prev}, v{B_}, v{A_}, s70")
            a(f"v_perm_b32 v{B_}, v{B_}, v{A_}, s71")
            LOr[(j, t)] = prev
            prev = A_
    if args.warm:
        a("s_mov_b64 exec, 0")
        a("s_branch LW_0")
        a.label("LC_warmret")
        a("s_mov_b64 exec, -1")
    a("s_branch LC_poll")

    a.label("LA_tail")
    if args.warm:
        a.hop_begin("LW", args.warm)
    a.nop(3)
    stamp(3)
    for r in (8, 4):
        a(f"v_add_f32_dpp v{L}, v{L}, v{L} row_ror:{r} row_mask:0xf bank_mask:0xf")
    for g in range(4):
        a(f"v_readlane_b32 s{80+g}, v{M}, {16*g}")
    a("v_mov_b32 v20, s80")
    a("v_max_f32 v20, s81, v20")
    a("v_max_f32 v20, s82, v20")
    a("v_max_f32 v20, s83, v20")
    a(f"v_sub_f32 v22, v{M}, v20")
    a("v_mul_f32 v22, s69, v22")
    a("v_exp_f32 v22, v22")
    a(f"v_mul_f32 v{L}, v22, v{L}")
    for j in range(8):
        a(f"v_mul_f32 v{ACC+j}, v22, v{ACC+j}")
    for g in range(4):
        a(f"v_readlane_b32 s{80+g}, v{L}, {16*g}")
    cross_row_reduce8(ACC)
    a("v_mov_b32 v21, s80")
    a("v_add_f32 v21, s81, v21")
    a("v_add_f32 v21, s82, v21")
    a("v_add_f32 v21, s83, v21")
    a(f"ds_write_b32 v{VRED}, v{ACC} offset:{L_OP - L_QP}")
    a(f"ds_write_b32 v{VRED}, v{ACC+4} offset:{L_OP - L_QP + 16}")
    a("s_lshl_b32 s4, s9, 3")
    a(f"s_add_u32 s4, s4, {L_ST}")
    a("v_mov_b32 v22, s4")
    a("ds_write_b64 v22, v[20:21]")
    a("v_lshlrev_b32 v20, 3, v0")
    a(f"v_add_u32 v20, {L_OP}, v20")
    a(f"v_mov_b32 v21, {L_ST}")
    lds_barrier(1, "t1")
    stamp(4)
    SB = 104
    for k in range(4):
        a(f"ds_read_b128 v[{SB+4*k}:{SB+4*k+3}], v21 offset:{16*k}")
    for w in range(8):
        a(f"ds_read_b64 v[{T0+2*w}:{T0+2*w+1}], v20 offset:{512*w}")
    a("s_lshl_b32 s4, s9, 3")
    a("s_waitcnt lgkmcnt(8)")
    a(f"v_max3_f32 v20, v{SB}, v{SB+2}, v{SB+4}")
    a(f"v_max3_f32 v20, v20, v{SB+6}, v{SB+8}")
    a(f"v_max3_f32 v20, v20, v{SB+10}, v{SB+12}")
    a(f"v_max_f32 v20, v20, v{SB+14}")
    for w in range(8):
        a(f"v_sub_f32 v{SB+2*w}, v{SB+2*w}, v20")
    for w in range(8):
        a(f"v_mul_f32 v{SB+2*w}, s69, v{SB+2*w}")
    for w in range(8):
        a(f"v_exp_f32 v{SB+2*w}, v{SB+2*w}")
    a(f"v_mul_f32 v21, v{SB}, v{SB+1}")
    for w in range(1, 8):
        a(f"v_fmac_f32 v21, v{SB+2*w}, v{SB+2*w+1}")
    a("v_rcp_f32 v22, v21")
    a("s_waitcnt lgkmcnt(0)")
    a(f"v_mul_f32 v2, v{SB}, v{T0}")
    a(f"v_mul_f32 v3, v{SB}, v{T0+1}")
    for w in range(1, 8):
        a(f"v_fmac_f32 v2, v{SB+2*w}, v{T0+2*w}")
        a(f"v_fmac_f32 v3, v{SB+2*w}, v{T0+2*w+1}")
    a("v_mul_f32 v2, v22, v2")
    a("v_mul_f32 v3, v22, v3")
    a("v_cvt_pk_bf16_f32 v2, v2, v3")
    for j in range(8):
        a(f"v_readlane_b32 s{72+j}, v2, s4")
        if j < 7:
            a("s_add_u32 s4, s4, 1")
    for j in range(8):
        for t in range(4):
            c = "0" if j == 0 else f"v{ACC+2*t}"
            a(f"v_dot2_f32_bf16 v{ACC+2*t}, v{LOr[(j, t)]}, s{72+j}, {c}")
            c = "0" if j == 0 else f"v{ACC+2*t+1}"
            a(f"v_dot2_f32_bf16 v{ACC+2*t+1}, v{W0+8*j+4+t}, s{72+j}, {c}")
    a("s_lshl_b32 s4, s9, 11")
    a("v_lshlrev_b32 v2, 5, v0")
    a("v_add_u32 v2, s4, v2")
    a(f"ds_write_b128 v2, v[{ACC}:{ACC+3}] offset:{L_Y}")
    a(f"ds_write_b128 v2, v[{ACC+4}:{ACC+7}] offset:{L_Y+16}")
    a("s_lshl_b32 s4, s9, 8")
    a("v_lshlrev_b32 v3, 2, v0")
    a("v_add_u32 v3, s4, v3")
    a("s_lshl_b32 s5, s7, 6")
    a("s_lshl_b32 s12, s6, 1")
    a("s_add_u32 s5, s5, s12")
    a("s_add_u32 s5, s5, s8")
    a("s_lshl_b32 s5, s5, 11")
    lds_barrier(2, "t2")
    for w in range(8):
        a(f"ds_read_b32 v{T0+w}, v3 offset:{L_Y + 2048*w}")
    a("s_waitcnt lgkmcnt(0)")
    for st in (1, 2, 4):
        for w in range(0, 8, 2 * st):
            a(f"v_add_f32 v{T0+w}, v{T0+w}, v{T0+w+st}")
    if args.warm:
        a.hop_end("LC_warmret")
    a(f"buffer_store_dword v{T0}, v3, s[60:63], s5 offen")
    stamp(5)
    a("s_cmp_lg_u32 s9, 0")
    a("s_cbranch_scc1 LA_end2")
    a("s_lshl_b32 s5, s7, 5")
    a("s_add_u32 s5, s5, s6")
    a("s_lshl_b32 s5, s5, 4")
    a("s_lshl_b32 s12, s8, 3")
    a("s_add_u32 s5, s5, s12")
    a(f"s_add_u32 s5, s5, {WS_STATS}")
    a("v_mov_b32 v2, 0")
    a("s_mov_b64 exec, 1")
    a("buffer_store_dwordx2 v[20:21], v2, s[60:63], s5 offen")
    a.label("LA_end2")
    stamp_store()
    a("s_endpgm")

    if args.mon:
        a.label("LA_mon")
        G = args.glob
        RATE = args.rate
        a("s_memrealtime s[66:67]")
        a("s_and_b32 s15, s2, 7")
        a(f"s_mul_i32 s4, s15, {args.bstride}")
        a(f"s_add_u32 s4, s4, {WS_BOARD}")
        a("s_add_u32 s60, s40, s4")
        a("s_addc_u32 s61, s41, 0")
        a(f"s_movk_i32 s62, {132 if G else 128}")
        a("s_lshr_b32 s12, s2, 3")
        a("s_lshl_b32 s12, s12, 2")
        a("v_lshlrev_b32 v5, 2, v0")
        a("v_mov_b32 v7, 0")
        a(f"v_mov_b32 v6, {C_LANDED}")
        a(f"s_sub_u32 s10, s79, {NJ}")
        a(f"s_sub_u32 s11, s79, {args.mon_stop}")
        if G:
            a(f"s_add_u32 s56, s40, {WS_BOARD + 8*args.bstride}")
            a("s_addc_u32 s57, s41, 0")
            a("s_mov_b32 s58, 32")
            a("s_lshl_b32 s15, s15, 2")
        if args.ts:
            for k in range(6):
                a(f"s_mov_b32 s{84+k}, 0")
        a("s_mov_b64 exec, 1")
        a("s_waitcnt lgkmcnt(0)")
        a(f"s_mul_i32 s4, s66, {RATE}")
        a("s_sub_u32 s4, 0, s4")
        a("v_mov_b32 v4, s4")
        a("buffer_store_dword v4, v7, s[60:63], s12 offen")
        if G:
            a("s_cmp_lg_u32 s12, 0")
            a("s_cbranch_scc1 LM_loop")
            a("s_lshl_b32 s4, s4, 5")
            a("v_mov_b32 v8, s4")
            a("buffer_store_dword v7, v7, s[60:63], 0 offen offset:128")
            a("buffer_store_dword v8, v7, s[56:59], s15 offen sc1")
        a.label("LM_loop")
        a(f"s_sleep {args.mon}")
        a("ds_read_b32 v4, v6")
        a("s_memrealtime s[66:67]")
        a("s_waitcnt lgkmcnt(0)")
        a("v_readfirstlane_b32 s14, v4")
        a("s_cmp_ge_u32 s14, s11")
        a("s_cbranch_scc1 LM_last")
        a("s_sub_u32 s4, s14, s10")
        a("s_lshl_b32 s4, s4, 10")
        a(f"s_mul_i32 s5, s66, {RATE}")
        a("s_sub_u32 s13, s4, s5")
        a("v_mov_b32 v4, s13")
        a("buffer_store_dword v4, v7, s[60:63], s12 offen")
        a("s_cmp_lt_u32 s14, 8")
        a("s_cbranch_scc1 LM_loop")
        a("s_mov_b64 exec, -1")
        a(f"buffer_load_dword v8, v5, s[60:63], 0 offen {args.monld}")
        if G:
            a("s_cmp_lg_u32 s12, 0")
            a("s_cbranch_scc1 LM_nl1")
            a("buffer_load_dword v9, v5, s[56:59], 0 offen sc1")
            a.label("LM_nl1")
        a("s_lshl_b32 s13, s13, 5")
        a("s_waitcnt vmcnt(0)")
        for r in (1, 2, 4, 8):
            a(f"v_add_u32_dpp v8, v8, v8 row_ror:{r} row_mask:0xf bank_mask:0xf")
            if G:
                a(f"v_add_u32_dpp v9, v9, v9 row_ror:{r} row_mask:0xf bank_mask:0xf")
        a("v_readlane_b32 s4, v8, 0")
        a("v_readlane_b32 s5, v8, 16")
        if G:
            a("v_readlane_b32 s65, v8, 32")
            a("v_readlane_b32 s66, v9, 0")
        a("s_mov_b64 exec, 1")
        a("s_add_u32 s4, s4, s5")
        a("s_sub_u32 s13, s4, s13")
        if G:
            a("s_cmp_lg_u32 s12, 0")
            a("s_cbranch_scc1 LM_nl2")
            a("v_mov_b32 v4, s4")
            a("buffer_store_dword v4, v7, s[56:59], s15 offen sc1")
            a("s_lshl_b32 s5, s4, 3")
            a("s_sub_u32 s65, s66, s5")
            a("s_ashr_i32 s65, s65, 3")
            a("v_mov_b32 v4, s65")
            a("buffer_store_dword v4, v7, s[60:63], 0 offen offset:128")
            a.label("LM_nl2")
            a(f"s_min_i32 s65, s65, {int(32768*G)}")
            a(f"s_max_i32 s65, s65, {-int(32768*G)}")
            a("s_add_u32 s13, s13, s65")
        a("s_mov_b32 s5, 0")
        for k, th in enumerate(TH):
            code = k + 1
            if LV[code] < LV[0]:
                a(f"s_cmp_lt_i32 s13, {int(round(th*32768))}")
            else:
                a(f"s_cmp_gt_i32 s13, {int(round(th*32768))}")
            a(f"s_cselect_b32 s5, {code}, s5")
        a("v_mov_b32 v4, s5")
        a(f"ds_write_b32 v6, v4 offset:{C_DEPTH - C_LANDED}")
        if args.ts:
            for k in range(len(LV)):
                a(f"s_cmp_eq_u32 s5, {k}")
                a(f"s_addc_u32 s{84+k}, s{84+k}, 0")
        a("s_branch LM_loop")
        a.label("LM_last")
        if args.ts:
            a("s_lshl_b32 s4, s2, 5")
            a(f"s_add_u32 s60, s40, {(4<<20) + 163840}")
            a("s_addc_u32 s61, s41, 0")
            a("s_mov_b32 s62, 0x100000")
            a("v_mov_b32 v2, 0")
            for k in range(6):
                a(f"v_mov_b32 v4, s{84+k}")
                a(f"buffer_store_dword v4, v2, s[60:63], s4 offen offset:{4*k}")
        a("s_endpgm")

    a.label("LA_ffn")
    a("s_mov_b32 s6, s5")
    a(f"s_cmp_ge_u32 s6, {NFFN}")
    a("s_cbranch_scc1 LA_end")
    a("s_cmp_lg_u32 s8, 0")
    a("s_cbranch_scc1 LA_end")
    if args.ffn_wait:
        a(f"v_mov_b32 v4, {C_DONE}")
        a.label("LF_wait")
        a("s_sleep 8")
        a("ds_read_b32 v5, v4")
        a("s_waitcnt lgkmcnt(0)")
        a("v_readfirstlane_b32 s4, v5")
        a(f"s_cmp_lt_u32 s4, {args.ffn_wait}")
        a("s_cbranch_scc1 LF_wait")
    FB = 104
    FA = 40
    FX = 72
    FU = 80
    FG = 88
    FH = 96
    def Fr(i): return f"v[{FB+4*i}:{FB+4*i+3}]"
    a("v_lshrrev_b32 v20, 1, v0")
    a("v_and_b32 v21, 1, v0")
    a("s_movk_i32 s4, 2752")
    a("v_mul_lo_u32 v2, v20, s4")
    a("v_lshl_add_u32 v2, v21, 4, v2")
    a("v_lshlrev_b32 v3, 4, v20")
    a(f"v_add_u32 v3, {L_XT}, v3")
    a("s_mov_b32 s46, 1409024")
    a("s_mov_b32 s50, 1409024")
    a("s_mov_b32 s58, 4096")
    a(f"s_mov_b32 s62, {NFFN*8192}")
    a("s_lshl_b32 s10, s6, 5")
    a("s_mov_b32 s44, s28")
    a("s_mov_b32 s45, s29")
    a("s_mov_b32 s48, s30")
    a("s_mov_b32 s49, s31")
    a("s_mov_b32 s56, s16")
    a("s_mov_b32 s57, s17")
    a(f"s_add_u32 s60, s40, {WS_F}")
    a("s_addc_u32 s61, s41, 0")
    for b in range(4):
        a(f"buffer_load_dwordx4 v[{4+4*b}:{7+4*b}], v1, s[56:59], 0 offen offset:{1024*b}")
    FD = args.fd
    a("s_mov_b32 s11, s10")
    for i in range(FD):
        a(f"buffer_load_dwordx4 {Fr(i)}, v2, s[44:47], s11 offen{wnt}")
        a(f"s_add_u32 s11, s11, {32*2752}")
    a(f"s_waitcnt vmcnt({FD})")
    for e in range(8):
        for b in range(4):
            src = f"v{4+4*b+(e>>1)}"
            if e & 1:
                a(f"v_and_b32 v{FA+4*e+b}, s42, {src}")
            else:
                a(f"v_lshlrev_b32 v{FA+4*e+b}, 16, {src}")
    a("v_lshlrev_b32 v20, 7, v0")
    a(f"v_add_u32 v20, {L_XT}, v20")
    for e in range(8):
        a(f"ds_write_b128 v20, v[{FA+4*e}:{FA+4*e+3}] offset:{16*e}")
    a("s_waitcnt lgkmcnt(0)")
    a("s_mov_b32 s9, 0")
    a("v_mov_b32 v22, v2")
    a(f"s_mov_b32 s12, {32*2752}")
    a.label("LF_pass")
    for k in range(32):
        a(f"v_mov_b32 v{FA+k}, 0")
    a(f"ds_read_b128 v[{FX}:{FX+3}], v3")
    for i in range(16):
        xb = FX + 4 * (i & 1)
        if i < 15:
            nb = FX + 4 * ((i + 1) & 1)
            a(f"ds_read_b128 v[{nb}:{nb+3}], v3 offset:{512*(i+1)}")
        a(f"s_waitcnt vmcnt({FD-1})")
        for d in range(4):
            a(f"v_lshlrev_b32 v{FU+2*d}, 16, v{FB+4*i+d}")
            a(f"v_and_b32 v{FU+2*d+1}, s42, v{FB+4*i+d}")
        if i + FD < 16:
            a(f"buffer_load_dwordx4 {Fr(i+FD)}, v2, s[44:47], s11 offen{wnt}")
            a(f"s_add_u32 s11, s11, {32*2752}")
        else:
            if i + FD == 16:
                a("s_mov_b32 s11, s10")
            a(f"buffer_load_dwordx4 {Fr(i+FD-16)}, v22, s[48:51], s11 offen{wnt}")
            a("s_add_u32 s11, s11, s12")
        a(f"s_waitcnt lgkmcnt({1 if i < 15 else 0})")
        for b in range(4):
            for e in range(8):
                a(f"v_fmac_f32 v{FA+8*b+e}, v{xb+b}, v{FU+e}")
    for k in range(16):
        a(f"v_permlane32_swap_b32 v{FA+k}, v{FA+16+k}")
    for k in range(16):
        a(f"v_add_f32 v{FA+k}, v{FA+k}, v{FA+16+k}")
    for k in range(8):
        a(f"v_permlane16_swap_b32 v{FA+k}, v{FA+8+k}")
    for k in range(8):
        a(f"v_add_f32 v{FA+k}, v{FA+k}, v{FA+8+k}")
    for r in (2, 4, 8):
        for k in range(8):
            a(f"v_add_f32_dpp v{FA+k}, v{FA+k}, v{FA+k} row_ror:{r} row_mask:0xf bank_mask:0xf")
    for k in range(8):
        a(f"v_mov_b32 v{FG+k}, v{FH+k}")
        a(f"v_mov_b32 v{FH+k}, v{FA+k}")
    a("s_cmp_eq_u32 s9, 1")
    a("s_cbranch_scc1 LF_p2")
    a("s_mov_b32 s9, 1")
    a("s_mov_b32 s44, s48")
    a("s_mov_b32 s45, s49")
    a("s_mov_b32 s48, s32")
    a("s_mov_b32 s49, s33")
    a("v_mov_b32 v22, v1")
    a("s_movk_i32 s12, 1024")
    a("s_lshl_b32 s10, s6, 14")
    a("s_branch LF_pass")
    a.label("LF_p2")
    a.nop(2)
    for k in range(8):
        g, u = f"v{FG+k}", f"v{FH+k}"
        round_bf16(a, g)
        round_bf16(a, u)
        a(f"v_mul_f32 {g}, s69, {g}")
        a(f"v_exp_f32 {g}, -{g}")
        a(f"v_add_f32 {g}, 1.0, {g}")
        a(f"v_rcp_f32 {g}, {g}")
        round_bf16(a, g)
        a(f"v_mul_f32 {u}, {g}, {u}")
        round_bf16(a, u)
    for k in range(32):
        a(f"v_mov_b32 v{FA+k}, 0")
    for f in range(16):
        for b in range(4):
            a(f"v_readlane_b32 s{80+b}, v{FH+(f&7)}, {16*b + (f >> 3)}")
        a(f"s_waitcnt vmcnt({min(FD-1, 15-f)})")
        for d in range(4):
            a(f"v_lshlrev_b32 v{FU+2*d}, 16, v{FB+4*f+d}")
            a(f"v_and_b32 v{FU+2*d+1}, s42, v{FB+4*f+d}")
        if f + FD < 16:
            a(f"buffer_load_dwordx4 {Fr(f+FD)}, v22, s[48:51], s11 offen{wnt}")
            a("s_add_u32 s11, s11, s12")
        for b in range(4):
            for e in range(8):
                a(f"v_fmac_f32 v{FA+8*b+e}, s{80+b}, v{FU+e}")
    a("v_lshlrev_b32 v2, 5, v0")
    a("s_lshl_b32 s10, s6, 13")
    for b in range(4):
        a(f"buffer_store_dwordx4 v[{FA+8*b}:{FA+8*b+3}], v2, s[60:63], s10 offen offset:{2048*(b&1)}")
        a(f"buffer_store_dwordx4 v[{FA+8*b+4}:{FA+8*b+7}], v2, s[60:63], s10 offen offset:{2048*(b&1)+16}")
        if b == 1:
            a("s_add_u32 s10, s10, 4096")
    stamp(5)
    a("s_branch LA_end2")
    a.label("LA_end")
    a("s_endpgm")

    fin_kernel(a)

    for name, vg in (("attn_kernel", 168), ("fin_kernel", 48)):
        a.raw(f""".section .rodata,"a"
.p2align 6
.amdhsa_kernel {name}
  .amdhsa_next_free_vgpr {vg}
  .amdhsa_next_free_sgpr 100
  .amdhsa_accum_offset {vg}
  .amdhsa_group_segment_fixed_size 0
  .amdhsa_kernarg_size 104
  .amdhsa_user_sgpr_count 2
  .amdhsa_user_sgpr_kernarg_segment_ptr 1
  .amdhsa_system_sgpr_workgroup_id_x 1
.end_amdhsa_kernel""")
    return a.text()


def fin_kernel(a):
    a.raw(".globl fin_kernel\n.p2align 8\n.type fin_kernel,@function")
    a.label("fin_kernel")
    a("s_cmp_ge_u32 s2, 64")
    a("s_cbranch_scc1 LB_end")
    a("s_load_dwordx2 s[16:17], s[0:1], 0")
    a("s_load_dwordx4 s[32:35], s[0:1], 72")
    a("s_load_dwordx2 s[40:41], s[0:1], 96")
    a("s_lshr_b32 s7, s2, 4")
    a("s_and_b32 s8, s2, 15")
    a("s_mov_b32 s42, 0xffff0000")
    a(f"s_mov_b32 s69, {LOG2E:#x}")
    for r in (47, 51, 55, 59, 63):
        a(f"s_mov_b32 s{r}, 0x20000")
    a(f"s_mov_b32 s46, {WS_STATS + 2048}")
    a(f"s_mov_b32 s50, {NFFN*8192}")
    a("s_mov_b32 s54, 4096")
    a("s_mov_b32 s58, 1024")
    a("s_mov_b32 s62, 4096")
    a("v_lshrrev_b32 v1, 3, v0")
    a("v_and_b32 v2, 7, v0")
    a("v_lshlrev_b32 v3, 11, v1")
    a("v_lshl_add_u32 v3, v2, 4, v3")
    a("v_lshrrev_b32 v4, 1, v1")
    a("v_lshlrev_b32 v4, 4, v4")
    a("v_lshlrev_b32 v5, 13, v1")
    a("v_lshl_add_u32 v5, v2, 4, v5")
    a("v_lshlrev_b32 v6, 2, v0")
    a("s_lshl_b32 s4, s7, 17")
    a("s_lshl_b32 s5, s8, 7")
    a("s_add_u32 s4, s4, s5")
    a("s_add_u32 s10, s4, 65536")
    a("s_lshl_b32 s11, s7, 9")
    a(f"s_add_u32 s11, s11, {WS_STATS}")
    a("s_lshl_b32 s12, s7, 11")
    a("s_add_u32 s12, s12, s5")
    a("s_add_u32 s13, s12, 0x40000")
    a("s_add_u32 s14, s12, 0x80000")
    a("s_lshl_b32 s15, s7, 10")
    a("s_waitcnt lgkmcnt(0)")
    a("s_mov_b32 s44, s40")
    a("s_mov_b32 s45, s41")
    a(f"s_add_u32 s48, s40, {WS_F}")
    a("s_addc_u32 s49, s41, 0")
    a("s_mov_b32 s52, s16")
    a("s_mov_b32 s53, s17")
    a("s_mov_b32 s56, s32")
    a("s_mov_b32 s57, s33")
    a("s_mov_b32 s60, s34")
    a("s_mov_b32 s61, s35")
    a("buffer_load_dwordx4 v[8:11], v4, s[44:47], s11 offen")
    a("buffer_load_dwordx4 v[12:15], v4, s[44:47], s11 offen offset:256")
    a("buffer_load_dword v36, v6, s[52:55], s15 offen")
    a("buffer_load_dword v37, v6, s[56:59], 0 offen")
    a("buffer_load_dwordx4 v[16:19], v3, s[44:47], s4 offen")
    a("buffer_load_dwordx4 v[20:23], v3, s[44:47], s10 offen")
    a("buffer_load_dwordx4 v[24:27], v5, s[48:51], s12 offen")
    a("buffer_load_dwordx4 v[28:31], v5, s[48:51], s13 offen")
    a("buffer_load_dwordx4 v[32:35], v5, s[48:51], s14 offen")
    a("v_and_b32 v7, 1, v1")
    a("v_cmp_eq_u32 vcc, 1, v7")
    a("s_waitcnt vmcnt(7)")
    for k, sb in enumerate((8, 12)):
        w = f"v{38+k}"
        a(f"v_max_f32 v40, v{sb}, v{sb+2}")
        a(f"v_sub_f32 v{sb}, v{sb}, v40")
        a(f"v_sub_f32 v{sb+2}, v{sb+2}, v40")
        a(f"v_mul_f32 v{sb}, s69, v{sb}")
        a(f"v_mul_f32 v{sb+2}, s69, v{sb+2}")
        a(f"v_exp_f32 v{sb}, v{sb}")
        a(f"v_exp_f32 v{sb+2}, v{sb+2}")
        a(f"v_mul_f32 v{sb}, v{sb}, v{sb+1}")
        a(f"v_mul_f32 v{sb+2}, v{sb+2}, v{sb+3}")
        a(f"v_add_f32 v40, v{sb}, v{sb+2}")
        a("v_rcp_f32 v40, v40")
        a(f"v_cndmask_b32 {w}, v{sb}, v{sb+2}, vcc")
        a(f"v_mul_f32 {w}, {w}, v40")
    a("s_waitcnt vmcnt(5)")
    a("v_lshlrev_b32 v40, 16, v36")
    a("v_and_b32 v41, s42, v36")
    a("v_lshlrev_b32 v42, 16, v37")
    a("v_and_b32 v43, s42, v37")
    a("v_mul_f32 v40, v40, v42")
    a("v_mul_f32 v41, v41, v43")
    round_bf16(a, "v40")
    round_bf16(a, "v41")
    a("v_add_f32 v40, v40, v41")
    for r in (1, 2, 4, 8):
        a(f"v_add_f32_dpp v40, v40, v40 row_ror:{r} row_mask:0xf bank_mask:0xf")
    for g in range(4):
        a(f"v_readlane_b32 s{80+g}, v40, {16*g}")
    a("v_mov_b32 v40, s80")
    a("v_add_f32 v40, s81, v40")
    a("v_add_f32 v40, s82, v40")
    a("v_add_f32 v40, s83, v40")
    a("v_lshrrev_b32 v41, 6, v0")
    a("v_lshlrev_b32 v42, 2, v41")
    a("ds_write_b32 v42, v40 offset:1024")
    a("s_waitcnt vmcnt(3)")
    for k in range(4):
        a(f"v_mul_f32 v{16+k}, v38, v{16+k}")
        a(f"v_fmac_f32 v{16+k}, v39, v{20+k}")
    a("s_waitcnt vmcnt(0)")
    for k in range(4):
        a(f"v_add_f32 v{24+k}, v{24+k}, v{28+k}")
        a(f"v_add_f32 v{24+k}, v{24+k}, v{32+k}")
    for k in range(4):
        a(f"v_permlane32_swap_b32 v{16+k}, v{24+k}")
    for k in range(4):
        a(f"v_add_f32 v{16+k}, v{16+k}, v{24+k}")
    a("v_permlane16_swap_b32 v16, v17")
    a("v_permlane16_swap_b32 v18, v19")
    a("v_add_f32 v16, v16, v17")
    a("v_add_f32 v18, v18, v19")
    a("v_add_f32_dpp v16, v16, v16 row_ror:8 row_mask:0xf bank_mask:0xf")
    a("v_add_f32_dpp v18, v18, v18 row_ror:8 row_mask:0xf bank_mask:0xf")
    a("v_bfe_u32 v43, v0, 5, 1")
    a("v_lshlrev_b32 v43, 7, v43")
    a("v_lshl_add_u32 v43, v41, 8, v43")
    a("v_lshl_add_u32 v43, v2, 4, v43")
    a("v_bfe_u32 v44, v0, 4, 1")
    a("v_lshl_add_u32 v43, v44, 2, v43")
    a("ds_write_b32 v43, v16")
    a("ds_write_b32 v43, v18 offset:8")
    a("s_waitcnt lgkmcnt(0)")
    a("s_barrier")
    a("v_cmp_gt_u32 vcc, 32, v0")
    a("s_and_saveexec_b64 s[84:85], vcc")
    a("s_cbranch_execz LB_end")
    a("v_mov_b32 v1, 0")
    for w in range(4):
        a(f"ds_read_b32 v{8+w}, v6 offset:{256*w}")
        a(f"ds_read_b32 v{12+w}, v6 offset:{256*w+128}")
    a("ds_read_b128 v[16:19], v1 offset:1024")
    a("s_waitcnt lgkmcnt(0)")
    a("v_add_f32 v8, v8, v9")
    a("v_add_f32 v10, v10, v11")
    a("v_add_f32 v12, v12, v13")
    a("v_add_f32 v14, v14, v15")
    a("v_add_f32 v16, v16, v17")
    a("v_add_f32 v18, v18, v19")
    a("v_add_f32 v8, v8, v10")
    a("v_add_f32 v12, v12, v14")
    a("v_add_f32 v16, v16, v18")
    round_bf16(a, "v8")
    round_bf16(a, "v12")
    round_bf16(a, "v16")
    a("v_mul_f32 v16, s69, v16")
    a("v_exp_f32 v16, -v16")
    a("v_add_f32 v16, 1.0, v16")
    a("v_rcp_f32 v16, v16")
    round_bf16(a, "v16")
    a("v_sub_f32 v17, 1.0, v16")
    round_bf16(a, "v17")
    a("v_mul_f32 v8, v16, v8")
    a("v_mul_f32 v12, v17, v12")
    round_bf16(a, "v8")
    round_bf16(a, "v12")
    a("v_add_f32 v8, v8, v12")
    a("v_cvt_pk_bf16_f32 v8, v8, v8")
    a("v_lshlrev_b32 v1, 1, v0")
    a("s_lshl_b32 s4, s7, 10")
    a("s_lshl_b32 s5, s8, 6")
    a("s_add_u32 s4, s4, s5")
    a("buffer_store_short v8, v1, s[60:63], s4 offen")
    a.label("LB_end")
    a("s_endpgm")


if __name__ == "__main__":
    ap = argparse.ArgumentParser()
    ap.add_argument("-o", default="v2.s")
    ap.add_argument("--ts", type=int, default=0)
    ap.add_argument("--slots", type=int, default=16)
    ap.add_argument("--inflight", type=int, default=24)
    ap.add_argument("--wo_at", type=int, default=1)
    ap.add_argument("--wo_npj", type=int, default=2)
    ap.add_argument("--fd", type=int, default=2)
    ap.add_argument("--pf", type=int, default=1)
    ap.add_argument("--coop", type=int, default=0)
    ap.add_argument("--wnt", type=int, default=1)
    ap.add_argument("--cnt", type=int, default=1)
    ap.add_argument("--dshift", type=int, default=4)
    ap.add_argument("--prep_at", type=int, default=11)
    ap.add_argument("--warm", type=int, default=12)
    ap.add_argument("--map", default="xcd")
    ap.add_argument("--ffn_wait", type=int, default=1)
    ap.add_argument("--tk", type=int, default=1)
    ap.add_argument("--rate", type=int, default=33)
    ap.add_argument("--glob", type=float, default=0)
    ap.add_argument("--xbias", type=float, default=0)
    ap.add_argument("--monx", type=int, default=0)
    ap.add_argument("--bstride", type=int, default=4352)
    ap.add_argument("--monld", default="sc1")
    ap.add_argument("--shard", default="xcd")
    ap.add_argument("--mon", type=int, default=0)
    ap.add_argument("--mon_stop", type=int, default=6)
    ap.add_argument("--lv", default="16,12,22,30,40")
    ap.add_argument("--th", default="-4,0,2,4")
    ap.add_argument("--end_code", type=int, default=0)
    ap.add_argument("--deepcls", type=int, default=0)
    ap.add_argument("--inf2", type=int, default=0)
    ap.add_argument("--deep_at", type=int, default=24)
    ap.add_argument("--tkmap", type=int, default=0)
    args = ap.parse_args()
    open(args.o, "w").write(gen(args))
```

```python
import sys, argparse
sys.path.insert(0, "work")
from asmlib import Asm

HEADER = open("gated_mix__gqa_block_cached__glu_gated_glu__decode.s.ref").read().split("; Override launch")[0]

WS_Y = 0
WS_STATS = 512 * 1024
WS_F = 1024 * 1024
NFFN = 86
WS_BOARD = 2 * 1024 * 1024

LOG2E = 0x3FB8AA3B
SCALE = 0x3DB504F3


def round_bf16(a, v):
    a(f"v_cvt_pk_bf16_f32 {v}, {v}, {v}")
    a(f"v_and_b32 {v}, s42, {v}")


def gen(args):
    a = Asm()
    NS = args.slots
    NJ = 128
    wnt = " nt" if args.wnt else ""
    cnt = " nt" if args.cnt else ""
    DS = args.dshift
    INF = args.inflight
    INF2 = args.inf2 or INF
    RING = NS * 8192
    LV = [int(x) for x in args.lv.split(",")]
    TH = [float(x) for x in args.th.split(",")]
    C_LANDED = RING
    C_DONE = RING + 4
    C_BAR = RING + 64
    C_DEPTH = RING + 128
    L_QP = RING + 256
    L_OP = L_QP
    L_ST = L_OP + 4096
    C_TK = L_ST + 128
    L_QQ = L_ST + 256
    L_XT = L_QQ + 2048
    LDS_A = L_XT + 8192
    L_Y = 0
    assert LDS_A <= 163840
    W0, KB, VB, T0 = 40, 104, 120, 24
    ACC, Q = 8, 4
    P, M, L = 16, 17, 18
    VRED = 19
    VZ = 136
    VBASE = 137
    VDONE = 138
    VCNT = 139

    def Wr(i): return f"v[{W0+4*i}:{W0+4*i+3}]"

    def stamp(k, mode=1):
        if args.ts and (mode == args.ts or k in (0, 1, 5)):
            a(f"s_memrealtime s[{84+2*k}:{85+2*k}]")

    def stamp_store():
        if args.ts:
            a("s_mov_b64 exec, 1")
            a("s_mul_i32 s4, s2, 10")
            a("s_add_u32 s4, s4, s3")
            a("s_lshl_b32 s4, s4, 6")
            a(f"s_add_u32 s60, s40, {4<<20}")
            a("s_addc_u32 s61, s41, 0")
            a("s_mov_b32 s62, 0x100000")
            a("s_mov_b32 s63, 0x20000")
            a("v_mov_b32 v2, 0")
            a("s_getreg_b32 s96, hwreg(HW_REG_XCC_ID)")
            a("s_getreg_b32 s97, hwreg(HW_REG_HW_ID)")
            a("s_waitcnt lgkmcnt(0)")
            for k in range(7):
                a(f"v_mov_b32 v4, s{84+2*k}")
                a(f"v_mov_b32 v5, s{85+2*k}")
                a(f"buffer_store_dwordx2 v[4:5], v2, s[60:63], s4 offen offset:{8*k}")
                a.nop(2)

    def lds_barrier(k, tag):
        a("s_waitcnt lgkmcnt(0)")
        a("s_mov_b64 exec, 1")
        a(f"ds_add_u32 v{VZ}, v{VCNT} offset:{C_BAR - RING + 4*k}")
        a("s_mov_b64 exec, -1")
        a.label(f"LB_spin{tag}")
        a(f"ds_read_b32 v23, v{VZ} offset:{C_BAR - RING + 4*k}")
        a("s_waitcnt lgkmcnt(0)")
        a("v_readfirstlane_b32 s14, v23")
        a("s_cmp_lt_u32 s14, 8")
        a(f"s_cbranch_scc1 LB_spin{tag}")

    a.raw(HEADER.rstrip("\n"))
    a.raw(f"; @launch kernel=attn_kernel grid=(256,1,1) block=({704 if args.mon else 640},1,1) lds={LDS_A}")
    a.raw("; @launch kernel=fin_kernel grid=(64,1,1) block=(256,1,1) lds=2048")
    a.raw('.amdgcn_target "amdgcn-amd-amdhsa--gfx950"')
    a.raw(".text")
    a.raw(".globl attn_kernel\n.p2align 8\n.type attn_kernel,@function")
    a.label("attn_kernel")
    a("s_cmp_ge_u32 s2, 256")
    a("s_cbranch_scc1 LA_end")
    a("s_load_dwordx16 s[16:31], s[0:1], 0")
    a("s_load_dwordx8 s[32:39], s[0:1], 64")
    a("s_load_dwordx2 s[40:41], s[0:1], 96")
    stamp(0)
    a("v_lshrrev_b32 v1, 6, v0")
    a("v_readfirstlane_b32 s3, v1")
    if args.tk:
        a("s_cmp_eq_u32 s3, 0")
        a("s_cbranch_scc1 LA_tk")
    if args.pf:
        a("s_getpc_b64 s[64:65]")
        a.label("LA_pc")
        a("s_mov_b32 s66, LB_end-LA_pc")
        a("s_mov_b32 s67, 0x20000")
        a("v_lshlrev_b32 v2, 6, v0")
        a("buffer_load_dword v39, v2, s[64:67], 0 offen")
    a("v_and_b32 v0, 63, v0")
    a("v_lshlrev_b32 v3, 2, v0")
    a("v_mov_b32 v2, 0")
    a(f"v_add_u32 v3, {RING}, v3")
    a("ds_write_b32 v3, v2")
    if args.tk:
        a(f"v_mov_b32 v4, {C_TK}")
        a("s_waitcnt lgkmcnt(0)")
        a("s_barrier")
        a("ds_read_b32 v5, v4")
        a("s_waitcnt lgkmcnt(0)")
        a("v_readfirstlane_b32 s2, v5")
        a("s_branch LA_tk_done")
        a.label("LA_tk")
        a("s_getreg_b32 s4, hwreg(HW_REG_XCC_ID)")
        a("s_and_b32 s4, s4, 7")
        a("s_movk_i32 s62, 256")
        a("s_mov_b32 s63, 0x20000")
        a("s_mov_b32 s9, 0")
        a(f"v_mov_b32 v6, {C_TK}")
        a("s_mov_b64 exec, 1")
        a("s_waitcnt lgkmcnt(0)")
        a("s_mov_b32 s60, s38")
        a("s_mov_b32 s61, s39")
        a.label("LA_tk_loop")
        a("s_lshl_b32 s5, s4, 5")
        a("v_mov_b32 v4, 1")
        a("v_mov_b32 v5, s5")
        a("buffer_atomic_add v4, v5, s[60:63], 0 offen sc0")
        a("s_waitcnt vmcnt(0)")
        a("v_readfirstlane_b32 s5, v4")
        a("s_cmp_lt_u32 s5, 32")
        a("s_cbranch_scc1 LA_tk_got")
        a("s_add_u32 s4, s4, 1")
        a("s_and_b32 s4, s4, 7")
        a("s_add_u32 s9, s9, 1")
        a("s_cmp_lt_u32 s9, 8")
        a("s_cbranch_scc1 LA_tk_loop")
        a("s_movk_i32 s5, 64")
        a.label("LA_tk_got")
        a("s_and_b32 s2, s5, 3")
        a(f"s_lshl_b32 s2, s2, {6 if args.tkmap else 3}")
        a("s_or_b32 s2, s2, s4")
        a("s_bfe_u32 s4, s5, 0x10004")
        a("s_lshl_b32 s4, s4, 5")
        a("s_or_b32 s2, s2, s4")
        a("s_bfe_u32 s4, s5, 0x20002")
        a(f"s_lshl_b32 s4, s4, {3 if args.tkmap else 6}")
        a("s_or_b32 s2, s2, s4")
        a("s_and_b32 s4, s5, 64")
        a("s_lshl_b32 s4, s4, 2")
        a("s_or_b32 s2, s2, s4")
        a("v_mov_b32 v4, s2")
        a("ds_write_b32 v6, v4")
        a("s_mov_b64 exec, -1")
        a("s_waitcnt lgkmcnt(0)")
        a("s_barrier")
        a.label("LA_tk_done")
        a("s_cmp_ge_u32 s2, 256")
        a("s_cbranch_scc1 LA_end")
    if args.map == "pair":
        a("s_lshr_b32 s4, s2, 1")
        a("s_and_b32 s5, s4, 3")
        a("s_lshl_b32 s5, s5, 3")
        a("s_bfe_u32 s6, s4, 0x30002")
        a("s_add_u32 s6, s6, s5")
        a("s_lshr_b32 s7, s4, 5")
        a("s_and_b32 s8, s2, 1")
    else:
        a("s_and_b32 s4, s2, 7")
        a("s_bfe_u32 s6, s2, 0x20003")
        a("s_lshl_b32 s4, s4, 2")
        a("s_add_u32 s6, s6, s4")
        a("s_lshr_b32 s7, s2, 6")
        a("s_bfe_u32 s8, s2, 0x10005")
    a("s_lshl_b32 s5, s7, 5")
    a("s_add_u32 s5, s5, s6")
    a(f"s_cmp_lt_u32 s5, {NFFN}")
    a(f"s_cselect_b32 s4, {DS}, 0")
    a(f"s_sub_u32 s78, {NJ}, s4")
    a(f"s_add_u32 s79, s4, {NJ}")
    a("s_cmp_eq_u32 s8, 0")
    a("s_cselect_b32 s79, s78, s79")
    a("s_cselect_b32 s78, 0, s78")
    a("v_lshlrev_b32 v1, 4, v0")
    a("s_mov_b32 s47, 0x20000")
    a("s_mov_b32 s51, 0x20000")
    if not args.tk:
        a("s_waitcnt lgkmcnt(0)")
        a("s_barrier")
    stamp(2, 2)
    a("s_cmp_lg_u32 s3, 0")
    a("s_cbranch_scc1 LA_cons")
    a("s_setprio 3")
    a("s_lshl_b32 s10, s5, 20")
    a("s_lshl_b32 s4, s78, 12")
    a("s_add_u32 s10, s10, s4")
    a("s_mov_b32 s44, s18")
    a("s_mov_b32 s45, s19")
    a("s_mov_b32 s46, 0x08000000")
    a("s_mov_b32 s48, s20")
    a("s_mov_b32 s49, s21")
    a("s_mov_b32 s50, 0x08000000")
    a("s_mov_b32 s12, 0")
    a("s_mov_b32 s13, 0")
    a("s_mov_b32 s9, 0")
    a(f"v_mov_b32 v4, {C_LANDED}")
    a(f"s_movk_i32 s15, {NS}")
    a(f"s_sub_u32 s11, s79, {args.deep_at}")
    a("s_mov_b32 s64, 0")
    if args.deepcls:
        a("s_bfe_u32 s4, s2, 0x20003")
        a("s_cmp_eq_u32 s4, 1")
        a("s_cselect_b32 s11, 0, s11")
    a.label("LL_loop")
    a("s_mov_b32 m0, s12")
    a("s_add_u32 s14, s12, 4096")
    for i in range(4):
        a(f"buffer_load_dwordx4 v1, s[44:47], s10 offen offset:{1024*i} {args.kp} lds")
    a("s_mov_b32 m0, s14")
    a("s_add_u32 s12, s12, 8192")
    for i in range(4):
        a(f"buffer_load_dwordx4 v1, s[48:51], s10 offen offset:{1024*i} {args.vp} lds")
    a(f"s_cmp_eq_u32 s12, {RING}")
    a("s_cselect_b32 s12, 0, s12")
    a("s_add_u32 s10, s10, 4096")
    a("s_add_u32 s13, s13, 1")
    if args.ts == 3:
        for k, x in ((1, 16), (2, 32), (3, 64), (4, 96)):
            a(f"s_cmp_lg_u32 s13, {x}")
            a(f"s_cbranch_scc1 LL_ns{k}")
            a(f"s_memrealtime s[{84+2*k}:{85+2*k}]")
            a.label(f"LL_ns{k}")
    a(f"s_sub_u32 s14, s13, {NS}")
    a("s_and_b32 s5, s14, 7")
    a("s_lshl_b32 s5, s5, 2")
    a(f"s_add_u32 s5, s5, {C_DONE}")
    a("v_mov_b32 v5, s5")
    if args.mon:
        a("ds_read_b32 v7, v5")
        a(f"ds_read_b32 v8, v4 offset:{C_DEPTH - C_LANDED}")
        if args.deep_at:
            a("s_cmp_ge_u32 s13, s11")
            a(f"s_cselect_b32 s4, {args.end_code}, 0")
            a("s_max_u32 s64, s64, s4")
        order = list(range(len(LV)))
        for n, code in enumerate(order):
            N = LV[code]
            if n < len(order) - 1:
                a(f"s_cmp_lg_u32 s64, {code}")
                a(f"s_cbranch_scc1 LL_lv{n+1}")
            a(f"s_sub_u32 s4, s13, {(N + 7)//8}")
            a("s_max_i32 s9, s9, s4")
            a("v_mov_b32 v6, s9")
            a(f"s_waitcnt vmcnt({N})")
            if n < len(order) - 1:
                a("s_branch LL_pub")
                a.label(f"LL_lv{n+1}")
        a.label("LL_pub")
        a("s_waitcnt lgkmcnt(0)")
        a("v_readfirstlane_b32 s64, v8")
    else:
        if INF2 != INF:
            a("s_cmp_ge_u32 s13, s11")
            a("s_cbranch_scc1 LL_deep")
        a(f"s_sub_u32 s4, s13, {INF//8 - 1}")
        a("s_max_i32 s9, s9, s4")
        a("v_mov_b32 v6, s9")
        a("ds_read_b32 v7, v5")
        a(f"s_waitcnt vmcnt({INF-8})")
        if INF2 != INF:
            a("s_branch LL_pub")
            a.label("LL_deep")
            a(f"s_sub_u32 s4, s13, {INF2//8 - 1}")
            a("s_max_i32 s9, s9, s4")
            a("v_mov_b32 v6, s9")
            a("ds_read_b32 v7, v5")
            a(f"s_waitcnt vmcnt({INF2-8})")
            a.label("LL_pub")
    a("ds_write_b32 v4, v6")
    a("s_cmp_ge_u32 s13, s79")
    a("s_cbranch_scc1 LL_fin")
    a("s_cmp_lt_u32 s13, s15")
    a("s_cbranch_scc1 LL_loop")
    a("s_lshr_b32 s14, s14, 3")
    if not args.mon:
        a("s_waitcnt lgkmcnt(0)")
    a("v_readfirstlane_b32 s4, v7")
    a("s_cmp_gt_u32 s4, s14")
    a("s_cbranch_scc1 LL_loop")
    a("s_mov_b32 s9, s13")
    a("v_mov_b32 v6, s13")
    a("s_waitcnt vmcnt(0)")
    a("ds_write_b32 v4, v6")
    a.label("LL_spin")
    a("s_sleep 1")
    a("ds_read_b32 v7, v5")
    a("s_waitcnt lgkmcnt(0)")
    a("v_readfirstlane_b32 s4, v7")
    a("s_cmp_gt_u32 s4, s14")
    a("s_cbranch_scc1 LL_loop")
    a("s_branch LL_spin")
    a.label("LL_fin")
    for k in range(((max(LV) + 7) // 8 - 1) if args.mon else (INF2 // 8 - 2), -1, -1):
        a(f"s_sub_u32 s4, s79, {k}")
        a("s_max_i32 s9, s9, s4")
        a("v_mov_b32 v6, s9")
        a(f"s_waitcnt vmcnt({8*k})")
        a("ds_write_b32 v4, v6")
    stamp(5)
    a("s_branch LA_end2")

    a.label("LA_cons")
    a("s_mov_b32 s42, 0xffff0000")
    a(f"s_mov_b32 s69, {LOG2E:#x}")
    a("s_mov_b32 s55, 0x20000")
    a("s_mov_b32 s59, 0x20000")
    a("s_mov_b32 s63, 0x20000")
    a("s_cmp_eq_u32 s3, 9")
    a("s_cbranch_scc1 LA_ffn")
    if args.mon:
        a("s_cmp_eq_u32 s3, 10")
        a("s_cbranch_scc1 LA_mon")
    a("s_sub_u32 s9, s3, 1")
    a("v_lshrrev_b32 v20, 4, v0")
    a("v_and_b32 v21, 15, v0")
    a("v_lshlrev_b32 v2, 14, v20")
    a("v_lshl_add_u32 v2, v21, 4, v2")
    a("v_lshlrev_b32 v3, 2, v20")
    a("v_lshl_add_u32 v3, v21, 4, v3")
    a("s_lshl_b32 s4, s7, 10")
    a("s_lshl_b32 s5, s9, 7")
    a("s_add_u32 s4, s4, s5")
    a("s_lshl_b32 s11, s9, 19")
    a("s_lshl_b32 s12, s6, 8")
    a("s_add_u32 s11, s11, s12")
    a("s_mov_b32 s48, s22")
    a("s_mov_b32 s49, s23")
    a("s_mov_b32 s50, 0x00400000")
    a("s_mov_b32 s56, s16")
    a("s_mov_b32 s57, s17")
    a("s_mov_b32 s58, 4096")
    a(f"buffer_load_dword v{P}, v3, s[56:59], s4 offen")
    if args.coop:
        a("v_lshrrev_b32 v22, 3, v0")
        a("v_lshlrev_b32 v22, 13, v22")
        a("v_and_b32 v23, 7, v0")
        a("v_lshl_add_u32 v22, v23, 5, v22")
        a("s_lshr_b32 s4, s2, 5")
        a("s_lshl_b32 s4, s4, 19")
        a("s_lshl_b32 s5, s9, 16")
        a("s_add_u32 s4, s4, s5")
        a("s_add_u32 s4, s4, s12")
        a(f"buffer_load_dword v38, v22, s[48:51], s4 offen{cnt}")
        a("s_waitcnt vmcnt(0)")
        if args.coop > 1:
            a(f"s_sleep {args.coop}")
    for k in range(8):
        a(f"buffer_load_dwordx4 {Wr(2*k)}, v2, s[48:51], s11 offen{wnt}")
        a("s_add_u32 s12, s11, 8192")
        a(f"buffer_load_dwordx4 {Wr(2*k+1)}, v2, s[48:51], s12 offen{wnt}")
        if k < 7:
            a("s_add_u32 s11, s11, 65536")
    a(f"s_mov_b32 s68, {SCALE:#x}")
    a("s_mov_b32 s70, 0x05040100")
    a("s_mov_b32 s71, 0x07060302")
    a("s_mov_b32 s52, s24")
    a("s_mov_b32 s53, s25")
    a("s_mov_b32 s54, 0x00400000")
    a("s_mov_b32 s60, s40")
    a("s_mov_b32 s61, s41")
    a(f"s_mov_b32 s62, {WS_STATS + 2048}")
    a("v_and_b32 v22, 1, v20")
    a("v_lshlrev_b32 v22, 1, v22")
    a("v_lshrrev_b32 v23, 1, v20")
    a("v_or_b32 v22, v22, v23")
    a("v_lshl_add_u32 v22, v21, 3, v22")
    a("v_lshlrev_b32 v22, 2, v22")
    a("s_lshl_b32 s4, s9, 9")
    a(f"s_add_u32 s4, s4, {L_QP}")
    a(f"v_add_u32 v{VRED}, s4, v22")
    a(f"v_mov_b32 v{VZ}, {RING}")
    a(f"v_mov_b32 v{VCNT}, 1")
    a("s_lshl_b32 s4, s9, 13")
    a(f"v_add_u32 v{VBASE}, s4, v1")
    a("s_lshl_b32 s4, s9, 2")
    a(f"s_add_u32 s4, s4, {C_DONE}")
    a(f"v_mov_b32 v{VDONE}, s4")
    for j in range(8):
        a(f"v_mov_b32 v{ACC+j}, 0")
    for k in range(8):
        tb = T0 + 8 * (k & 1)
        a(f"s_waitcnt vmcnt({14 - 2*k})")
        if k == 0:
            stamp(3, 2)
        for d in range(4):
            A_, B_ = W0 + 8 * k + d, W0 + 8 * k + 4 + d
            a(f"v_perm_b32 v{tb+2*d}, v{B_}, v{A_}, s70")
            a(f"v_perm_b32 v{tb+2*d+1}, v{B_}, v{A_}, s71")
        for e in range(8):
            a(f"v_dot2c_f32_bf16_dpp v{ACC+e}, v{P}, v{tb+e} row_newbcast:{k} row_mask:0xf bank_mask:0xf")

    def cross_row_reduce8(base):
        for k in range(4):
            a(f"v_permlane32_swap_b32 v{base+2*k}, v{base+2*k+1}")
        for k in range(4):
            a(f"v_add_f32 v{base+2*k}, v{base+2*k}, v{base+2*k+1}")
        a(f"v_permlane16_swap_b32 v{base}, v{base+2}")
        a(f"v_permlane16_swap_b32 v{base+4}, v{base+6}")
        a(f"v_add_f32 v{base}, v{base}, v{base+2}")
        a(f"v_add_f32 v{base+4}, v{base+4}, v{base+6}")

    cross_row_reduce8(ACC)
    a(f"ds_write_b32 v{VRED}, v{ACC}")
    a(f"ds_write_b32 v{VRED}, v{ACC+4} offset:16")
    a("v_lshlrev_b32 v20, 3, v0")
    a(f"v_add_u32 v20, {L_QP}, v20")
    stamp(4, 2)
    lds_barrier(0, "q")
    for w in range(8):
        a(f"ds_read_b64 v[{T0+2*w}:{T0+2*w+1}], v20 offset:{512*w}")
    a("s_lshl_b32 s4, s9, 8")
    a(f"s_add_u32 s4, s4, {L_QQ}")
    a("v_lshlrev_b32 v21, 2, v0")
    a("v_add_u32 v21, s4, v21")
    a("v_and_b32 v22, 15, v0")
    a("v_lshlrev_b32 v22, 4, v22")
    a("v_add_u32 v22, s4, v22")
    a("s_waitcnt lgkmcnt(0)")
    for st in (1, 2, 4):
        for w in range(0, 8, 2 * st):
            a(f"v_add_f32 v{T0+2*w}, v{T0+2*w}, v{T0+2*(w+st)}")
            a(f"v_add_f32 v{T0+2*w+1}, v{T0+2*w+1}, v{T0+2*(w+st)+1}")
    a(f"v_cvt_pk_bf16_f32 v23, v{T0}, v{T0+1}")
    a("ds_write_b32 v21, v23")
    a("s_waitcnt lgkmcnt(0)")
    a(f"ds_read_b128 v[{Q}:{Q+3}], v22")
    for j in range(8):
        a(f"v_mov_b32 v{ACC+j}, 0")
    a(f"v_mov_b32 v{M}, 0xff800000")
    a(f"v_mov_b32 v{L}, 0")
    if args.coop:
        a("s_lshl_b32 s4, s6, 17")
        a("s_lshr_b32 s5, s2, 5")
        a("s_lshl_b32 s5, s5, 14")
        a("s_add_u32 s4, s4, s5")
        a("s_lshl_b32 s5, s9, 11")
        a("s_add_u32 s4, s4, s5")
        a("v_lshlrev_b32 v22, 5, v0")
        a(f"buffer_load_dword v141, v22, s[52:55], s4 offen{cnt}")
    a("s_lshl_b32 s43, s6, 17")
    a("s_lshl_b32 s5, s9, 14")
    a("s_add_u32 s43, s43, s5")
    a("s_mov_b32 s13, s9")
    a("s_mov_b32 s15, 0")
    a(f"v_mov_b32 v{VCNT+1}, 0")
    stamp(1)
    a.label("LC_poll")
    a(f"ds_read_b32 v20, v{VZ}")
    a("s_waitcnt lgkmcnt(0)")
    a("v_readfirstlane_b32 s14, v20")
    a("s_cmp_gt_u32 s14, s13")
    a("s_cbranch_scc1 LC_go")
    a("s_sleep 1")
    a("s_branch LC_poll")
    a.label("LC_go")
    for i in range(4):
        a(f"ds_read_b128 v[{KB+4*i}:{KB+4*i+3}], v{VBASE} offset:{1024*i}")
    for i in range(4):
        a(f"ds_read_b128 v[{VB+4*i}:{VB+4*i+3}], v{VBASE} offset:{4096+1024*i}")
    a("s_add_u32 s15, s15, 1")
    a("s_add_u32 s13, s13, 8")
    a(f"v_add_u32 v{VCNT+1}, 1, v{VCNT+1}")
    if NS == 16:
        a(f"v_xor_b32 v{VBASE}, 0x10000, v{VBASE}")
    else:
        a(f"v_add_u32 v{VBASE}, 0x10000, v{VBASE}")
        a(f"v_subrev_u32 v21, {RING}, v{VBASE}")
        a(f"v_min_u32 v{VBASE}, v21, v{VBASE}")
    a("s_waitcnt lgkmcnt(4)")
    for d in range(4):
        for i in range(4):
            t = f"v{T0+i}"
            c = "0" if d == 0 else t
            a(f"v_dot2_f32_bf16 {t}, v{KB+4*i+d}, v{Q+d}, {c}")
    a("s_waitcnt lgkmcnt(0)")
    a(f"ds_write_b32 v{VDONE}, v{VCNT+1}")
    for i in range(2):
        a(f"v_add_f32_dpp v{T0+i}, v{T0+i}, v{T0+i} row_ror:8 row_mask:0xf bank_mask:0x3")
        a(f"v_add_f32_dpp v{T0+i}, v{T0+i+2}, v{T0+i+2} row_ror:8 row_mask:0xf bank_mask:0xc")
    PV1, PV2 = T0 + 8, KB
    for d in range(2):
        a(f"v_perm_b32 v{PV1+2*d}, v{VB+4+d}, v{VB+d}, s70")
        a(f"v_perm_b32 v{PV1+2*d+1}, v{VB+4+d}, v{VB+d}, s71")
    a(f"v_add_f32_dpp v{T0}, v{T0}, v{T0} row_half_mirror row_mask:0xf bank_mask:0x5")
    a(f"v_add_f32_dpp v{T0}, v{T0+1}, v{T0+1} row_half_mirror row_mask:0xf bank_mask:0xa")
    for d in range(2, 4):
        a(f"v_perm_b32 v{PV1+2*d}, v{VB+4+d}, v{VB+d}, s70")
        a(f"v_perm_b32 v{PV1+2*d+1}, v{VB+4+d}, v{VB+d}, s71")
    S = f"v{T0}"
    a(f"v_add_f32_dpp {S}, {S}, {S} quad_perm:[1,0,3,2] row_mask:0xf bank_mask:0xf")
    a(f"v_perm_b32 v{PV2}, v{VB+12}, v{VB+8}, s70")
    a(f"v_perm_b32 v{PV2+1}, v{VB+12}, v{VB+8}, s71")
    a(f"v_add_f32_dpp {S}, {S}, {S} quad_perm:[2,3,0,1] row_mask:0xf bank_mask:0xf")
    round_bf16(a, S)
    a(f"v_mul_f32 {S}, s68, {S}")
    round_bf16(a, S)
    MX = f"v{T0+1}"
    a(f"v_perm_b32 v{PV2+2}, v{VB+13}, v{VB+9}, s70")
    a(f"v_perm_b32 v{PV2+3}, v{VB+13}, v{VB+9}, s71")
    a(f"v_max_f32_dpp {MX}, {S}, {S} row_ror:8 row_mask:0xf bank_mask:0xf")
    a(f"v_perm_b32 v{PV2+4}, v{VB+14}, v{VB+10}, s70")
    a(f"v_perm_b32 v{PV2+5}, v{VB+14}, v{VB+10}, s71")
    a(f"v_max_f32_dpp {MX}, {MX}, {MX} row_ror:4 row_mask:0xf bank_mask:0xf")
    a(f"v_perm_b32 v{PV2+6}, v{VB+15}, v{VB+11}, s70")
    a(f"v_perm_b32 v{PV2+7}, v{VB+15}, v{VB+11}, s71")
    a(f"v_max_f32 {MX}, {MX}, v{M}")
    AL = f"v{T0+2}"
    a(f"v_sub_f32 {AL}, v{M}, {MX}")
    a(f"v_sub_f32 v{P}, {S}, {MX}")
    a(f"v_mul_f32 {AL}, s69, {AL}")
    a(f"v_mul_f32 v{P}, s69, v{P}")
    a(f"v_exp_f32 {AL}, {AL}")
    a(f"v_exp_f32 v{P}, v{P}")
    a(f"v_mov_b32 v{M}, {MX}")
    a(f"v_fma_f32 v{L}, v{L}, {AL}, v{P}")
    a(f"v_mul_f32 v{ACC}, {AL}, v{ACC}")
    a(f"v_mov_b32_dpp v{T0+3}, v{P} row_shl:4 row_mask:0xf bank_mask:0xf")
    for j in range(1, 8):
        a(f"v_mul_f32 v{ACC+j}, {AL}, v{ACC+j}")
        if j == 1:
            a(f"v_cvt_pk_bf16_f32 v{P}, v{P}, v{T0+3}")
    for e in range(8):
        a(f"v_dot2c_f32_bf16_dpp v{ACC+e}, v{P}, v{PV1+e} row_newbcast:0 row_mask:0xf bank_mask:0xf")
    for e in range(8):
        a(f"v_dot2c_f32_bf16_dpp v{ACC+e}, v{P}, v{PV2+e} row_newbcast:8 row_mask:0xf bank_mask:0xf")
    NPJ = args.wo_npj
    NB = 16 // NPJ
    a(f"s_cmp_le_u32 s15, {args.wo_at + NB - 1}")
    a("s_cbranch_scc1 LC_wo")
    a(f"s_cmp_eq_u32 s15, {args.prep_at}")
    a("s_cbranch_scc1 LC_prep")
    a("s_cmp_lt_u32 s13, s79")
    a("s_cbranch_scc1 LC_poll")
    a("s_branch LA_tail")
    a.label("LC_wo")
    for k in range(NB):
        a(f"s_cmp_lg_u32 s15, {args.wo_at + k}")
        a(f"s_cbranch_scc1 {'LC_wo%d' % (k+1) if k < NB-1 else 'LC_poll'}")
        for i in range(NPJ * k, NPJ * (k + 1)):
            if i % 4 == 0 or i == NPJ * k:
                a(f"s_add_u32 s4, s43, {(i >> 2) * 4096}")
            a(f"buffer_load_dwordx4 {Wr(i)}, v1, s[52:55], s4 offen offset:{(i & 3) * 1024}{wnt}")
        a("s_branch LC_poll")
        if k < NB - 1:
            a.label(f"LC_wo{k+1}")

    a.label("LC_prep")
    a("s_waitcnt vmcnt(0)")
    LOr = {}
    prev = 141
    for j in range(8):
        for t in range(4):
            A_, B_ = W0 + 8 * j + t, W0 + 8 * j + 4 + t
            a(f"v_perm_b32 v{prev}, v{B_}, v{A_}, s70")
            a(f"v_perm_b32 v{B_}, v{B_}, v{A_}, s71")
            LOr[(j, t)] = prev
            prev = A_
    if args.warm:
        a("s_mov_b64 exec, 0")
        a("s_branch LW_0")
        a.label("LC_warmret")
        a("s_mov_b64 exec, -1")
    a("s_branch LC_poll")

    a.label("LA_tail")
    if args.warm:
        a.hop_begin("LW", args.warm)
    a.nop(3)
    stamp(3)
    for r in (8, 4):
        a(f"v_add_f32_dpp v{L}, v{L}, v{L} row_ror:{r} row_mask:0xf bank_mask:0xf")
    for g in range(4):
        a(f"v_readlane_b32 s{80+g}, v{M}, {16*g}")
    a("v_mov_b32 v20, s80")
    a("v_max_f32 v20, s81, v20")
    a("v_max_f32 v20, s82, v20")
    a("v_max_f32 v20, s83, v20")
    a(f"v_sub_f32 v22, v{M}, v20")
    a("v_mul_f32 v22, s69, v22")
    a("v_exp_f32 v22, v22")
    a(f"v_mul_f32 v{L}, v22, v{L}")
    for j in range(8):
        a(f"v_mul_f32 v{ACC+j}, v22, v{ACC+j}")
    for g in range(4):
        a(f"v_readlane_b32 s{80+g}, v{L}, {16*g}")
    cross_row_reduce8(ACC)
    a("v_mov_b32 v21, s80")
    a("v_add_f32 v21, s81, v21")
    a("v_add_f32 v21, s82, v21")
    a("v_add_f32 v21, s83, v21")
    a(f"ds_write_b32 v{VRED}, v{ACC} offset:{L_OP - L_QP}")
    a(f"ds_write_b32 v{VRED}, v{ACC+4} offset:{L_OP - L_QP + 16}")
    a("s_lshl_b32 s4, s9, 3")
    a(f"s_add_u32 s4, s4, {L_ST}")
    a("v_mov_b32 v22, s4")
    a("ds_write_b64 v22, v[20:21]")
    a("v_lshlrev_b32 v20, 3, v0")
    a(f"v_add_u32 v20, {L_OP}, v20")
    a(f"v_mov_b32 v21, {L_ST}")
    lds_barrier(1, "t1")
    stamp(4)
    SB = 104
    for k in range(4):
        a(f"ds_read_b128 v[{SB+4*k}:{SB+4*k+3}], v21 offset:{16*k}")
    for w in range(8):
        a(f"ds_read_b64 v[{T0+2*w}:{T0+2*w+1}], v20 offset:{512*w}")
    a("s_lshl_b32 s4, s9, 3")
    a("s_waitcnt lgkmcnt(8)")
    a(f"v_max3_f32 v20, v{SB}, v{SB+2}, v{SB+4}")
    a(f"v_max3_f32 v20, v20, v{SB+6}, v{SB+8}")
    a(f"v_max3_f32 v20, v20, v{SB+10}, v{SB+12}")
    a(f"v_max_f32 v20, v20, v{SB+14}")
    for w in range(8):
        a(f"v_sub_f32 v{SB+2*w}, v{SB+2*w}, v20")
    for w in range(8):
        a(f"v_mul_f32 v{SB+2*w}, s69, v{SB+2*w}")
    for w in range(8):
        a(f"v_exp_f32 v{SB+2*w}, v{SB+2*w}")
    a(f"v_mul_f32 v21, v{SB}, v{SB+1}")
    for w in range(1, 8):
        a(f"v_fmac_f32 v21, v{SB+2*w}, v{SB+2*w+1}")
    a("v_rcp_f32 v22, v21")
    a("s_waitcnt lgkmcnt(0)")
    a(f"v_mul_f32 v2, v{SB}, v{T0}")
    a(f"v_mul_f32 v3, v{SB}, v{T0+1}")
    for w in range(1, 8):
        a(f"v_fmac_f32 v2, v{SB+2*w}, v{T0+2*w}")
        a(f"v_fmac_f32 v3, v{SB+2*w}, v{T0+2*w+1}")
    a("v_mul_f32 v2, v22, v2")
    a("v_mul_f32 v3, v22, v3")
    a("v_cvt_pk_bf16_f32 v2, v2, v3")
    for j in range(8):
        a(f"v_readlane_b32 s{72+j}, v2, s4")
        if j < 7:
            a("s_add_u32 s4, s4, 1")
    for j in range(8):
        for t in range(4):
            c = "0" if j == 0 else f"v{ACC+2*t}"
            a(f"v_dot2_f32_bf16 v{ACC+2*t}, v{LOr[(j, t)]}, s{72+j}, {c}")
            c = "0" if j == 0 else f"v{ACC+2*t+1}"
            a(f"v_dot2_f32_bf16 v{ACC+2*t+1}, v{W0+8*j+4+t}, s{72+j}, {c}")
    a("s_lshl_b32 s4, s9, 11")
    a("v_lshlrev_b32 v2, 5, v0")
    a("v_add_u32 v2, s4, v2")
    a(f"ds_write_b128 v2, v[{ACC}:{ACC+3}] offset:{L_Y}")
    a(f"ds_write_b128 v2, v[{ACC+4}:{ACC+7}] offset:{L_Y+16}")
    a("s_lshl_b32 s4, s9, 8")
    a("v_lshlrev_b32 v3, 2, v0")
    a("v_add_u32 v3, s4, v3")
    a("s_lshl_b32 s5, s7, 6")
    a("s_lshl_b32 s12, s6, 1")
    a("s_add_u32 s5, s5, s12")
    a("s_add_u32 s5, s5, s8")
    a("s_lshl_b32 s5, s5, 11")
    lds_barrier(2, "t2")
    for w in range(8):
        a(f"ds_read_b32 v{T0+w}, v3 offset:{L_Y + 2048*w}")
    a("s_waitcnt lgkmcnt(0)")
    for st in (1, 2, 4):
        for w in range(0, 8, 2 * st):
            a(f"v_add_f32 v{T0+w}, v{T0+w}, v{T0+w+st}")
    if args.warm:
        a.hop_end("LC_warmret")
    a(f"buffer_store_dword v{T0}, v3, s[60:63], s5 offen")
    stamp(5)
    a("s_cmp_lg_u32 s9, 0")
    a("s_cbranch_scc1 LA_end2")
    a("s_lshl_b32 s5, s7, 5")
    a("s_add_u32 s5, s5, s6")
    a("s_lshl_b32 s5, s5, 4")
    a("s_lshl_b32 s12, s8, 3")
    a("s_add_u32 s5, s5, s12")
    a(f"s_add_u32 s5, s5, {WS_STATS}")
    a("v_mov_b32 v2, 0")
    a("s_mov_b64 exec, 1")
    a("buffer_store_dwordx2 v[20:21], v2, s[60:63], s5 offen")
    a.label("LA_end2")
    stamp_store()
    a("s_endpgm")

    if args.mon:
        a.label("LA_mon")
        G = args.glob
        RATE = args.rate
        a("s_memrealtime s[66:67]")
        a("s_and_b32 s15, s2, 7")
        a(f"s_mul_i32 s4, s15, {args.bstride}")
        a(f"s_add_u32 s4, s4, {WS_BOARD}")
        a("s_add_u32 s60, s40, s4")
        a("s_addc_u32 s61, s41, 0")
        a(f"s_movk_i32 s62, {132 if G else 128}")
        a("s_lshr_b32 s12, s2, 3")
        a("s_lshl_b32 s12, s12, 2")
        a("v_lshlrev_b32 v5, 2, v0")
        a("v_mov_b32 v7, 0")
        a(f"v_mov_b32 v6, {C_LANDED}")
        a(f"s_sub_u32 s10, s79, {NJ}")
        a(f"s_sub_u32 s11, s79, {args.mon_stop}")
        if G:
            a(f"s_add_u32 s56, s40, {WS_BOARD + 8*args.bstride}")
            a("s_addc_u32 s57, s41, 0")
            a("s_mov_b32 s58, 32")
            a("s_lshl_b32 s15, s15, 2")
        if args.ts:
            for k in range(6):
                a(f"s_mov_b32 s{84+k}, 0")
        a("s_mov_b64 exec, 1")
        a("s_waitcnt lgkmcnt(0)")
        a(f"s_mul_i32 s4, s66, {RATE}")
        a("s_sub_u32 s4, 0, s4")
        a("v_mov_b32 v4, s4")
        a("buffer_store_dword v4, v7, s[60:63], s12 offen")
        if G:
            a("s_cmp_lg_u32 s12, 0")
            a("s_cbranch_scc1 LM_loop")
            a("s_lshl_b32 s4, s4, 5")
            a("v_mov_b32 v8, s4")
            a("buffer_store_dword v7, v7, s[60:63], 0 offen offset:128")
            a("buffer_store_dword v8, v7, s[56:59], s15 offen sc1")
        a.label("LM_loop")
        a(f"s_sleep {args.mon}")
        a("ds_read_b32 v4, v6")
        a("s_memrealtime s[66:67]")
        a("s_waitcnt lgkmcnt(0)")
        a("v_readfirstlane_b32 s14, v4")
        a("s_cmp_ge_u32 s14, s11")
        a("s_cbranch_scc1 LM_last")
        a("s_sub_u32 s4, s14, s10")
        a("s_lshl_b32 s4, s4, 10")
        a(f"s_mul_i32 s5, s66, {RATE}")
        a("s_sub_u32 s13, s4, s5")
        a("v_mov_b32 v4, s13")
        a("buffer_store_dword v4, v7, s[60:63], s12 offen")
        a("s_cmp_lt_u32 s14, 8")
        a("s_cbranch_scc1 LM_loop")
        a("s_mov_b64 exec, -1")
        a(f"buffer_load_dword v8, v5, s[60:63], 0 offen {args.monld}")
        if G:
            a("s_cmp_lg_u32 s12, 0")
            a("s_cbranch_scc1 LM_nl1")
            a("buffer_load_dword v9, v5, s[56:59], 0 offen sc1")
            a.label("LM_nl1")
        a("s_lshl_b32 s13, s13, 5")
        a("s_waitcnt vmcnt(0)")
        for r in (1, 2, 4, 8):
            a(f"v_add_u32_dpp v8, v8, v8 row_ror:{r} row_mask:0xf bank_mask:0xf")
            if G:
                a(f"v_add_u32_dpp v9, v9, v9 row_ror:{r} row_mask:0xf bank_mask:0xf")
        a("v_readlane_b32 s4, v8, 0")
        a("v_readlane_b32 s5, v8, 16")
        if G:
            a("v_readlane_b32 s65, v8, 32")
            a("v_readlane_b32 s66, v9, 0")
        a("s_mov_b64 exec, 1")
        a("s_add_u32 s4, s4, s5")
        a("s_sub_u32 s13, s4, s13")
        if G:
            a("s_cmp_lg_u32 s12, 0")
            a("s_cbranch_scc1 LM_nl2")
            a("v_mov_b32 v4, s4")
            a("buffer_store_dword v4, v7, s[56:59], s15 offen sc1")
            a("s_lshl_b32 s5, s4, 3")
            a("s_sub_u32 s65, s66, s5")
            a("s_ashr_i32 s65, s65, 3")
            a("v_mov_b32 v4, s65")
            a("buffer_store_dword v4, v7, s[60:63], 0 offen offset:128")
            a.label("LM_nl2")
            a(f"s_min_i32 s65, s65, {int(32768*G)}")
            a(f"s_max_i32 s65, s65, {-int(32768*G)}")
            a("s_add_u32 s13, s13, s65")
        a("s_mov_b32 s5, 0")
        for k, th in enumerate(TH):
            code = k + 1
            if LV[code] < LV[0]:
                a(f"s_cmp_lt_i32 s13, {int(round(th*32768))}")
            else:
                a(f"s_cmp_gt_i32 s13, {int(round(th*32768))}")
            a(f"s_cselect_b32 s5, {code}, s5")
        a("v_mov_b32 v4, s5")
        a(f"ds_write_b32 v6, v4 offset:{C_DEPTH - C_LANDED}")
        if args.ts:
            for k in range(len(LV)):
                a(f"s_cmp_eq_u32 s5, {k}")
                a(f"s_addc_u32 s{84+k}, s{84+k}, 0")
        a("s_branch LM_loop")
        a.label("LM_last")
        if args.ts:
            a("s_lshl_b32 s4, s2, 5")
            a(f"s_add_u32 s60, s40, {(4<<20) + 163840}")
            a("s_addc_u32 s61, s41, 0")
            a("s_mov_b32 s62, 0x100000")
            a("v_mov_b32 v2, 0")
            for k in range(6):
                a(f"v_mov_b32 v4, s{84+k}")
                a(f"buffer_store_dword v4, v2, s[60:63], s4 offen offset:{4*k}")
        a("s_endpgm")

    a.label("LA_ffn")
    a("s_mov_b32 s6, s5")
    a(f"s_cmp_ge_u32 s6, {NFFN}")
    a("s_cbranch_scc1 LA_end")
    a("s_cmp_lg_u32 s8, 0")
    a("s_cbranch_scc1 LA_end")
    if args.ffn_wait:
        a(f"v_mov_b32 v4, {C_DONE}")
        a.label("LF_wait")
        a("s_sleep 8")
        a("ds_read_b32 v5, v4")
        a("s_waitcnt lgkmcnt(0)")
        a("v_readfirstlane_b32 s4, v5")
        a(f"s_cmp_lt_u32 s4, {args.ffn_wait}")
        a("s_cbranch_scc1 LF_wait")
    FB = 104
    FA = 40
    FX = 72
    FU = 80
    FG = 88
    FH = 96
    def Fr(i): return f"v[{FB+4*i}:{FB+4*i+3}]"
    a("v_lshrrev_b32 v20, 1, v0")
    a("v_and_b32 v21, 1, v0")
    a("s_movk_i32 s4, 2752")
    a("v_mul_lo_u32 v2, v20, s4")
    a("v_lshl_add_u32 v2, v21, 4, v2")
    a("v_lshlrev_b32 v3, 4, v20")
    a(f"v_add_u32 v3, {L_XT}, v3")
    a("s_mov_b32 s46, 1409024")
    a("s_mov_b32 s50, 1409024")
    a("s_mov_b32 s58, 4096")
    a(f"s_mov_b32 s62, {NFFN*8192}")
    a("s_lshl_b32 s10, s6, 5")
    a("s_mov_b32 s44, s28")
    a("s_mov_b32 s45, s29")
    a("s_mov_b32 s48, s30")
    a("s_mov_b32 s49, s31")
    a("s_mov_b32 s56, s16")
    a("s_mov_b32 s57, s17")
    a(f"s_add_u32 s60, s40, {WS_F}")
    a("s_addc_u32 s61, s41, 0")
    for b in range(4):
        a(f"buffer_load_dwordx4 v[{4+4*b}:{7+4*b}], v1, s[56:59], 0 offen offset:{1024*b}")
    FD = args.fd
    a("s_mov_b32 s11, s10")
    for i in range(FD):
        a(f"buffer_load_dwordx4 {Fr(i)}, v2, s[44:47], s11 offen{wnt}")
        a(f"s_add_u32 s11, s11, {32*2752}")
    a(f"s_waitcnt vmcnt({FD})")
    for e in range(8):
        for b in range(4):
            src = f"v{4+4*b+(e>>1)}"
            if e & 1:
                a(f"v_and_b32 v{FA+4*e+b}, s42, {src}")
            else:
                a(f"v_lshlrev_b32 v{FA+4*e+b}, 16, {src}")
    a("v_lshlrev_b32 v20, 7, v0")
    a(f"v_add_u32 v20, {L_XT}, v20")
    for e in range(8):
        a(f"ds_write_b128 v20, v[{FA+4*e}:{FA+4*e+3}] offset:{16*e}")
    a("s_waitcnt lgkmcnt(0)")
    a("s_mov_b32 s9, 0")
    a("v_mov_b32 v22, v2")
    a(f"s_mov_b32 s12, {32*2752}")
    a.label("LF_pass")
    for k in range(32):
        a(f"v_mov_b32 v{FA+k}, 0")
    a(f"ds_read_b128 v[{FX}:{FX+3}], v3")
    for i in range(16):
        xb = FX + 4 * (i & 1)
        if i < 15:
            nb = FX + 4 * ((i + 1) & 1)
            a(f"ds_read_b128 v[{nb}:{nb+3}], v3 offset:{512*(i+1)}")
        a(f"s_waitcnt vmcnt({FD-1})")
        for d in range(4):
            a(f"v_lshlrev_b32 v{FU+2*d}, 16, v{FB+4*i+d}")
            a(f"v_and_b32 v{FU+2*d+1}, s42, v{FB+4*i+d}")
        if i + FD < 16:
            a(f"buffer_load_dwordx4 {Fr(i+FD)}, v2, s[44:47], s11 offen{wnt}")
            a(f"s_add_u32 s11, s11, {32*2752}")
        else:
            if i + FD == 16:
                a("s_mov_b32 s11, s10")
            a(f"buffer_load_dwordx4 {Fr(i+FD-16)}, v22, s[48:51], s11 offen{wnt}")
            a("s_add_u32 s11, s11, s12")
        a(f"s_waitcnt lgkmcnt({1 if i < 15 else 0})")
        for b in range(4):
            for e in range(8):
                a(f"v_fmac_f32 v{FA+8*b+e}, v{xb+b}, v{FU+e}")
    for k in range(16):
        a(f"v_permlane32_swap_b32 v{FA+k}, v{FA+16+k}")
    for k in range(16):
        a(f"v_add_f32 v{FA+k}, v{FA+k}, v{FA+16+k}")
    for k in range(8):
        a(f"v_permlane16_swap_b32 v{FA+k}, v{FA+8+k}")
    for k in range(8):
        a(f"v_add_f32 v{FA+k}, v{FA+k}, v{FA+8+k}")
    for r in (2, 4, 8):
        for k in range(8):
            a(f"v_add_f32_dpp v{FA+k}, v{FA+k}, v{FA+k} row_ror:{r} row_mask:0xf bank_mask:0xf")
    for k in range(8):
        a(f"v_mov_b32 v{FG+k}, v{FH+k}")
        a(f"v_mov_b32 v{FH+k}, v{FA+k}")
    a("s_cmp_eq_u32 s9, 1")
    a("s_cbranch_scc1 LF_p2")
    a("s_mov_b32 s9, 1")
    a("s_mov_b32 s44, s48")
    a("s_mov_b32 s45, s49")
    a("s_mov_b32 s48, s32")
    a("s_mov_b32 s49, s33")
    a("v_mov_b32 v22, v1")
    a("s_movk_i32 s12, 1024")
    a("s_lshl_b32 s10, s6, 14")
    a("s_branch LF_pass")
    a.label("LF_p2")
    a.nop(2)
    for k in range(8):
        g, u = f"v{FG+k}", f"v{FH+k}"
        round_bf16(a, g)
        round_bf16(a, u)
        a(f"v_mul_f32 {g}, s69, {g}")
        a(f"v_exp_f32 {g}, -{g}")
        a(f"v_add_f32 {g}, 1.0, {g}")
        a(f"v_rcp_f32 {g}, {g}")
        round_bf16(a, g)
        a(f"v_mul_f32 {u}, {g}, {u}")
        round_bf16(a, u)
    for k in range(32):
        a(f"v_mov_b32 v{FA+k}, 0")
    for f in range(16):
        for b in range(4):
            a(f"v_readlane_b32 s{80+b}, v{FH+(f&7)}, {16*b + (f >> 3)}")
        a(f"s_waitcnt vmcnt({min(FD-1, 15-f)})")
        for d in range(4):
            a(f"v_lshlrev_b32 v{FU+2*d}, 16, v{FB+4*f+d}")
            a(f"v_and_b32 v{FU+2*d+1}, s42, v{FB+4*f+d}")
        if f + FD < 16:
            a(f"buffer_load_dwordx4 {Fr(f+FD)}, v22, s[48:51], s11 offen{wnt}")
            a("s_add_u32 s11, s11, s12")
        for b in range(4):
            for e in range(8):
                a(f"v_fmac_f32 v{FA+8*b+e}, s{80+b}, v{FU+e}")
    a("v_lshlrev_b32 v2, 5, v0")
    a("s_lshl_b32 s10, s6, 13")
    for b in range(4):
        a(f"buffer_store_dwordx4 v[{FA+8*b}:{FA+8*b+3}], v2, s[60:63], s10 offen offset:{2048*(b&1)}")
        a(f"buffer_store_dwordx4 v[{FA+8*b+4}:{FA+8*b+7}], v2, s[60:63], s10 offen offset:{2048*(b&1)+16}")
        if b == 1:
            a("s_add_u32 s10, s10, 4096")
    stamp(5)
    a("s_branch LA_end2")
    a.label("LA_end")
    a("s_endpgm")

    fin_kernel(a)

    for name, vg in (("attn_kernel", 168), ("fin_kernel", 48)):
        a.raw(f""".section .rodata,"a"
.p2align 6
.amdhsa_kernel {name}
  .amdhsa_next_free_vgpr {vg}
  .amdhsa_next_free_sgpr 100
  .amdhsa_accum_offset {vg}
  .amdhsa_group_segment_fixed_size 0
  .amdhsa_kernarg_size 104
  .amdhsa_user_sgpr_count 2
  .amdhsa_user_sgpr_kernarg_segment_ptr 1
  .amdhsa_system_sgpr_workgroup_id_x 1
.end_amdhsa_kernel""")
    return a.text()


def fin_kernel(a):
    a.raw(".globl fin_kernel\n.p2align 8\n.type fin_kernel,@function")
    a.label("fin_kernel")
    a("s_cmp_ge_u32 s2, 64")
    a("s_cbranch_scc1 LB_end")
    a("s_load_dwordx2 s[16:17], s[0:1], 0")
    a("s_load_dwordx4 s[32:35], s[0:1], 72")
    a("s_load_dwordx2 s[40:41], s[0:1], 96")
    a("s_lshr_b32 s7, s2, 4")
    a("s_and_b32 s8, s2, 15")
    a("s_mov_b32 s42, 0xffff0000")
    a(f"s_mov_b32 s69, {LOG2E:#x}")
    for r in (47, 51, 55, 59, 63):
        a(f"s_mov_b32 s{r}, 0x20000")
    a(f"s_mov_b32 s46, {WS_STATS + 2048}")
    a(f"s_mov_b32 s50, {NFFN*8192}")
    a("s_mov_b32 s54, 4096")
    a("s_mov_b32 s58, 1024")
    a("s_mov_b32 s62, 4096")
    a("v_lshrrev_b32 v1, 3, v0")
    a("v_and_b32 v2, 7, v0")
    a("v_lshlrev_b32 v3, 11, v1")
    a("v_lshl_add_u32 v3, v2, 4, v3")
    a("v_lshrrev_b32 v4, 1, v1")
    a("v_lshlrev_b32 v4, 4, v4")
    a("v_lshlrev_b32 v5, 13, v1")
    a("v_lshl_add_u32 v5, v2, 4, v5")
    a("v_lshlrev_b32 v6, 2, v0")
    a("s_lshl_b32 s4, s7, 17")
    a("s_lshl_b32 s5, s8, 7")
    a("s_add_u32 s4, s4, s5")
    a("s_add_u32 s10, s4, 65536")
    a("s_lshl_b32 s11, s7, 9")
    a(f"s_add_u32 s11, s11, {WS_STATS}")
    a("s_lshl_b32 s12, s7, 11")
    a("s_add_u32 s12, s12, s5")
    a("s_add_u32 s13, s12, 0x40000")
    a("s_add_u32 s14, s12, 0x80000")
    a("s_lshl_b32 s15, s7, 10")
    a("s_waitcnt lgkmcnt(0)")
    a("s_mov_b32 s44, s40")
    a("s_mov_b32 s45, s41")
    a(f"s_add_u32 s48, s40, {WS_F}")
    a("s_addc_u32 s49, s41, 0")
    a("s_mov_b32 s52, s16")
    a("s_mov_b32 s53, s17")
    a("s_mov_b32 s56, s32")
    a("s_mov_b32 s57, s33")
    a("s_mov_b32 s60, s34")
    a("s_mov_b32 s61, s35")
    a("buffer_load_dwordx4 v[8:11], v4, s[44:47], s11 offen")
    a("buffer_load_dwordx4 v[12:15], v4, s[44:47], s11 offen offset:256")
    a("buffer_load_dword v36, v6, s[52:55], s15 offen")
    a("buffer_load_dword v37, v6, s[56:59], 0 offen")
    a("buffer_load_dwordx4 v[16:19], v3, s[44:47], s4 offen")
    a("buffer_load_dwordx4 v[20:23], v3, s[44:47], s10 offen")
    a("buffer_load_dwordx4 v[24:27], v5, s[48:51], s12 offen")
    a("buffer_load_dwordx4 v[28:31], v5, s[48:51], s13 offen")
    a("buffer_load_dwordx4 v[32:35], v5, s[48:51], s14 offen")
    a("v_and_b32 v7, 1, v1")
    a("v_cmp_eq_u32 vcc, 1, v7")
    a("s_waitcnt vmcnt(7)")
    for k, sb in enumerate((8, 12)):
        w = f"v{38+k}"
        a(f"v_max_f32 v40, v{sb}, v{sb+2}")
        a(f"v_sub_f32 v{sb}, v{sb}, v40")
        a(f"v_sub_f32 v{sb+2}, v{sb+2}, v40")
        a(f"v_mul_f32 v{sb}, s69, v{sb}")
        a(f"v_mul_f32 v{sb+2}, s69, v{sb+2}")
        a(f"v_exp_f32 v{sb}, v{sb}")
        a(f"v_exp_f32 v{sb+2}, v{sb+2}")
        a(f"v_mul_f32 v{sb}, v{sb}, v{sb+1}")
        a(f"v_mul_f32 v{sb+2}, v{sb+2}, v{sb+3}")
        a(f"v_add_f32 v40, v{sb}, v{sb+2}")
        a("v_rcp_f32 v40, v40")
        a(f"v_cndmask_b32 {w}, v{sb}, v{sb+2}, vcc")
        a(f"v_mul_f32 {w}, {w}, v40")
    a("s_waitcnt vmcnt(5)")
    a("v_lshlrev_b32 v40, 16, v36")
    a("v_and_b32 v41, s42, v36")
    a("v_lshlrev_b32 v42, 16, v37")
    a("v_and_b32 v43, s42, v37")
    a("v_mul_f32 v40, v40, v42")
    a("v_mul_f32 v41, v41, v43")
    round_bf16(a, "v40")
    round_bf16(a, "v41")
    a("v_add_f32 v40, v40, v41")
    for r in (1, 2, 4, 8):
        a(f"v_add_f32_dpp v40, v40, v40 row_ror:{r} row_mask:0xf bank_mask:0xf")
    for g in range(4):
        a(f"v_readlane_b32 s{80+g}, v40, {16*g}")
    a("v_mov_b32 v40, s80")
    a("v_add_f32 v40, s81, v40")
    a("v_add_f32 v40, s82, v40")
    a("v_add_f32 v40, s83, v40")
    a("v_lshrrev_b32 v41, 6, v0")
    a("v_lshlrev_b32 v42, 2, v41")
    a("ds_write_b32 v42, v40 offset:1024")
    a("s_waitcnt vmcnt(3)")
    for k in range(4):
        a(f"v_mul_f32 v{16+k}, v38, v{16+k}")
        a(f"v_fmac_f32 v{16+k}, v39, v{20+k}")
    a("s_waitcnt vmcnt(0)")
    for k in range(4):
        a(f"v_add_f32 v{24+k}, v{24+k}, v{28+k}")
        a(f"v_add_f32 v{24+k}, v{24+k}, v{32+k}")
    for k in range(4):
        a(f"v_permlane32_swap_b32 v{16+k}, v{24+k}")
    for k in range(4):
        a(f"v_add_f32 v{16+k}, v{16+k}, v{24+k}")
    a("v_permlane16_swap_b32 v16, v17")
    a("v_permlane16_swap_b32 v18, v19")
    a("v_add_f32 v16, v16, v17")
    a("v_add_f32 v18, v18, v19")
    a("v_add_f32_dpp v16, v16, v16 row_ror:8 row_mask:0xf bank_mask:0xf")
    a("v_add_f32_dpp v18, v18, v18 row_ror:8 row_mask:0xf bank_mask:0xf")
    a("v_bfe_u32 v43, v0, 5, 1")
    a("v_lshlrev_b32 v43, 7, v43")
    a("v_lshl_add_u32 v43, v41, 8, v43")
    a("v_lshl_add_u32 v43, v2, 4, v43")
    a("v_bfe_u32 v44, v0, 4, 1")
    a("v_lshl_add_u32 v43, v44, 2, v43")
    a("ds_write_b32 v43, v16")
    a("ds_write_b32 v43, v18 offset:8")
    a("s_waitcnt lgkmcnt(0)")
    a("s_barrier")
    a("v_cmp_gt_u32 vcc, 32, v0")
    a("s_and_saveexec_b64 s[84:85], vcc")
    a("s_cbranch_execz LB_end")
    a("v_mov_b32 v1, 0")
    for w in range(4):
        a(f"ds_read_b32 v{8+w}, v6 offset:{256*w}")
        a(f"ds_read_b32 v{12+w}, v6 offset:{256*w+128}")
    a("ds_read_b128 v[16:19], v1 offset:1024")
    a("s_waitcnt lgkmcnt(0)")
    a("v_add_f32 v8, v8, v9")
    a("v_add_f32 v10, v10, v11")
    a("v_add_f32 v12, v12, v13")
    a("v_add_f32 v14, v14, v15")
    a("v_add_f32 v16, v16, v17")
    a("v_add_f32 v18, v18, v19")
    a("v_add_f32 v8, v8, v10")
    a("v_add_f32 v12, v12, v14")
    a("v_add_f32 v16, v16, v18")
    round_bf16(a, "v8")
    round_bf16(a, "v12")
    round_bf16(a, "v16")
    a("v_mul_f32 v16, s69, v16")
    a("v_exp_f32 v16, -v16")
    a("v_add_f32 v16, 1.0, v16")
    a("v_rcp_f32 v16, v16")
    round_bf16(a, "v16")
    a("v_sub_f32 v17, 1.0, v16")
    round_bf16(a, "v17")
    a("v_mul_f32 v8, v16, v8")
    a("v_mul_f32 v12, v17, v12")
    round_bf16(a, "v8")
    round_bf16(a, "v12")
    a("v_add_f32 v8, v8, v12")
    a("v_cvt_pk_bf16_f32 v8, v8, v8")
    a("v_lshlrev_b32 v1, 1, v0")
    a("s_lshl_b32 s4, s7, 10")
    a("s_lshl_b32 s5, s8, 6")
    a("s_add_u32 s4, s4, s5")
    a("buffer_store_short v8, v1, s[60:63], s4 offen")
    a.label("LB_end")
    a("s_endpgm")


if __name__ == "__main__":
    ap = argparse.ArgumentParser()
    ap.add_argument("-o", default="v2.s")
    ap.add_argument("--ts", type=int, default=0)
    ap.add_argument("--slots", type=int, default=16)
    ap.add_argument("--inflight", type=int, default=24)
    ap.add_argument("--wo_at", type=int, default=1)
    ap.add_argument("--wo_npj", type=int, default=2)
    ap.add_argument("--fd", type=int, default=2)
    ap.add_argument("--pf", type=int, default=1)
    ap.add_argument("--coop", type=int, default=0)
    ap.add_argument("--wnt", type=int, default=1)
    ap.add_argument("--cnt", type=int, default=1)
    ap.add_argument("--dshift", type=int, default=4)
    ap.add_argument("--prep_at", type=int, default=11)
    ap.add_argument("--warm", type=int, default=12)
    ap.add_argument("--map", default="xcd")
    ap.add_argument("--ffn_wait", type=int, default=1)
    ap.add_argument("--tk", type=int, default=1)
    ap.add_argument("--kp", default="nt")
    ap.add_argument("--vp", default="nt")
    ap.add_argument("--rate", type=int, default=33)
    ap.add_argument("--glob", type=float, default=0)
    ap.add_argument("--xbias", type=float, default=0)
    ap.add_argument("--monx", type=int, default=0)
    ap.add_argument("--bstride", type=int, default=4352)
    ap.add_argument("--monld", default="sc1")
    ap.add_argument("--shard", default="xcd")
    ap.add_argument("--mon", type=int, default=0)
    ap.add_argument("--mon_stop", type=int, default=6)
    ap.add_argument("--lv", default="16,12,22,30,40")
    ap.add_argument("--th", default="-4,0,2,4")
    ap.add_argument("--end_code", type=int, default=0)
    ap.add_argument("--deepcls", type=int, default=0)
    ap.add_argument("--inf2", type=int, default=0)
    ap.add_argument("--deep_at", type=int, default=24)
    ap.add_argument("--tkmap", type=int, default=0)
    args = ap.parse_args()
    open(args.o, "w").write(gen(args))
```

```python
import sys, argparse
sys.path.insert(0, "work")
from asmlib import Asm

HEADER = open("gated_mix__gqa_block_cached__glu_gated_glu__decode.s.ref").read().split("; Override launch")[0]

WS_Y = 0
WS_STATS = 512 * 1024
WS_F = 1024 * 1024
NFFN = 86
WS_BOARD = 2 * 1024 * 1024

LOG2E = 0x3FB8AA3B
SCALE = 0x3DB504F3


def round_bf16(a, v):
    a(f"v_cvt_pk_bf16_f32 {v}, {v}, {v}")
    a(f"v_and_b32 {v}, s42, {v}")


def gen(args):
    a = Asm()
    NS = args.slots
    NJ = 128
    wnt = " nt" if args.wnt else ""
    cnt = " nt" if args.cnt else ""
    DS = args.dshift
    INF = args.inflight
    INF2 = args.inf2 or INF
    RING = NS * 8192
    LV = [int(x) for x in args.lv.split(",")]
    TH = [float(x) for x in args.th.split(",")]
    C_LANDED = RING
    C_DONE = RING + 4
    C_BAR = RING + 64
    C_DEPTH = RING + 128
    L_QP = RING + 256
    L_OP = L_QP
    L_ST = L_OP + 4096
    C_TK = L_ST + 128
    L_QQ = L_ST + 256
    L_XT = L_QQ + 2048
    LDS_A = L_XT + 8192
    L_Y = 0
    assert LDS_A <= 163840
    W0, KB, VB, T0 = 40, 104, 120, 24
    ACC, Q = 8, 4
    P, M, L = 16, 17, 18
    VRED = 19
    VZ = 136
    VBASE = 137
    VDONE = 138
    VCNT = 139

    def Wr(i): return f"v[{W0+4*i}:{W0+4*i+3}]"

    def stamp(k, mode=1):
        if args.ts and (mode == args.ts or k in (0, 1, 5)):
            a(f"s_memrealtime s[{84+2*k}:{85+2*k}]")

    def stamp_store():
        if args.ts:
            a("s_mov_b64 exec, 1")
            a("s_mul_i32 s4, s2, 10")
            a("s_add_u32 s4, s4, s3")
            a("s_lshl_b32 s4, s4, 6")
            a(f"s_add_u32 s60, s40, {4<<20}")
            a("s_addc_u32 s61, s41, 0")
            a("s_mov_b32 s62, 0x100000")
            a("s_mov_b32 s63, 0x20000")
            a("v_mov_b32 v2, 0")
            a("s_getreg_b32 s96, hwreg(HW_REG_XCC_ID)")
            a("s_getreg_b32 s97, hwreg(HW_REG_HW_ID)")
            a("s_waitcnt lgkmcnt(0)")
            for k in range(7):
                a(f"v_mov_b32 v4, s{84+2*k}")
                a(f"v_mov_b32 v5, s{85+2*k}")
                a(f"buffer_store_dwordx2 v[4:5], v2, s[60:63], s4 offen offset:{8*k}")
                a.nop(2)

    def lds_barrier(k, tag):
        a("s_waitcnt lgkmcnt(0)")
        a("s_mov_b64 exec, 1")
        a(f"ds_add_u32 v{VZ}, v{VCNT} offset:{C_BAR - RING + 4*k}")
        a("s_mov_b64 exec, -1")
        a.label(f"LB_spin{tag}")
        a(f"ds_read_b32 v23, v{VZ} offset:{C_BAR - RING + 4*k}")
        a("s_waitcnt lgkmcnt(0)")
        a("v_readfirstlane_b32 s14, v23")
        a("s_cmp_lt_u32 s14, 8")
        a(f"s_cbranch_scc1 LB_spin{tag}")

    a.raw(HEADER.rstrip("\n"))
    if args.probe:
        a.raw("; @launch kernel=probe_kernel grid=(1,1,1) block=(64,1,1) lds=0")
    a.raw(f"; @launch kernel=attn_kernel grid=(256,1,1) block=({704 if args.mon else 640},1,1) lds={LDS_A}")
    a.raw("; @launch kernel=fin_kernel grid=(64,1,1) block=(256,1,1) lds=2048")
    a.raw('.amdgcn_target "amdgcn-amd-amdhsa--gfx950"')
    a.raw(".text")
    a.raw(".globl attn_kernel\n.p2align 8\n.type attn_kernel,@function")
    a.label("attn_kernel")
    a("s_cmp_ge_u32 s2, 256")
    a("s_cbranch_scc1 LA_end")
    a("s_load_dwordx16 s[16:31], s[0:1], 0")
    a("s_load_dwordx8 s[32:39], s[0:1], 64")
    a("s_load_dwordx2 s[40:41], s[0:1], 96")
    stamp(0)
    a("v_lshrrev_b32 v1, 6, v0")
    a("v_readfirstlane_b32 s3, v1")
    if args.tk:
        a("s_cmp_eq_u32 s3, 0")
        a("s_cbranch_scc1 LA_tk")
    if args.pf:
        a("s_getpc_b64 s[64:65]")
        a.label("LA_pc")
        a("s_mov_b32 s66, LB_end-LA_pc")
        a("s_mov_b32 s67, 0x20000")
        a("v_lshlrev_b32 v2, 6, v0")
        a("buffer_load_dword v39, v2, s[64:67], 0 offen")
    a("v_and_b32 v0, 63, v0")
    a("v_lshlrev_b32 v3, 2, v0")
    a("v_mov_b32 v2, 0")
    a(f"v_add_u32 v3, {RING}, v3")
    a("ds_write_b32 v3, v2")
    if args.tk:
        a(f"v_mov_b32 v4, {C_TK}")
        a("s_waitcnt lgkmcnt(0)")
        a("s_barrier")
        a("ds_read_b32 v5, v4")
        a("s_waitcnt lgkmcnt(0)")
        a("v_readfirstlane_b32 s2, v5")
        a("s_branch LA_tk_done")
        a.label("LA_tk")
        a("s_getreg_b32 s4, hwreg(HW_REG_XCC_ID)")
        a("s_and_b32 s4, s4, 7")
        a("s_movk_i32 s62, 256")
        a("s_mov_b32 s63, 0x20000")
        a("s_mov_b32 s9, 0")
        a(f"v_mov_b32 v6, {C_TK}")
        a("s_mov_b64 exec, 1")
        a("s_waitcnt lgkmcnt(0)")
        a("s_mov_b32 s60, s38")
        a("s_mov_b32 s61, s39")
        a.label("LA_tk_loop")
        a("s_lshl_b32 s5, s4, 5")
        a("v_mov_b32 v4, 1")
        a("v_mov_b32 v5, s5")
        a("buffer_atomic_add v4, v5, s[60:63], 0 offen sc0")
        a("s_waitcnt vmcnt(0)")
        a("v_readfirstlane_b32 s5, v4")
        a("s_cmp_lt_u32 s5, 32")
        a("s_cbranch_scc1 LA_tk_got")
        a("s_add_u32 s4, s4, 1")
        a("s_and_b32 s4, s4, 7")
        a("s_add_u32 s9, s9, 1")
        a("s_cmp_lt_u32 s9, 8")
        a("s_cbranch_scc1 LA_tk_loop")
        a("s_movk_i32 s5, 64")
        a.label("LA_tk_got")
        a("s_and_b32 s2, s5, 3")
        a(f"s_lshl_b32 s2, s2, {6 if args.tkmap else 3}")
        a("s_or_b32 s2, s2, s4")
        a("s_bfe_u32 s4, s5, 0x10004")
        a("s_lshl_b32 s4, s4, 5")
        a("s_or_b32 s2, s2, s4")
        a("s_bfe_u32 s4, s5, 0x20002")
        a(f"s_lshl_b32 s4, s4, {3 if args.tkmap else 6}")
        a("s_or_b32 s2, s2, s4")
        a("s_and_b32 s4, s5, 64")
        a("s_lshl_b32 s4, s4, 2")
        a("s_or_b32 s2, s2, s4")
        a("v_mov_b32 v4, s2")
        a("ds_write_b32 v6, v4")
        a("s_mov_b64 exec, -1")
        a("s_waitcnt lgkmcnt(0)")
        a("s_barrier")
        a.label("LA_tk_done")
        a("s_cmp_ge_u32 s2, 256")
        a("s_cbranch_scc1 LA_end")
    if args.map == "pair":
        a("s_lshr_b32 s4, s2, 1")
        a("s_and_b32 s5, s4, 3")
        a("s_lshl_b32 s5, s5, 3")
        a("s_bfe_u32 s6, s4, 0x30002")
        a("s_add_u32 s6, s6, s5")
        a("s_lshr_b32 s7, s4, 5")
        a("s_and_b32 s8, s2, 1")
    else:
        a("s_and_b32 s4, s2, 7")
        a("s_bfe_u32 s6, s2, 0x20003")
        a("s_lshl_b32 s4, s4, 2")
        a("s_add_u32 s6, s6, s4")
        a("s_lshr_b32 s7, s2, 6")
        a("s_bfe_u32 s8, s2, 0x10005")
    a("s_lshl_b32 s5, s7, 5")
    a("s_add_u32 s5, s5, s6")
    a(f"s_cmp_lt_u32 s5, {NFFN}")
    a(f"s_cselect_b32 s4, {DS}, 0")
    a(f"s_sub_u32 s78, {NJ}, s4")
    a(f"s_add_u32 s79, s4, {NJ}")
    a("s_cmp_eq_u32 s8, 0")
    a("s_cselect_b32 s79, s78, s79")
    a("s_cselect_b32 s78, 0, s78")
    a("v_lshlrev_b32 v1, 4, v0")
    a("s_mov_b32 s47, 0x20000")
    a("s_mov_b32 s51, 0x20000")
    if not args.tk:
        a("s_waitcnt lgkmcnt(0)")
        a("s_barrier")
    stamp(2, 2)
    a("s_cmp_lg_u32 s3, 0")
    a("s_cbranch_scc1 LA_cons")
    a("s_setprio 3")
    a("s_lshl_b32 s10, s5, 20")
    a("s_lshl_b32 s4, s78, 12")
    a("s_add_u32 s10, s10, s4")
    a("s_mov_b32 s44, s18")
    a("s_mov_b32 s45, s19")
    a("s_mov_b32 s46, 0x08000000")
    a("s_mov_b32 s48, s20")
    a("s_mov_b32 s49, s21")
    a("s_mov_b32 s50, 0x08000000")
    a("s_mov_b32 s12, 0")
    a("s_mov_b32 s13, 0")
    a("s_mov_b32 s9, 0")
    a(f"v_mov_b32 v4, {C_LANDED}")
    a(f"s_movk_i32 s15, {NS}")
    a(f"s_sub_u32 s11, s79, {args.deep_at}")
    a("s_mov_b32 s64, 0")
    if args.deepcls:
        a("s_bfe_u32 s4, s2, 0x20003")
        a("s_cmp_eq_u32 s4, 1")
        a("s_cselect_b32 s11, 0, s11")
    a.label("LL_loop")
    a("s_mov_b32 m0, s12")
    a("s_add_u32 s14, s12, 4096")
    for i in range(4):
        a(f"buffer_load_dwordx4 v1, s[44:47], s10 offen offset:{1024*i} {args.kp} lds")
    a("s_mov_b32 m0, s14")
    a("s_add_u32 s12, s12, 8192")
    for i in range(4):
        a(f"buffer_load_dwordx4 v1, s[48:51], s10 offen offset:{1024*i} {args.vp} lds")
    a(f"s_cmp_eq_u32 s12, {RING}")
    a("s_cselect_b32 s12, 0, s12")
    a("s_add_u32 s10, s10, 4096")
    a("s_add_u32 s13, s13, 1")
    if args.ts == 3:
        for k, x in ((1, 16), (2, 32), (3, 64), (4, 96)):
            a(f"s_cmp_lg_u32 s13, {x}")
            a(f"s_cbranch_scc1 LL_ns{k}")
            a(f"s_memrealtime s[{84+2*k}:{85+2*k}]")
            a.label(f"LL_ns{k}")
    a(f"s_sub_u32 s14, s13, {NS}")
    a("s_and_b32 s5, s14, 7")
    a("s_lshl_b32 s5, s5, 2")
    a(f"s_add_u32 s5, s5, {C_DONE}")
    a("v_mov_b32 v5, s5")
    if args.mon:
        a("ds_read_b32 v7, v5")
        a(f"ds_read_b32 v8, v4 offset:{C_DEPTH - C_LANDED}")
        if args.deep_at:
            a("s_cmp_ge_u32 s13, s11")
            a(f"s_cselect_b32 s4, {args.end_code}, 0")
            a("s_max_u32 s64, s64, s4")
        order = list(range(len(LV)))
        for n, code in enumerate(order):
            N = LV[code]
            if n < len(order) - 1:
                a(f"s_cmp_lg_u32 s64, {code}")
                a(f"s_cbranch_scc1 LL_lv{n+1}")
            a(f"s_sub_u32 s4, s13, {(N + 7)//8}")
            a("s_max_i32 s9, s9, s4")
            a("v_mov_b32 v6, s9")
            a(f"s_waitcnt vmcnt({N})")
            if n < len(order) - 1:
                a("s_branch LL_pub")
                a.label(f"LL_lv{n+1}")
        a.label("LL_pub")
        a("s_waitcnt lgkmcnt(0)")
        a("v_readfirstlane_b32 s64, v8")
    else:
        if INF2 != INF:
            a("s_cmp_ge_u32 s13, s11")
            a("s_cbranch_scc1 LL_deep")
        a(f"s_sub_u32 s4, s13, {INF//8 - 1}")
        a("s_max_i32 s9, s9, s4")
        a("v_mov_b32 v6, s9")
        a("ds_read_b32 v7, v5")
        a(f"s_waitcnt vmcnt({INF-8})")
        if INF2 != INF:
            a("s_branch LL_pub")
            a.label("LL_deep")
            a(f"s_sub_u32 s4, s13, {INF2//8 - 1}")
            a("s_max_i32 s9, s9, s4")
            a("v_mov_b32 v6, s9")
            a("ds_read_b32 v7, v5")
            a(f"s_waitcnt vmcnt({INF2-8})")
            a.label("LL_pub")
    a("ds_write_b32 v4, v6")
    a("s_cmp_ge_u32 s13, s79")
    a("s_cbranch_scc1 LL_fin")
    a("s_cmp_lt_u32 s13, s15")
    a("s_cbranch_scc1 LL_loop")
    a("s_lshr_b32 s14, s14, 3")
    if not args.mon:
        a("s_waitcnt lgkmcnt(0)")
    a("v_readfirstlane_b32 s4, v7")
    a("s_cmp_gt_u32 s4, s14")
    a("s_cbranch_scc1 LL_loop")
    a("s_mov_b32 s9, s13")
    a("v_mov_b32 v6, s13")
    a("s_waitcnt vmcnt(0)")
    a("ds_write_b32 v4, v6")
    a.label("LL_spin")
    a("s_sleep 1")
    a("ds_read_b32 v7, v5")
    a("s_waitcnt lgkmcnt(0)")
    a("v_readfirstlane_b32 s4, v7")
    a("s_cmp_gt_u32 s4, s14")
    a("s_cbranch_scc1 LL_loop")
    a("s_branch LL_spin")
    a.label("LL_fin")
    for k in range(((max(LV) + 7) // 8 - 1) if args.mon else (INF2 // 8 - 2), -1, -1):
        a(f"s_sub_u32 s4, s79, {k}")
        a("s_max_i32 s9, s9, s4")
        a("v_mov_b32 v6, s9")
        a(f"s_waitcnt vmcnt({8*k})")
        a("ds_write_b32 v4, v6")
    stamp(5)
    a("s_branch LA_end2")

    a.label("LA_cons")
    a("s_mov_b32 s42, 0xffff0000")
    a(f"s_mov_b32 s69, {LOG2E:#x}")
    a("s_mov_b32 s55, 0x20000")
    a("s_mov_b32 s59, 0x20000")
    a("s_mov_b32 s63, 0x20000")
    a("s_cmp_eq_u32 s3, 9")
    a("s_cbranch_scc1 LA_ffn")
    if args.mon:
        a("s_cmp_eq_u32 s3, 10")
        a("s_cbranch_scc1 LA_mon")
    a("s_sub_u32 s9, s3, 1")
    a("v_lshrrev_b32 v20, 4, v0")
    a("v_and_b32 v21, 15, v0")
    a("v_lshlrev_b32 v2, 14, v20")
    a("v_lshl_add_u32 v2, v21, 4, v2")
    a("v_lshlrev_b32 v3, 2, v20")
    a("v_lshl_add_u32 v3, v21, 4, v3")
    a("s_lshl_b32 s4, s7, 10")
    a("s_lshl_b32 s5, s9, 7")
    a("s_add_u32 s4, s4, s5")
    a("s_lshl_b32 s11, s9, 19")
    a("s_lshl_b32 s12, s6, 8")
    a("s_add_u32 s11, s11, s12")
    a("s_mov_b32 s48, s22")
    a("s_mov_b32 s49, s23")
    a("s_mov_b32 s50, 0x00400000")
    a("s_mov_b32 s56, s16")
    a("s_mov_b32 s57, s17")
    a("s_mov_b32 s58, 4096")
    a(f"buffer_load_dword v{P}, v3, s[56:59], s4 offen")
    if args.coop:
        a("v_lshrrev_b32 v22, 3, v0")
        a("v_lshlrev_b32 v22, 13, v22")
        a("v_and_b32 v23, 7, v0")
        a("v_lshl_add_u32 v22, v23, 5, v22")
        a("s_lshr_b32 s4, s2, 5")
        a("s_lshl_b32 s4, s4, 19")
        a("s_lshl_b32 s5, s9, 16")
        a("s_add_u32 s4, s4, s5")
        a("s_add_u32 s4, s4, s12")
        a(f"buffer_load_dword v38, v22, s[48:51], s4 offen{cnt}")
        a("s_waitcnt vmcnt(0)")
        if args.coop > 1:
            a(f"s_sleep {args.coop}")
    for k in range(8):
        a(f"buffer_load_dwordx4 {Wr(2*k)}, v2, s[48:51], s11 offen{wnt}")
        a("s_add_u32 s12, s11, 8192")
        a(f"buffer_load_dwordx4 {Wr(2*k+1)}, v2, s[48:51], s12 offen{wnt}")
        if k < 7:
            a("s_add_u32 s11, s11, 65536")
    a(f"s_mov_b32 s68, {SCALE:#x}")
    a("s_mov_b32 s70, 0x05040100")
    a("s_mov_b32 s71, 0x07060302")
    a("s_mov_b32 s52, s24")
    a("s_mov_b32 s53, s25")
    a("s_mov_b32 s54, 0x00400000")
    a("s_mov_b32 s60, s40")
    a("s_mov_b32 s61, s41")
    a(f"s_mov_b32 s62, {WS_STATS + 2048}")
    a("v_and_b32 v22, 1, v20")
    a("v_lshlrev_b32 v22, 1, v22")
    a("v_lshrrev_b32 v23, 1, v20")
    a("v_or_b32 v22, v22, v23")
    a("v_lshl_add_u32 v22, v21, 3, v22")
    a("v_lshlrev_b32 v22, 2, v22")
    a("s_lshl_b32 s4, s9, 9")
    a(f"s_add_u32 s4, s4, {L_QP}")
    a(f"v_add_u32 v{VRED}, s4, v22")
    a(f"v_mov_b32 v{VZ}, {RING}")
    a(f"v_mov_b32 v{VCNT}, 1")
    a("s_lshl_b32 s4, s9, 13")
    a(f"v_add_u32 v{VBASE}, s4, v1")
    a("s_lshl_b32 s4, s9, 2")
    a(f"s_add_u32 s4, s4, {C_DONE}")
    a(f"v_mov_b32 v{VDONE}, s4")
    for j in range(8):
        a(f"v_mov_b32 v{ACC+j}, 0")
    for k in range(8):
        tb = T0 + 8 * (k & 1)
        a(f"s_waitcnt vmcnt({14 - 2*k})")
        if k == 0:
            stamp(3, 2)
        for d in range(4):
            A_, B_ = W0 + 8 * k + d, W0 + 8 * k + 4 + d
            a(f"v_perm_b32 v{tb+2*d}, v{B_}, v{A_}, s70")
            a(f"v_perm_b32 v{tb+2*d+1}, v{B_}, v{A_}, s71")
        for e in range(8):
            a(f"v_dot2c_f32_bf16_dpp v{ACC+e}, v{P}, v{tb+e} row_newbcast:{k} row_mask:0xf bank_mask:0xf")

    def cross_row_reduce8(base):
        for k in range(4):
            a(f"v_permlane32_swap_b32 v{base+2*k}, v{base+2*k+1}")
        for k in range(4):
            a(f"v_add_f32 v{base+2*k}, v{base+2*k}, v{base+2*k+1}")
        a(f"v_permlane16_swap_b32 v{base}, v{base+2}")
        a(f"v_permlane16_swap_b32 v{base+4}, v{base+6}")
        a(f"v_add_f32 v{base}, v{base}, v{base+2}")
        a(f"v_add_f32 v{base+4}, v{base+4}, v{base+6}")

    cross_row_reduce8(ACC)
    a(f"ds_write_b32 v{VRED}, v{ACC}")
    a(f"ds_write_b32 v{VRED}, v{ACC+4} offset:16")
    a("v_lshlrev_b32 v20, 3, v0")
    a(f"v_add_u32 v20, {L_QP}, v20")
    stamp(4, 2)
    lds_barrier(0, "q")
    for w in range(8):
        a(f"ds_read_b64 v[{T0+2*w}:{T0+2*w+1}], v20 offset:{512*w}")
    a("s_lshl_b32 s4, s9, 8")
    a(f"s_add_u32 s4, s4, {L_QQ}")
    a("v_lshlrev_b32 v21, 2, v0")
    a("v_add_u32 v21, s4, v21")
    a("v_and_b32 v22, 15, v0")
    a("v_lshlrev_b32 v22, 4, v22")
    a("v_add_u32 v22, s4, v22")
    a("s_waitcnt lgkmcnt(0)")
    for st in (1, 2, 4):
        for w in range(0, 8, 2 * st):
            a(f"v_add_f32 v{T0+2*w}, v{T0+2*w}, v{T0+2*(w+st)}")
            a(f"v_add_f32 v{T0+2*w+1}, v{T0+2*w+1}, v{T0+2*(w+st)+1}")
    a(f"v_cvt_pk_bf16_f32 v23, v{T0}, v{T0+1}")
    a("ds_write_b32 v21, v23")
    a("s_waitcnt lgkmcnt(0)")
    a(f"ds_read_b128 v[{Q}:{Q+3}], v22")
    for j in range(8):
        a(f"v_mov_b32 v{ACC+j}, 0")
    a(f"v_mov_b32 v{M}, 0xff800000")
    a(f"v_mov_b32 v{L}, 0")
    if args.coop:
        a("s_lshl_b32 s4, s6, 17")
        a("s_lshr_b32 s5, s2, 5")
        a("s_lshl_b32 s5, s5, 14")
        a("s_add_u32 s4, s4, s5")
        a("s_lshl_b32 s5, s9, 11")
        a("s_add_u32 s4, s4, s5")
        a("v_lshlrev_b32 v22, 5, v0")
        a(f"buffer_load_dword v141, v22, s[52:55], s4 offen{cnt}")
    a("s_lshl_b32 s43, s6, 17")
    a("s_lshl_b32 s5, s9, 14")
    a("s_add_u32 s43, s43, s5")
    a("s_mov_b32 s13, s9")
    a("s_mov_b32 s15, 0")
    a(f"v_mov_b32 v{VCNT+1}, 0")
    stamp(1)
    a.label("LC_poll")
    a(f"ds_read_b32 v20, v{VZ}")
    a("s_waitcnt lgkmcnt(0)")
    a("v_readfirstlane_b32 s14, v20")
    a("s_cmp_gt_u32 s14, s13")
    a("s_cbranch_scc1 LC_go")
    a("s_sleep 1")
    a("s_branch LC_poll")
    a.label("LC_go")
    for i in range(4):
        a(f"ds_read_b128 v[{KB+4*i}:{KB+4*i+3}], v{VBASE} offset:{1024*i}")
    for i in range(4):
        a(f"ds_read_b128 v[{VB+4*i}:{VB+4*i+3}], v{VBASE} offset:{4096+1024*i}")
    a("s_add_u32 s15, s15, 1")
    a("s_add_u32 s13, s13, 8")
    a(f"v_add_u32 v{VCNT+1}, 1, v{VCNT+1}")
    if NS == 16:
        a(f"v_xor_b32 v{VBASE}, 0x10000, v{VBASE}")
    else:
        a(f"v_add_u32 v{VBASE}, 0x10000, v{VBASE}")
        a(f"v_subrev_u32 v21, {RING}, v{VBASE}")
        a(f"v_min_u32 v{VBASE}, v21, v{VBASE}")
    a("s_waitcnt lgkmcnt(4)")
    for d in range(4):
        for i in range(4):
            t = f"v{T0+i}"
            c = "0" if d == 0 else t
            a(f"v_dot2_f32_bf16 {t}, v{KB+4*i+d}, v{Q+d}, {c}")
    a("s_waitcnt lgkmcnt(0)")
    a(f"ds_write_b32 v{VDONE}, v{VCNT+1}")
    for i in range(2):
        a(f"v_add_f32_dpp v{T0+i}, v{T0+i}, v{T0+i} row_ror:8 row_mask:0xf bank_mask:0x3")
        a(f"v_add_f32_dpp v{T0+i}, v{T0+i+2}, v{T0+i+2} row_ror:8 row_mask:0xf bank_mask:0xc")
    PV1, PV2 = T0 + 8, KB
    for d in range(2):
        a(f"v_perm_b32 v{PV1+2*d}, v{VB+4+d}, v{VB+d}, s70")
        a(f"v_perm_b32 v{PV1+2*d+1}, v{VB+4+d}, v{VB+d}, s71")
    a(f"v_add_f32_dpp v{T0}, v{T0}, v{T0} row_half_mirror row_mask:0xf bank_mask:0x5")
    a(f"v_add_f32_dpp v{T0}, v{T0+1}, v{T0+1} row_half_mirror row_mask:0xf bank_mask:0xa")
    for d in range(2, 4):
        a(f"v_perm_b32 v{PV1+2*d}, v{VB+4+d}, v{VB+d}, s70")
        a(f"v_perm_b32 v{PV1+2*d+1}, v{VB+4+d}, v{VB+d}, s71")
    S = f"v{T0}"
    a(f"v_add_f32_dpp {S}, {S}, {S} quad_perm:[1,0,3,2] row_mask:0xf bank_mask:0xf")
    a(f"v_perm_b32 v{PV2}, v{VB+12}, v{VB+8}, s70")
    a(f"v_perm_b32 v{PV2+1}, v{VB+12}, v{VB+8}, s71")
    a(f"v_add_f32_dpp {S}, {S}, {S} quad_perm:[2,3,0,1] row_mask:0xf bank_mask:0xf")
    round_bf16(a, S)
    a(f"v_mul_f32 {S}, s68, {S}")
    round_bf16(a, S)
    MX = f"v{T0+1}"
    a(f"v_perm_b32 v{PV2+2}, v{VB+13}, v{VB+9}, s70")
    a(f"v_perm_b32 v{PV2+3}, v{VB+13}, v{VB+9}, s71")
    a(f"v_max_f32_dpp {MX}, {S}, {S} row_ror:8 row_mask:0xf bank_mask:0xf")
    a(f"v_perm_b32 v{PV2+4}, v{VB+14}, v{VB+10}, s70")
    a(f"v_perm_b32 v{PV2+5}, v{VB+14}, v{VB+10}, s71")
    a(f"v_max_f32_dpp {MX}, {MX}, {MX} row_ror:4 row_mask:0xf bank_mask:0xf")
    a(f"v_perm_b32 v{PV2+6}, v{VB+15}, v{VB+11}, s70")
    a(f"v_perm_b32 v{PV2+7}, v{VB+15}, v{VB+11}, s71")
    a(f"v_max_f32 {MX}, {MX}, v{M}")
    AL = f"v{T0+2}"
    a(f"v_sub_f32 {AL}, v{M}, {MX}")
    a(f"v_sub_f32 v{P}, {S}, {MX}")
    a(f"v_mul_f32 {AL}, s69, {AL}")
    a(f"v_mul_f32 v{P}, s69, v{P}")
    a(f"v_exp_f32 {AL}, {AL}")
    a(f"v_exp_f32 v{P}, v{P}")
    a(f"v_mov_b32 v{M}, {MX}")
    a(f"v_fma_f32 v{L}, v{L}, {AL}, v{P}")
    a(f"v_mul_f32 v{ACC}, {AL}, v{ACC}")
    a(f"v_mov_b32_dpp v{T0+3}, v{P} row_shl:4 row_mask:0xf bank_mask:0xf")
    for j in range(1, 8):
        a(f"v_mul_f32 v{ACC+j}, {AL}, v{ACC+j}")
        if j == 1:
            a(f"v_cvt_pk_bf16_f32 v{P}, v{P}, v{T0+3}")
    for e in range(8):
        a(f"v_dot2c_f32_bf16_dpp v{ACC+e}, v{P}, v{PV1+e} row_newbcast:0 row_mask:0xf bank_mask:0xf")
    for e in range(8):
        a(f"v_dot2c_f32_bf16_dpp v{ACC+e}, v{P}, v{PV2+e} row_newbcast:8 row_mask:0xf bank_mask:0xf")
    NPJ = args.wo_npj
    NB = 16 // NPJ
    a(f"s_cmp_le_u32 s15, {args.wo_at + NB - 1}")
    a("s_cbranch_scc1 LC_wo")
    a(f"s_cmp_eq_u32 s15, {args.prep_at}")
    a("s_cbranch_scc1 LC_prep")
    a("s_cmp_lt_u32 s13, s79")
    a("s_cbranch_scc1 LC_poll")
    a("s_branch LA_tail")
    a.label("LC_wo")
    for k in range(NB):
        a(f"s_cmp_lg_u32 s15, {args.wo_at + k}")
        a(f"s_cbranch_scc1 {'LC_wo%d' % (k+1) if k < NB-1 else 'LC_poll'}")
        for i in range(NPJ * k, NPJ * (k + 1)):
            if i % 4 == 0 or i == NPJ * k:
                a(f"s_add_u32 s4, s43, {(i >> 2) * 4096}")
            a(f"buffer_load_dwordx4 {Wr(i)}, v1, s[52:55], s4 offen offset:{(i & 3) * 1024}{wnt}")
        a("s_branch LC_poll")
        if k < NB - 1:
            a.label(f"LC_wo{k+1}")

    a.label("LC_prep")
    a("s_waitcnt vmcnt(0)")
    LOr = {}
    prev = 141
    for j in range(8):
        for t in range(4):
            A_, B_ = W0 + 8 * j + t, W0 + 8 * j + 4 + t
            a(f"v_perm_b32 v{prev}, v{B_}, v{A_}, s70")
            a(f"v_perm_b32 v{B_}, v{B_}, v{A_}, s71")
            LOr[(j, t)] = prev
            prev = A_
    if args.warm:
        a("s_mov_b64 exec, 0")
        a("s_branch LW_0")
        a.label("LC_warmret")
        a("s_mov_b64 exec, -1")
    a("s_branch LC_poll")

    a.label("LA_tail")
    if args.warm:
        a.hop_begin("LW", args.warm)
    a.nop(3)
    stamp(3)
    for r in (8, 4):
        a(f"v_add_f32_dpp v{L}, v{L}, v{L} row_ror:{r} row_mask:0xf bank_mask:0xf")
    for g in range(4):
        a(f"v_readlane_b32 s{80+g}, v{M}, {16*g}")
    a("v_mov_b32 v20, s80")
    a("v_max_f32 v20, s81, v20")
    a("v_max_f32 v20, s82, v20")
    a("v_max_f32 v20, s83, v20")
    a(f"v_sub_f32 v22, v{M}, v20")
    a("v_mul_f32 v22, s69, v22")
    a("v_exp_f32 v22, v22")
    a(f"v_mul_f32 v{L}, v22, v{L}")
    for j in range(8):
        a(f"v_mul_f32 v{ACC+j}, v22, v{ACC+j}")
    for g in range(4):
        a(f"v_readlane_b32 s{80+g}, v{L}, {16*g}")
    cross_row_reduce8(ACC)
    a("v_mov_b32 v21, s80")
    a("v_add_f32 v21, s81, v21")
    a("v_add_f32 v21, s82, v21")
    a("v_add_f32 v21, s83, v21")
    a(f"ds_write_b32 v{VRED}, v{ACC} offset:{L_OP - L_QP}")
    a(f"ds_write_b32 v{VRED}, v{ACC+4} offset:{L_OP - L_QP + 16}")
    a("s_lshl_b32 s4, s9, 3")
    a(f"s_add_u32 s4, s4, {L_ST}")
    a("v_mov_b32 v22, s4")
    a("ds_write_b64 v22, v[20:21]")
    a("v_lshlrev_b32 v20, 3, v0")
    a(f"v_add_u32 v20, {L_OP}, v20")
    a(f"v_mov_b32 v21, {L_ST}")
    lds_barrier(1, "t1")
    stamp(4)
    SB = 104
    for k in range(4):
        a(f"ds_read_b128 v[{SB+4*k}:{SB+4*k+3}], v21 offset:{16*k}")
    for w in range(8):
        a(f"ds_read_b64 v[{T0+2*w}:{T0+2*w+1}], v20 offset:{512*w}")
    a("s_lshl_b32 s4, s9, 3")
    a("s_waitcnt lgkmcnt(8)")
    a(f"v_max3_f32 v20, v{SB}, v{SB+2}, v{SB+4}")
    a(f"v_max3_f32 v20, v20, v{SB+6}, v{SB+8}")
    a(f"v_max3_f32 v20, v20, v{SB+10}, v{SB+12}")
    a(f"v_max_f32 v20, v20, v{SB+14}")
    for w in range(8):
        a(f"v_sub_f32 v{SB+2*w}, v{SB+2*w}, v20")
    for w in range(8):
        a(f"v_mul_f32 v{SB+2*w}, s69, v{SB+2*w}")
    for w in range(8):
        a(f"v_exp_f32 v{SB+2*w}, v{SB+2*w}")
    a(f"v_mul_f32 v21, v{SB}, v{SB+1}")
    for w in range(1, 8):
        a(f"v_fmac_f32 v21, v{SB+2*w}, v{SB+2*w+1}")
    a("v_rcp_f32 v22, v21")
    a("s_waitcnt lgkmcnt(0)")
    a(f"v_mul_f32 v2, v{SB}, v{T0}")
    a(f"v_mul_f32 v3, v{SB}, v{T0+1}")
    for w in range(1, 8):
        a(f"v_fmac_f32 v2, v{SB+2*w}, v{T0+2*w}")
        a(f"v_fmac_f32 v3, v{SB+2*w}, v{T0+2*w+1}")
    a("v_mul_f32 v2, v22, v2")
    a("v_mul_f32 v3, v22, v3")
    a("v_cvt_pk_bf16_f32 v2, v2, v3")
    for j in range(8):
        a(f"v_readlane_b32 s{72+j}, v2, s4")
        if j < 7:
            a("s_add_u32 s4, s4, 1")
    for j in range(8):
        for t in range(4):
            c = "0" if j == 0 else f"v{ACC+2*t}"
            a(f"v_dot2_f32_bf16 v{ACC+2*t}, v{LOr[(j, t)]}, s{72+j}, {c}")
            c = "0" if j == 0 else f"v{ACC+2*t+1}"
            a(f"v_dot2_f32_bf16 v{ACC+2*t+1}, v{W0+8*j+4+t}, s{72+j}, {c}")
    a("s_lshl_b32 s4, s9, 11")
    a("v_lshlrev_b32 v2, 5, v0")
    a("v_add_u32 v2, s4, v2")
    a(f"ds_write_b128 v2, v[{ACC}:{ACC+3}] offset:{L_Y}")
    a(f"ds_write_b128 v2, v[{ACC+4}:{ACC+7}] offset:{L_Y+16}")
    a("s_lshl_b32 s4, s9, 8")
    a("v_lshlrev_b32 v3, 2, v0")
    a("v_add_u32 v3, s4, v3")
    a("s_lshl_b32 s5, s7, 6")
    a("s_lshl_b32 s12, s6, 1")
    a("s_add_u32 s5, s5, s12")
    a("s_add_u32 s5, s5, s8")
    a("s_lshl_b32 s5, s5, 11")
    lds_barrier(2, "t2")
    for w in range(8):
        a(f"ds_read_b32 v{T0+w}, v3 offset:{L_Y + 2048*w}")
    a("s_waitcnt lgkmcnt(0)")
    for st in (1, 2, 4):
        for w in range(0, 8, 2 * st):
            a(f"v_add_f32 v{T0+w}, v{T0+w}, v{T0+w+st}")
    if args.warm:
        a.hop_end("LC_warmret")
    a(f"buffer_store_dword v{T0}, v3, s[60:63], s5 offen")
    stamp(5)
    a("s_cmp_lg_u32 s9, 0")
    a("s_cbranch_scc1 LA_end2")
    a("s_lshl_b32 s5, s7, 5")
    a("s_add_u32 s5, s5, s6")
    a("s_lshl_b32 s5, s5, 4")
    a("s_lshl_b32 s12, s8, 3")
    a("s_add_u32 s5, s5, s12")
    a(f"s_add_u32 s5, s5, {WS_STATS}")
    a("v_mov_b32 v2, 0")
    a("s_mov_b64 exec, 1")
    a("buffer_store_dwordx2 v[20:21], v2, s[60:63], s5 offen")
    a.label("LA_end2")
    stamp_store()
    a("s_endpgm")

    if args.mon:
        a.label("LA_mon")
        G = args.glob
        RATE = args.rate
        a("s_memrealtime s[66:67]")
        a("s_and_b32 s15, s2, 7")
        a(f"s_mul_i32 s4, s15, {args.bstride}")
        a(f"s_add_u32 s4, s4, {WS_BOARD}")
        a("s_add_u32 s60, s40, s4")
        a("s_addc_u32 s61, s41, 0")
        a(f"s_movk_i32 s62, {132 if G else 128}")
        a("s_lshr_b32 s12, s2, 3")
        a("s_lshl_b32 s12, s12, 2")
        a("v_lshlrev_b32 v5, 2, v0")
        a("v_mov_b32 v7, 0")
        a(f"v_mov_b32 v6, {C_LANDED}")
        a(f"s_sub_u32 s10, s79, {NJ}")
        a(f"s_sub_u32 s11, s79, {args.mon_stop}")
        if G:
            a(f"s_add_u32 s56, s40, {WS_BOARD + 8*args.bstride}")
            a("s_addc_u32 s57, s41, 0")
            a("s_mov_b32 s58, 32")
            a("s_lshl_b32 s15, s15, 2")
        if args.ts:
            for k in range(6):
                a(f"s_mov_b32 s{84+k}, 0")
        a("s_mov_b64 exec, 1")
        a("s_waitcnt lgkmcnt(0)")
        a(f"s_mul_i32 s4, s66, {RATE}")
        a("s_sub_u32 s4, 0, s4")
        a("v_mov_b32 v4, s4")
        a("buffer_store_dword v4, v7, s[60:63], s12 offen")
        if G:
            a("s_cmp_lg_u32 s12, 0")
            a("s_cbranch_scc1 LM_loop")
            a("s_lshl_b32 s4, s4, 5")
            a("v_mov_b32 v8, s4")
            a("buffer_store_dword v7, v7, s[60:63], 0 offen offset:128")
            a("buffer_store_dword v8, v7, s[56:59], s15 offen sc1")
        a.label("LM_loop")
        a(f"s_sleep {args.mon}")
        a("ds_read_b32 v4, v6")
        a("s_memrealtime s[66:67]")
        a("s_waitcnt lgkmcnt(0)")
        a("v_readfirstlane_b32 s14, v4")
        a("s_cmp_ge_u32 s14, s11")
        a("s_cbranch_scc1 LM_last")
        a("s_sub_u32 s4, s14, s10")
        a("s_lshl_b32 s4, s4, 10")
        a(f"s_mul_i32 s5, s66, {RATE}")
        a("s_sub_u32 s13, s4, s5")
        a("v_mov_b32 v4, s13")
        a("buffer_store_dword v4, v7, s[60:63], s12 offen")
        a("s_cmp_lt_u32 s14, 8")
        a("s_cbranch_scc1 LM_loop")
        a("s_mov_b64 exec, -1")
        a(f"buffer_load_dword v8, v5, s[60:63], 0 offen {args.monld}")
        if G:
            a("s_cmp_lg_u32 s12, 0")
            a("s_cbranch_scc1 LM_nl1")
            a("buffer_load_dword v9, v5, s[56:59], 0 offen sc1")
            a.label("LM_nl1")
        a("s_lshl_b32 s13, s13, 5")
        a("s_waitcnt vmcnt(0)")
        for r in (1, 2, 4, 8):
            a(f"v_add_u32_dpp v8, v8, v8 row_ror:{r} row_mask:0xf bank_mask:0xf")
            if G:
                a(f"v_add_u32_dpp v9, v9, v9 row_ror:{r} row_mask:0xf bank_mask:0xf")
        a("v_readlane_b32 s4, v8, 0")
        a("v_readlane_b32 s5, v8, 16")
        if G:
            a("v_readlane_b32 s65, v8, 32")
            a("v_readlane_b32 s66, v9, 0")
        a("s_mov_b64 exec, 1")
        a("s_add_u32 s4, s4, s5")
        a("s_sub_u32 s13, s4, s13")
        if G:
            a("s_cmp_lg_u32 s12, 0")
            a("s_cbranch_scc1 LM_nl2")
            a("v_mov_b32 v4, s4")
            a("buffer_store_dword v4, v7, s[56:59], s15 offen sc1")
            a("s_lshl_b32 s5, s4, 3")
            a("s_sub_u32 s65, s66, s5")
            a("s_ashr_i32 s65, s65, 3")
            a("v_mov_b32 v4, s65")
            a("buffer_store_dword v4, v7, s[60:63], 0 offen offset:128")
            a.label("LM_nl2")
            a(f"s_min_i32 s65, s65, {int(32768*G)}")
            a(f"s_max_i32 s65, s65, {-int(32768*G)}")
            a("s_add_u32 s13, s13, s65")
        a("s_mov_b32 s5, 0")
        for k, th in enumerate(TH):
            code = k + 1
            if LV[code] < LV[0]:
                a(f"s_cmp_lt_i32 s13, {int(round(th*32768))}")
            else:
                a(f"s_cmp_gt_i32 s13, {int(round(th*32768))}")
            a(f"s_cselect_b32 s5, {code}, s5")
        a("v_mov_b32 v4, s5")
        a(f"ds_write_b32 v6, v4 offset:{C_DEPTH - C_LANDED}")
        if args.ts:
            for k in range(len(LV)):
                a(f"s_cmp_eq_u32 s5, {k}")
                a(f"s_addc_u32 s{84+k}, s{84+k}, 0")
        a("s_branch LM_loop")
        a.label("LM_last")
        if args.ts:
            a("s_lshl_b32 s4, s2, 5")
            a(f"s_add_u32 s60, s40, {(4<<20) + 163840}")
            a("s_addc_u32 s61, s41, 0")
            a("s_mov_b32 s62, 0x100000")
            a("v_mov_b32 v2, 0")
            for k in range(6):
                a(f"v_mov_b32 v4, s{84+k}")
                a(f"buffer_store_dword v4, v2, s[60:63], s4 offen offset:{4*k}")
        a("s_endpgm")

    a.label("LA_ffn")
    a("s_mov_b32 s6, s5")
    a(f"s_cmp_ge_u32 s6, {NFFN}")
    a("s_cbranch_scc1 LA_end")
    a("s_cmp_lg_u32 s8, 0")
    a("s_cbranch_scc1 LA_end")
    if args.ffn_wait:
        a(f"v_mov_b32 v4, {C_DONE}")
        a.label("LF_wait")
        a("s_sleep 8")
        a("ds_read_b32 v5, v4")
        a("s_waitcnt lgkmcnt(0)")
        a("v_readfirstlane_b32 s4, v5")
        a(f"s_cmp_lt_u32 s4, {args.ffn_wait}")
        a("s_cbranch_scc1 LF_wait")
    FB = 104
    FA = 40
    FX = 72
    FU = 80
    FG = 88
    FH = 96
    def Fr(i): return f"v[{FB+4*i}:{FB+4*i+3}]"
    a("v_lshrrev_b32 v20, 1, v0")
    a("v_and_b32 v21, 1, v0")
    a("s_movk_i32 s4, 2752")
    a("v_mul_lo_u32 v2, v20, s4")
    a("v_lshl_add_u32 v2, v21, 4, v2")
    a("v_lshlrev_b32 v3, 4, v20")
    a(f"v_add_u32 v3, {L_XT}, v3")
    a("s_mov_b32 s46, 1409024")
    a("s_mov_b32 s50, 1409024")
    a("s_mov_b32 s58, 4096")
    a(f"s_mov_b32 s62, {NFFN*8192}")
    a("s_lshl_b32 s10, s6, 5")
    a("s_mov_b32 s44, s28")
    a("s_mov_b32 s45, s29")
    a("s_mov_b32 s48, s30")
    a("s_mov_b32 s49, s31")
    a("s_mov_b32 s56, s16")
    a("s_mov_b32 s57, s17")
    a(f"s_add_u32 s60, s40, {WS_F}")
    a("s_addc_u32 s61, s41, 0")
    for b in range(4):
        a(f"buffer_load_dwordx4 v[{4+4*b}:{7+4*b}], v1, s[56:59], 0 offen offset:{1024*b}")
    FD = args.fd
    a("s_mov_b32 s11, s10")
    for i in range(FD):
        a(f"buffer_load_dwordx4 {Fr(i)}, v2, s[44:47], s11 offen{wnt}")
        a(f"s_add_u32 s11, s11, {32*2752}")
    a(f"s_waitcnt vmcnt({FD})")
    for e in range(8):
        for b in range(4):
            src = f"v{4+4*b+(e>>1)}"
            if e & 1:
                a(f"v_and_b32 v{FA+4*e+b}, s42, {src}")
            else:
                a(f"v_lshlrev_b32 v{FA+4*e+b}, 16, {src}")
    a("v_lshlrev_b32 v20, 7, v0")
    a(f"v_add_u32 v20, {L_XT}, v20")
    for e in range(8):
        a(f"ds_write_b128 v20, v[{FA+4*e}:{FA+4*e+3}] offset:{16*e}")
    a("s_waitcnt lgkmcnt(0)")
    a("s_mov_b32 s9, 0")
    a("v_mov_b32 v22, v2")
    a(f"s_mov_b32 s12, {32*2752}")
    a.label("LF_pass")
    for k in range(32):
        a(f"v_mov_b32 v{FA+k}, 0")
    a(f"ds_read_b128 v[{FX}:{FX+3}], v3")
    for i in range(16):
        xb = FX + 4 * (i & 1)
        if i < 15:
            nb = FX + 4 * ((i + 1) & 1)
            a(f"ds_read_b128 v[{nb}:{nb+3}], v3 offset:{512*(i+1)}")
        a(f"s_waitcnt vmcnt({FD-1})")
        for d in range(4):
            a(f"v_lshlrev_b32 v{FU+2*d}, 16, v{FB+4*i+d}")
            a(f"v_and_b32 v{FU+2*d+1}, s42, v{FB+4*i+d}")
        if i + FD < 16:
            a(f"buffer_load_dwordx4 {Fr(i+FD)}, v2, s[44:47], s11 offen{wnt}")
            a(f"s_add_u32 s11, s11, {32*2752}")
        else:
            if i + FD == 16:
                a("s_mov_b32 s11, s10")
            a(f"buffer_load_dwordx4 {Fr(i+FD-16)}, v22, s[48:51], s11 offen{wnt}")
            a("s_add_u32 s11, s11, s12")
        a(f"s_waitcnt lgkmcnt({1 if i < 15 else 0})")
        for b in range(4):
            for e in range(8):
                a(f"v_fmac_f32 v{FA+8*b+e}, v{xb+b}, v{FU+e}")
    for k in range(16):
        a(f"v_permlane32_swap_b32 v{FA+k}, v{FA+16+k}")
    for k in range(16):
        a(f"v_add_f32 v{FA+k}, v{FA+k}, v{FA+16+k}")
    for k in range(8):
        a(f"v_permlane16_swap_b32 v{FA+k}, v{FA+8+k}")
    for k in range(8):
        a(f"v_add_f32 v{FA+k}, v{FA+k}, v{FA+8+k}")
    for r in (2, 4, 8):
        for k in range(8):
            a(f"v_add_f32_dpp v{FA+k}, v{FA+k}, v{FA+k} row_ror:{r} row_mask:0xf bank_mask:0xf")
    for k in range(8):
        a(f"v_mov_b32 v{FG+k}, v{FH+k}")
        a(f"v_mov_b32 v{FH+k}, v{FA+k}")
    a("s_cmp_eq_u32 s9, 1")
    a("s_cbranch_scc1 LF_p2")
    a("s_mov_b32 s9, 1")
    a("s_mov_b32 s44, s48")
    a("s_mov_b32 s45, s49")
    a("s_mov_b32 s48, s32")
    a("s_mov_b32 s49, s33")
    a("v_mov_b32 v22, v1")
    a("s_movk_i32 s12, 1024")
    a("s_lshl_b32 s10, s6, 14")
    a("s_branch LF_pass")
    a.label("LF_p2")
    a.nop(2)
    for k in range(8):
        g, u = f"v{FG+k}", f"v{FH+k}"
        round_bf16(a, g)
        round_bf16(a, u)
        a(f"v_mul_f32 {g}, s69, {g}")
        a(f"v_exp_f32 {g}, -{g}")
        a(f"v_add_f32 {g}, 1.0, {g}")
        a(f"v_rcp_f32 {g}, {g}")
        round_bf16(a, g)
        a(f"v_mul_f32 {u}, {g}, {u}")
        round_bf16(a, u)
    for k in range(32):
        a(f"v_mov_b32 v{FA+k}, 0")
    for f in range(16):
        for b in range(4):
            a(f"v_readlane_b32 s{80+b}, v{FH+(f&7)}, {16*b + (f >> 3)}")
        a(f"s_waitcnt vmcnt({min(FD-1, 15-f)})")
        for d in range(4):
            a(f"v_lshlrev_b32 v{FU+2*d}, 16, v{FB+4*f+d}")
            a(f"v_and_b32 v{FU+2*d+1}, s42, v{FB+4*f+d}")
        if f + FD < 16:
            a(f"buffer_load_dwordx4 {Fr(f+FD)}, v22, s[48:51], s11 offen{wnt}")
            a("s_add_u32 s11, s11, s12")
        for b in range(4):
            for e in range(8):
                a(f"v_fmac_f32 v{FA+8*b+e}, s{80+b}, v{FU+e}")
    a("v_lshlrev_b32 v2, 5, v0")
    a("s_lshl_b32 s10, s6, 13")
    for b in range(4):
        a(f"buffer_store_dwordx4 v[{FA+8*b}:{FA+8*b+3}], v2, s[60:63], s10 offen offset:{2048*(b&1)}")
        a(f"buffer_store_dwordx4 v[{FA+8*b+4}:{FA+8*b+7}], v2, s[60:63], s10 offen offset:{2048*(b&1)+16}")
        if b == 1:
            a("s_add_u32 s10, s10, 4096")
    stamp(5)
    a("s_branch LA_end2")
    a.label("LA_end")
    a("s_endpgm")

    fin_kernel(a, args)
    if args.probe:
        probe_kernel(a, args)

    for name, vg in (("attn_kernel", 168), ("fin_kernel", 48)) + ((("probe_kernel", 16),) if args.probe else ()):
        a.raw(f""".section .rodata,"a"
.p2align 6
.amdhsa_kernel {name}
  .amdhsa_next_free_vgpr {vg}
  .amdhsa_next_free_sgpr 100
  .amdhsa_accum_offset {vg}
  .amdhsa_group_segment_fixed_size 0
  .amdhsa_kernarg_size 104
  .amdhsa_user_sgpr_count 2
  .amdhsa_user_sgpr_kernarg_segment_ptr 1
  .amdhsa_system_sgpr_workgroup_id_x 1
.end_amdhsa_kernel""")
    return a.text()


def probe_kernel(a, args):
    a.raw(".globl probe_kernel\n.p2align 8\n.type probe_kernel,@function")
    a.label("probe_kernel")
    a("s_cmp_ge_u32 s2, 1")
    a("s_cbranch_scc1 LP_end")
    a("s_load_dwordx16 s[16:31], s[0:1], 0")
    a("s_load_dwordx2 s[40:41], s[0:1], 96")
    a("s_mov_b32 s46, 0x08000000")
    a("s_mov_b32 s47, 0x20000")
    a("s_mov_b32 s62, 4096")
    a("s_mov_b32 s63, 0x20000")
    a("v_mov_b32 v1, 0")
    a("s_mov_b64 exec, 1")
    a("s_waitcnt lgkmcnt(0)")
    a(f"s_add_u32 s60, s40, {3<<20}")
    a("s_addc_u32 s61, s41, 0")
    n = 0
    for base in (18, 20):
        a(f"s_mov_b32 s44, s{base}")
        a(f"s_mov_b32 s45, s{base+1}")
        for i in range(8):
            off = i * (16 << 20) + (8 << 20) + 0x12300
            a(f"s_mov_b32 s10, {off}")
            a(f"buffer_load_dword v2, v1, s[44:47], s10 offen {args.probe_pol}")
            a("s_waitcnt vmcnt(0)")
            a("v_mov_b32 v3, 0")
            for r in range(4):
                a(f"s_add_u32 s10, s10, {0x4d00}")
                a("s_memtime s[12:13]")
                a("s_waitcnt lgkmcnt(0)")
                a(f"buffer_load_dword v2, v1, s[44:47], s10 offen {args.probe_pol}")
                a("s_waitcnt vmcnt(0)")
                a("s_memtime s[14:15]")
                a("s_waitcnt lgkmcnt(0)")
                a("s_sub_u32 s14, s14, s12")
                a("v_add_u32 v3, s14, v3")
            a(f"buffer_store_dword v3, v1, s[60:63], 0 offen offset:{4*n}")
            n += 1
    a.label("LP_end")
    a("s_endpgm")


def fin_kernel(a, args):
    a.raw(".globl fin_kernel\n.p2align 8\n.type fin_kernel,@function")
    a.label("fin_kernel")
    a("s_cmp_ge_u32 s2, 64")
    a("s_cbranch_scc1 LB_end")
    a("s_load_dwordx2 s[16:17], s[0:1], 0")
    a("s_load_dwordx4 s[32:35], s[0:1], 72")
    a("s_load_dwordx2 s[40:41], s[0:1], 96")
    a("s_lshr_b32 s7, s2, 4")
    a("s_and_b32 s8, s2, 15")
    a("s_mov_b32 s42, 0xffff0000")
    a(f"s_mov_b32 s69, {LOG2E:#x}")
    for r in (47, 51, 55, 59, 63):
        a(f"s_mov_b32 s{r}, 0x20000")
    a(f"s_mov_b32 s46, {WS_STATS + 2048}")
    a(f"s_mov_b32 s50, {NFFN*8192}")
    a("s_mov_b32 s54, 4096")
    a("s_mov_b32 s58, 1024")
    a("s_mov_b32 s62, 4096")
    a("v_lshrrev_b32 v1, 3, v0")
    a("v_and_b32 v2, 7, v0")
    a("v_lshlrev_b32 v3, 11, v1")
    a("v_lshl_add_u32 v3, v2, 4, v3")
    a("v_lshrrev_b32 v4, 1, v1")
    a("v_lshlrev_b32 v4, 4, v4")
    a("v_lshlrev_b32 v5, 13, v1")
    a("v_lshl_add_u32 v5, v2, 4, v5")
    a("v_lshlrev_b32 v6, 2, v0")
    a("s_lshl_b32 s4, s7, 17")
    a("s_lshl_b32 s5, s8, 7")
    a("s_add_u32 s4, s4, s5")
    a("s_add_u32 s10, s4, 65536")
    a("s_lshl_b32 s11, s7, 9")
    a(f"s_add_u32 s11, s11, {WS_STATS}")
    a("s_lshl_b32 s12, s7, 11")
    a("s_add_u32 s12, s12, s5")
    a("s_add_u32 s13, s12, 0x40000")
    a("s_add_u32 s14, s12, 0x80000")
    a("s_lshl_b32 s15, s7, 10")
    a("s_waitcnt lgkmcnt(0)")
    a("s_mov_b32 s44, s40")
    a("s_mov_b32 s45, s41")
    a(f"s_add_u32 s48, s40, {WS_F}")
    a("s_addc_u32 s49, s41, 0")
    a("s_mov_b32 s52, s16")
    a("s_mov_b32 s53, s17")
    a("s_mov_b32 s56, s32")
    a("s_mov_b32 s57, s33")
    a("s_mov_b32 s60, s34")
    a("s_mov_b32 s61, s35")
    a("buffer_load_dwordx4 v[8:11], v4, s[44:47], s11 offen")
    a("buffer_load_dwordx4 v[12:15], v4, s[44:47], s11 offen offset:256")
    a("buffer_load_dword v36, v6, s[52:55], s15 offen")
    a("buffer_load_dword v37, v6, s[56:59], 0 offen")
    a("buffer_load_dwordx4 v[16:19], v3, s[44:47], s4 offen")
    a("buffer_load_dwordx4 v[20:23], v3, s[44:47], s10 offen")
    a("buffer_load_dwordx4 v[24:27], v5, s[48:51], s12 offen")
    a("buffer_load_dwordx4 v[28:31], v5, s[48:51], s13 offen")
    a("buffer_load_dwordx4 v[32:35], v5, s[48:51], s14 offen")
    a("v_and_b32 v7, 1, v1")
    a("v_cmp_eq_u32 vcc, 1, v7")
    a("s_waitcnt vmcnt(7)")
    for k, sb in enumerate((8, 12)):
        w = f"v{38+k}"
        a(f"v_max_f32 v40, v{sb}, v{sb+2}")
        a(f"v_sub_f32 v{sb}, v{sb}, v40")
        a(f"v_sub_f32 v{sb+2}, v{sb+2}, v40")
        a(f"v_mul_f32 v{sb}, s69, v{sb}")
        a(f"v_mul_f32 v{sb+2}, s69, v{sb+2}")
        a(f"v_exp_f32 v{sb}, v{sb}")
        a(f"v_exp_f32 v{sb+2}, v{sb+2}")
        a(f"v_mul_f32 v{sb}, v{sb}, v{sb+1}")
        a(f"v_mul_f32 v{sb+2}, v{sb+2}, v{sb+3}")
        a(f"v_add_f32 v40, v{sb}, v{sb+2}")
        a("v_rcp_f32 v40, v40")
        a(f"v_cndmask_b32 {w}, v{sb}, v{sb+2}, vcc")
        a(f"v_mul_f32 {w}, {w}, v40")
    a("s_waitcnt vmcnt(5)")
    a("v_lshlrev_b32 v40, 16, v36")
    a("v_and_b32 v41, s42, v36")
    a("v_lshlrev_b32 v42, 16, v37")
    a("v_and_b32 v43, s42, v37")
    a("v_mul_f32 v40, v40, v42")
    a("v_mul_f32 v41, v41, v43")
    round_bf16(a, "v40")
    round_bf16(a, "v41")
    a("v_add_f32 v40, v40, v41")
    for r in (1, 2, 4, 8):
        a(f"v_add_f32_dpp v40, v40, v40 row_ror:{r} row_mask:0xf bank_mask:0xf")
    for g in range(4):
        a(f"v_readlane_b32 s{80+g}, v40, {16*g}")
    a("v_mov_b32 v40, s80")
    a("v_add_f32 v40, s81, v40")
    a("v_add_f32 v40, s82, v40")
    a("v_add_f32 v40, s83, v40")
    a("v_lshrrev_b32 v41, 6, v0")
    a("v_lshlrev_b32 v42, 2, v41")
    a("ds_write_b32 v42, v40 offset:1024")
    a("s_waitcnt vmcnt(3)")
    for k in range(4):
        a(f"v_mul_f32 v{16+k}, v38, v{16+k}")
        a(f"v_fmac_f32 v{16+k}, v39, v{20+k}")
    a("s_waitcnt vmcnt(0)")
    for k in range(4):
        a(f"v_add_f32 v{24+k}, v{24+k}, v{28+k}")
        a(f"v_add_f32 v{24+k}, v{24+k}, v{32+k}")
    for k in range(4):
        a(f"v_permlane32_swap_b32 v{16+k}, v{24+k}")
    for k in range(4):
        a(f"v_add_f32 v{16+k}, v{16+k}, v{24+k}")
    a("v_permlane16_swap_b32 v16, v17")
    a("v_permlane16_swap_b32 v18, v19")
    a("v_add_f32 v16, v16, v17")
    a("v_add_f32 v18, v18, v19")
    a("v_add_f32_dpp v16, v16, v16 row_ror:8 row_mask:0xf bank_mask:0xf")
    a("v_add_f32_dpp v18, v18, v18 row_ror:8 row_mask:0xf bank_mask:0xf")
    a("v_bfe_u32 v43, v0, 5, 1")
    a("v_lshlrev_b32 v43, 7, v43")
    a("v_lshl_add_u32 v43, v41, 8, v43")
    a("v_lshl_add_u32 v43, v2, 4, v43")
    a("v_bfe_u32 v44, v0, 4, 1")
    a("v_lshl_add_u32 v43, v44, 2, v43")
    a("ds_write_b32 v43, v16")
    a("ds_write_b32 v43, v18 offset:8")
    a("s_waitcnt lgkmcnt(0)")
    a("s_barrier")
    a("v_cmp_gt_u32 vcc, 32, v0")
    a("s_and_saveexec_b64 s[84:85], vcc")
    a("s_cbranch_execz LB_end")
    a("v_mov_b32 v1, 0")
    for w in range(4):
        a(f"ds_read_b32 v{8+w}, v6 offset:{256*w}")
        a(f"ds_read_b32 v{12+w}, v6 offset:{256*w+128}")
    a("ds_read_b128 v[16:19], v1 offset:1024")
    a("s_waitcnt lgkmcnt(0)")
    a("v_add_f32 v8, v8, v9")
    a("v_add_f32 v10, v10, v11")
    a("v_add_f32 v12, v12, v13")
    a("v_add_f32 v14, v14, v15")
    a("v_add_f32 v16, v16, v17")
    a("v_add_f32 v18, v18, v19")
    a("v_add_f32 v8, v8, v10")
    a("v_add_f32 v12, v12, v14")
    a("v_add_f32 v16, v16, v18")
    round_bf16(a, "v8")
    round_bf16(a, "v12")
    round_bf16(a, "v16")
    a("v_mul_f32 v16, s69, v16")
    a("v_exp_f32 v16, -v16")
    a("v_add_f32 v16, 1.0, v16")
    a("v_rcp_f32 v16, v16")
    round_bf16(a, "v16")
    a("v_sub_f32 v17, 1.0, v16")
    round_bf16(a, "v17")
    a("v_mul_f32 v8, v16, v8")
    a("v_mul_f32 v12, v17, v12")
    round_bf16(a, "v8")
    round_bf16(a, "v12")
    a("v_add_f32 v8, v8, v12")
    a("v_cvt_pk_bf16_f32 v8, v8, v8")
    a("v_lshlrev_b32 v1, 1, v0")
    a("s_lshl_b32 s4, s7, 10")
    a("s_lshl_b32 s5, s8, 6")
    a("s_add_u32 s4, s4, s5")
    a("buffer_store_short v8, v1, s[60:63], s4 offen")
    if args.probe:
        a("s_cmp_lg_u32 s2, 0")
        a("s_cbranch_scc1 LB_end")
        a("s_load_dwordx2 s[4:5], s[0:1], 88")
        a(f"s_add_u32 s44, s40, {3<<20}")
        a("s_addc_u32 s45, s41, 0")
        a("s_mov_b32 s46, 64")
        a("s_mov_b32 s50, 64")
        a("buffer_load_dword v8, v6, s[44:47], 0 offen")
        a("s_waitcnt vmcnt(0) lgkmcnt(0)")
        a("s_mov_b32 s48, s4")
        a("s_mov_b32 s49, s5")
        a("buffer_store_dword v8, v6, s[48:51], 0 offen")
    a.label("LB_end")
    a("s_endpgm")


if __name__ == "__main__":
    ap = argparse.ArgumentParser()
    ap.add_argument("-o", default="v2.s")
    ap.add_argument("--ts", type=int, default=0)
    ap.add_argument("--slots", type=int, default=16)
    ap.add_argument("--inflight", type=int, default=24)
    ap.add_argument("--wo_at", type=int, default=1)
    ap.add_argument("--wo_npj", type=int, default=2)
    ap.add_argument("--fd", type=int, default=2)
    ap.add_argument("--pf", type=int, default=1)
    ap.add_argument("--coop", type=int, default=0)
    ap.add_argument("--wnt", type=int, default=1)
    ap.add_argument("--cnt", type=int, default=1)
    ap.add_argument("--dshift", type=int, default=4)
    ap.add_argument("--prep_at", type=int, default=11)
    ap.add_argument("--warm", type=int, default=12)
    ap.add_argument("--map", default="xcd")
    ap.add_argument("--ffn_wait", type=int, default=1)
    ap.add_argument("--tk", type=int, default=1)
    ap.add_argument("--probe", type=int, default=0)
    ap.add_argument("--probe_pol", default="nt")
    ap.add_argument("--kp", default="nt")
    ap.add_argument("--vp", default="nt")
    ap.add_argument("--rate", type=int, default=33)
    ap.add_argument("--glob", type=float, default=0)
    ap.add_argument("--xbias", type=float, default=0)
    ap.add_argument("--monx", type=int, default=0)
    ap.add_argument("--bstride", type=int, default=4352)
    ap.add_argument("--monld", default="sc1")
    ap.add_argument("--shard", default="xcd")
    ap.add_argument("--mon", type=int, default=0)
    ap.add_argument("--mon_stop", type=int, default=6)
    ap.add_argument("--lv", default="16,12,22,30,40")
    ap.add_argument("--th", default="-4,0,2,4")
    ap.add_argument("--end_code", type=int, default=0)
    ap.add_argument("--deepcls", type=int, default=0)
    ap.add_argument("--inf2", type=int, default=0)
    ap.add_argument("--deep_at", type=int, default=24)
    ap.add_argument("--tkmap", type=int, default=0)
    args = ap.parse_args()
    open(args.o, "w").write(gen(args))
```

```python
import sys, argparse
sys.path.insert(0, "work")
from asmlib import Asm

HEADER = open("gated_mix__gqa_block_cached__glu_gated_glu__decode.s.ref").read().split("; Override launch")[0]

WS_Y = 0
WS_STATS = 512 * 1024
WS_F = 1024 * 1024
NFFN = 86
WS_BOARD = 2 * 1024 * 1024

LOG2E = 0x3FB8AA3B
SCALE = 0x3DB504F3


def round_bf16(a, v):
    a(f"v_cvt_pk_bf16_f32 {v}, {v}, {v}")
    a(f"v_and_b32 {v}, s42, {v}")


def gen(args):
    a = Asm()
    NS = args.slots
    NJ = 128
    wnt = " nt" if args.wnt else ""
    cnt = " nt" if args.cnt else ""
    DS = args.dshift
    INF = args.inflight
    INF2 = args.inf2 or INF
    RING = NS * 8192
    LV = [int(x) for x in args.lv.split(",")]
    TH = [float(x) for x in args.th.split(",")]
    C_LANDED = RING
    C_DONE = RING + 4
    C_BAR = RING + 64
    C_DEPTH = RING + 128
    L_QP = RING + 256
    L_OP = L_QP
    L_ST = L_OP + 4096
    C_TK = L_ST + 128
    L_QQ = L_ST + 256
    L_XT = L_QQ + 2048
    LDS_A = L_XT + 8192
    L_Y = 0
    assert LDS_A <= 163840
    W0, KB, VB, T0 = 40, 104, 120, 24
    ACC, Q = 8, 4
    P, M, L = 16, 17, 18
    VRED = 19
    VZ = 136
    VBASE = 137
    VDONE = 138
    VCNT = 139

    def Wr(i): return f"v[{W0+4*i}:{W0+4*i+3}]"

    def stamp(k, mode=1):
        if args.ts and (mode == args.ts or k in (0, 1, 5)):
            a(f"s_memrealtime s[{84+2*k}:{85+2*k}]")

    def stamp_store():
        if args.ts:
            a("s_mov_b64 exec, 1")
            a("s_mul_i32 s4, s2, 10")
            a("s_add_u32 s4, s4, s3")
            a("s_lshl_b32 s4, s4, 6")
            a(f"s_add_u32 s60, s40, {4<<20}")
            a("s_addc_u32 s61, s41, 0")
            a("s_mov_b32 s62, 0x100000")
            a("s_mov_b32 s63, 0x20000")
            a("v_mov_b32 v2, 0")
            a("s_getreg_b32 s96, hwreg(HW_REG_XCC_ID)")
            a("s_getreg_b32 s97, hwreg(HW_REG_HW_ID)")
            a("s_waitcnt lgkmcnt(0)")
            for k in range(7):
                a(f"v_mov_b32 v4, s{84+2*k}")
                a(f"v_mov_b32 v5, s{85+2*k}")
                a(f"buffer_store_dwordx2 v[4:5], v2, s[60:63], s4 offen offset:{8*k}")
                a.nop(2)

    def lds_barrier(k, tag):
        a("s_waitcnt lgkmcnt(0)")
        a("s_mov_b64 exec, 1")
        a(f"ds_add_u32 v{VZ}, v{VCNT} offset:{C_BAR - RING + 4*k}")
        a("s_mov_b64 exec, -1")
        a.label(f"LB_spin{tag}")
        a(f"ds_read_b32 v23, v{VZ} offset:{C_BAR - RING + 4*k}")
        a("s_waitcnt lgkmcnt(0)")
        a("v_readfirstlane_b32 s14, v23")
        a("s_cmp_lt_u32 s14, 8")
        a(f"s_cbranch_scc1 LB_spin{tag}")

    a.raw(HEADER.rstrip("\n"))
    if args.probe == 1:
        a.raw("; @launch kernel=probe_kernel grid=(1,1,1) block=(64,1,1) lds=0")
    a.raw(f"; @launch kernel=attn_kernel grid=(256,1,1) block=({704 if args.mon else 640},1,1) lds={LDS_A}")
    a.raw("; @launch kernel=fin_kernel grid=(64,1,1) block=(256,1,1) lds=2048")
    a.raw('.amdgcn_target "amdgcn-amd-amdhsa--gfx950"')
    a.raw(".text")
    a.raw(".globl attn_kernel\n.p2align 8\n.type attn_kernel,@function")
    a.label("attn_kernel")
    a("s_cmp_ge_u32 s2, 256")
    a("s_cbranch_scc1 LA_end")
    a("s_load_dwordx16 s[16:31], s[0:1], 0")
    a("s_load_dwordx8 s[32:39], s[0:1], 64")
    a("s_load_dwordx2 s[40:41], s[0:1], 96")
    stamp(0)
    a("v_lshrrev_b32 v1, 6, v0")
    a("v_readfirstlane_b32 s3, v1")
    if args.tk:
        a("s_cmp_eq_u32 s3, 0")
        a("s_cbranch_scc1 LA_tk")
    if args.pf:
        a("s_getpc_b64 s[64:65]")
        a.label("LA_pc")
        a("s_mov_b32 s66, LB_end-LA_pc")
        a("s_mov_b32 s67, 0x20000")
        a("v_lshlrev_b32 v2, 6, v0")
        a("buffer_load_dword v39, v2, s[64:67], 0 offen")
    a("v_and_b32 v0, 63, v0")
    a("v_lshlrev_b32 v3, 2, v0")
    a("v_mov_b32 v2, 0")
    a(f"v_add_u32 v3, {RING}, v3")
    a("ds_write_b32 v3, v2")
    if args.tk:
        a(f"v_mov_b32 v4, {C_TK}")
        a("s_waitcnt lgkmcnt(0)")
        a("s_barrier")
        a("ds_read_b32 v5, v4")
        a("s_waitcnt lgkmcnt(0)")
        a("v_readfirstlane_b32 s2, v5")
        a("s_branch LA_tk_done")
        a.label("LA_tk")
        a("s_getreg_b32 s4, hwreg(HW_REG_XCC_ID)")
        a("s_and_b32 s4, s4, 7")
        a("s_movk_i32 s62, 256")
        a("s_mov_b32 s63, 0x20000")
        a("s_mov_b32 s9, 0")
        a(f"v_mov_b32 v6, {C_TK}")
        a("s_mov_b64 exec, 1")
        a("s_waitcnt lgkmcnt(0)")
        a("s_mov_b32 s60, s38")
        a("s_mov_b32 s61, s39")
        a.label("LA_tk_loop")
        a("s_lshl_b32 s5, s4, 5")
        a("v_mov_b32 v4, 1")
        a("v_mov_b32 v5, s5")
        a("buffer_atomic_add v4, v5, s[60:63], 0 offen sc0")
        a("s_waitcnt vmcnt(0)")
        a("v_readfirstlane_b32 s5, v4")
        a("s_cmp_lt_u32 s5, 32")
        a("s_cbranch_scc1 LA_tk_got")
        a("s_add_u32 s4, s4, 1")
        a("s_and_b32 s4, s4, 7")
        a("s_add_u32 s9, s9, 1")
        a("s_cmp_lt_u32 s9, 8")
        a("s_cbranch_scc1 LA_tk_loop")
        a("s_movk_i32 s5, 64")
        a.label("LA_tk_got")
        a("s_and_b32 s2, s5, 3")
        a(f"s_lshl_b32 s2, s2, {6 if args.tkmap else 3}")
        a("s_or_b32 s2, s2, s4")
        a("s_bfe_u32 s4, s5, 0x10004")
        a("s_lshl_b32 s4, s4, 5")
        a("s_or_b32 s2, s2, s4")
        a("s_bfe_u32 s4, s5, 0x20002")
        a(f"s_lshl_b32 s4, s4, {3 if args.tkmap else 6}")
        a("s_or_b32 s2, s2, s4")
        a("s_and_b32 s4, s5, 64")
        a("s_lshl_b32 s4, s4, 2")
        a("s_or_b32 s2, s2, s4")
        a("v_mov_b32 v4, s2")
        a("ds_write_b32 v6, v4")
        a("s_mov_b64 exec, -1")
        a("s_waitcnt lgkmcnt(0)")
        a("s_barrier")
        a.label("LA_tk_done")
        a("s_cmp_ge_u32 s2, 256")
        a("s_cbranch_scc1 LA_end")
    if args.map == "pair":
        a("s_lshr_b32 s4, s2, 1")
        a("s_and_b32 s5, s4, 3")
        a("s_lshl_b32 s5, s5, 3")
        a("s_bfe_u32 s6, s4, 0x30002")
        a("s_add_u32 s6, s6, s5")
        a("s_lshr_b32 s7, s4, 5")
        a("s_and_b32 s8, s2, 1")
    else:
        a("s_and_b32 s4, s2, 7")
        a("s_bfe_u32 s6, s2, 0x20003")
        a("s_lshl_b32 s4, s4, 2")
        a("s_add_u32 s6, s6, s4")
        a("s_lshr_b32 s7, s2, 6")
        a("s_bfe_u32 s8, s2, 0x10005")
    a("s_lshl_b32 s5, s7, 5")
    a("s_add_u32 s5, s5, s6")
    a(f"s_cmp_lt_u32 s5, {NFFN}")
    a(f"s_cselect_b32 s4, {DS}, 0")
    a(f"s_sub_u32 s78, {NJ}, s4")
    a(f"s_add_u32 s79, s4, {NJ}")
    a("s_cmp_eq_u32 s8, 0")
    a("s_cselect_b32 s79, s78, s79")
    a("s_cselect_b32 s78, 0, s78")
    a("v_lshlrev_b32 v1, 4, v0")
    a("s_mov_b32 s47, 0x20000")
    a("s_mov_b32 s51, 0x20000")
    if not args.tk:
        a("s_waitcnt lgkmcnt(0)")
        a("s_barrier")
    stamp(2, 2)
    a("s_cmp_lg_u32 s3, 0")
    a("s_cbranch_scc1 LA_cons")
    a("s_setprio 3")
    a("s_lshl_b32 s10, s5, 20")
    a("s_lshl_b32 s4, s78, 12")
    a("s_add_u32 s10, s10, s4")
    a("s_mov_b32 s44, s18")
    a("s_mov_b32 s45, s19")
    a("s_mov_b32 s46, 0x08000000")
    a("s_mov_b32 s48, s20")
    a("s_mov_b32 s49, s21")
    a("s_mov_b32 s50, 0x08000000")
    a("s_mov_b32 s12, 0")
    a("s_mov_b32 s13, 0")
    a("s_mov_b32 s9, 0")
    a(f"v_mov_b32 v4, {C_LANDED}")
    a(f"s_movk_i32 s15, {NS}")
    a(f"s_sub_u32 s11, s79, {args.deep_at}")
    a("s_mov_b32 s64, 0")
    if args.deepcls:
        a("s_bfe_u32 s4, s2, 0x20003")
        a("s_cmp_eq_u32 s4, 1")
        a("s_cselect_b32 s11, 0, s11")
    a.label("LL_loop")
    a("s_mov_b32 m0, s12")
    a("s_add_u32 s14, s12, 4096")
    for i in range(4):
        a(f"buffer_load_dwordx4 v1, s[44:47], s10 offen offset:{1024*i} {args.kp} lds")
    a("s_mov_b32 m0, s14")
    a("s_add_u32 s12, s12, 8192")
    for i in range(4):
        a(f"buffer_load_dwordx4 v1, s[48:51], s10 offen offset:{1024*i} {args.vp} lds")
    a(f"s_cmp_eq_u32 s12, {RING}")
    a("s_cselect_b32 s12, 0, s12")
    a("s_add_u32 s10, s10, 4096")
    a("s_add_u32 s13, s13, 1")
    if args.ts == 3:
        for k, x in ((1, 16), (2, 32), (3, 64), (4, 96)):
            a(f"s_cmp_lg_u32 s13, {x}")
            a(f"s_cbranch_scc1 LL_ns{k}")
            a(f"s_memrealtime s[{84+2*k}:{85+2*k}]")
            a.label(f"LL_ns{k}")
    a(f"s_sub_u32 s14, s13, {NS}")
    a("s_and_b32 s5, s14, 7")
    a("s_lshl_b32 s5, s5, 2")
    a(f"s_add_u32 s5, s5, {C_DONE}")
    a("v_mov_b32 v5, s5")
    if args.mon:
        a("ds_read_b32 v7, v5")
        a(f"ds_read_b32 v8, v4 offset:{C_DEPTH - C_LANDED}")
        if args.deep_at:
            a("s_cmp_ge_u32 s13, s11")
            a(f"s_cselect_b32 s4, {args.end_code}, 0")
            a("s_max_u32 s64, s64, s4")
        order = list(range(len(LV)))
        for n, code in enumerate(order):
            N = LV[code]
            if n < len(order) - 1:
                a(f"s_cmp_lg_u32 s64, {code}")
                a(f"s_cbranch_scc1 LL_lv{n+1}")
            a(f"s_sub_u32 s4, s13, {(N + 7)//8}")
            a("s_max_i32 s9, s9, s4")
            a("v_mov_b32 v6, s9")
            a(f"s_waitcnt vmcnt({N})")
            if n < len(order) - 1:
                a("s_branch LL_pub")
                a.label(f"LL_lv{n+1}")
        a.label("LL_pub")
        a("s_waitcnt lgkmcnt(0)")
        a("v_readfirstlane_b32 s64, v8")
    else:
        if INF2 != INF:
            a("s_cmp_ge_u32 s13, s11")
            a("s_cbranch_scc1 LL_deep")
        a(f"s_sub_u32 s4, s13, {INF//8 - 1}")
        a("s_max_i32 s9, s9, s4")
        a("v_mov_b32 v6, s9")
        a("ds_read_b32 v7, v5")
        a(f"s_waitcnt vmcnt({INF-8})")
        if INF2 != INF:
            a("s_branch LL_pub")
            a.label("LL_deep")
            a(f"s_sub_u32 s4, s13, {INF2//8 - 1}")
            a("s_max_i32 s9, s9, s4")
            a("v_mov_b32 v6, s9")
            a("ds_read_b32 v7, v5")
            a(f"s_waitcnt vmcnt({INF2-8})")
            a.label("LL_pub")
    a("ds_write_b32 v4, v6")
    a("s_cmp_ge_u32 s13, s79")
    a("s_cbranch_scc1 LL_fin")
    a("s_cmp_lt_u32 s13, s15")
    a("s_cbranch_scc1 LL_loop")
    a("s_lshr_b32 s14, s14, 3")
    if not args.mon:
        a("s_waitcnt lgkmcnt(0)")
    a("v_readfirstlane_b32 s4, v7")
    a("s_cmp_gt_u32 s4, s14")
    a("s_cbranch_scc1 LL_loop")
    a("s_mov_b32 s9, s13")
    a("v_mov_b32 v6, s13")
    a("s_waitcnt vmcnt(0)")
    a("ds_write_b32 v4, v6")
    a.label("LL_spin")
    a("s_sleep 1")
    a("ds_read_b32 v7, v5")
    a("s_waitcnt lgkmcnt(0)")
    a("v_readfirstlane_b32 s4, v7")
    a("s_cmp_gt_u32 s4, s14")
    a("s_cbranch_scc1 LL_loop")
    a("s_branch LL_spin")
    a.label("LL_fin")
    for k in range(((max(LV) + 7) // 8 - 1) if args.mon else (INF2 // 8 - 2), -1, -1):
        a(f"s_sub_u32 s4, s79, {k}")
        a("s_max_i32 s9, s9, s4")
        a("v_mov_b32 v6, s9")
        a(f"s_waitcnt vmcnt({8*k})")
        a("ds_write_b32 v4, v6")
    stamp(5)
    a("s_branch LA_end2")

    a.label("LA_cons")
    a("s_mov_b32 s42, 0xffff0000")
    a(f"s_mov_b32 s69, {LOG2E:#x}")
    a("s_mov_b32 s55, 0x20000")
    a("s_mov_b32 s59, 0x20000")
    a("s_mov_b32 s63, 0x20000")
    a("s_cmp_eq_u32 s3, 9")
    a("s_cbranch_scc1 LA_ffn")
    if args.mon:
        a("s_cmp_eq_u32 s3, 10")
        a("s_cbranch_scc1 LA_mon")
    a("s_sub_u32 s9, s3, 1")
    a("v_lshrrev_b32 v20, 4, v0")
    a("v_and_b32 v21, 15, v0")
    a("v_lshlrev_b32 v2, 14, v20")
    a("v_lshl_add_u32 v2, v21, 4, v2")
    a("v_lshlrev_b32 v3, 2, v20")
    a("v_lshl_add_u32 v3, v21, 4, v3")
    a("s_lshl_b32 s4, s7, 10")
    a("s_lshl_b32 s5, s9, 7")
    a("s_add_u32 s4, s4, s5")
    a("s_lshl_b32 s11, s9, 19")
    a("s_lshl_b32 s12, s6, 8")
    a("s_add_u32 s11, s11, s12")
    a("s_mov_b32 s48, s22")
    a("s_mov_b32 s49, s23")
    a("s_mov_b32 s50, 0x00400000")
    a("s_mov_b32 s56, s16")
    a("s_mov_b32 s57, s17")
    a("s_mov_b32 s58, 4096")
    a(f"buffer_load_dword v{P}, v3, s[56:59], s4 offen")
    if args.coop:
        a("v_lshrrev_b32 v22, 3, v0")
        a("v_lshlrev_b32 v22, 13, v22")
        a("v_and_b32 v23, 7, v0")
        a("v_lshl_add_u32 v22, v23, 5, v22")
        a("s_lshr_b32 s4, s2, 5")
        a("s_lshl_b32 s4, s4, 19")
        a("s_lshl_b32 s5, s9, 16")
        a("s_add_u32 s4, s4, s5")
        a("s_add_u32 s4, s4, s12")
        a(f"buffer_load_dword v38, v22, s[48:51], s4 offen{cnt}")
        a("s_waitcnt vmcnt(0)")
        if args.coop > 1:
            a(f"s_sleep {args.coop}")
    for k in range(8):
        a(f"buffer_load_dwordx4 {Wr(2*k)}, v2, s[48:51], s11 offen{wnt}")
        a("s_add_u32 s12, s11, 8192")
        a(f"buffer_load_dwordx4 {Wr(2*k+1)}, v2, s[48:51], s12 offen{wnt}")
        if k < 7:
            a("s_add_u32 s11, s11, 65536")
    a(f"s_mov_b32 s68, {SCALE:#x}")
    a("s_mov_b32 s70, 0x05040100")
    a("s_mov_b32 s71, 0x07060302")
    a("s_mov_b32 s52, s24")
    a("s_mov_b32 s53, s25")
    a("s_mov_b32 s54, 0x00400000")
    a("s_mov_b32 s60, s40")
    a("s_mov_b32 s61, s41")
    a(f"s_mov_b32 s62, {WS_STATS + 2048}")
    a("v_and_b32 v22, 1, v20")
    a("v_lshlrev_b32 v22, 1, v22")
    a("v_lshrrev_b32 v23, 1, v20")
    a("v_or_b32 v22, v22, v23")
    a("v_lshl_add_u32 v22, v21, 3, v22")
    a("v_lshlrev_b32 v22, 2, v22")
    a("s_lshl_b32 s4, s9, 9")
    a(f"s_add_u32 s4, s4, {L_QP}")
    a(f"v_add_u32 v{VRED}, s4, v22")
    a(f"v_mov_b32 v{VZ}, {RING}")
    a(f"v_mov_b32 v{VCNT}, 1")
    a("s_lshl_b32 s4, s9, 13")
    a(f"v_add_u32 v{VBASE}, s4, v1")
    a("s_lshl_b32 s4, s9, 2")
    a(f"s_add_u32 s4, s4, {C_DONE}")
    a(f"v_mov_b32 v{VDONE}, s4")
    for j in range(8):
        a(f"v_mov_b32 v{ACC+j}, 0")
    for k in range(8):
        tb = T0 + 8 * (k & 1)
        a(f"s_waitcnt vmcnt({14 - 2*k})")
        if k == 0:
            stamp(3, 2)
        for d in range(4):
            A_, B_ = W0 + 8 * k + d, W0 + 8 * k + 4 + d
            a(f"v_perm_b32 v{tb+2*d}, v{B_}, v{A_}, s70")
            a(f"v_perm_b32 v{tb+2*d+1}, v{B_}, v{A_}, s71")
        for e in range(8):
            a(f"v_dot2c_f32_bf16_dpp v{ACC+e}, v{P}, v{tb+e} row_newbcast:{k} row_mask:0xf bank_mask:0xf")

    def cross_row_reduce8(base):
        for k in range(4):
            a(f"v_permlane32_swap_b32 v{base+2*k}, v{base+2*k+1}")
        for k in range(4):
            a(f"v_add_f32 v{base+2*k}, v{base+2*k}, v{base+2*k+1}")
        a(f"v_permlane16_swap_b32 v{base}, v{base+2}")
        a(f"v_permlane16_swap_b32 v{base+4}, v{base+6}")
        a(f"v_add_f32 v{base}, v{base}, v{base+2}")
        a(f"v_add_f32 v{base+4}, v{base+4}, v{base+6}")

    cross_row_reduce8(ACC)
    a(f"ds_write_b32 v{VRED}, v{ACC}")
    a(f"ds_write_b32 v{VRED}, v{ACC+4} offset:16")
    a("v_lshlrev_b32 v20, 3, v0")
    a(f"v_add_u32 v20, {L_QP}, v20")
    stamp(4, 2)
    lds_barrier(0, "q")
    for w in range(8):
        a(f"ds_read_b64 v[{T0+2*w}:{T0+2*w+1}], v20 offset:{512*w}")
    a("s_lshl_b32 s4, s9, 8")
    a(f"s_add_u32 s4, s4, {L_QQ}")
    a("v_lshlrev_b32 v21, 2, v0")
    a("v_add_u32 v21, s4, v21")
    a("v_and_b32 v22, 15, v0")
    a("v_lshlrev_b32 v22, 4, v22")
    a("v_add_u32 v22, s4, v22")
    a("s_waitcnt lgkmcnt(0)")
    for st in (1, 2, 4):
        for w in range(0, 8, 2 * st):
            a(f"v_add_f32 v{T0+2*w}, v{T0+2*w}, v{T0+2*(w+st)}")
            a(f"v_add_f32 v{T0+2*w+1}, v{T0+2*w+1}, v{T0+2*(w+st)+1}")
    a(f"v_cvt_pk_bf16_f32 v23, v{T0}, v{T0+1}")
    a("ds_write_b32 v21, v23")
    a("s_waitcnt lgkmcnt(0)")
    a(f"ds_read_b128 v[{Q}:{Q+3}], v22")
    for j in range(8):
        a(f"v_mov_b32 v{ACC+j}, 0")
    a(f"v_mov_b32 v{M}, 0xff800000")
    a(f"v_mov_b32 v{L}, 0")
    if args.coop:
        a("s_lshl_b32 s4, s6, 17")
        a("s_lshr_b32 s5, s2, 5")
        a("s_lshl_b32 s5, s5, 14")
        a("s_add_u32 s4, s4, s5")
        a("s_lshl_b32 s5, s9, 11")
        a("s_add_u32 s4, s4, s5")
        a("v_lshlrev_b32 v22, 5, v0")
        a(f"buffer_load_dword v141, v22, s[52:55], s4 offen{cnt}")
    a("s_lshl_b32 s43, s6, 17")
    a("s_lshl_b32 s5, s9, 14")
    a("s_add_u32 s43, s43, s5")
    a("s_mov_b32 s13, s9")
    a("s_mov_b32 s15, 0")
    a(f"v_mov_b32 v{VCNT+1}, 0")
    stamp(1)
    a.label("LC_poll")
    a(f"ds_read_b32 v20, v{VZ}")
    a("s_waitcnt lgkmcnt(0)")
    a("v_readfirstlane_b32 s14, v20")
    a("s_cmp_gt_u32 s14, s13")
    a("s_cbranch_scc1 LC_go")
    a("s_sleep 1")
    a("s_branch LC_poll")
    a.label("LC_go")
    for i in range(4):
        a(f"ds_read_b128 v[{KB+4*i}:{KB+4*i+3}], v{VBASE} offset:{1024*i}")
    for i in range(4):
        a(f"ds_read_b128 v[{VB+4*i}:{VB+4*i+3}], v{VBASE} offset:{4096+1024*i}")
    a("s_add_u32 s15, s15, 1")
    a("s_add_u32 s13, s13, 8")
    a(f"v_add_u32 v{VCNT+1}, 1, v{VCNT+1}")
    if NS == 16:
        a(f"v_xor_b32 v{VBASE}, 0x10000, v{VBASE}")
    else:
        a(f"v_add_u32 v{VBASE}, 0x10000, v{VBASE}")
        a(f"v_subrev_u32 v21, {RING}, v{VBASE}")
        a(f"v_min_u32 v{VBASE}, v21, v{VBASE}")
    a("s_waitcnt lgkmcnt(4)")
    for d in range(4):
        for i in range(4):
            t = f"v{T0+i}"
            c = "0" if d == 0 else t
            a(f"v_dot2_f32_bf16 {t}, v{KB+4*i+d}, v{Q+d}, {c}")
    a("s_waitcnt lgkmcnt(0)")
    a(f"ds_write_b32 v{VDONE}, v{VCNT+1}")
    for i in range(2):
        a(f"v_add_f32_dpp v{T0+i}, v{T0+i}, v{T0+i} row_ror:8 row_mask:0xf bank_mask:0x3")
        a(f"v_add_f32_dpp v{T0+i}, v{T0+i+2}, v{T0+i+2} row_ror:8 row_mask:0xf bank_mask:0xc")
    PV1, PV2 = T0 + 8, KB
    for d in range(2):
        a(f"v_perm_b32 v{PV1+2*d}, v{VB+4+d}, v{VB+d}, s70")
        a(f"v_perm_b32 v{PV1+2*d+1}, v{VB+4+d}, v{VB+d}, s71")
    a(f"v_add_f32_dpp v{T0}, v{T0}, v{T0} row_half_mirror row_mask:0xf bank_mask:0x5")
    a(f"v_add_f32_dpp v{T0}, v{T0+1}, v{T0+1} row_half_mirror row_mask:0xf bank_mask:0xa")
    for d in range(2, 4):
        a(f"v_perm_b32 v{PV1+2*d}, v{VB+4+d}, v{VB+d}, s70")
        a(f"v_perm_b32 v{PV1+2*d+1}, v{VB+4+d}, v{VB+d}, s71")
    S = f"v{T0}"
    a(f"v_add_f32_dpp {S}, {S}, {S} quad_perm:[1,0,3,2] row_mask:0xf bank_mask:0xf")
    a(f"v_perm_b32 v{PV2}, v{VB+12}, v{VB+8}, s70")
    a(f"v_perm_b32 v{PV2+1}, v{VB+12}, v{VB+8}, s71")
    a(f"v_add_f32_dpp {S}, {S}, {S} quad_perm:[2,3,0,1] row_mask:0xf bank_mask:0xf")
    round_bf16(a, S)
    a(f"v_mul_f32 {S}, s68, {S}")
    round_bf16(a, S)
    MX = f"v{T0+1}"
    a(f"v_perm_b32 v{PV2+2}, v{VB+13}, v{VB+9}, s70")
    a(f"v_perm_b32 v{PV2+3}, v{VB+13}, v{VB+9}, s71")
    a(f"v_max_f32_dpp {MX}, {S}, {S} row_ror:8 row_mask:0xf bank_mask:0xf")
    a(f"v_perm_b32 v{PV2+4}, v{VB+14}, v{VB+10}, s70")
    a(f"v_perm_b32 v{PV2+5}, v{VB+14}, v{VB+10}, s71")
    a(f"v_max_f32_dpp {MX}, {MX}, {MX} row_ror:4 row_mask:0xf bank_mask:0xf")
    a(f"v_perm_b32 v{PV2+6}, v{VB+15}, v{VB+11}, s70")
    a(f"v_perm_b32 v{PV2+7}, v{VB+15}, v{VB+11}, s71")
    a(f"v_max_f32 {MX}, {MX}, v{M}")
    AL = f"v{T0+2}"
    a(f"v_sub_f32 {AL}, v{M}, {MX}")
    a(f"v_sub_f32 v{P}, {S}, {MX}")
    a(f"v_mul_f32 {AL}, s69, {AL}")
    a(f"v_mul_f32 v{P}, s69, v{P}")
    a(f"v_exp_f32 {AL}, {AL}")
    a(f"v_exp_f32 v{P}, v{P}")
    a(f"v_mov_b32 v{M}, {MX}")
    a(f"v_fma_f32 v{L}, v{L}, {AL}, v{P}")
    a(f"v_mul_f32 v{ACC}, {AL}, v{ACC}")
    a(f"v_mov_b32_dpp v{T0+3}, v{P} row_shl:4 row_mask:0xf bank_mask:0xf")
    for j in range(1, 8):
        a(f"v_mul_f32 v{ACC+j}, {AL}, v{ACC+j}")
        if j == 1:
            a(f"v_cvt_pk_bf16_f32 v{P}, v{P}, v{T0+3}")
    for e in range(8):
        a(f"v_dot2c_f32_bf16_dpp v{ACC+e}, v{P}, v{PV1+e} row_newbcast:0 row_mask:0xf bank_mask:0xf")
    for e in range(8):
        a(f"v_dot2c_f32_bf16_dpp v{ACC+e}, v{P}, v{PV2+e} row_newbcast:8 row_mask:0xf bank_mask:0xf")
    NPJ = args.wo_npj
    NB = 16 // NPJ
    a(f"s_cmp_le_u32 s15, {args.wo_at + NB - 1}")
    a("s_cbranch_scc1 LC_wo")
    a(f"s_cmp_eq_u32 s15, {args.prep_at}")
    a("s_cbranch_scc1 LC_prep")
    a("s_cmp_lt_u32 s13, s79")
    a("s_cbranch_scc1 LC_poll")
    a("s_branch LA_tail")
    a.label("LC_wo")
    for k in range(NB):
        a(f"s_cmp_lg_u32 s15, {args.wo_at + k}")
        a(f"s_cbranch_scc1 {'LC_wo%d' % (k+1) if k < NB-1 else 'LC_poll'}")
        for i in range(NPJ * k, NPJ * (k + 1)):
            if i % 4 == 0 or i == NPJ * k:
                a(f"s_add_u32 s4, s43, {(i >> 2) * 4096}")
            a(f"buffer_load_dwordx4 {Wr(i)}, v1, s[52:55], s4 offen offset:{(i & 3) * 1024}{wnt}")
        a("s_branch LC_poll")
        if k < NB - 1:
            a.label(f"LC_wo{k+1}")

    a.label("LC_prep")
    a("s_waitcnt vmcnt(0)")
    LOr = {}
    prev = 141
    for j in range(8):
        for t in range(4):
            A_, B_ = W0 + 8 * j + t, W0 + 8 * j + 4 + t
            a(f"v_perm_b32 v{prev}, v{B_}, v{A_}, s70")
            a(f"v_perm_b32 v{B_}, v{B_}, v{A_}, s71")
            LOr[(j, t)] = prev
            prev = A_
    if args.warm:
        a("s_mov_b64 exec, 0")
        a("s_branch LW_0")
        a.label("LC_warmret")
        a("s_mov_b64 exec, -1")
    a("s_branch LC_poll")

    a.label("LA_tail")
    if args.warm:
        a.hop_begin("LW", args.warm)
    a.nop(3)
    stamp(3)
    for r in (8, 4):
        a(f"v_add_f32_dpp v{L}, v{L}, v{L} row_ror:{r} row_mask:0xf bank_mask:0xf")
    for g in range(4):
        a(f"v_readlane_b32 s{80+g}, v{M}, {16*g}")
    a("v_mov_b32 v20, s80")
    a("v_max_f32 v20, s81, v20")
    a("v_max_f32 v20, s82, v20")
    a("v_max_f32 v20, s83, v20")
    a(f"v_sub_f32 v22, v{M}, v20")
    a("v_mul_f32 v22, s69, v22")
    a("v_exp_f32 v22, v22")
    a(f"v_mul_f32 v{L}, v22, v{L}")
    for j in range(8):
        a(f"v_mul_f32 v{ACC+j}, v22, v{ACC+j}")
    for g in range(4):
        a(f"v_readlane_b32 s{80+g}, v{L}, {16*g}")
    cross_row_reduce8(ACC)
    a("v_mov_b32 v21, s80")
    a("v_add_f32 v21, s81, v21")
    a("v_add_f32 v21, s82, v21")
    a("v_add_f32 v21, s83, v21")
    a(f"ds_write_b32 v{VRED}, v{ACC} offset:{L_OP - L_QP}")
    a(f"ds_write_b32 v{VRED}, v{ACC+4} offset:{L_OP - L_QP + 16}")
    a("s_lshl_b32 s4, s9, 3")
    a(f"s_add_u32 s4, s4, {L_ST}")
    a("v_mov_b32 v22, s4")
    a("ds_write_b64 v22, v[20:21]")
    a("v_lshlrev_b32 v20, 3, v0")
    a(f"v_add_u32 v20, {L_OP}, v20")
    a(f"v_mov_b32 v21, {L_ST}")
    lds_barrier(1, "t1")
    stamp(4)
    SB = 104
    for k in range(4):
        a(f"ds_read_b128 v[{SB+4*k}:{SB+4*k+3}], v21 offset:{16*k}")
    for w in range(8):
        a(f"ds_read_b64 v[{T0+2*w}:{T0+2*w+1}], v20 offset:{512*w}")
    a("s_lshl_b32 s4, s9, 3")
    a("s_waitcnt lgkmcnt(8)")
    a(f"v_max3_f32 v20, v{SB}, v{SB+2}, v{SB+4}")
    a(f"v_max3_f32 v20, v20, v{SB+6}, v{SB+8}")
    a(f"v_max3_f32 v20, v20, v{SB+10}, v{SB+12}")
    a(f"v_max_f32 v20, v20, v{SB+14}")
    for w in range(8):
        a(f"v_sub_f32 v{SB+2*w}, v{SB+2*w}, v20")
    for w in range(8):
        a(f"v_mul_f32 v{SB+2*w}, s69, v{SB+2*w}")
    for w in range(8):
        a(f"v_exp_f32 v{SB+2*w}, v{SB+2*w}")
    a(f"v_mul_f32 v21, v{SB}, v{SB+1}")
    for w in range(1, 8):
        a(f"v_fmac_f32 v21, v{SB+2*w}, v{SB+2*w+1}")
    a("v_rcp_f32 v22, v21")
    a("s_waitcnt lgkmcnt(0)")
    a(f"v_mul_f32 v2, v{SB}, v{T0}")
    a(f"v_mul_f32 v3, v{SB}, v{T0+1}")
    for w in range(1, 8):
        a(f"v_fmac_f32 v2, v{SB+2*w}, v{T0+2*w}")
        a(f"v_fmac_f32 v3, v{SB+2*w}, v{T0+2*w+1}")
    a("v_mul_f32 v2, v22, v2")
    a("v_mul_f32 v3, v22, v3")
    a("v_cvt_pk_bf16_f32 v2, v2, v3")
    for j in range(8):
        a(f"v_readlane_b32 s{72+j}, v2, s4")
        if j < 7:
            a("s_add_u32 s4, s4, 1")
    for j in range(8):
        for t in range(4):
            c = "0" if j == 0 else f"v{ACC+2*t}"
            a(f"v_dot2_f32_bf16 v{ACC+2*t}, v{LOr[(j, t)]}, s{72+j}, {c}")
            c = "0" if j == 0 else f"v{ACC+2*t+1}"
            a(f"v_dot2_f32_bf16 v{ACC+2*t+1}, v{W0+8*j+4+t}, s{72+j}, {c}")
    a("s_lshl_b32 s4, s9, 11")
    a("v_lshlrev_b32 v2, 5, v0")
    a("v_add_u32 v2, s4, v2")
    a(f"ds_write_b128 v2, v[{ACC}:{ACC+3}] offset:{L_Y}")
    a(f"ds_write_b128 v2, v[{ACC+4}:{ACC+7}] offset:{L_Y+16}")
    a("s_lshl_b32 s4, s9, 8")
    a("v_lshlrev_b32 v3, 2, v0")
    a("v_add_u32 v3, s4, v3")
    a("s_lshl_b32 s5, s7, 6")
    a("s_lshl_b32 s12, s6, 1")
    a("s_add_u32 s5, s5, s12")
    a("s_add_u32 s5, s5, s8")
    a("s_lshl_b32 s5, s5, 11")
    lds_barrier(2, "t2")
    for w in range(8):
        a(f"ds_read_b32 v{T0+w}, v3 offset:{L_Y + 2048*w}")
    a("s_waitcnt lgkmcnt(0)")
    for st in (1, 2, 4):
        for w in range(0, 8, 2 * st):
            a(f"v_add_f32 v{T0+w}, v{T0+w}, v{T0+w+st}")
    if args.warm:
        a.hop_end("LC_warmret")
    a(f"buffer_store_dword v{T0}, v3, s[60:63], s5 offen")
    stamp(5)
    a("s_cmp_lg_u32 s9, 0")
    a("s_cbranch_scc1 LA_end2")
    a("s_lshl_b32 s5, s7, 5")
    a("s_add_u32 s5, s5, s6")
    a("s_lshl_b32 s5, s5, 4")
    a("s_lshl_b32 s12, s8, 3")
    a("s_add_u32 s5, s5, s12")
    a(f"s_add_u32 s5, s5, {WS_STATS}")
    a("v_mov_b32 v2, 0")
    a("s_mov_b64 exec, 1")
    a("buffer_store_dwordx2 v[20:21], v2, s[60:63], s5 offen")
    a.label("LA_end2")
    stamp_store()
    a("s_endpgm")

    if args.mon:
        a.label("LA_mon")
        G = args.glob
        RATE = args.rate
        a("s_memrealtime s[66:67]")
        a("s_and_b32 s15, s2, 7")
        a(f"s_mul_i32 s4, s15, {args.bstride}")
        a(f"s_add_u32 s4, s4, {WS_BOARD}")
        a("s_add_u32 s60, s40, s4")
        a("s_addc_u32 s61, s41, 0")
        a(f"s_movk_i32 s62, {132 if G else 128}")
        a("s_lshr_b32 s12, s2, 3")
        a("s_lshl_b32 s12, s12, 2")
        a("v_lshlrev_b32 v5, 2, v0")
        a("v_mov_b32 v7, 0")
        a(f"v_mov_b32 v6, {C_LANDED}")
        a(f"s_sub_u32 s10, s79, {NJ}")
        a(f"s_sub_u32 s11, s79, {args.mon_stop}")
        if G:
            a(f"s_add_u32 s56, s40, {WS_BOARD + 8*args.bstride}")
            a("s_addc_u32 s57, s41, 0")
            a("s_mov_b32 s58, 32")
            a("s_lshl_b32 s15, s15, 2")
        if args.ts:
            for k in range(6):
                a(f"s_mov_b32 s{84+k}, 0")
        a("s_mov_b64 exec, 1")
        a("s_waitcnt lgkmcnt(0)")
        a(f"s_mul_i32 s4, s66, {RATE}")
        a("s_sub_u32 s4, 0, s4")
        a("v_mov_b32 v4, s4")
        a("buffer_store_dword v4, v7, s[60:63], s12 offen")
        if G:
            a("s_cmp_lg_u32 s12, 0")
            a("s_cbranch_scc1 LM_loop")
            a("s_lshl_b32 s4, s4, 5")
            a("v_mov_b32 v8, s4")
            a("buffer_store_dword v7, v7, s[60:63], 0 offen offset:128")
            a("buffer_store_dword v8, v7, s[56:59], s15 offen sc1")
        a.label("LM_loop")
        a(f"s_sleep {args.mon}")
        a("ds_read_b32 v4, v6")
        a("s_memrealtime s[66:67]")
        a("s_waitcnt lgkmcnt(0)")
        a("v_readfirstlane_b32 s14, v4")
        a("s_cmp_ge_u32 s14, s11")
        a("s_cbranch_scc1 LM_last")
        a("s_sub_u32 s4, s14, s10")
        a("s_lshl_b32 s4, s4, 10")
        a(f"s_mul_i32 s5, s66, {RATE}")
        a("s_sub_u32 s13, s4, s5")
        a("v_mov_b32 v4, s13")
        a("buffer_store_dword v4, v7, s[60:63], s12 offen")
        a("s_cmp_lt_u32 s14, 8")
        a("s_cbranch_scc1 LM_loop")
        a("s_mov_b64 exec, -1")
        a(f"buffer_load_dword v8, v5, s[60:63], 0 offen {args.monld}")
        if G:
            a("s_cmp_lg_u32 s12, 0")
            a("s_cbranch_scc1 LM_nl1")
            a("buffer_load_dword v9, v5, s[56:59], 0 offen sc1")
            a.label("LM_nl1")
        a("s_lshl_b32 s13, s13, 5")
        a("s_waitcnt vmcnt(0)")
        for r in (1, 2, 4, 8):
            a(f"v_add_u32_dpp v8, v8, v8 row_ror:{r} row_mask:0xf bank_mask:0xf")
            if G:
                a(f"v_add_u32_dpp v9, v9, v9 row_ror:{r} row_mask:0xf bank_mask:0xf")
        a("v_readlane_b32 s4, v8, 0")
        a("v_readlane_b32 s5, v8, 16")
        if G:
            a("v_readlane_b32 s65, v8, 32")
            a("v_readlane_b32 s66, v9, 0")
        a("s_mov_b64 exec, 1")
        a("s_add_u32 s4, s4, s5")
        a("s_sub_u32 s13, s4, s13")
        if G:
            a("s_cmp_lg_u32 s12, 0")
            a("s_cbranch_scc1 LM_nl2")
            a("v_mov_b32 v4, s4")
            a("buffer_store_dword v4, v7, s[56:59], s15 offen sc1")
            a("s_lshl_b32 s5, s4, 3")
            a("s_sub_u32 s65, s66, s5")
            a("s_ashr_i32 s65, s65, 3")
            a("v_mov_b32 v4, s65")
            a("buffer_store_dword v4, v7, s[60:63], 0 offen offset:128")
            a.label("LM_nl2")
            a(f"s_min_i32 s65, s65, {int(32768*G)}")
            a(f"s_max_i32 s65, s65, {-int(32768*G)}")
            a("s_add_u32 s13, s13, s65")
        a("s_mov_b32 s5, 0")
        for k, th in enumerate(TH):
            code = k + 1
            if LV[code] < LV[0]:
                a(f"s_cmp_lt_i32 s13, {int(round(th*32768))}")
            else:
                a(f"s_cmp_gt_i32 s13, {int(round(th*32768))}")
            a(f"s_cselect_b32 s5, {code}, s5")
        a("v_mov_b32 v4, s5")
        a(f"ds_write_b32 v6, v4 offset:{C_DEPTH - C_LANDED}")
        if args.ts:
            for k in range(len(LV)):
                a(f"s_cmp_eq_u32 s5, {k}")
                a(f"s_addc_u32 s{84+k}, s{84+k}, 0")
        a("s_branch LM_loop")
        a.label("LM_last")
        if args.ts:
            a("s_lshl_b32 s4, s2, 5")
            a(f"s_add_u32 s60, s40, {(4<<20) + 163840}")
            a("s_addc_u32 s61, s41, 0")
            a("s_mov_b32 s62, 0x100000")
            a("v_mov_b32 v2, 0")
            for k in range(6):
                a(f"v_mov_b32 v4, s{84+k}")
                a(f"buffer_store_dword v4, v2, s[60:63], s4 offen offset:{4*k}")
        a("s_endpgm")

    a.label("LA_ffn")
    a("s_mov_b32 s6, s5")
    a(f"s_cmp_ge_u32 s6, {NFFN}")
    a("s_cbranch_scc1 LA_end")
    a("s_cmp_lg_u32 s8, 0")
    a("s_cbranch_scc1 LA_end")
    if args.ffn_wait:
        a(f"v_mov_b32 v4, {C_DONE}")
        a.label("LF_wait")
        a("s_sleep 8")
        a("ds_read_b32 v5, v4")
        a("s_waitcnt lgkmcnt(0)")
        a("v_readfirstlane_b32 s4, v5")
        a(f"s_cmp_lt_u32 s4, {args.ffn_wait}")
        a("s_cbranch_scc1 LF_wait")
    FB = 104
    FA = 40
    FX = 72
    FU = 80
    FG = 88
    FH = 96
    def Fr(i): return f"v[{FB+4*i}:{FB+4*i+3}]"
    a("v_lshrrev_b32 v20, 1, v0")
    a("v_and_b32 v21, 1, v0")
    a("s_movk_i32 s4, 2752")
    a("v_mul_lo_u32 v2, v20, s4")
    a("v_lshl_add_u32 v2, v21, 4, v2")
    a("v_lshlrev_b32 v3, 4, v20")
    a(f"v_add_u32 v3, {L_XT}, v3")
    a("s_mov_b32 s46, 1409024")
    a("s_mov_b32 s50, 1409024")
    a("s_mov_b32 s58, 4096")
    a(f"s_mov_b32 s62, {NFFN*8192}")
    a("s_lshl_b32 s10, s6, 5")
    a("s_mov_b32 s44, s28")
    a("s_mov_b32 s45, s29")
    a("s_mov_b32 s48, s30")
    a("s_mov_b32 s49, s31")
    a("s_mov_b32 s56, s16")
    a("s_mov_b32 s57, s17")
    a(f"s_add_u32 s60, s40, {WS_F}")
    a("s_addc_u32 s61, s41, 0")
    for b in range(4):
        a(f"buffer_load_dwordx4 v[{4+4*b}:{7+4*b}], v1, s[56:59], 0 offen offset:{1024*b}")
    FD = args.fd
    a("s_mov_b32 s11, s10")
    for i in range(FD):
        a(f"buffer_load_dwordx4 {Fr(i)}, v2, s[44:47], s11 offen{wnt}")
        a(f"s_add_u32 s11, s11, {32*2752}")
    a(f"s_waitcnt vmcnt({FD})")
    for e in range(8):
        for b in range(4):
            src = f"v{4+4*b+(e>>1)}"
            if e & 1:
                a(f"v_and_b32 v{FA+4*e+b}, s42, {src}")
            else:
                a(f"v_lshlrev_b32 v{FA+4*e+b}, 16, {src}")
    a("v_lshlrev_b32 v20, 7, v0")
    a(f"v_add_u32 v20, {L_XT}, v20")
    for e in range(8):
        a(f"ds_write_b128 v20, v[{FA+4*e}:{FA+4*e+3}] offset:{16*e}")
    a("s_waitcnt lgkmcnt(0)")
    a("s_mov_b32 s9, 0")
    a("v_mov_b32 v22, v2")
    a(f"s_mov_b32 s12, {32*2752}")
    a.label("LF_pass")
    for k in range(32):
        a(f"v_mov_b32 v{FA+k}, 0")
    a(f"ds_read_b128 v[{FX}:{FX+3}], v3")
    for i in range(16):
        xb = FX + 4 * (i & 1)
        if i < 15:
            nb = FX + 4 * ((i + 1) & 1)
            a(f"ds_read_b128 v[{nb}:{nb+3}], v3 offset:{512*(i+1)}")
        a(f"s_waitcnt vmcnt({FD-1})")
        for d in range(4):
            a(f"v_lshlrev_b32 v{FU+2*d}, 16, v{FB+4*i+d}")
            a(f"v_and_b32 v{FU+2*d+1}, s42, v{FB+4*i+d}")
        if i + FD < 16:
            a(f"buffer_load_dwordx4 {Fr(i+FD)}, v2, s[44:47], s11 offen{wnt}")
            a(f"s_add_u32 s11, s11, {32*2752}")
        else:
            if i + FD == 16:
                a("s_mov_b32 s11, s10")
            a(f"buffer_load_dwordx4 {Fr(i+FD-16)}, v22, s[48:51], s11 offen{wnt}")
            a("s_add_u32 s11, s11, s12")
        a(f"s_waitcnt lgkmcnt({1 if i < 15 else 0})")
        for b in range(4):
            for e in range(8):
                a(f"v_fmac_f32 v{FA+8*b+e}, v{xb+b}, v{FU+e}")
    for k in range(16):
        a(f"v_permlane32_swap_b32 v{FA+k}, v{FA+16+k}")
    for k in range(16):
        a(f"v_add_f32 v{FA+k}, v{FA+k}, v{FA+16+k}")
    for k in range(8):
        a(f"v_permlane16_swap_b32 v{FA+k}, v{FA+8+k}")
    for k in range(8):
        a(f"v_add_f32 v{FA+k}, v{FA+k}, v{FA+8+k}")
    for r in (2, 4, 8):
        for k in range(8):
            a(f"v_add_f32_dpp v{FA+k}, v{FA+k}, v{FA+k} row_ror:{r} row_mask:0xf bank_mask:0xf")
    for k in range(8):
        a(f"v_mov_b32 v{FG+k}, v{FH+k}")
        a(f"v_mov_b32 v{FH+k}, v{FA+k}")
    a("s_cmp_eq_u32 s9, 1")
    a("s_cbranch_scc1 LF_p2")
    a("s_mov_b32 s9, 1")
    a("s_mov_b32 s44, s48")
    a("s_mov_b32 s45, s49")
    a("s_mov_b32 s48, s32")
    a("s_mov_b32 s49, s33")
    a("v_mov_b32 v22, v1")
    a("s_movk_i32 s12, 1024")
    a("s_lshl_b32 s10, s6, 14")
    a("s_branch LF_pass")
    a.label("LF_p2")
    a.nop(2)
    for k in range(8):
        g, u = f"v{FG+k}", f"v{FH+k}"
        round_bf16(a, g)
        round_bf16(a, u)
        a(f"v_mul_f32 {g}, s69, {g}")
        a(f"v_exp_f32 {g}, -{g}")
        a(f"v_add_f32 {g}, 1.0, {g}")
        a(f"v_rcp_f32 {g}, {g}")
        round_bf16(a, g)
        a(f"v_mul_f32 {u}, {g}, {u}")
        round_bf16(a, u)
    for k in range(32):
        a(f"v_mov_b32 v{FA+k}, 0")
    for f in range(16):
        for b in range(4):
            a(f"v_readlane_b32 s{80+b}, v{FH+(f&7)}, {16*b + (f >> 3)}")
        a(f"s_waitcnt vmcnt({min(FD-1, 15-f)})")
        for d in range(4):
            a(f"v_lshlrev_b32 v{FU+2*d}, 16, v{FB+4*f+d}")
            a(f"v_and_b32 v{FU+2*d+1}, s42, v{FB+4*f+d}")
        if f + FD < 16:
            a(f"buffer_load_dwordx4 {Fr(f+FD)}, v22, s[48:51], s11 offen{wnt}")
            a("s_add_u32 s11, s11, s12")
        for b in range(4):
            for e in range(8):
                a(f"v_fmac_f32 v{FA+8*b+e}, s{80+b}, v{FU+e}")
    a("v_lshlrev_b32 v2, 5, v0")
    a("s_lshl_b32 s10, s6, 13")
    for b in range(4):
        a(f"buffer_store_dwordx4 v[{FA+8*b}:{FA+8*b+3}], v2, s[60:63], s10 offen offset:{2048*(b&1)}")
        a(f"buffer_store_dwordx4 v[{FA+8*b+4}:{FA+8*b+7}], v2, s[60:63], s10 offen offset:{2048*(b&1)+16}")
        if b == 1:
            a("s_add_u32 s10, s10, 4096")
    stamp(5)
    a("s_branch LA_end2")
    a.label("LA_end")
    a("s_endpgm")

    fin_kernel(a, args)
    if args.probe == 1:
        probe_kernel(a, args)

    for name, vg in (("attn_kernel", 168), ("fin_kernel", 48)) + ((("probe_kernel", 16),) if args.probe == 1 else ()):
        a.raw(f""".section .rodata,"a"
.p2align 6
.amdhsa_kernel {name}
  .amdhsa_next_free_vgpr {vg}
  .amdhsa_next_free_sgpr 100
  .amdhsa_accum_offset {vg}
  .amdhsa_group_segment_fixed_size 0
  .amdhsa_kernarg_size 104
  .amdhsa_user_sgpr_count 2
  .amdhsa_user_sgpr_kernarg_segment_ptr 1
  .amdhsa_system_sgpr_workgroup_id_x 1
.end_amdhsa_kernel""")
    return a.text()


def probe_kernel(a, args):
    a.raw(".globl probe_kernel\n.p2align 8\n.type probe_kernel,@function")
    a.label("probe_kernel")
    a("s_cmp_ge_u32 s2, 1")
    a("s_cbranch_scc1 LP_end")
    a("s_load_dwordx16 s[16:31], s[0:1], 0")
    a("s_load_dwordx2 s[40:41], s[0:1], 96")
    a("s_mov_b32 s46, 0x08000000")
    a("s_mov_b32 s47, 0x20000")
    a("s_mov_b32 s62, 4096")
    a("s_mov_b32 s63, 0x20000")
    a("v_mov_b32 v1, 0")
    a("s_mov_b64 exec, 1")
    a("s_waitcnt lgkmcnt(0)")
    a(f"s_add_u32 s60, s40, {3<<20}")
    a("s_addc_u32 s61, s41, 0")
    n = 0
    for base in (18, 20):
        a(f"s_mov_b32 s44, s{base}")
        a(f"s_mov_b32 s45, s{base+1}")
        for i in range(8):
            off = i * (16 << 20) + (8 << 20) + 0x12300
            a(f"s_mov_b32 s10, {off}")
            a(f"buffer_load_dword v2, v1, s[44:47], s10 offen {args.probe_pol}")
            a("s_waitcnt vmcnt(0)")
            a("v_mov_b32 v3, 0")
            for r in range(4):
                a(f"s_add_u32 s10, s10, {0x4d00}")
                a("s_memtime s[12:13]")
                a("s_waitcnt lgkmcnt(0)")
                a(f"buffer_load_dword v2, v1, s[44:47], s10 offen {args.probe_pol}")
                a("s_waitcnt vmcnt(0)")
                a("s_memtime s[14:15]")
                a("s_waitcnt lgkmcnt(0)")
                a("s_sub_u32 s14, s14, s12")
                a("v_add_u32 v3, s14, v3")
            a(f"buffer_store_dword v3, v1, s[60:63], 0 offen offset:{4*n}")
            n += 1
    a.label("LP_end")
    a("s_endpgm")


def fin_kernel(a, args):
    a.raw(".globl fin_kernel\n.p2align 8\n.type fin_kernel,@function")
    a.label("fin_kernel")
    a("s_cmp_ge_u32 s2, 64")
    a("s_cbranch_scc1 LB_end")
    if args.probe == 2:
        a("s_cmp_lg_u32 s2, 0")
        a("s_cbranch_scc1 LB_nodiag")
        a("s_memrealtime s[20:21]")
        a("s_load_dwordx4 s[4:7], s[0:1], 88")
        a("s_mov_b32 s46, 0x100000")
        a("s_mov_b32 s47, 0x20000")
        a("s_mov_b32 s50, 64")
        a("s_mov_b32 s51, 0x20000")
        a("s_waitcnt lgkmcnt(0)")
        a(f"s_add_u32 s44, s6, {4<<20}")
        a("s_addc_u32 s45, s7, 0")
        a("s_mov_b32 s48, s4")
        a("s_mov_b32 s49, s5")
        a("v_mul_u32_u24 v1, 640, v0")
        a("v_mov_b32 v2, 0")
        a("buffer_load_dword v3, v2, s[44:47], 0 offen")
        for k in range(6):
            a(f"buffer_load_dword v{4+k}, v1, s[44:47], 0 offen offset:{8*k}")
        a("buffer_load_dword v10, v1, s[44:47], 0 offen offset:104")
        a("s_waitcnt vmcnt(0)")
        a("v_mov_b32 v12, 0x10000")
        for k in range(7):
            a(f"v_sub_u32 v{4+k}, v{4+k}, v3")
            a(f"v_add_u32 v{4+k}, 1000, v{4+k}")
            a(f"buffer_atomic_umax v{4+k}, v2, s[48:51], 0 offen offset:{8*k}")
            a(f"v_sub_u32 v11, v12, v{4+k}")
            a(f"buffer_atomic_umax v11, v2, s[48:51], 0 offen offset:{8*k+4}")
        a("v_sub_u32 v4, s20, v3")
        a("v_add_u32 v4, 1000, v4")
        a("buffer_atomic_umax v4, v2, s[48:51], 0 offen offset:56")
        a("s_waitcnt vmcnt(0)")
        a.label("LB_nodiag")
    a("s_load_dwordx2 s[16:17], s[0:1], 0")
    a("s_load_dwordx4 s[32:35], s[0:1], 72")
    a("s_load_dwordx2 s[40:41], s[0:1], 96")
    a("s_lshr_b32 s7, s2, 4")
    a("s_and_b32 s8, s2, 15")
    a("s_mov_b32 s42, 0xffff0000")
    a(f"s_mov_b32 s69, {LOG2E:#x}")
    for r in (47, 51, 55, 59, 63):
        a(f"s_mov_b32 s{r}, 0x20000")
    a(f"s_mov_b32 s46, {WS_STATS + 2048}")
    a(f"s_mov_b32 s50, {NFFN*8192}")
    a("s_mov_b32 s54, 4096")
    a("s_mov_b32 s58, 1024")
    a("s_mov_b32 s62, 4096")
    a("v_lshrrev_b32 v1, 3, v0")
    a("v_and_b32 v2, 7, v0")
    a("v_lshlrev_b32 v3, 11, v1")
    a("v_lshl_add_u32 v3, v2, 4, v3")
    a("v_lshrrev_b32 v4, 1, v1")
    a("v_lshlrev_b32 v4, 4, v4")
    a("v_lshlrev_b32 v5, 13, v1")
    a("v_lshl_add_u32 v5, v2, 4, v5")
    a("v_lshlrev_b32 v6, 2, v0")
    a("s_lshl_b32 s4, s7, 17")
    a("s_lshl_b32 s5, s8, 7")
    a("s_add_u32 s4, s4, s5")
    a("s_add_u32 s10, s4, 65536")
    a("s_lshl_b32 s11, s7, 9")
    a(f"s_add_u32 s11, s11, {WS_STATS}")
    a("s_lshl_b32 s12, s7, 11")
    a("s_add_u32 s12, s12, s5")
    a("s_add_u32 s13, s12, 0x40000")
    a("s_add_u32 s14, s12, 0x80000")
    a("s_lshl_b32 s15, s7, 10")
    a("s_waitcnt lgkmcnt(0)")
    a("s_mov_b32 s44, s40")
    a("s_mov_b32 s45, s41")
    a(f"s_add_u32 s48, s40, {WS_F}")
    a("s_addc_u32 s49, s41, 0")
    a("s_mov_b32 s52, s16")
    a("s_mov_b32 s53, s17")
    a("s_mov_b32 s56, s32")
    a("s_mov_b32 s57, s33")
    a("s_mov_b32 s60, s34")
    a("s_mov_b32 s61, s35")
    a("buffer_load_dwordx4 v[8:11], v4, s[44:47], s11 offen")
    a("buffer_load_dwordx4 v[12:15], v4, s[44:47], s11 offen offset:256")
    a("buffer_load_dword v36, v6, s[52:55], s15 offen")
    a("buffer_load_dword v37, v6, s[56:59], 0 offen")
    a("buffer_load_dwordx4 v[16:19], v3, s[44:47], s4 offen")
    a("buffer_load_dwordx4 v[20:23], v3, s[44:47], s10 offen")
    a("buffer_load_dwordx4 v[24:27], v5, s[48:51], s12 offen")
    a("buffer_load_dwordx4 v[28:31], v5, s[48:51], s13 offen")
    a("buffer_load_dwordx4 v[32:35], v5, s[48:51], s14 offen")
    a("v_and_b32 v7, 1, v1")
    a("v_cmp_eq_u32 vcc, 1, v7")
    a("s_waitcnt vmcnt(7)")
    for k, sb in enumerate((8, 12)):
        w = f"v{38+k}"
        a(f"v_max_f32 v40, v{sb}, v{sb+2}")
        a(f"v_sub_f32 v{sb}, v{sb}, v40")
        a(f"v_sub_f32 v{sb+2}, v{sb+2}, v40")
        a(f"v_mul_f32 v{sb}, s69, v{sb}")
        a(f"v_mul_f32 v{sb+2}, s69, v{sb+2}")
        a(f"v_exp_f32 v{sb}, v{sb}")
        a(f"v_exp_f32 v{sb+2}, v{sb+2}")
        a(f"v_mul_f32 v{sb}, v{sb}, v{sb+1}")
        a(f"v_mul_f32 v{sb+2}, v{sb+2}, v{sb+3}")
        a(f"v_add_f32 v40, v{sb}, v{sb+2}")
        a("v_rcp_f32 v40, v40")
        a(f"v_cndmask_b32 {w}, v{sb}, v{sb+2}, vcc")
        a(f"v_mul_f32 {w}, {w}, v40")
    a("s_waitcnt vmcnt(5)")
    a("v_lshlrev_b32 v40, 16, v36")
    a("v_and_b32 v41, s42, v36")
    a("v_lshlrev_b32 v42, 16, v37")
    a("v_and_b32 v43, s42, v37")
    a("v_mul_f32 v40, v40, v42")
    a("v_mul_f32 v41, v41, v43")
    round_bf16(a, "v40")
    round_bf16(a, "v41")
    a("v_add_f32 v40, v40, v41")
    for r in (1, 2, 4, 8):
        a(f"v_add_f32_dpp v40, v40, v40 row_ror:{r} row_mask:0xf bank_mask:0xf")
    for g in range(4):
        a(f"v_readlane_b32 s{80+g}, v40, {16*g}")
    a("v_mov_b32 v40, s80")
    a("v_add_f32 v40, s81, v40")
    a("v_add_f32 v40, s82, v40")
    a("v_add_f32 v40, s83, v40")
    a("v_lshrrev_b32 v41, 6, v0")
    a("v_lshlrev_b32 v42, 2, v41")
    a("ds_write_b32 v42, v40 offset:1024")
    a("s_waitcnt vmcnt(3)")
    for k in range(4):
        a(f"v_mul_f32 v{16+k}, v38, v{16+k}")
        a(f"v_fmac_f32 v{16+k}, v39, v{20+k}")
    a("s_waitcnt vmcnt(0)")
    for k in range(4):
        a(f"v_add_f32 v{24+k}, v{24+k}, v{28+k}")
        a(f"v_add_f32 v{24+k}, v{24+k}, v{32+k}")
    for k in range(4):
        a(f"v_permlane32_swap_b32 v{16+k}, v{24+k}")
    for k in range(4):
        a(f"v_add_f32 v{16+k}, v{16+k}, v{24+k}")
    a("v_permlane16_swap_b32 v16, v17")
    a("v_permlane16_swap_b32 v18, v19")
    a("v_add_f32 v16, v16, v17")
    a("v_add_f32 v18, v18, v19")
    a("v_add_f32_dpp v16, v16, v16 row_ror:8 row_mask:0xf bank_mask:0xf")
    a("v_add_f32_dpp v18, v18, v18 row_ror:8 row_mask:0xf bank_mask:0xf")
    a("v_bfe_u32 v43, v0, 5, 1")
    a("v_lshlrev_b32 v43, 7, v43")
    a("v_lshl_add_u32 v43, v41, 8, v43")
    a("v_lshl_add_u32 v43, v2, 4, v43")
    a("v_bfe_u32 v44, v0, 4, 1")
    a("v_lshl_add_u32 v43, v44, 2, v43")
    a("ds_write_b32 v43, v16")
    a("ds_write_b32 v43, v18 offset:8")
    a("s_waitcnt lgkmcnt(0)")
    a("s_barrier")
    a("v_cmp_gt_u32 vcc, 32, v0")
    a("s_and_saveexec_b64 s[84:85], vcc")
    a("s_cbranch_execz LB_end")
    a("v_mov_b32 v1, 0")
    for w in range(4):
        a(f"ds_read_b32 v{8+w}, v6 offset:{256*w}")
        a(f"ds_read_b32 v{12+w}, v6 offset:{256*w+128}")
    a("ds_read_b128 v[16:19], v1 offset:1024")
    a("s_waitcnt lgkmcnt(0)")
    a("v_add_f32 v8, v8, v9")
    a("v_add_f32 v10, v10, v11")
    a("v_add_f32 v12, v12, v13")
    a("v_add_f32 v14, v14, v15")
    a("v_add_f32 v16, v16, v17")
    a("v_add_f32 v18, v18, v19")
    a("v_add_f32 v8, v8, v10")
    a("v_add_f32 v12, v12, v14")
    a("v_add_f32 v16, v16, v18")
    round_bf16(a, "v8")
    round_bf16(a, "v12")
    round_bf16(a, "v16")
    a("v_mul_f32 v16, s69, v16")
    a("v_exp_f32 v16, -v16")
    a("v_add_f32 v16, 1.0, v16")
    a("v_rcp_f32 v16, v16")
    round_bf16(a, "v16")
    a("v_sub_f32 v17, 1.0, v16")
    round_bf16(a, "v17")
    a("v_mul_f32 v8, v16, v8")
    a("v_mul_f32 v12, v17, v12")
    round_bf16(a, "v8")
    round_bf16(a, "v12")
    a("v_add_f32 v8, v8, v12")
    a("v_cvt_pk_bf16_f32 v8, v8, v8")
    a("v_lshlrev_b32 v1, 1, v0")
    a("s_lshl_b32 s4, s7, 10")
    a("s_lshl_b32 s5, s8, 6")
    a("s_add_u32 s4, s4, s5")
    a("buffer_store_short v8, v1, s[60:63], s4 offen")
    if args.probe == 1:
        a("s_cmp_lg_u32 s2, 0")
        a("s_cbranch_scc1 LB_end")
        a("s_load_dwordx2 s[4:5], s[0:1], 88")
        a(f"s_add_u32 s44, s40, {3<<20}")
        a("s_addc_u32 s45, s41, 0")
        a("s_mov_b32 s46, 64")
        a("s_mov_b32 s50, 64")
        a("buffer_load_dword v8, v6, s[44:47], 0 offen")
        a("s_waitcnt vmcnt(0) lgkmcnt(0)")
        a("s_mov_b32 s48, s4")
        a("s_mov_b32 s49, s5")
        a("buffer_store_dword v8, v6, s[48:51], 0 offen")
    a.label("LB_end")
    a("s_endpgm")


if __name__ == "__main__":
    ap = argparse.ArgumentParser()
    ap.add_argument("-o", default="v2.s")
    ap.add_argument("--ts", type=int, default=0)
    ap.add_argument("--slots", type=int, default=16)
    ap.add_argument("--inflight", type=int, default=24)
    ap.add_argument("--wo_at", type=int, default=1)
    ap.add_argument("--wo_npj", type=int, default=2)
    ap.add_argument("--fd", type=int, default=2)
    ap.add_argument("--pf", type=int, default=1)
    ap.add_argument("--coop", type=int, default=0)
    ap.add_argument("--wnt", type=int, default=1)
    ap.add_argument("--cnt", type=int, default=1)
    ap.add_argument("--dshift", type=int, default=4)
    ap.add_argument("--prep_at", type=int, default=11)
    ap.add_argument("--warm", type=int, default=12)
    ap.add_argument("--map", default="xcd")
    ap.add_argument("--ffn_wait", type=int, default=1)
    ap.add_argument("--tk", type=int, default=1)
    ap.add_argument("--probe", type=int, default=0)
    ap.add_argument("--probe_pol", default="nt")
    ap.add_argument("--kp", default="nt")
    ap.add_argument("--vp", default="nt")
    ap.add_argument("--rate", type=int, default=33)
    ap.add_argument("--glob", type=float, default=0)
    ap.add_argument("--xbias", type=float, default=0)
    ap.add_argument("--monx", type=int, default=0)
    ap.add_argument("--bstride", type=int, default=4352)
    ap.add_argument("--monld", default="sc1")
    ap.add_argument("--shard", default="xcd")
    ap.add_argument("--mon", type=int, default=0)
    ap.add_argument("--mon_stop", type=int, default=6)
    ap.add_argument("--lv", default="16,12,22,30,40")
    ap.add_argument("--th", default="-4,0,2,4")
    ap.add_argument("--end_code", type=int, default=0)
    ap.add_argument("--deepcls", type=int, default=0)
    ap.add_argument("--inf2", type=int, default=0)
    ap.add_argument("--deep_at", type=int, default=24)
    ap.add_argument("--tkmap", type=int, default=0)
    args = ap.parse_args()
    open(args.o, "w").write(gen(args))
```

```python
import sys, argparse
sys.path.insert(0, "work")
from asmlib import Asm

HEADER = open("gated_mix__gqa_block_cached__glu_gated_glu__decode.s.ref").read().split("; Override launch")[0]

WS_Y = 0
WS_STATS = 512 * 1024
WS_F = 1024 * 1024
NFFN = 86
WS_BOARD = 2 * 1024 * 1024

LOG2E = 0x3FB8AA3B
SCALE = 0x3DB504F3


def round_bf16(a, v):
    a(f"v_cvt_pk_bf16_f32 {v}, {v}, {v}")
    a(f"v_and_b32 {v}, s42, {v}")


def gen(args):
    a = Asm()
    NS = args.slots
    NJ = 128
    wnt = " nt" if args.wnt else ""
    cnt = " nt" if args.cnt else ""
    DS = args.dshift
    INF = args.inflight
    INF2 = args.inf2 or INF
    RING = NS * 8192
    LV = [int(x) for x in args.lv.split(",")]
    TH = [float(x) for x in args.th.split(",")]
    C_LANDED = RING
    C_DONE = RING + 4
    C_BAR = RING + 64
    C_DEPTH = RING + 128
    L_QP = RING + 256
    L_OP = L_QP
    L_ST = L_OP + 4096
    C_TK = L_ST + 128
    L_QQ = L_ST + 256
    L_XT = L_QQ + 2048
    LDS_A = L_XT + 8192
    L_Y = 0
    assert LDS_A <= 163840
    W0, KB, VB, T0 = 40, 104, 120, 24
    ACC, Q = 8, 4
    P, M, L = 16, 17, 18
    VRED = 19
    VZ = 136
    VBASE = 137
    VDONE = 138
    VCNT = 139

    def Wr(i): return f"v[{W0+4*i}:{W0+4*i+3}]"

    def stamp(k, mode=1):
        if args.ts and (mode == args.ts or k in (0, 1, 5)):
            a(f"s_memrealtime s[{84+2*k}:{85+2*k}]")

    def stamp_store():
        if args.ts:
            a("s_mov_b64 exec, 1")
            a("s_mul_i32 s4, s2, 10")
            a("s_add_u32 s4, s4, s3")
            a("s_lshl_b32 s4, s4, 6")
            a(f"s_add_u32 s60, s40, {4<<20}")
            a("s_addc_u32 s61, s41, 0")
            a("s_mov_b32 s62, 0x100000")
            a("s_mov_b32 s63, 0x20000")
            a("v_mov_b32 v2, 0")
            a("s_getreg_b32 s96, hwreg(HW_REG_XCC_ID)")
            a("s_getreg_b32 s97, hwreg(HW_REG_HW_ID)")
            a("s_waitcnt lgkmcnt(0)")
            for k in range(7):
                a(f"v_mov_b32 v4, s{84+2*k}")
                a(f"v_mov_b32 v5, s{85+2*k}")
                a(f"buffer_store_dwordx2 v[4:5], v2, s[60:63], s4 offen offset:{8*k}")
                a.nop(2)

    def lds_barrier(k, tag, cnt=8):
        a("s_waitcnt lgkmcnt(0)")
        a("s_mov_b64 exec, 1")
        a(f"ds_add_u32 v{VZ}, v{VCNT} offset:{C_BAR - RING + 4*k}")
        a("s_mov_b64 exec, -1")
        a.label(f"LB_spin{tag}")
        a(f"ds_read_b32 v23, v{VZ} offset:{C_BAR - RING + 4*k}")
        a("s_waitcnt lgkmcnt(0)")
        a("v_readfirstlane_b32 s14, v23")
        a(f"s_cmp_lt_u32 s14, {cnt}")
        a(f"s_cbranch_scc1 LB_spin{tag}")

    a.raw(HEADER.rstrip("\n"))
    if args.probe == 1:
        a.raw("; @launch kernel=probe_kernel grid=(1,1,1) block=(64,1,1) lds=0")
    a.raw(f"; @launch kernel=attn_kernel grid=(256,1,1) block=({704 if args.mon else 640},1,1) lds={LDS_A}")
    if not args.fuse:
        a.raw("; @launch kernel=fin_kernel grid=(64,1,1) block=(256,1,1) lds=2048")
    a.raw('.amdgcn_target "amdgcn-amd-amdhsa--gfx950"')
    a.raw(".text")
    a.raw(".globl attn_kernel\n.p2align 8\n.type attn_kernel,@function")
    a.label("attn_kernel")
    a("s_cmp_ge_u32 s2, 256")
    a("s_cbranch_scc1 LA_end")
    a("s_load_dwordx16 s[16:31], s[0:1], 0")
    a("s_load_dwordx8 s[32:39], s[0:1], 64")
    a("s_load_dwordx2 s[40:41], s[0:1], 96")
    stamp(0)
    a("v_lshrrev_b32 v1, 6, v0")
    a("v_readfirstlane_b32 s3, v1")
    def vid(dst, x, t, tmp):
        a(f"s_bfe_u32 {dst}, {t}, 0x20001")
        a(f"s_lshl_b32 {dst}, {dst}, 3")
        a(f"s_or_b32 {dst}, {dst}, {x}")
        a(f"s_and_b32 {tmp}, {t}, 1")
        a(f"s_lshl_b32 {tmp}, {tmp}, 5")
        a(f"s_or_b32 {dst}, {dst}, {tmp}")
        a(f"s_lshr_b32 {tmp}, {t}, 3")
        a(f"s_lshl_b32 {tmp}, {tmp}, 6")
        a(f"s_or_b32 {dst}, {dst}, {tmp}")

    def sync(tag):
        a("s_cmp_lg_u32 s77, 0")
        a(f"s_cbranch_scc1 LA_synced{tag}")
        a(f"v_mov_b32 v4, {C_TK}")
        a("s_barrier")
        a("ds_read_b32 v5, v4")
        a("s_mov_b32 s77, 1")
        a("s_waitcnt lgkmcnt(0)")
        a("v_readfirstlane_b32 s4, v5")
        a("s_cmp_eq_u32 s4, s2")
        a(f"s_cbranch_scc1 LA_synced{tag}")
        a("s_mov_b32 s2, s4")
        a("s_branch LA_tk_done")
        a.label(f"LA_synced{tag}")

    if args.tk == 2:
        a("s_getreg_b32 s72, hwreg(HW_REG_XCC_ID)")
        a("s_getreg_b32 s4, hwreg(HW_REG_HW_ID)")
        a("s_and_b32 s72, s72, 7")
        a("s_bfe_u32 s73, s4, 0x2000d")
        a("s_lshl_b32 s73, s73, 3")
        a("s_bfe_u32 s4, s4, 0x30008")
        a("s_add_u32 s4, s4, s73")
        a("s_lshl_b32 s74, 1, s4")
        vid("s2", "s72", "s4", "s5")
        a("s_mov_b32 s77, 0")
        a("s_cmp_eq_u32 s3, 0")
        a("s_cbranch_scc1 LA_tk_done")
    elif args.tk:
        a("s_cmp_eq_u32 s3, 0")
        a("s_cbranch_scc1 LA_tk")
    if args.pf:
        a("s_getpc_b64 s[64:65]")
        a.label("LA_pc")
        a("s_mov_b32 s66, LB_end-LA_pc")
        a("s_mov_b32 s67, 0x20000")
        a("v_lshlrev_b32 v2, 6, v0")
        a("buffer_load_dword v39, v2, s[64:67], 0 offen")
    a("v_and_b32 v0, 63, v0")
    a("v_lshlrev_b32 v3, 2, v0")
    a("v_mov_b32 v2, 0")
    a(f"v_add_u32 v3, {RING}, v3")
    a("ds_write_b32 v3, v2")
    if args.tk == 2:
        a.label("LA_tk_done")
        a("s_cmp_ge_u32 s2, 256")
        a("s_cbranch_scc1 LA_end")
    elif args.tk:
        a(f"v_mov_b32 v4, {C_TK}")
        a("s_waitcnt lgkmcnt(0)")
        a("s_barrier")
        a("ds_read_b32 v5, v4")
        a("s_waitcnt lgkmcnt(0)")
        a("v_readfirstlane_b32 s2, v5")
        a("s_branch LA_tk_done")
        a.label("LA_tk")
        a("s_getreg_b32 s4, hwreg(HW_REG_XCC_ID)")
        a("s_and_b32 s4, s4, 7")
        a("s_movk_i32 s62, 256")
        a("s_mov_b32 s63, 0x20000")
        a("s_mov_b32 s9, 0")
        a(f"v_mov_b32 v6, {C_TK}")
        a("s_mov_b64 exec, 1")
        a("s_waitcnt lgkmcnt(0)")
        a("s_mov_b32 s60, s38")
        a("s_mov_b32 s61, s39")
        a.label("LA_tk_loop")
        a("s_lshl_b32 s5, s4, 5")
        a("v_mov_b32 v4, 1")
        a("v_mov_b32 v5, s5")
        a("buffer_atomic_add v4, v5, s[60:63], 0 offen sc0")
        a("s_waitcnt vmcnt(0)")
        a("v_readfirstlane_b32 s5, v4")
        a("s_cmp_lt_u32 s5, 32")
        a("s_cbranch_scc1 LA_tk_got")
        a("s_add_u32 s4, s4, 1")
        a("s_and_b32 s4, s4, 7")
        a("s_add_u32 s9, s9, 1")
        a("s_cmp_lt_u32 s9, 8")
        a("s_cbranch_scc1 LA_tk_loop")
        a("s_movk_i32 s5, 64")
        a.label("LA_tk_got")
        a("s_and_b32 s2, s5, 3")
        a(f"s_lshl_b32 s2, s2, {6 if args.tkmap else 3}")
        a("s_or_b32 s2, s2, s4")
        a("s_bfe_u32 s4, s5, 0x10004")
        a("s_lshl_b32 s4, s4, 5")
        a("s_or_b32 s2, s2, s4")
        a("s_bfe_u32 s4, s5, 0x20002")
        a(f"s_lshl_b32 s4, s4, {3 if args.tkmap else 6}")
        a("s_or_b32 s2, s2, s4")
        a("s_and_b32 s4, s5, 64")
        a("s_lshl_b32 s4, s4, 2")
        a("s_or_b32 s2, s2, s4")
        a("v_mov_b32 v4, s2")
        a("ds_write_b32 v6, v4")
        a("s_mov_b64 exec, -1")
        a("s_waitcnt lgkmcnt(0)")
        a("s_barrier")
        a.label("LA_tk_done")
        a("s_cmp_ge_u32 s2, 256")
        a("s_cbranch_scc1 LA_end")
    if args.map == "pair":
        a("s_lshr_b32 s4, s2, 1")
        a("s_and_b32 s5, s4, 3")
        a("s_lshl_b32 s5, s5, 3")
        a("s_bfe_u32 s6, s4, 0x30002")
        a("s_add_u32 s6, s6, s5")
        a("s_lshr_b32 s7, s4, 5")
        a("s_and_b32 s8, s2, 1")
    else:
        a("s_and_b32 s4, s2, 7")
        a("s_bfe_u32 s6, s2, 0x20003")
        a("s_lshl_b32 s4, s4, 2")
        a("s_add_u32 s6, s6, s4")
        a("s_lshr_b32 s7, s2, 6")
        a("s_bfe_u32 s8, s2, 0x10005")
    a("s_lshl_b32 s5, s7, 5")
    a("s_add_u32 s5, s5, s6")
    a(f"s_cmp_lt_u32 s5, {NFFN}")
    a(f"s_cselect_b32 s4, {DS}, 0")
    a(f"s_sub_u32 s78, {NJ}, s4")
    a(f"s_add_u32 s79, s4, {NJ}")
    a("s_cmp_eq_u32 s8, 0")
    a("s_cselect_b32 s79, s78, s79")
    a("s_cselect_b32 s78, 0, s78")
    a("v_lshlrev_b32 v1, 4, v0")
    a("s_mov_b32 s47, 0x20000")
    a("s_mov_b32 s51, 0x20000")
    if not args.tk:
        a("s_waitcnt lgkmcnt(0)")
        a("s_barrier")
    if args.tk == 2:
        a("s_waitcnt lgkmcnt(0)")
    stamp(2, 2)
    a("s_cmp_lg_u32 s3, 0")
    a("s_cbranch_scc1 LA_cons")
    a("s_setprio 3")
    if args.tk == 2:
        a("s_mov_b32 s60, s38")
        a("s_mov_b32 s61, s39")
        a("s_movk_i32 s62, 256")
        a("s_mov_b32 s63, 0x20000")
        a("s_movk_i32 s76, -1")
        a("s_cmp_lg_u32 s77, 0")
        a("s_cbranch_scc1 LL_noclaim")
        a("s_lshl_b32 s4, s72, 5")
        a("v_mov_b32 v9, s4")
        a("v_mov_b32 v10, s74")
        a("s_mov_b64 exec, 1")
        a("buffer_atomic_or v10, v9, s[60:63], 0 offen sc0")
        a("s_mov_b64 exec, -1")
        a(f"s_mov_b32 s76, {args.nspec}")
        a.label("LL_noclaim")
    a("s_lshl_b32 s10, s5, 20")
    a("s_lshl_b32 s4, s78, 12")
    a("s_add_u32 s10, s10, s4")
    a("s_mov_b32 s44, s18")
    a("s_mov_b32 s45, s19")
    a("s_mov_b32 s46, 0x08000000")
    a("s_mov_b32 s48, s20")
    a("s_mov_b32 s49, s21")
    a("s_mov_b32 s50, 0x08000000")
    a("s_mov_b32 s12, 0")
    a("s_mov_b32 s13, 0")
    a("s_mov_b32 s9, 0")
    a(f"v_mov_b32 v4, {C_LANDED}")
    a(f"s_movk_i32 s15, {NS}")
    a(f"s_sub_u32 s11, s79, {args.deep_at}")
    a("s_mov_b32 s64, 0")
    if args.deepcls:
        a("s_bfe_u32 s4, s2, 0x20003")
        a("s_cmp_eq_u32 s4, 1")
        a("s_cselect_b32 s11, 0, s11")
    a.label("LL_loop")
    a("s_mov_b32 m0, s12")
    a("s_add_u32 s14, s12, 4096")
    for i in range(4):
        a(f"buffer_load_dwordx4 v1, s[44:47], s10 offen offset:{1024*i} {args.kp} lds")
    a("s_mov_b32 m0, s14")
    a("s_add_u32 s12, s12, 8192")
    for i in range(4):
        a(f"buffer_load_dwordx4 v1, s[48:51], s10 offen offset:{1024*i} {args.vp} lds")
    a(f"s_cmp_eq_u32 s12, {RING}")
    a("s_cselect_b32 s12, 0, s12")
    a("s_add_u32 s10, s10, 4096")
    a("s_add_u32 s13, s13, 1")
    if args.tk == 2:
        a("s_cmp_le_i32 s13, s76")
        a("s_cbranch_scc1 LL_resolve")
        a.label("LL_resolved")
    if args.ts == 3:
        for k, x in ((1, 16), (2, 32), (3, 64), (4, 96)):
            a(f"s_cmp_lg_u32 s13, {x}")
            a(f"s_cbranch_scc1 LL_ns{k}")
            a(f"s_memrealtime s[{84+2*k}:{85+2*k}]")
            a.label(f"LL_ns{k}")
    a(f"s_sub_u32 s14, s13, {NS}")
    a("s_and_b32 s5, s14, 7")
    a("s_lshl_b32 s5, s5, 2")
    a(f"s_add_u32 s5, s5, {C_DONE}")
    a("v_mov_b32 v5, s5")
    if args.mon:
        a("ds_read_b32 v7, v5")
        a(f"ds_read_b32 v8, v4 offset:{C_DEPTH - C_LANDED}")
        if args.deep_at:
            a("s_cmp_ge_u32 s13, s11")
            a(f"s_cselect_b32 s4, {args.end_code}, 0")
            a("s_max_u32 s64, s64, s4")
        if args.early:
            a(f"s_cmp_lt_u32 s13, {args.early}")
            a(f"s_cselect_b32 s4, {args.early_code}, 0")
            a("s_max_u32 s64, s64, s4")
        order = list(range(len(LV)))
        for n, code in enumerate(order):
            N = LV[code]
            if n < len(order) - 1:
                a(f"s_cmp_lg_u32 s64, {code}")
                a(f"s_cbranch_scc1 LL_lv{n+1}")
            a(f"s_sub_u32 s4, s13, {(N + 7)//8}")
            a("s_max_i32 s9, s9, s4")
            a("v_mov_b32 v6, s9")
            a(f"s_waitcnt vmcnt({N})")
            if n < len(order) - 1:
                a("s_branch LL_pub")
                a.label(f"LL_lv{n+1}")
        a.label("LL_pub")
        a("s_waitcnt lgkmcnt(0)")
        a("v_readfirstlane_b32 s64, v8")
    else:
        if INF2 != INF:
            a("s_cmp_ge_u32 s13, s11")
            a("s_cbranch_scc1 LL_deep")
        a(f"s_sub_u32 s4, s13, {INF//8 - 1}")
        a("s_max_i32 s9, s9, s4")
        a("v_mov_b32 v6, s9")
        a("ds_read_b32 v7, v5")
        a(f"s_waitcnt vmcnt({INF-8})")
        if INF2 != INF:
            a("s_branch LL_pub")
            a.label("LL_deep")
            a(f"s_sub_u32 s4, s13, {INF2//8 - 1}")
            a("s_max_i32 s9, s9, s4")
            a("v_mov_b32 v6, s9")
            a("ds_read_b32 v7, v5")
            a(f"s_waitcnt vmcnt({INF2-8})")
            a.label("LL_pub")
    a("ds_write_b32 v4, v6")
    a("s_cmp_ge_u32 s13, s79")
    a("s_cbranch_scc1 LL_fin")
    a("s_cmp_lt_u32 s13, s15")
    a("s_cbranch_scc1 LL_loop")
    a("s_lshr_b32 s14, s14, 3")
    if not args.mon:
        a("s_waitcnt lgkmcnt(0)")
    a("v_readfirstlane_b32 s4, v7")
    a("s_cmp_gt_u32 s4, s14")
    a("s_cbranch_scc1 LL_loop")
    a("s_mov_b32 s9, s13")
    a("v_mov_b32 v6, s13")
    a("s_waitcnt vmcnt(0)")
    a("ds_write_b32 v4, v6")
    a.label("LL_spin")
    a("s_sleep 1")
    a("ds_read_b32 v7, v5")
    a("s_waitcnt lgkmcnt(0)")
    a("v_readfirstlane_b32 s4, v7")
    a("s_cmp_gt_u32 s4, s14")
    a("s_cbranch_scc1 LL_loop")
    a("s_branch LL_spin")
    a.label("LL_fin")
    for k in range(((max(LV) + 7) // 8 - 1) if args.mon else (INF2 // 8 - 2), -1, -1):
        a(f"s_sub_u32 s4, s79, {k}")
        a("s_max_i32 s9, s9, s4")
        a("v_mov_b32 v6, s9")
        a(f"s_waitcnt vmcnt({8*k})")
        a("ds_write_b32 v4, v6")
    stamp(5)
    a("s_branch LA_end2")
    if args.tk == 2:
        a.label("LL_resolve")
        a("s_cmp_lt_i32 s13, s76")
        a("s_cbranch_scc1 LL_loop")
        a(f"v_mov_b32 v11, {C_TK}")
        a("s_mov_b32 s77, 1")
        a("s_movk_i32 s76, -1")
        a(f"s_waitcnt vmcnt({8*args.nspec})")
        a("v_readfirstlane_b32 s4, v10")
        a("s_and_b32 s4, s4, s74")
        a("s_cbranch_scc1 LL_lost")
        a("v_mov_b32 v10, s2")
        a("ds_write_b32 v11, v10")
        a("s_waitcnt lgkmcnt(0)")
        a("s_barrier")
        a("s_mov_b32 s64, 0")
        a("s_branch LL_resolved")
        a.label("LL_lost")
        a("s_mov_b64 exec, 1")
        a("s_mov_b32 s9, 0")
        a(f"s_sleep {args.lost_sleep}")
        a.label("LL_try")
        a("s_lshl_b32 s4, s72, 5")
        a("v_mov_b32 v9, s4")
        a("v_mov_b32 v10, 0")
        a("buffer_atomic_or v10, v9, s[60:63], 0 offen sc0")
        a("s_waitcnt vmcnt(0)")
        a("v_readfirstlane_b32 s4, v10")
        a("s_not_b32 s4, s4")
        a("s_cbranch_scc0 LL_nextx")
        a("s_lshl_b32 s5, 0xff, s73")
        a("s_and_b32 s5, s5, s4")
        a("s_cselect_b32 s4, s5, s4")
        a("s_ff1_i32_b32 s5, s4")
        a("s_lshl_b32 s74, 1, s5")
        a("v_mov_b32 v10, s74")
        a("buffer_atomic_or v10, v9, s[60:63], 0 offen sc0")
        a("s_waitcnt vmcnt(0)")
        a("v_readfirstlane_b32 s4, v10")
        a("s_and_b32 s4, s4, s74")
        a("s_cbranch_scc1 LL_try")
        vid("s2", "s72", "s5", "s4")
        a("s_branch LL_got")
        a.label("LL_nextx")
        a("s_add_u32 s72, s72, 1")
        a("s_and_b32 s72, s72, 7")
        a("s_add_u32 s9, s9, 1")
        a("s_cmp_lt_u32 s9, 8")
        a("s_cbranch_scc1 LL_try")
        a("s_movk_i32 s2, 256")
        a.label("LL_got")
        a("v_mov_b32 v10, s2")
        a("ds_write_b32 v11, v10")
        a("s_mov_b64 exec, -1")
        a("s_waitcnt lgkmcnt(0)")
        a("s_barrier")
        a("s_branch LA_tk_done")

    a.label("LA_cons")
    a("s_mov_b32 s42, 0xffff0000")
    a(f"s_mov_b32 s69, {LOG2E:#x}")
    a("s_mov_b32 s55, 0x20000")
    a("s_mov_b32 s59, 0x20000")
    a("s_mov_b32 s63, 0x20000")
    a("s_cmp_eq_u32 s3, 9")
    a("s_cbranch_scc1 LA_ffn")
    if args.mon:
        a("s_cmp_eq_u32 s3, 10")
        a("s_cbranch_scc1 LA_mon")
    a("s_sub_u32 s9, s3, 1")
    a("v_lshrrev_b32 v20, 4, v0")
    a("v_and_b32 v21, 15, v0")
    a("v_lshlrev_b32 v2, 14, v20")
    a("v_lshl_add_u32 v2, v21, 4, v2")
    a("v_lshlrev_b32 v3, 2, v20")
    a("v_lshl_add_u32 v3, v21, 4, v3")
    a("s_lshl_b32 s4, s7, 10")
    a("s_lshl_b32 s5, s9, 7")
    a("s_add_u32 s4, s4, s5")
    a("s_lshl_b32 s11, s9, 19")
    a("s_lshl_b32 s12, s6, 8")
    a("s_add_u32 s11, s11, s12")
    a("s_mov_b32 s48, s22")
    a("s_mov_b32 s49, s23")
    a("s_mov_b32 s50, 0x00400000")
    a("s_mov_b32 s56, s16")
    a("s_mov_b32 s57, s17")
    a("s_mov_b32 s58, 4096")
    a(f"buffer_load_dword v{P}, v3, s[56:59], s4 offen")
    if args.coop:
        a("v_lshrrev_b32 v22, 3, v0")
        a("v_lshlrev_b32 v22, 13, v22")
        a("v_and_b32 v23, 7, v0")
        a("v_lshl_add_u32 v22, v23, 5, v22")
        a("s_lshr_b32 s4, s2, 5")
        a("s_lshl_b32 s4, s4, 19")
        a("s_lshl_b32 s5, s9, 16")
        a("s_add_u32 s4, s4, s5")
        a("s_add_u32 s4, s4, s12")
        a(f"buffer_load_dword v38, v22, s[48:51], s4 offen{cnt}")
        a("s_waitcnt vmcnt(0)")
        if args.coop > 1:
            a(f"s_sleep {args.coop}")
    for k in range(8):
        a(f"buffer_load_dwordx4 {Wr(2*k)}, v2, s[48:51], s11 offen{wnt}")
        a("s_add_u32 s12, s11, 8192")
        a(f"buffer_load_dwordx4 {Wr(2*k+1)}, v2, s[48:51], s12 offen{wnt}")
        if k < 7:
            a("s_add_u32 s11, s11, 65536")
    a(f"s_mov_b32 s68, {SCALE:#x}")
    a("s_mov_b32 s70, 0x05040100")
    a("s_mov_b32 s71, 0x07060302")
    a("s_mov_b32 s52, s24")
    a("s_mov_b32 s53, s25")
    a("s_mov_b32 s54, 0x00400000")
    a("s_mov_b32 s60, s40")
    a("s_mov_b32 s61, s41")
    a(f"s_mov_b32 s62, {WS_STATS + 2048}")
    a("v_and_b32 v22, 1, v20")
    a("v_lshlrev_b32 v22, 1, v22")
    a("v_lshrrev_b32 v23, 1, v20")
    a("v_or_b32 v22, v22, v23")
    a("v_lshl_add_u32 v22, v21, 3, v22")
    a("v_lshlrev_b32 v22, 2, v22")
    a("s_lshl_b32 s4, s9, 9")
    a(f"s_add_u32 s4, s4, {L_QP}")
    a(f"v_add_u32 v{VRED}, s4, v22")
    a(f"v_mov_b32 v{VZ}, {RING}")
    a(f"v_mov_b32 v{VCNT}, 1")
    a("s_lshl_b32 s4, s9, 13")
    a(f"v_add_u32 v{VBASE}, s4, v1")
    a("s_lshl_b32 s4, s9, 2")
    a(f"s_add_u32 s4, s4, {C_DONE}")
    a(f"v_mov_b32 v{VDONE}, s4")
    for j in range(8):
        a(f"v_mov_b32 v{ACC+j}, 0")
    if args.tk == 2:
        sync("c")
    for k in range(8):
        tb = T0 + 8 * (k & 1)
        a(f"s_waitcnt vmcnt({14 - 2*k})")
        if k == 0:
            stamp(3, 2)
        for d in range(4):
            A_, B_ = W0 + 8 * k + d, W0 + 8 * k + 4 + d
            a(f"v_perm_b32 v{tb+2*d}, v{B_}, v{A_}, s70")
            a(f"v_perm_b32 v{tb+2*d+1}, v{B_}, v{A_}, s71")
        for e in range(8):
            a(f"v_dot2c_f32_bf16_dpp v{ACC+e}, v{P}, v{tb+e} row_newbcast:{k} row_mask:0xf bank_mask:0xf")

    def cross_row_reduce8(base):
        for k in range(4):
            a(f"v_permlane32_swap_b32 v{base+2*k}, v{base+2*k+1}")
        for k in range(4):
            a(f"v_add_f32 v{base+2*k}, v{base+2*k}, v{base+2*k+1}")
        a(f"v_permlane16_swap_b32 v{base}, v{base+2}")
        a(f"v_permlane16_swap_b32 v{base+4}, v{base+6}")
        a(f"v_add_f32 v{base}, v{base}, v{base+2}")
        a(f"v_add_f32 v{base+4}, v{base+4}, v{base+6}")

    cross_row_reduce8(ACC)
    a(f"ds_write_b32 v{VRED}, v{ACC}")
    a(f"ds_write_b32 v{VRED}, v{ACC+4} offset:16")
    a("v_lshlrev_b32 v20, 3, v0")
    a(f"v_add_u32 v20, {L_QP}, v20")
    stamp(4, 2)
    lds_barrier(0, "q")
    for w in range(8):
        a(f"ds_read_b64 v[{T0+2*w}:{T0+2*w+1}], v20 offset:{512*w}")
    a("s_lshl_b32 s4, s9, 8")
    a(f"s_add_u32 s4, s4, {L_QQ}")
    a("v_lshlrev_b32 v21, 2, v0")
    a("v_add_u32 v21, s4, v21")
    a("v_and_b32 v22, 15, v0")
    a("v_lshlrev_b32 v22, 4, v22")
    a("v_add_u32 v22, s4, v22")
    a("s_waitcnt lgkmcnt(0)")
    for st in (1, 2, 4):
        for w in range(0, 8, 2 * st):
            a(f"v_add_f32 v{T0+2*w}, v{T0+2*w}, v{T0+2*(w+st)}")
            a(f"v_add_f32 v{T0+2*w+1}, v{T0+2*w+1}, v{T0+2*(w+st)+1}")
    a(f"v_cvt_pk_bf16_f32 v23, v{T0}, v{T0+1}")
    a("ds_write_b32 v21, v23")
    a("s_waitcnt lgkmcnt(0)")
    a(f"ds_read_b128 v[{Q}:{Q+3}], v22")
    for j in range(8):
        a(f"v_mov_b32 v{ACC+j}, 0")
    a(f"v_mov_b32 v{M}, 0xff800000")
    a(f"v_mov_b32 v{L}, 0")
    if args.coop:
        a("s_lshl_b32 s4, s6, 17")
        a("s_lshr_b32 s5, s2, 5")
        a("s_lshl_b32 s5, s5, 14")
        a("s_add_u32 s4, s4, s5")
        a("s_lshl_b32 s5, s9, 11")
        a("s_add_u32 s4, s4, s5")
        a("v_lshlrev_b32 v22, 5, v0")
        a(f"buffer_load_dword v141, v22, s[52:55], s4 offen{cnt}")
    a("s_lshl_b32 s43, s6, 17")
    a(f"s_lshl_b32 s5, s9, {7 if args.tail2 else 14}")
    a("s_add_u32 s43, s43, s5")
    if args.tail2:
        a("v_lshrrev_b32 v22, 4, v0")
        a("v_and_b32 v23, 15, v0")
        a("v_lshlrev_b32 v142, 15, v22")
        a("v_lshl_add_u32 v142, v23, 3, v142")
        a("v_and_b32 v143, 1, v22")
        a("v_lshlrev_b32 v143, 1, v143")
        a("v_lshrrev_b32 v22, 1, v22")
        a("v_or_b32 v143, v143, v22")
        a("v_lshl_add_u32 v143, v23, 2, v143")
        a("v_lshlrev_b32 v143, 2, v143")
        a("s_lshl_b32 s5, s7, 6")
        a("s_lshl_b32 s12, s6, 1")
        a("s_add_u32 s5, s5, s12")
        a("s_add_u32 s5, s5, s8")
        a("s_lshl_b32 s65, s5, 3")
        a(f"s_add_u32 s65, s65, {WS_STATS}")
        a("s_lshl_b32 s64, s5, 11")
        a("s_lshl_b32 s5, s9, 8")
        a("s_add_u32 s64, s64, s5")
    a("s_mov_b32 s13, s9")
    a("s_mov_b32 s15, 0")
    a(f"v_mov_b32 v{VCNT+1}, 0")
    stamp(1)
    a.label("LC_poll")
    a(f"ds_read_b32 v20, v{VZ}")
    a("s_waitcnt lgkmcnt(0)")
    a("v_readfirstlane_b32 s14, v20")
    a("s_cmp_gt_u32 s14, s13")
    a("s_cbranch_scc1 LC_go")
    a("s_sleep 1")
    a("s_branch LC_poll")
    a.label("LC_go")
    for i in range(4):
        a(f"ds_read_b128 v[{KB+4*i}:{KB+4*i+3}], v{VBASE} offset:{1024*i}")
    for i in range(4):
        a(f"ds_read_b128 v[{VB+4*i}:{VB+4*i+3}], v{VBASE} offset:{4096+1024*i}")
    a("s_add_u32 s15, s15, 1")
    a("s_add_u32 s13, s13, 8")
    a(f"v_add_u32 v{VCNT+1}, 1, v{VCNT+1}")
    if NS == 16:
        a(f"v_xor_b32 v{VBASE}, 0x10000, v{VBASE}")
    else:
        a(f"v_add_u32 v{VBASE}, 0x10000, v{VBASE}")
        a(f"v_subrev_u32 v21, {RING}, v{VBASE}")
        a(f"v_min_u32 v{VBASE}, v21, v{VBASE}")
    a("s_waitcnt lgkmcnt(4)")
    for d in range(4):
        for i in range(4):
            t = f"v{T0+i}"
            c = "0" if d == 0 else t
            a(f"v_dot2_f32_bf16 {t}, v{KB+4*i+d}, v{Q+d}, {c}")
    a("s_waitcnt lgkmcnt(0)")
    a(f"ds_write_b32 v{VDONE}, v{VCNT+1}")
    for i in range(2):
        a(f"v_add_f32_dpp v{T0+i}, v{T0+i}, v{T0+i} row_ror:8 row_mask:0xf bank_mask:0x3")
        a(f"v_add_f32_dpp v{T0+i}, v{T0+i+2}, v{T0+i+2} row_ror:8 row_mask:0xf bank_mask:0xc")
    PV1, PV2 = T0 + 8, KB
    for d in range(2):
        a(f"v_perm_b32 v{PV1+2*d}, v{VB+4+d}, v{VB+d}, s70")
        a(f"v_perm_b32 v{PV1+2*d+1}, v{VB+4+d}, v{VB+d}, s71")
    a(f"v_add_f32_dpp v{T0}, v{T0}, v{T0} row_half_mirror row_mask:0xf bank_mask:0x5")
    a(f"v_add_f32_dpp v{T0}, v{T0+1}, v{T0+1} row_half_mirror row_mask:0xf bank_mask:0xa")
    for d in range(2, 4):
        a(f"v_perm_b32 v{PV1+2*d}, v{VB+4+d}, v{VB+d}, s70")
        a(f"v_perm_b32 v{PV1+2*d+1}, v{VB+4+d}, v{VB+d}, s71")
    S = f"v{T0}"
    a(f"v_add_f32_dpp {S}, {S}, {S} quad_perm:[1,0,3,2] row_mask:0xf bank_mask:0xf")
    a(f"v_perm_b32 v{PV2}, v{VB+12}, v{VB+8}, s70")
    a(f"v_perm_b32 v{PV2+1}, v{VB+12}, v{VB+8}, s71")
    a(f"v_add_f32_dpp {S}, {S}, {S} quad_perm:[2,3,0,1] row_mask:0xf bank_mask:0xf")
    round_bf16(a, S)
    a(f"v_mul_f32 {S}, s68, {S}")
    round_bf16(a, S)
    MX = f"v{T0+1}"
    a(f"v_perm_b32 v{PV2+2}, v{VB+13}, v{VB+9}, s70")
    a(f"v_perm_b32 v{PV2+3}, v{VB+13}, v{VB+9}, s71")
    a(f"v_max_f32_dpp {MX}, {S}, {S} row_ror:8 row_mask:0xf bank_mask:0xf")
    a(f"v_perm_b32 v{PV2+4}, v{VB+14}, v{VB+10}, s70")
    a(f"v_perm_b32 v{PV2+5}, v{VB+14}, v{VB+10}, s71")
    a(f"v_max_f32_dpp {MX}, {MX}, {MX} row_ror:4 row_mask:0xf bank_mask:0xf")
    a(f"v_perm_b32 v{PV2+6}, v{VB+15}, v{VB+11}, s70")
    a(f"v_perm_b32 v{PV2+7}, v{VB+15}, v{VB+11}, s71")
    a(f"v_max_f32 {MX}, {MX}, v{M}")
    AL = f"v{T0+2}"
    a(f"v_sub_f32 {AL}, v{M}, {MX}")
    a(f"v_sub_f32 v{P}, {S}, {MX}")
    a(f"v_mul_f32 {AL}, s69, {AL}")
    a(f"v_mul_f32 v{P}, s69, v{P}")
    a(f"v_exp_f32 {AL}, {AL}")
    a(f"v_exp_f32 v{P}, v{P}")
    a(f"v_mov_b32 v{M}, {MX}")
    a(f"v_fma_f32 v{L}, v{L}, {AL}, v{P}")
    a(f"v_mul_f32 v{ACC}, {AL}, v{ACC}")
    a(f"v_mov_b32_dpp v{T0+3}, v{P} row_shl:4 row_mask:0xf bank_mask:0xf")
    for j in range(1, 8):
        a(f"v_mul_f32 v{ACC+j}, {AL}, v{ACC+j}")
        if j == 1:
            a(f"v_cvt_pk_bf16_f32 v{P}, v{P}, v{T0+3}")
    for e in range(8):
        a(f"v_dot2c_f32_bf16_dpp v{ACC+e}, v{P}, v{PV1+e} row_newbcast:0 row_mask:0xf bank_mask:0xf")
    for e in range(8):
        a(f"v_dot2c_f32_bf16_dpp v{ACC+e}, v{P}, v{PV2+e} row_newbcast:8 row_mask:0xf bank_mask:0xf")
    NPJ = args.wo_npj
    NB = 16 // NPJ
    a(f"s_cmp_le_u32 s15, {args.wo_at + NB - 1}")
    a("s_cbranch_scc1 LC_wo")
    a(f"s_cmp_eq_u32 s15, {args.prep_at}")
    a("s_cbranch_scc1 LC_prep")
    a("s_cmp_lt_u32 s13, s79")
    a("s_cbranch_scc1 LC_poll")
    a("s_branch LA_tail")
    a.label("LC_wo")
    for k in range(NB):
        a(f"s_cmp_lg_u32 s15, {args.wo_at + k}")
        a(f"s_cbranch_scc1 {'LC_wo%d' % (k+1) if k < NB-1 else 'LC_poll'}")
        if args.tail2:
            for i in range(2 * NPJ * k, 2 * NPJ * (k + 1)):
                if i % 4 == 0 or i == 2 * NPJ * k:
                    a(f"s_add_u32 s4, s43, {(i >> 2) * 4096}")
                a(f"buffer_load_dwordx2 v[{W0+2*i}:{W0+2*i+1}], v142, s[52:55], s4 offen offset:{(i & 3) * 1024}{wnt}")
        else:
          for i in range(NPJ * k, NPJ * (k + 1)):
            if i % 4 == 0 or i == NPJ * k:
                a(f"s_add_u32 s4, s43, {(i >> 2) * 4096}")
            a(f"buffer_load_dwordx4 {Wr(i)}, v1, s[52:55], s4 offen offset:{(i & 3) * 1024}{wnt}")
        a("s_branch LC_poll")
        if k < NB - 1:
            a.label(f"LC_wo{k+1}")

    a.label("LC_prep")
    a("s_waitcnt vmcnt(0)")
    LOr = {}
    HIr = {}
    prev = 141
    for j in range(16 if args.tail2 else 8):
        for t in range(2 if args.tail2 else 4):
            if args.tail2:
                A_, B_ = W0 + 4 * j + t, W0 + 4 * j + 2 + t
            else:
                A_, B_ = W0 + 8 * j + t, W0 + 8 * j + 4 + t
            a(f"v_perm_b32 v{prev}, v{B_}, v{A_}, s70")
            a(f"v_perm_b32 v{B_}, v{B_}, v{A_}, s71")
            LOr[(j, t)] = prev
            HIr[(j, t)] = B_
            prev = A_
    if args.warm:
        a("s_mov_b64 exec, 0")
        a("s_branch LW_0")
        a.label("LC_warmret")
        a("s_mov_b64 exec, -1")
    a("s_branch LC_poll")

    a.label("LA_tail")
    if args.warm:
        a.hop_begin("LW", args.warm)
    a.nop(3)
    stamp(3)
    for r in (8, 4):
        a(f"v_add_f32_dpp v{L}, v{L}, v{L} row_ror:{r} row_mask:0xf bank_mask:0xf")
    for g in range(4):
        a(f"v_readlane_b32 s{80+g}, v{M}, {16*g}")
    a("v_mov_b32 v20, s80")
    a("v_max_f32 v20, s81, v20")
    a("v_max_f32 v20, s82, v20")
    a("v_max_f32 v20, s83, v20")
    a(f"v_sub_f32 v22, v{M}, v20")
    a("v_mul_f32 v22, s69, v22")
    a("v_exp_f32 v22, v22")
    a(f"v_mul_f32 v{L}, v22, v{L}")
    for j in range(8):
        a(f"v_mul_f32 v{ACC+j}, v22, v{ACC+j}")
    for g in range(4):
        a(f"v_readlane_b32 s{80+g}, v{L}, {16*g}")
    cross_row_reduce8(ACC)
    a("v_mov_b32 v21, s80")
    a("v_add_f32 v21, s81, v21")
    a("v_add_f32 v21, s82, v21")
    a("v_add_f32 v21, s83, v21")
    a(f"ds_write_b32 v{VRED}, v{ACC} offset:{L_OP - L_QP}")
    a(f"ds_write_b32 v{VRED}, v{ACC+4} offset:{L_OP - L_QP + 16}")
    a("s_lshl_b32 s4, s9, 3")
    a(f"s_add_u32 s4, s4, {L_ST}")
    a("v_mov_b32 v22, s4")
    a("ds_write_b64 v22, v[20:21]")
    a("v_lshlrev_b32 v20, 3, v0")
    a(f"v_add_u32 v20, {L_OP}, v20")
    a(f"v_mov_b32 v21, {L_ST}")
    lds_barrier(1, "t1", 9 if args.fuse else 8)
    stamp(4)
    SB = 104
    for k in range(4):
        a(f"ds_read_b128 v[{SB+4*k}:{SB+4*k+3}], v21 offset:{16*k}")
    for w in range(8):
        a(f"ds_read_b64 v[{T0+2*w}:{T0+2*w+1}], v20 offset:{512*w}")
    a("s_lshl_b32 s4, s9, 3")
    if args.tail2:
        for j in range(8):
            a(f"v_mov_b32 v{ACC+j}, 0")
        a("v_mov_b32 v3, 0")
        a("s_cmp_eq_u32 s9, 0")
        a("s_cselect_b32 s66, 1, 0")
        a("s_mov_b32 s67, 0")
    a("s_waitcnt lgkmcnt(8)")
    a(f"v_max3_f32 v20, v{SB}, v{SB+2}, v{SB+4}")
    a(f"v_max3_f32 v20, v20, v{SB+6}, v{SB+8}")
    a(f"v_max3_f32 v20, v20, v{SB+10}, v{SB+12}")
    a(f"v_max_f32 v20, v20, v{SB+14}")
    for w in range(8):
        a(f"v_sub_f32 v{SB+2*w}, v{SB+2*w}, v20")
    for w in range(8):
        a(f"v_mul_f32 v{SB+2*w}, s69, v{SB+2*w}")
    for w in range(8):
        a(f"v_exp_f32 v{SB+2*w}, v{SB+2*w}")
    a(f"v_mul_f32 v21, v{SB}, v{SB+1}")
    for w in range(1, 8):
        a(f"v_fmac_f32 v21, v{SB+2*w}, v{SB+2*w+1}")
    a("v_rcp_f32 v22, v21")
    if args.tail2:
        a("s_mov_b64 exec, s[66:67]")
        a(f"buffer_store_dwordx2 v[20:21], v3, s[60:63], s65 offen{' sc1' if args.fuse else ''}")
        a("s_mov_b64 exec, -1")
    a("s_waitcnt lgkmcnt(0)")
    a(f"v_mul_f32 v2, v{SB}, v{T0}")
    a(f"v_mul_f32 v3, v{SB}, v{T0+1}")
    for w in range(1, 8):
        a(f"v_fmac_f32 v2, v{SB+2*w}, v{T0+2*w}")
        a(f"v_fmac_f32 v3, v{SB+2*w}, v{T0+2*w+1}")
    a("v_mul_f32 v2, v22, v2")
    a("v_mul_f32 v3, v22, v3")
    a("v_cvt_pk_bf16_f32 v2, v2, v3")
    ysc = " sc1" if args.fuse else ""
    if args.tail2:
        for j in range(16):
            o = ACC + 4 * (j & 1)
            for t in range(2):
                a(f"v_dot2c_f32_bf16_dpp v{o+2*t}, v2, v{LOr[(j, t)]} row_newbcast:{j} row_mask:0xf bank_mask:0xf")
                a(f"v_dot2c_f32_bf16_dpp v{o+2*t+1}, v2, v{HIr[(j, t)]} row_newbcast:{j} row_mask:0xf bank_mask:0xf")
        for k in range(4):
            a(f"v_add_f32 v{ACC+k}, v{ACC+k}, v{ACC+4+k}")
        a(f"v_permlane32_swap_b32 v{ACC}, v{ACC+1}")
        a(f"v_permlane32_swap_b32 v{ACC+2}, v{ACC+3}")
        a(f"v_add_f32 v{ACC}, v{ACC}, v{ACC+1}")
        a(f"v_add_f32 v{ACC+2}, v{ACC+2}, v{ACC+3}")
        a(f"v_permlane16_swap_b32 v{ACC}, v{ACC+2}")
        a(f"v_add_f32 v{ACC}, v{ACC}, v{ACC+2}")
        if args.yx4:
            z = ACC
            a(f"v_mov_b32 v{z+4}, v{z}")
            a(f"v_mov_b32 v{z+5}, v{z}")
            a(f"v_mov_b32 v{z+1}, v{z}")
            a(f"v_permlane32_swap_b32 v{z+4}, v{z+1}")
            a(f"v_permlane16_swap_b32 v{z+5}, v{z+2}")
            a(f"v_mov_b32 v{z+6}, v{z+1}")
            a(f"v_permlane16_swap_b32 v{z+6}, v{z+3}")
            a("s_mov_b64 exec, 0xffff")
            a(f"buffer_store_dwordx4 v[{z}:{z+3}], v1, s[60:63], s64 offen{ysc}")
            a("s_mov_b64 exec, -1")
        else:
            a(f"buffer_store_dword v{ACC}, v143, s[60:63], s64 offen{ysc}")
        stamp(5)
    else:
        for j in range(8):
            a(f"v_readlane_b32 s{72+j}, v2, s4")
            if j < 7:
                a("s_add_u32 s4, s4, 1")
        for j in range(8):
            for t in range(4):
                c = "0" if j == 0 else f"v{ACC+2*t}"
                a(f"v_dot2_f32_bf16 v{ACC+2*t}, v{LOr[(j, t)]}, s{72+j}, {c}")
                c = "0" if j == 0 else f"v{ACC+2*t+1}"
                a(f"v_dot2_f32_bf16 v{ACC+2*t+1}, v{W0+8*j+4+t}, s{72+j}, {c}")
        a("s_lshl_b32 s4, s9, 11")
        a("v_lshlrev_b32 v2, 5, v0")
        a("v_add_u32 v2, s4, v2")
        a(f"ds_write_b128 v2, v[{ACC}:{ACC+3}] offset:{L_Y}")
        a(f"ds_write_b128 v2, v[{ACC+4}:{ACC+7}] offset:{L_Y+16}")
        a("s_lshl_b32 s4, s9, 8")
        a("v_lshlrev_b32 v3, 2, v0")
        a("v_add_u32 v3, s4, v3")
        a("s_lshl_b32 s5, s7, 6")
        a("s_lshl_b32 s12, s6, 1")
        a("s_add_u32 s5, s5, s12")
        a("s_add_u32 s5, s5, s8")
        a("s_lshl_b32 s5, s5, 11")
        lds_barrier(2, "t2")
        for w in range(8):
            a(f"ds_read_b32 v{T0+w}, v3 offset:{L_Y + 2048*w}")
        a("s_waitcnt lgkmcnt(0)")
        for st in (1, 2, 4):
            for w in range(0, 8, 2 * st):
                a(f"v_add_f32 v{T0+w}, v{T0+w}, v{T0+w+st}")
        if args.warm:
            a.hop_end("LC_warmret")
        a(f"buffer_store_dword v{T0}, v3, s[60:63], s5 offen{ysc}")
        stamp(5)
        a("s_cmp_lg_u32 s9, 0")
        a("s_cbranch_scc1 LA_end2")
        a("s_lshl_b32 s5, s7, 5")
        a("s_add_u32 s5, s5, s6")
        a("s_lshl_b32 s5, s5, 4")
        a("s_lshl_b32 s12, s8, 3")
        a("s_add_u32 s5, s5, s12")
        a(f"s_add_u32 s5, s5, {WS_STATS}")
        a("v_mov_b32 v2, 0")
        a("s_mov_b64 exec, 1")
        a(f"buffer_store_dwordx2 v[20:21], v2, s[60:63], s5 offen{ysc}")
    a.label("LA_end2")
    stamp_store()
    a("s_endpgm")

    if args.mon:
        a.label("LA_mon")
        if args.tk == 2:
            sync("m")
        G = args.glob
        RATE = args.rate
        a("s_memrealtime s[66:67]")
        a("s_and_b32 s15, s2, 7")
        a(f"s_mul_i32 s4, s15, {args.bstride}")
        a(f"s_add_u32 s4, s4, {WS_BOARD}")
        a("s_add_u32 s60, s40, s4")
        a("s_addc_u32 s61, s41, 0")
        a(f"s_movk_i32 s62, {132 if G else 128}")
        a("s_lshr_b32 s12, s2, 3")
        a("s_lshl_b32 s12, s12, 2")
        a("v_lshlrev_b32 v5, 2, v0")
        a("v_mov_b32 v7, 0")
        a(f"v_mov_b32 v6, {C_LANDED}")
        a(f"s_sub_u32 s10, s79, {NJ}")
        a(f"s_sub_u32 s11, s79, {args.mon_stop}")
        if G:
            a(f"s_add_u32 s56, s40, {WS_BOARD + 8*args.bstride}")
            a("s_addc_u32 s57, s41, 0")
            a("s_mov_b32 s58, 32")
            a("s_lshl_b32 s15, s15, 2")
        if args.ts:
            for k in range(6):
                a(f"s_mov_b32 s{84+k}, 0")
        a("s_mov_b64 exec, 1")
        a("s_waitcnt lgkmcnt(0)")
        a(f"s_mul_i32 s4, s66, {RATE}")
        a("s_sub_u32 s4, 0, s4")
        a("v_mov_b32 v4, s4")
        a("buffer_store_dword v4, v7, s[60:63], s12 offen")
        if args.fuse:
            a("s_mov_b32 s56, s40")
            a("s_mov_b32 s57, s41")
            a(f"s_mov_b32 s58, {WS_STATS + 2048}")
            a("s_mov_b32 s52, s38")
            a("s_mov_b32 s53, s39")
            a("s_movk_i32 s54, 256")
            a("s_lshl_b32 s4, s7, 6")
            a("s_lshl_b32 s5, s6, 1")
            a("s_add_u32 s4, s4, s5")
            a("s_add_u32 s4, s4, s8")
            a("s_lshl_b32 s5, s4, 3")
            a(f"s_add_u32 s5, s5, {WS_STATS}")
            a("s_lshl_b32 s4, s4, 11")
            a("s_mov_b64 exec, -1")
            for k in range(4):
                a(f"v_mov_b32 v{8+k}, -1")
            a("buffer_store_dwordx4 v[8:11], v1, s[56:59], s4 offen sc1")
            a("buffer_store_dwordx4 v[8:11], v1, s[56:59], s4 offen offset:1024 sc1")
            a("s_mov_b64 exec, 1")
            a("buffer_store_dwordx2 v[8:9], v7, s[56:59], s5 offen sc1")
            a("v_mov_b32 v12, 1")
            a("s_lshl_b32 s4, s15, 5")
            a("s_waitcnt vmcnt(0)")
            a(f"ds_add_u32 v6, v12 offset:{C_BAR + 4 - C_LANDED}")
            a("buffer_atomic_add v12, v7, s[52:55], s4 offen offset:8")
        if G:
            a("s_cmp_lg_u32 s12, 0")
            a("s_cbranch_scc1 LM_loop")
            a("s_lshl_b32 s4, s4, 5")
            a("v_mov_b32 v8, s4")
            a("buffer_store_dword v7, v7, s[60:63], 0 offen offset:128")
            a("buffer_store_dword v8, v7, s[56:59], s15 offen sc1")
        a.label("LM_loop")
        a(f"s_sleep {args.mon}")
        a("ds_read_b32 v4, v6")
        a("s_memrealtime s[66:67]")
        a("s_waitcnt lgkmcnt(0)")
        a("v_readfirstlane_b32 s14, v4")
        a("s_cmp_ge_u32 s14, s11")
        a("s_cbranch_scc1 LM_last")
        a("s_sub_u32 s4, s14, s10")
        a("s_lshl_b32 s4, s4, 10")
        a(f"s_mul_i32 s5, s66, {RATE}")
        a("s_sub_u32 s13, s4, s5")
        a("v_mov_b32 v4, s13")
        a("buffer_store_dword v4, v7, s[60:63], s12 offen")
        a("s_cmp_lt_u32 s14, 8")
        a("s_cbranch_scc1 LM_loop")
        a("s_mov_b64 exec, -1")
        a(f"buffer_load_dword v8, v5, s[60:63], 0 offen {args.monld}")
        if G:
            a("s_cmp_lg_u32 s12, 0")
            a("s_cbranch_scc1 LM_nl1")
            a("buffer_load_dword v9, v5, s[56:59], 0 offen sc1")
            a.label("LM_nl1")
        a("s_lshl_b32 s13, s13, 5")
        a("s_waitcnt vmcnt(0)")
        for r in (1, 2, 4, 8):
            a(f"v_add_u32_dpp v8, v8, v8 row_ror:{r} row_mask:0xf bank_mask:0xf")
            if G:
                a(f"v_add_u32_dpp v9, v9, v9 row_ror:{r} row_mask:0xf bank_mask:0xf")
        a("v_readlane_b32 s4, v8, 0")
        a("v_readlane_b32 s5, v8, 16")
        if G:
            a("v_readlane_b32 s65, v8, 32")
            a("v_readlane_b32 s66, v9, 0")
        a("s_mov_b64 exec, 1")
        a("s_add_u32 s4, s4, s5")
        a("s_sub_u32 s13, s4, s13")
        if G:
            a("s_cmp_lg_u32 s12, 0")
            a("s_cbranch_scc1 LM_nl2")
            a("v_mov_b32 v4, s4")
            a("buffer_store_dword v4, v7, s[56:59], s15 offen sc1")
            a("s_lshl_b32 s5, s4, 3")
            a("s_sub_u32 s65, s66, s5")
            a("s_ashr_i32 s65, s65, 3")
            a("v_mov_b32 v4, s65")
            a("buffer_store_dword v4, v7, s[60:63], 0 offen offset:128")
            a.label("LM_nl2")
            a(f"s_min_i32 s65, s65, {int(32768*G)}")
            a(f"s_max_i32 s65, s65, {-int(32768*G)}")
            a("s_add_u32 s13, s13, s65")
        a("s_mov_b32 s5, 0")
        for k, th in enumerate(TH):
            code = k + 1
            if LV[code] < LV[0]:
                a(f"s_cmp_lt_i32 s13, {int(round(th*32768))}")
            else:
                a(f"s_cmp_gt_i32 s13, {int(round(th*32768))}")
            a(f"s_cselect_b32 s5, {code}, s5")
        a("v_mov_b32 v4, s5")
        a(f"ds_write_b32 v6, v4 offset:{C_DEPTH - C_LANDED}")
        if args.ts:
            for k in range(len(LV)):
                a(f"s_cmp_eq_u32 s5, {k}")
                a(f"s_addc_u32 s{84+k}, s{84+k}, 0")
        a("s_branch LM_loop")
        a.label("LM_last")
        if args.warmfin:
            a(f"s_cmp_ge_u32 s12, {4*args.warmfin}")
            a("s_cbranch_scc1 LM_nowarm")
            a("s_mov_b64 exec, -1")
            a("s_getpc_b64 s[64:65]")
            a.label("LM_pc")
            a("s_add_u32 s64, s64, fin_kernel-LM_pc")
            a("s_addc_u32 s65, s65, 0")
            a("s_mov_b32 s66, LB_end-fin_kernel")
            a("s_mov_b32 s67, 0x20000")
            a("v_lshlrev_b32 v2, 6, v0")
            a("buffer_load_dword v10, v2, s[64:67], 0 offen")
            a("s_mov_b32 s56, s16")
            a("s_mov_b32 s57, s17")
            a("s_mov_b32 s58, 4096")
            a("buffer_load_dword v11, v2, s[56:59], 0 offen")
            a("s_mov_b32 s52, s34")
            a("s_mov_b32 s53, s35")
            a("s_mov_b32 s54, 1024")
            a("buffer_load_dword v12, v2, s[52:55], 0 offen")
            a("s_mov_b32 s44, s36")
            a("s_mov_b32 s45, s37")
            a("s_mov_b32 s46, 4096")
            a("buffer_load_dword v13, v2, s[44:47], 0 offen")
            a("s_mov_b64 exec, 1")
            a.label("LM_nowarm")
        if args.ts:
            a("s_lshl_b32 s4, s2, 5")
            a(f"s_add_u32 s60, s40, {(4<<20) + 163840}")
            a("s_addc_u32 s61, s41, 0")
            a("s_mov_b32 s62, 0x100000")
            a("v_mov_b32 v2, 0")
            for k in range(6):
                a(f"v_mov_b32 v4, s{84+k}")
                a(f"buffer_store_dword v4, v2, s[60:63], s4 offen offset:{4*k}")
        a("s_endpgm")

    a.label("LA_ffn")
    if args.tk == 2:
        sync("f")
    if args.fuse:
        a("s_cmp_ge_u32 s2, 192")
        a("s_cbranch_scc1 LA_red")
    a("s_mov_b32 s6, s5")
    a(f"s_cmp_ge_u32 s6, {NFFN}")
    a("s_cbranch_scc1 LA_end")
    a("s_cmp_lg_u32 s8, 0")
    a("s_cbranch_scc1 LA_end")
    if args.ffn_wait:
        a(f"v_mov_b32 v4, {C_DONE}")
        a.label("LF_wait")
        a("s_sleep 8")
        a("ds_read_b32 v5, v4")
        a("s_waitcnt lgkmcnt(0)")
        a("v_readfirstlane_b32 s4, v5")
        a(f"s_cmp_lt_u32 s4, {args.ffn_wait}")
        a("s_cbranch_scc1 LF_wait")
    FB = 104
    FA = 40
    FX = 72
    FU = 80
    FG = 88
    FH = 96
    def Fr(i): return f"v[{FB+4*i}:{FB+4*i+3}]"
    a("v_lshrrev_b32 v20, 1, v0")
    a("v_and_b32 v21, 1, v0")
    a("s_movk_i32 s4, 2752")
    a("v_mul_lo_u32 v2, v20, s4")
    a("v_lshl_add_u32 v2, v21, 4, v2")
    a("v_lshlrev_b32 v3, 4, v20")
    a(f"v_add_u32 v3, {L_XT}, v3")
    a("s_mov_b32 s46, 1409024")
    a("s_mov_b32 s50, 1409024")
    a("s_mov_b32 s58, 4096")
    a(f"s_mov_b32 s62, {NFFN*8192}")
    a("s_lshl_b32 s10, s6, 5")
    a("s_mov_b32 s44, s28")
    a("s_mov_b32 s45, s29")
    a("s_mov_b32 s48, s30")
    a("s_mov_b32 s49, s31")
    a("s_mov_b32 s56, s16")
    a("s_mov_b32 s57, s17")
    a(f"s_add_u32 s60, s40, {WS_F}")
    a("s_addc_u32 s61, s41, 0")
    for b in range(4):
        a(f"buffer_load_dwordx4 v[{4+4*b}:{7+4*b}], v1, s[56:59], 0 offen offset:{1024*b}")
    FD = args.fd
    a("s_mov_b32 s11, s10")
    for i in range(FD):
        a(f"buffer_load_dwordx4 {Fr(i)}, v2, s[44:47], s11 offen{wnt}")
        a(f"s_add_u32 s11, s11, {32*2752}")
    a(f"s_waitcnt vmcnt({FD})")
    for e in range(8):
        for b in range(4):
            src = f"v{4+4*b+(e>>1)}"
            if e & 1:
                a(f"v_and_b32 v{FA+4*e+b}, s42, {src}")
            else:
                a(f"v_lshlrev_b32 v{FA+4*e+b}, 16, {src}")
    a("v_lshlrev_b32 v20, 7, v0")
    a(f"v_add_u32 v20, {L_XT}, v20")
    for e in range(8):
        a(f"ds_write_b128 v20, v[{FA+4*e}:{FA+4*e+3}] offset:{16*e}")
    a("s_waitcnt lgkmcnt(0)")
    a("s_mov_b32 s9, 0")
    a("v_mov_b32 v22, v2")
    a(f"s_mov_b32 s12, {32*2752}")
    a.label("LF_pass")
    for k in range(32):
        a(f"v_mov_b32 v{FA+k}, 0")
    a(f"ds_read_b128 v[{FX}:{FX+3}], v3")
    for i in range(16):
        xb = FX + 4 * (i & 1)
        if i < 15:
            nb = FX + 4 * ((i + 1) & 1)
            a(f"ds_read_b128 v[{nb}:{nb+3}], v3 offset:{512*(i+1)}")
        a(f"s_waitcnt vmcnt({FD-1})")
        for d in range(4):
            a(f"v_lshlrev_b32 v{FU+2*d}, 16, v{FB+4*i+d}")
            a(f"v_and_b32 v{FU+2*d+1}, s42, v{FB+4*i+d}")
        if i + FD < 16:
            a(f"buffer_load_dwordx4 {Fr(i+FD)}, v2, s[44:47], s11 offen{wnt}")
            a(f"s_add_u32 s11, s11, {32*2752}")
        else:
            if i + FD == 16:
                a("s_mov_b32 s11, s10")
            a(f"buffer_load_dwordx4 {Fr(i+FD-16)}, v22, s[48:51], s11 offen{wnt}")
            a("s_add_u32 s11, s11, s12")
        a(f"s_waitcnt lgkmcnt({1 if i < 15 else 0})")
        for b in range(4):
            for e in range(8):
                a(f"v_fmac_f32 v{FA+8*b+e}, v{xb+b}, v{FU+e}")
    for k in range(16):
        a(f"v_permlane32_swap_b32 v{FA+k}, v{FA+16+k}")
    for k in range(16):
        a(f"v_add_f32 v{FA+k}, v{FA+k}, v{FA+16+k}")
    for k in range(8):
        a(f"v_permlane16_swap_b32 v{FA+k}, v{FA+8+k}")
    for k in range(8):
        a(f"v_add_f32 v{FA+k}, v{FA+k}, v{FA+8+k}")
    for r in (2, 4, 8):
        for k in range(8):
            a(f"v_add_f32_dpp v{FA+k}, v{FA+k}, v{FA+k} row_ror:{r} row_mask:0xf bank_mask:0xf")
    for k in range(8):
        a(f"v_mov_b32 v{FG+k}, v{FH+k}")
        a(f"v_mov_b32 v{FH+k}, v{FA+k}")
    a("s_cmp_eq_u32 s9, 1")
    a("s_cbranch_scc1 LF_p2")
    a("s_mov_b32 s9, 1")
    a("s_mov_b32 s44, s48")
    a("s_mov_b32 s45, s49")
    a("s_mov_b32 s48, s32")
    a("s_mov_b32 s49, s33")
    a("v_mov_b32 v22, v1")
    a("s_movk_i32 s12, 1024")
    a("s_lshl_b32 s10, s6, 14")
    a("s_branch LF_pass")
    a.label("LF_p2")
    a.nop(2)
    for k in range(8):
        g, u = f"v{FG+k}", f"v{FH+k}"
        round_bf16(a, g)
        round_bf16(a, u)
        a(f"v_mul_f32 {g}, s69, {g}")
        a(f"v_exp_f32 {g}, -{g}")
        a(f"v_add_f32 {g}, 1.0, {g}")
        a(f"v_rcp_f32 {g}, {g}")
        round_bf16(a, g)
        a(f"v_mul_f32 {u}, {g}, {u}")
        round_bf16(a, u)
    for k in range(32):
        a(f"v_mov_b32 v{FA+k}, 0")
    for f in range(16):
        for b in range(4):
            a(f"v_readlane_b32 s{80+b}, v{FH+(f&7)}, {16*b + (f >> 3)}")
        a(f"s_waitcnt vmcnt({min(FD-1, 15-f)})")
        for d in range(4):
            a(f"v_lshlrev_b32 v{FU+2*d}, 16, v{FB+4*f+d}")
            a(f"v_and_b32 v{FU+2*d+1}, s42, v{FB+4*f+d}")
        if f + FD < 16:
            a(f"buffer_load_dwordx4 {Fr(f+FD)}, v22, s[48:51], s11 offen{wnt}")
            a("s_add_u32 s11, s11, s12")
        for b in range(4):
            for e in range(8):
                a(f"v_fmac_f32 v{FA+8*b+e}, s{80+b}, v{FU+e}")
    a("v_lshlrev_b32 v2, 5, v0")
    a("s_lshl_b32 s10, s6, 13")
    for b in range(4):
        a(f"buffer_store_dwordx4 v[{FA+8*b}:{FA+8*b+3}], v2, s[60:63], s10 offen offset:{2048*(b&1)}{ysc}")
        a(f"buffer_store_dwordx4 v[{FA+8*b+4}:{FA+8*b+7}], v2, s[60:63], s10 offen offset:{2048*(b&1)+16}{ysc}")
        if b == 1:
            a("s_add_u32 s10, s10, 4096")
    if args.fuse:
        a("s_mov_b32 s52, s38")
        a("s_mov_b32 s53, s39")
        a("s_movk_i32 s54, 256")
        a("s_and_b32 s4, s2, 7")
        a("s_lshl_b32 s4, s4, 5")
        a("v_mov_b32 v4, 0x10000")
        a("v_mov_b32 v5, 0")
        a("s_mov_b64 exec, 1")
        a("s_waitcnt vmcnt(0)")
        a("buffer_atomic_add v4, v5, s[52:55], s4 offen offset:8")
    stamp(5)
    a("s_branch LA_end2")
    if args.fuse:
        reducer(a, args, C_LANDED, stamp)
    a.label("LA_end")
    a("s_endpgm")

    if args.fuse:
        a.label("LB_end")
        a("s_endpgm")
    else:
        fin_kernel(a, args)
    if args.probe == 1:
        probe_kernel(a, args)

    for name, vg in (("attn_kernel", 168),) + (() if args.fuse else (("fin_kernel", 48),)) + ((("probe_kernel", 16),) if args.probe == 1 else ()):
        a.raw(f""".section .rodata,"a"
.p2align 6
.amdhsa_kernel {name}
  .amdhsa_next_free_vgpr {vg}
  .amdhsa_next_free_sgpr 100
  .amdhsa_accum_offset {vg}
  .amdhsa_group_segment_fixed_size 0
  .amdhsa_kernarg_size 104
  .amdhsa_user_sgpr_count 2
  .amdhsa_user_sgpr_kernarg_segment_ptr 1
  .amdhsa_system_sgpr_workgroup_id_x 1
.end_amdhsa_kernel""")
    return a.text()


def reducer(a, args, C_LANDED, stamp):
    Y0 = 40
    F0 = 72
    WT = 120
    AC = 8
    a.label("LA_red")
    a("s_sub_u32 s4, s2, 192")
    a("s_lshr_b32 s7, s4, 4")
    a("s_and_b32 s8, s4, 15")
    a("s_mov_b32 s44, s40")
    a("s_mov_b32 s45, s41")
    a(f"s_mov_b32 s46, {WS_F + NFFN*8192}")
    a("s_mov_b32 s48, s38")
    a("s_mov_b32 s49, s39")
    a("s_movk_i32 s50, 256")
    a("s_mov_b32 s52, s16")
    a("s_mov_b32 s53, s17")
    a("s_movk_i32 s54, 4096")
    a("s_mov_b32 s56, s34")
    a("s_mov_b32 s57, s35")
    a("s_movk_i32 s58, 1024")
    a("s_mov_b32 s60, s36")
    a("s_mov_b32 s61, s37")
    a("s_movk_i32 s62, 4096")
    a("v_lshrrev_b32 v20, 3, v0")
    a("v_and_b32 v21, 7, v0")
    a("v_lshlrev_b32 v3, 11, v20")
    a("v_lshl_add_u32 v3, v21, 4, v3")
    a("v_lshlrev_b32 v5, 13, v20")
    a("v_lshl_add_u32 v5, v21, 4, v5")
    a("v_lshlrev_b32 v6, 2, v0")
    a("v_lshlrev_b32 v7, 3, v0")
    a("v_lshlrev_b32 v2, 2, v20")
    a("v_lshrrev_b32 v22, 4, v0")
    a("v_and_b32 v23, 1, v22")
    a("v_lshlrev_b32 v23, 1, v23")
    a("v_lshrrev_b32 v22, 1, v22")
    a("v_or_b32 v23, v23, v22")
    a("v_lshl_add_u32 v23, v21, 2, v23")
    a("v_lshlrev_b32 v4, 1, v23")
    a(f"v_mov_b32 v16, {C_LANDED}")
    a("s_lshl_b32 s4, s7, 17")
    a("s_lshl_b32 s5, s8, 7")
    a("s_add_u32 s70, s4, s5")
    for i in range(1, 8):
        a(f"s_add_u32 s{70+i}, s{69+i}, 16384")
    a("s_lshl_b32 s11, s7, 9")
    a(f"s_add_u32 s11, s11, {WS_STATS}")
    a("s_lshl_b32 s12, s7, 11")
    a("s_add_u32 s12, s12, s5")
    a(f"s_add_u32 s12, s12, {WS_F}")
    a("s_lshl_b32 s15, s7, 10")
    a("s_lshl_b32 s5, s8, 6")
    a("s_add_u32 s13, s15, s5")
    a(f"s_sub_u32 s10, s79, {args.red_t1}")
    a.label("LR_w1")
    a("s_sleep 32")
    a("ds_read_b32 v17, v16")
    a("s_waitcnt lgkmcnt(0)")
    a("v_readfirstlane_b32 s4, v17")
    a("s_cmp_lt_u32 s4, s10")
    a("s_cbranch_scc1 LR_w1")
    stamp(1)
    a("buffer_load_dwordx4 v[24:27], v1, s[52:55], s15 offen")
    a("buffer_load_dwordx4 v[28:31], v1, s[56:59], 0 offen")
    a(f"s_mov_b32 s9, {args.red_tmo}")
    a("v_mov_b32 v18, 0")
    a("s_mov_b32 s16, 0x04040404")
    a("s_mov_b32 s17, 0x04040404")
    a.label("LR_c")
    a("s_mov_b64 exec, s[16:17]")
    a("buffer_load_dword v18, v6, s[48:51], 0 offen sc1")
    a("s_mov_b64 exec, -1")
    a("s_waitcnt vmcnt(0)")
    a("v_add_u32_dpp v19, v18, v18 row_ror:8 row_mask:0xf bank_mask:0xf")
    for g in range(4):
        a(f"v_readlane_b32 s{20+g}, v19, {16*g+2}")
    a("s_add_u32 s20, s20, s21")
    a("s_add_u32 s22, s22, s23")
    a("s_add_u32 s20, s20, s22")
    a(f"s_cmp_eq_u32 s20, {256 + (NFFN << 16)}")
    a("s_cbranch_scc1 LR_cok")
    a("s_sleep 16")
    a("s_sub_u32 s9, s9, 1")
    a("s_cmp_lg_u32 s9, 0")
    a("s_cbranch_scc1 LR_c")
    a.label("LR_cok")
    for i in range(11):
        a(f"buffer_load_dwordx4 v[{F0+4*i}:{F0+4*i+3}], v5, s[44:47], s12 offen sc1")
        if i < 10:
            a("s_add_u32 s12, s12, 65536")
    for d in range(4):
        a(f"v_lshlrev_b32 v{32+2*d}, 16, v{24+d}")
        a(f"v_and_b32 v{33+2*d}, s42, v{24+d}")
        a(f"v_lshlrev_b32 v{AC+2*d}, 16, v{28+d}")
        a(f"v_and_b32 v{AC+2*d+1}, s42, v{28+d}")
    for e in range(8):
        a(f"v_mul_f32 v{32+e}, v{32+e}, v{AC+e}")
    for e in range(8):
        round_bf16(a, f"v{32+e}")
    for st in (1, 2, 4):
        for e in range(0, 8, 2 * st):
            a(f"v_add_f32 v{32+e}, v{32+e}, v{32+e+st}")
    for r in (1, 2, 4, 8):
        a(f"v_add_f32_dpp v32, v32, v32 row_ror:{r} row_mask:0xf bank_mask:0xf")
    for g in range(4):
        a(f"v_readlane_b32 s{20+g}, v32, {16*g}")
    a("v_mov_b32 v32, s20")
    a("v_add_f32 v32, s21, v32")
    a("v_add_f32 v32, s22, v32")
    a("v_add_f32 v32, s23, v32")
    round_bf16(a, "v32")
    a("v_mul_f32 v32, s69, v32")
    a("v_exp_f32 v32, -v32")
    a("v_add_f32 v32, 1.0, v32")
    a("v_rcp_f32 v32, v32")
    round_bf16(a, "v32")
    a("v_sub_f32 v33, 1.0, v32")
    round_bf16(a, "v33")

    def red4(b):
        a(f"v_permlane32_swap_b32 v{b}, v{b+1}")
        a(f"v_permlane32_swap_b32 v{b+2}, v{b+3}")
        a(f"v_add_f32 v{b}, v{b}, v{b+1}")
        a(f"v_add_f32 v{b+2}, v{b+2}, v{b+3}")
        a(f"v_permlane16_swap_b32 v{b}, v{b+2}")
        a(f"v_add_f32 v{b}, v{b}, v{b+2}")
        a(f"v_add_f32_dpp v{b}, v{b}, v{b} row_ror:8 row_mask:0xf bank_mask:0xf")

    for k in range(32):
        a(f"v_mov_b32 v{Y0+k}, -1")
    a("v_mov_b32 v36, -1")
    a("v_mov_b32 v37, -1")
    for i in range(8):
        a(f"s_mov_b64 s[{16+2*i}:{17+2*i}], -1")
    a("s_mov_b64 s[32:33], -1")
    a("s_mov_b32 s36, 0x00ff00ff")
    a("s_mov_b32 s37, 0x00ff00ff")
    a("s_waitcnt vmcnt(0)")
    for st in (1, 2, 4, 8):
        for i in range(0, 11, 2 * st):
            if i + st < 11:
                for c in range(4):
                    a(f"v_add_f32 v{F0+4*i+c}, v{F0+4*i+c}, v{F0+4*(i+st)+c}")
    red4(F0)
    round_bf16(a, f"v{F0}")
    a(f"v_mul_f32 v33, v33, v{F0}")
    round_bf16(a, "v33")
    stamp(2)
    a(f"s_sub_u32 s10, s79, {args.red_t2}")
    a.label("LR_w2")
    a("s_sleep 4")
    a("ds_read_b32 v17, v16")
    a("s_waitcnt lgkmcnt(0)")
    a("v_readfirstlane_b32 s4, v17")
    a("s_cmp_lt_u32 s4, s10")
    a("s_cbranch_scc1 LR_w2")
    a(f"s_mov_b32 s9, {args.red_tmo}")
    a(f"s_setprio {args.red_prio}")
    stamp(3)
    if args.red_a:
        a.label("LR_a")
        a("buffer_load_dwordx2 v[36:37], v7, s[44:47], s11 offen sc1")
        a("s_sub_u32 s9, s9, 1")
        a("s_waitcnt vmcnt(0)")
        a("v_max_u32 v38, v36, v37")
        a("v_cmp_eq_u32 s[32:33], -1, v38")
        a("s_cmp_eq_u32 s9, 0")
        a("s_cbranch_scc1 LR_ae")
        a("s_bcnt1_i32_b64 s4, s[32:33]")
        a(f"s_cmp_gt_u32 s4, {64 - args.red_a}")
        a("s_cbranch_scc1 LR_a")
        a.label("LR_ae")
        a(f"s_mov_b32 s9, {args.red_tmo}")
    stamp(4)
    a.label("LR_p")
    a("s_or_b64 exec, s[32:33], 1")
    a("buffer_load_dwordx2 v[36:37], v7, s[44:47], s11 offen sc1")
    for i in range(8):
        a(f"s_or_b64 exec, s[{16+2*i}:{17+2*i}], 1")
        a(f"buffer_load_dwordx4 v[{Y0+4*i}:{Y0+4*i+3}], v3, s[44:47], s{70+i} offen sc1")
    a("s_mov_b64 exec, -1")
    a("s_sub_u32 s9, s9, 1")
    a("s_waitcnt vmcnt(8)")
    a("v_max_u32 v38, v36, v37")
    a("v_mov_b32_dpp v39, v36 quad_perm:[1,0,3,2] row_mask:0xf bank_mask:0xf")
    a("v_cmp_eq_u32 s[32:33], -1, v38")
    a("v_max_f32 v39, v36, v39")
    a("v_sub_f32 v38, v36, v39")
    a("v_mul_f32 v38, s69, v38")
    a("v_exp_f32 v38, v38")
    a("v_mul_f32 v38, v38, v37")
    a("v_add_f32_dpp v39, v38, v38 quad_perm:[1,0,3,2] row_mask:0xf bank_mask:0xf")
    a("v_rcp_f32 v39, v39")
    a("v_mul_f32 v38, v38, v39")
    for i in range(8):
        a(f"ds_bpermute_b32 v{WT+i}, v2, v38 offset:{32*i}")
    a("s_mov_b64 s[34:35], s[32:33]")
    for i in range(8):
        y = Y0 + 4 * i
        a(f"s_waitcnt vmcnt({7-i})")
        a(f"v_max3_u32 v38, v{y}, v{y+1}, v{y+2}")
        a(f"v_max_u32 v38, v38, v{y+3}")
        a(f"v_cmp_eq_u32 s[{16+2*i}:{17+2*i}], -1, v38")
        if i == 0:
            a("s_waitcnt lgkmcnt(0)")
        o = AC + 4 * (i & 1)
        for c in range(4):
            if i < 2:
                a(f"v_mul_f32 v{o+c}, v{WT+i}, v{y+c}")
            else:
                a(f"v_fmac_f32 v{o+c}, v{WT+i}, v{y+c}")
        a(f"s_or_b64 s[34:35], s[34:35], s[{16+2*i}:{17+2*i}]")
    for c in range(4):
        a(f"v_add_f32 v{AC+c}, v{AC+c}, v{AC+4+c}")
    a("s_cmp_eq_u32 s9, 0")
    a("s_cselect_b64 s[34:35], 0, s[34:35]")
    red4(AC)
    a("s_cmp_eq_u64 s[34:35], 0")
    a("s_cselect_b64 s[38:39], s[36:37], 0")
    round_bf16(a, f"v{AC}")
    a(f"v_mul_f32 v{AC}, v32, v{AC}")
    round_bf16(a, f"v{AC}")
    a(f"v_add_f32 v{AC}, v{AC}, v33")
    a(f"v_cvt_pk_bf16_f32 v{AC}, v{AC}, v{AC}")
    a("s_mov_b64 exec, s[38:39]")
    a(f"buffer_store_short v{AC}, v4, s[60:63], s13 offen")
    a("s_cbranch_scc0 LR_p")
    a("s_mov_b64 exec, -1")
    stamp(5)
    a("s_branch LA_end2")


def probe_kernel(a, args):
    a.raw(".globl probe_kernel\n.p2align 8\n.type probe_kernel,@function")
    a.label("probe_kernel")
    a("s_cmp_ge_u32 s2, 1")
    a("s_cbranch_scc1 LP_end")
    a("s_load_dwordx16 s[16:31], s[0:1], 0")
    a("s_load_dwordx2 s[40:41], s[0:1], 96")
    a("s_mov_b32 s46, 0x08000000")
    a("s_mov_b32 s47, 0x20000")
    a("s_mov_b32 s62, 4096")
    a("s_mov_b32 s63, 0x20000")
    a("v_mov_b32 v1, 0")
    a("s_mov_b64 exec, 1")
    a("s_waitcnt lgkmcnt(0)")
    a(f"s_add_u32 s60, s40, {3<<20}")
    a("s_addc_u32 s61, s41, 0")
    n = 0
    for base in (18, 20):
        a(f"s_mov_b32 s44, s{base}")
        a(f"s_mov_b32 s45, s{base+1}")
        for i in range(8):
            off = i * (16 << 20) + (8 << 20) + 0x12300
            a(f"s_mov_b32 s10, {off}")
            a(f"buffer_load_dword v2, v1, s[44:47], s10 offen {args.probe_pol}")
            a("s_waitcnt vmcnt(0)")
            a("v_mov_b32 v3, 0")
            for r in range(4):
                a(f"s_add_u32 s10, s10, {0x4d00}")
                a("s_memtime s[12:13]")
                a("s_waitcnt lgkmcnt(0)")
                a(f"buffer_load_dword v2, v1, s[44:47], s10 offen {args.probe_pol}")
                a("s_waitcnt vmcnt(0)")
                a("s_memtime s[14:15]")
                a("s_waitcnt lgkmcnt(0)")
                a("s_sub_u32 s14, s14, s12")
                a("v_add_u32 v3, s14, v3")
            a(f"buffer_store_dword v3, v1, s[60:63], 0 offen offset:{4*n}")
            n += 1
    a.label("LP_end")
    a("s_endpgm")


def fin_kernel(a, args):
    a.raw(".globl fin_kernel\n.p2align 8\n.type fin_kernel,@function")
    a.label("fin_kernel")
    a("s_cmp_ge_u32 s2, 64")
    a("s_cbranch_scc1 LB_end")
    if args.probe == 2:
        a("s_cmp_lg_u32 s2, 0")
        a("s_cbranch_scc1 LB_nodiag")
        a("s_memrealtime s[20:21]")
        a("s_load_dwordx4 s[4:7], s[0:1], 88")
        a("s_mov_b32 s46, 0x100000")
        a("s_mov_b32 s47, 0x20000")
        a("s_mov_b32 s50, 64")
        a("s_mov_b32 s51, 0x20000")
        a("s_waitcnt lgkmcnt(0)")
        a(f"s_add_u32 s44, s6, {4<<20}")
        a("s_addc_u32 s45, s7, 0")
        a("s_mov_b32 s48, s4")
        a("s_mov_b32 s49, s5")
        a("v_mul_u32_u24 v1, 640, v0")
        a("v_mov_b32 v2, 0")
        a("buffer_load_dword v3, v2, s[44:47], 0 offen")
        for k in range(6):
            a(f"buffer_load_dword v{4+k}, v1, s[44:47], 0 offen offset:{8*k}")
        a("buffer_load_dword v10, v1, s[44:47], 0 offen offset:104")
        a("s_waitcnt vmcnt(0)")
        a("v_mov_b32 v12, 0x10000")
        for k in range(7):
            a(f"v_sub_u32 v{4+k}, v{4+k}, v3")
            a(f"v_add_u32 v{4+k}, 1000, v{4+k}")
            a(f"buffer_atomic_umax v{4+k}, v2, s[48:51], 0 offen offset:{8*k}")
            a(f"v_sub_u32 v11, v12, v{4+k}")
            a(f"buffer_atomic_umax v11, v2, s[48:51], 0 offen offset:{8*k+4}")
        a("v_sub_u32 v4, s20, v3")
        a("v_add_u32 v4, 1000, v4")
        a("buffer_atomic_umax v4, v2, s[48:51], 0 offen offset:56")
        a("s_waitcnt vmcnt(0)")
        a.label("LB_nodiag")
    a("s_load_dwordx2 s[16:17], s[0:1], 0")
    a("s_load_dwordx4 s[32:35], s[0:1], 72")
    a("s_load_dwordx2 s[40:41], s[0:1], 96")
    a("s_lshr_b32 s7, s2, 4")
    a("s_and_b32 s8, s2, 15")
    a("s_mov_b32 s42, 0xffff0000")
    a(f"s_mov_b32 s69, {LOG2E:#x}")
    for r in (47, 51, 55, 59, 63):
        a(f"s_mov_b32 s{r}, 0x20000")
    a(f"s_mov_b32 s46, {WS_STATS + 2048}")
    a(f"s_mov_b32 s50, {NFFN*8192}")
    a("s_mov_b32 s54, 4096")
    a("s_mov_b32 s58, 1024")
    a("s_mov_b32 s62, 4096")
    a("v_lshrrev_b32 v1, 3, v0")
    a("v_and_b32 v2, 7, v0")
    a("v_lshlrev_b32 v3, 11, v1")
    a("v_lshl_add_u32 v3, v2, 4, v3")
    a("v_lshrrev_b32 v4, 1, v1")
    a("v_lshlrev_b32 v4, 4, v4")
    a("v_lshlrev_b32 v5, 13, v1")
    a("v_lshl_add_u32 v5, v2, 4, v5")
    a("v_lshlrev_b32 v6, 2, v0")
    a("s_lshl_b32 s4, s7, 17")
    a("s_lshl_b32 s5, s8, 7")
    a("s_add_u32 s4, s4, s5")
    a("s_add_u32 s10, s4, 65536")
    a("s_lshl_b32 s11, s7, 9")
    a(f"s_add_u32 s11, s11, {WS_STATS}")
    a("s_lshl_b32 s12, s7, 11")
    a("s_add_u32 s12, s12, s5")
    a("s_add_u32 s13, s12, 0x40000")
    a("s_add_u32 s14, s12, 0x80000")
    a("s_lshl_b32 s15, s7, 10")
    a("s_waitcnt lgkmcnt(0)")
    a("s_mov_b32 s44, s40")
    a("s_mov_b32 s45, s41")
    a(f"s_add_u32 s48, s40, {WS_F}")
    a("s_addc_u32 s49, s41, 0")
    a("s_mov_b32 s52, s16")
    a("s_mov_b32 s53, s17")
    a("s_mov_b32 s56, s32")
    a("s_mov_b32 s57, s33")
    a("s_mov_b32 s60, s34")
    a("s_mov_b32 s61, s35")
    a("buffer_load_dwordx4 v[8:11], v4, s[44:47], s11 offen")
    a("buffer_load_dwordx4 v[12:15], v4, s[44:47], s11 offen offset:256")
    a("buffer_load_dword v36, v6, s[52:55], s15 offen")
    a("buffer_load_dword v37, v6, s[56:59], 0 offen")
    a("buffer_load_dwordx4 v[16:19], v3, s[44:47], s4 offen")
    a("buffer_load_dwordx4 v[20:23], v3, s[44:47], s10 offen")
    a("buffer_load_dwordx4 v[24:27], v5, s[48:51], s12 offen")
    a("buffer_load_dwordx4 v[28:31], v5, s[48:51], s13 offen")
    a("buffer_load_dwordx4 v[32:35], v5, s[48:51], s14 offen")
    a("v_and_b32 v7, 1, v1")
    a("v_cmp_eq_u32 vcc, 1, v7")
    a("s_waitcnt vmcnt(7)")
    for k, sb in enumerate((8, 12)):
        w = f"v{38+k}"
        a(f"v_max_f32 v40, v{sb}, v{sb+2}")
        a(f"v_sub_f32 v{sb}, v{sb}, v40")
        a(f"v_sub_f32 v{sb+2}, v{sb+2}, v40")
        a(f"v_mul_f32 v{sb}, s69, v{sb}")
        a(f"v_mul_f32 v{sb+2}, s69, v{sb+2}")
        a(f"v_exp_f32 v{sb}, v{sb}")
        a(f"v_exp_f32 v{sb+2}, v{sb+2}")
        a(f"v_mul_f32 v{sb}, v{sb}, v{sb+1}")
        a(f"v_mul_f32 v{sb+2}, v{sb+2}, v{sb+3}")
        a(f"v_add_f32 v40, v{sb}, v{sb+2}")
        a("v_rcp_f32 v40, v40")
        a(f"v_cndmask_b32 {w}, v{sb}, v{sb+2}, vcc")
        a(f"v_mul_f32 {w}, {w}, v40")
    a("s_waitcnt vmcnt(5)")
    a("v_lshlrev_b32 v40, 16, v36")
    a("v_and_b32 v41, s42, v36")
    a("v_lshlrev_b32 v42, 16, v37")
    a("v_and_b32 v43, s42, v37")
    a("v_mul_f32 v40, v40, v42")
    a("v_mul_f32 v41, v41, v43")
    round_bf16(a, "v40")
    round_bf16(a, "v41")
    a("v_add_f32 v40, v40, v41")
    for r in (1, 2, 4, 8):
        a(f"v_add_f32_dpp v40, v40, v40 row_ror:{r} row_mask:0xf bank_mask:0xf")
    for g in range(4):
        a(f"v_readlane_b32 s{80+g}, v40, {16*g}")
    a("v_mov_b32 v40, s80")
    a("v_add_f32 v40, s81, v40")
    a("v_add_f32 v40, s82, v40")
    a("v_add_f32 v40, s83, v40")
    a("v_lshrrev_b32 v41, 6, v0")
    a("v_lshlrev_b32 v42, 2, v41")
    a("ds_write_b32 v42, v40 offset:1024")
    a("s_waitcnt vmcnt(3)")
    for k in range(4):
        a(f"v_mul_f32 v{16+k}, v38, v{16+k}")
        a(f"v_fmac_f32 v{16+k}, v39, v{20+k}")
    a("s_waitcnt vmcnt(0)")
    for k in range(4):
        a(f"v_add_f32 v{24+k}, v{24+k}, v{28+k}")
        a(f"v_add_f32 v{24+k}, v{24+k}, v{32+k}")
    for k in range(4):
        a(f"v_permlane32_swap_b32 v{16+k}, v{24+k}")
    for k in range(4):
        a(f"v_add_f32 v{16+k}, v{16+k}, v{24+k}")
    a("v_permlane16_swap_b32 v16, v17")
    a("v_permlane16_swap_b32 v18, v19")
    a("v_add_f32 v16, v16, v17")
    a("v_add_f32 v18, v18, v19")
    a("v_add_f32_dpp v16, v16, v16 row_ror:8 row_mask:0xf bank_mask:0xf")
    a("v_add_f32_dpp v18, v18, v18 row_ror:8 row_mask:0xf bank_mask:0xf")
    a("v_bfe_u32 v43, v0, 5, 1")
    a("v_lshlrev_b32 v43, 7, v43")
    a("v_lshl_add_u32 v43, v41, 8, v43")
    a("v_lshl_add_u32 v43, v2, 4, v43")
    a("v_bfe_u32 v44, v0, 4, 1")
    a("v_lshl_add_u32 v43, v44, 2, v43")
    a("ds_write_b32 v43, v16")
    a("ds_write_b32 v43, v18 offset:8")
    a("s_waitcnt lgkmcnt(0)")
    a("s_barrier")
    a("v_cmp_gt_u32 vcc, 32, v0")
    a("s_and_saveexec_b64 s[84:85], vcc")
    a("s_cbranch_execz LB_end")
    a("v_mov_b32 v1, 0")
    for w in range(4):
        a(f"ds_read_b32 v{8+w}, v6 offset:{256*w}")
        a(f"ds_read_b32 v{12+w}, v6 offset:{256*w+128}")
    a("ds_read_b128 v[16:19], v1 offset:1024")
    a("s_waitcnt lgkmcnt(0)")
    a("v_add_f32 v8, v8, v9")
    a("v_add_f32 v10, v10, v11")
    a("v_add_f32 v12, v12, v13")
    a("v_add_f32 v14, v14, v15")
    a("v_add_f32 v16, v16, v17")
    a("v_add_f32 v18, v18, v19")
    a("v_add_f32 v8, v8, v10")
    a("v_add_f32 v12, v12, v14")
    a("v_add_f32 v16, v16, v18")
    round_bf16(a, "v8")
    round_bf16(a, "v12")
    round_bf16(a, "v16")
    a("v_mul_f32 v16, s69, v16")
    a("v_exp_f32 v16, -v16")
    a("v_add_f32 v16, 1.0, v16")
    a("v_rcp_f32 v16, v16")
    round_bf16(a, "v16")
    a("v_sub_f32 v17, 1.0, v16")
    round_bf16(a, "v17")
    a("v_mul_f32 v8, v16, v8")
    a("v_mul_f32 v12, v17, v12")
    round_bf16(a, "v8")
    round_bf16(a, "v12")
    a("v_add_f32 v8, v8, v12")
    a("v_cvt_pk_bf16_f32 v8, v8, v8")
    a("v_lshlrev_b32 v1, 1, v0")
    a("s_lshl_b32 s4, s7, 10")
    a("s_lshl_b32 s5, s8, 6")
    a("s_add_u32 s4, s4, s5")
    a("buffer_store_short v8, v1, s[60:63], s4 offen")
    if args.probe == 1:
        a("s_cmp_lg_u32 s2, 0")
        a("s_cbranch_scc1 LB_end")
        a("s_load_dwordx2 s[4:5], s[0:1], 88")
        a(f"s_add_u32 s44, s40, {3<<20}")
        a("s_addc_u32 s45, s41, 0")
        a("s_mov_b32 s46, 64")
        a("s_mov_b32 s50, 64")
        a("buffer_load_dword v8, v6, s[44:47], 0 offen")
        a("s_waitcnt vmcnt(0) lgkmcnt(0)")
        a("s_mov_b32 s48, s4")
        a("s_mov_b32 s49, s5")
        a("buffer_store_dword v8, v6, s[48:51], 0 offen")
    a.label("LB_end")
    a("s_endpgm")


if __name__ == "__main__":
    ap = argparse.ArgumentParser()
    ap.add_argument("-o", default="v2.s")
    ap.add_argument("--ts", type=int, default=0)
    ap.add_argument("--slots", type=int, default=16)
    ap.add_argument("--inflight", type=int, default=24)
    ap.add_argument("--wo_at", type=int, default=1)
    ap.add_argument("--wo_npj", type=int, default=2)
    ap.add_argument("--fd", type=int, default=2)
    ap.add_argument("--pf", type=int, default=1)
    ap.add_argument("--coop", type=int, default=0)
    ap.add_argument("--wnt", type=int, default=1)
    ap.add_argument("--cnt", type=int, default=1)
    ap.add_argument("--dshift", type=int, default=4)
    ap.add_argument("--prep_at", type=int, default=11)
    ap.add_argument("--warm", type=int, default=12)
    ap.add_argument("--map", default="xcd")
    ap.add_argument("--ffn_wait", type=int, default=1)
    ap.add_argument("--tk", type=int, default=1)
    ap.add_argument("--warmfin", type=int, default=0)
    ap.add_argument("--early", type=int, default=0)
    ap.add_argument("--early_code", type=int, default=1)
    ap.add_argument("--nspec", type=int, default=3)
    ap.add_argument("--lost_sleep", type=int, default=12)
    ap.add_argument("--probe", type=int, default=0)
    ap.add_argument("--probe_pol", default="nt")
    ap.add_argument("--kp", default="nt")
    ap.add_argument("--vp", default="nt")
    ap.add_argument("--rate", type=int, default=33)
    ap.add_argument("--glob", type=float, default=0)
    ap.add_argument("--xbias", type=float, default=0)
    ap.add_argument("--monx", type=int, default=0)
    ap.add_argument("--bstride", type=int, default=4352)
    ap.add_argument("--monld", default="sc1")
    ap.add_argument("--shard", default="xcd")
    ap.add_argument("--mon", type=int, default=0)
    ap.add_argument("--mon_stop", type=int, default=6)
    ap.add_argument("--lv", default="16,12,22,30,40")
    ap.add_argument("--th", default="-4,0,2,4")
    ap.add_argument("--end_code", type=int, default=0)
    ap.add_argument("--deepcls", type=int, default=0)
    ap.add_argument("--inf2", type=int, default=0)
    ap.add_argument("--deep_at", type=int, default=24)
    ap.add_argument("--tkmap", type=int, default=0)
    ap.add_argument("--fuse", type=int, default=0)
    ap.add_argument("--tail2", type=int, default=0)
    ap.add_argument("--yx4", type=int, default=0)
    ap.add_argument("--red_t1", type=int, default=24)
    ap.add_argument("--red_t2", type=int, default=6)
    ap.add_argument("--red_a", type=int, default=24)
    ap.add_argument("--red_prio", type=int, default=2)
    ap.add_argument("--red_tmo", type=int, default=2000)
    args = ap.parse_args()
    open(args.o, "w").write(gen(args))
```

```python
import sys, argparse
sys.path.insert(0, "work")
from asmlib import Asm

HEADER = open("gated_mix__gqa_block_cached__glu_gated_glu__decode.s.ref").read().split("; Override launch")[0]

WS_Y = 0
WS_STATS = 512 * 1024
WS_F = 1024 * 1024
NFFN = 86
WS_BOARD = 2 * 1024 * 1024
WS_H = WS_F + 65536

LOG2E = 0x3FB8AA3B
SCALE = 0x3DB504F3


def round_bf16(a, v):
    a(f"v_cvt_pk_bf16_f32 {v}, {v}, {v}")
    a(f"v_and_b32 {v}, s42, {v}")


def gen(args):
    a = Asm()
    NS = args.slots
    NJ = 128
    wnt = " nt" if args.wnt else ""
    cnt = " nt" if args.cnt else ""
    DS = args.dshift
    INF = args.inflight
    INF2 = args.inf2 or INF
    RING = NS * 8192
    LV = [int(x) for x in args.lv.split(",")]
    TH = [float(x) for x in args.th.split(",")]
    C_LANDED = RING
    C_DONE = RING + 4
    C_BAR = RING + 64
    C_DEPTH = RING + 128
    L_QP = RING + 256
    L_OP = L_QP
    L_ST = L_OP + 4096
    C_TK = L_ST + 128
    L_QQ = L_ST + 256
    L_XT = L_QQ + 2048
    LDS_A = L_XT + 8192
    L_Y = 0
    assert LDS_A <= 163840
    W0, KB, VB, T0 = 40, 104, 120, 24
    ACC, Q = 8, 4
    P, M, L = 16, 17, 18
    VRED = 19
    VZ = 136
    VBASE = 137
    VDONE = 138
    VCNT = 139

    def Wr(i): return f"v[{W0+4*i}:{W0+4*i+3}]"

    def stamp(k, mode=1):
        if args.ts and (mode == args.ts or k in (0, 1, 5)):
            a(f"s_memrealtime s[{84+2*k}:{85+2*k}]")

    def stamp_store():
        if args.ts:
            a("s_mov_b64 exec, 1")
            a("s_mul_i32 s4, s2, 10")
            a("s_add_u32 s4, s4, s3")
            a("s_lshl_b32 s4, s4, 6")
            a(f"s_add_u32 s60, s40, {4<<20}")
            a("s_addc_u32 s61, s41, 0")
            a("s_mov_b32 s62, 0x100000")
            a("s_mov_b32 s63, 0x20000")
            a("v_mov_b32 v2, 0")
            a("s_getreg_b32 s96, hwreg(HW_REG_XCC_ID)")
            a("s_getreg_b32 s97, hwreg(HW_REG_HW_ID)")
            a("s_waitcnt lgkmcnt(0)")
            for k in range(7):
                a(f"v_mov_b32 v4, s{84+2*k}")
                a(f"v_mov_b32 v5, s{85+2*k}")
                a(f"buffer_store_dwordx2 v[4:5], v2, s[60:63], s4 offen offset:{8*k}")
                a.nop(2)

    def lds_barrier(k, tag, cnt=8):
        a("s_waitcnt lgkmcnt(0)")
        a("s_mov_b64 exec, 1")
        a(f"ds_add_u32 v{VZ}, v{VCNT} offset:{C_BAR - RING + 4*k}")
        a("s_mov_b64 exec, -1")
        a.label(f"LB_spin{tag}")
        a(f"ds_read_b32 v23, v{VZ} offset:{C_BAR - RING + 4*k}")
        a("s_waitcnt lgkmcnt(0)")
        a("v_readfirstlane_b32 s14, v23")
        a(f"s_cmp_lt_u32 s14, {cnt}")
        a(f"s_cbranch_scc1 LB_spin{tag}")

    a.raw(HEADER.rstrip("\n"))
    if args.probe == 1:
        a.raw("; @launch kernel=probe_kernel grid=(1,1,1) block=(64,1,1) lds=0")
    a.raw(f"; @launch kernel=attn_kernel grid=(256,1,1) block=({704 if args.mon else 640},1,1) lds={LDS_A}")
    if not args.fuse:
        a.raw("; @launch kernel=fin_kernel grid=(64,1,1) block=(256,1,1) lds=2048")
    a.raw('.amdgcn_target "amdgcn-amd-amdhsa--gfx950"')
    a.raw(".text")
    a.raw(".globl attn_kernel\n.p2align 8\n.type attn_kernel,@function")
    a.label("attn_kernel")
    a("s_cmp_ge_u32 s2, 256")
    a("s_cbranch_scc1 LA_end")
    a("s_load_dwordx16 s[16:31], s[0:1], 0")
    a("s_load_dwordx8 s[32:39], s[0:1], 64")
    a("s_load_dwordx2 s[40:41], s[0:1], 96")
    stamp(0)
    a("v_lshrrev_b32 v1, 6, v0")
    a("v_readfirstlane_b32 s3, v1")
    def vid(dst, x, t, tmp):
        a(f"s_bfe_u32 {dst}, {t}, 0x20001")
        a(f"s_lshl_b32 {dst}, {dst}, 3")
        a(f"s_or_b32 {dst}, {dst}, {x}")
        a(f"s_and_b32 {tmp}, {t}, 1")
        a(f"s_lshl_b32 {tmp}, {tmp}, 5")
        a(f"s_or_b32 {dst}, {dst}, {tmp}")
        a(f"s_lshr_b32 {tmp}, {t}, 3")
        a(f"s_lshl_b32 {tmp}, {tmp}, 6")
        a(f"s_or_b32 {dst}, {dst}, {tmp}")

    def sync(tag):
        a("s_cmp_lg_u32 s77, 0")
        a(f"s_cbranch_scc1 LA_synced{tag}")
        a(f"v_mov_b32 v4, {C_TK}")
        a("s_barrier")
        a("ds_read_b32 v5, v4")
        a("s_mov_b32 s77, 1")
        a("s_waitcnt lgkmcnt(0)")
        a("v_readfirstlane_b32 s4, v5")
        a("s_cmp_eq_u32 s4, s2")
        a(f"s_cbranch_scc1 LA_synced{tag}")
        a("s_mov_b32 s2, s4")
        a("s_branch LA_tk_done")
        a.label(f"LA_synced{tag}")

    if args.tk == 2:
        a("s_getreg_b32 s72, hwreg(HW_REG_XCC_ID)")
        a("s_getreg_b32 s4, hwreg(HW_REG_HW_ID)")
        a("s_and_b32 s72, s72, 7")
        a("s_bfe_u32 s73, s4, 0x2000d")
        a("s_lshl_b32 s73, s73, 3")
        a("s_bfe_u32 s4, s4, 0x30008")
        a("s_add_u32 s4, s4, s73")
        a("s_lshl_b32 s74, 1, s4")
        vid("s2", "s72", "s4", "s5")
        a("s_mov_b32 s77, 0")
        a("s_cmp_eq_u32 s3, 0")
        a("s_cbranch_scc1 LA_tk_done")
    elif args.tk:
        a("s_cmp_eq_u32 s3, 0")
        a("s_cbranch_scc1 LA_tk")
    if args.pf:
        a("s_getpc_b64 s[64:65]")
        a.label("LA_pc")
        a("s_mov_b32 s66, LB_end-LA_pc")
        a("s_mov_b32 s67, 0x20000")
        a("v_lshlrev_b32 v2, 6, v0")
        a("buffer_load_dword v39, v2, s[64:67], 0 offen")
    a("v_and_b32 v0, 63, v0")
    a("v_lshlrev_b32 v3, 2, v0")
    a("v_mov_b32 v2, 0")
    a(f"v_add_u32 v3, {RING}, v3")
    a("ds_write_b32 v3, v2")
    if args.tk == 2:
        a.label("LA_tk_done")
        a("s_cmp_ge_u32 s2, 256")
        a("s_cbranch_scc1 LA_end")
    elif args.tk:
        a(f"v_mov_b32 v4, {C_TK}")
        a("s_waitcnt lgkmcnt(0)")
        a("s_barrier")
        a("ds_read_b32 v5, v4")
        a("s_waitcnt lgkmcnt(0)")
        a("v_readfirstlane_b32 s2, v5")
        a("s_branch LA_tk_done")
        a.label("LA_tk")
        a("s_getreg_b32 s4, hwreg(HW_REG_XCC_ID)")
        a("s_and_b32 s4, s4, 7")
        a("s_movk_i32 s62, 256")
        a("s_mov_b32 s63, 0x20000")
        a("s_mov_b32 s9, 0")
        a(f"v_mov_b32 v6, {C_TK}")
        a("s_mov_b64 exec, 1")
        a("s_waitcnt lgkmcnt(0)")
        a("s_mov_b32 s60, s38")
        a("s_mov_b32 s61, s39")
        a.label("LA_tk_loop")
        a("s_lshl_b32 s5, s4, 5")
        a("v_mov_b32 v4, 1")
        a("v_mov_b32 v5, s5")
        a("buffer_atomic_add v4, v5, s[60:63], 0 offen sc0")
        a("s_waitcnt vmcnt(0)")
        a("v_readfirstlane_b32 s5, v4")
        a("s_cmp_lt_u32 s5, 32")
        a("s_cbranch_scc1 LA_tk_got")
        a("s_add_u32 s4, s4, 1")
        a("s_and_b32 s4, s4, 7")
        a("s_add_u32 s9, s9, 1")
        a("s_cmp_lt_u32 s9, 8")
        a("s_cbranch_scc1 LA_tk_loop")
        a("s_movk_i32 s5, 64")
        a.label("LA_tk_got")
        a("s_and_b32 s2, s5, 3")
        a(f"s_lshl_b32 s2, s2, {6 if args.tkmap else 3}")
        a("s_or_b32 s2, s2, s4")
        a("s_bfe_u32 s4, s5, 0x10004")
        a("s_lshl_b32 s4, s4, 5")
        a("s_or_b32 s2, s2, s4")
        a("s_bfe_u32 s4, s5, 0x20002")
        a(f"s_lshl_b32 s4, s4, {3 if args.tkmap else 6}")
        a("s_or_b32 s2, s2, s4")
        a("s_and_b32 s4, s5, 64")
        a("s_lshl_b32 s4, s4, 2")
        a("s_or_b32 s2, s2, s4")
        a("v_mov_b32 v4, s2")
        a("ds_write_b32 v6, v4")
        a("s_mov_b64 exec, -1")
        a("s_waitcnt lgkmcnt(0)")
        a("s_barrier")
        a.label("LA_tk_done")
        a("s_cmp_ge_u32 s2, 256")
        a("s_cbranch_scc1 LA_end")
    if args.map == "pair":
        a("s_lshr_b32 s4, s2, 1")
        a("s_and_b32 s5, s4, 3")
        a("s_lshl_b32 s5, s5, 3")
        a("s_bfe_u32 s6, s4, 0x30002")
        a("s_add_u32 s6, s6, s5")
        a("s_lshr_b32 s7, s4, 5")
        a("s_and_b32 s8, s2, 1")
    else:
        a("s_and_b32 s4, s2, 7")
        a("s_bfe_u32 s6, s2, 0x20003")
        a("s_lshl_b32 s4, s4, 2")
        a("s_add_u32 s6, s6, s4")
        a("s_lshr_b32 s7, s2, 6")
        a("s_bfe_u32 s8, s2, 0x10005")
    a("s_lshl_b32 s5, s7, 5")
    a("s_add_u32 s5, s5, s6")
    a(f"s_cmp_lt_u32 s5, {NFFN}")
    a(f"s_cselect_b32 s4, {DS}, 0")
    a(f"s_sub_u32 s78, {NJ}, s4")
    a(f"s_add_u32 s79, s4, {NJ}")
    a("s_cmp_eq_u32 s8, 0")
    a("s_cselect_b32 s79, s78, s79")
    a("s_cselect_b32 s78, 0, s78")
    a("v_lshlrev_b32 v1, 4, v0")
    a("s_mov_b32 s47, 0x20000")
    a("s_mov_b32 s51, 0x20000")
    if not args.tk:
        a("s_waitcnt lgkmcnt(0)")
        a("s_barrier")
    if args.tk == 2:
        a("s_waitcnt lgkmcnt(0)")
    stamp(2, 2)
    a("s_cmp_lg_u32 s3, 0")
    a("s_cbranch_scc1 LA_cons")
    a("s_setprio 3")
    if args.tk == 2:
        a("s_mov_b32 s60, s38")
        a("s_mov_b32 s61, s39")
        a("s_movk_i32 s62, 256")
        a("s_mov_b32 s63, 0x20000")
        a("s_movk_i32 s76, -1")
        a("s_cmp_lg_u32 s77, 0")
        a("s_cbranch_scc1 LL_noclaim")
        a("s_lshl_b32 s4, s72, 5")
        a("v_mov_b32 v9, s4")
        a("v_mov_b32 v10, s74")
        a("s_mov_b64 exec, 1")
        a("buffer_atomic_or v10, v9, s[60:63], 0 offen sc0")
        a("s_mov_b64 exec, -1")
        a(f"s_mov_b32 s76, {args.nspec}")
        a.label("LL_noclaim")
    a("s_lshl_b32 s10, s5, 20")
    a("s_lshl_b32 s4, s78, 12")
    a("s_add_u32 s10, s10, s4")
    a("s_mov_b32 s44, s18")
    a("s_mov_b32 s45, s19")
    a("s_mov_b32 s46, 0x08000000")
    a("s_mov_b32 s48, s20")
    a("s_mov_b32 s49, s21")
    a("s_mov_b32 s50, 0x08000000")
    a("s_mov_b32 s12, 0")
    a("s_mov_b32 s13, 0")
    a("s_mov_b32 s9, 0")
    a(f"v_mov_b32 v4, {C_LANDED}")
    a(f"s_movk_i32 s15, {NS}")
    a(f"s_sub_u32 s11, s79, {args.deep_at}")
    a("s_mov_b32 s64, 0")
    if args.deepcls:
        a("s_bfe_u32 s4, s2, 0x20003")
        a("s_cmp_eq_u32 s4, 1")
        a("s_cselect_b32 s11, 0, s11")
    a.label("LL_loop")
    a("s_mov_b32 m0, s12")
    a("s_add_u32 s14, s12, 4096")
    for i in range(4):
        a(f"buffer_load_dwordx4 v1, s[44:47], s10 offen offset:{1024*i} {args.kp} lds")
    a("s_mov_b32 m0, s14")
    a("s_add_u32 s12, s12, 8192")
    for i in range(4):
        a(f"buffer_load_dwordx4 v1, s[48:51], s10 offen offset:{1024*i} {args.vp} lds")
    a(f"s_cmp_eq_u32 s12, {RING}")
    a("s_cselect_b32 s12, 0, s12")
    a("s_add_u32 s10, s10, 4096")
    a("s_add_u32 s13, s13, 1")
    if args.tk == 2:
        a("s_cmp_le_i32 s13, s76")
        a("s_cbranch_scc1 LL_resolve")
        a.label("LL_resolved")
    if args.ts == 3:
        for k, x in ((1, 16), (2, 32), (3, 64), (4, 96)):
            a(f"s_cmp_lg_u32 s13, {x}")
            a(f"s_cbranch_scc1 LL_ns{k}")
            a(f"s_memrealtime s[{84+2*k}:{85+2*k}]")
            a.label(f"LL_ns{k}")
    a(f"s_sub_u32 s14, s13, {NS}")
    a("s_and_b32 s5, s14, 7")
    a("s_lshl_b32 s5, s5, 2")
    a(f"s_add_u32 s5, s5, {C_DONE}")
    a("v_mov_b32 v5, s5")
    if args.mon:
        a("ds_read_b32 v7, v5")
        a(f"ds_read_b32 v8, v4 offset:{C_DEPTH - C_LANDED}")
        if args.deep_at:
            a("s_cmp_ge_u32 s13, s11")
            a(f"s_cselect_b32 s4, {args.end_code}, 0")
            a("s_max_u32 s64, s64, s4")
        if args.early:
            a(f"s_cmp_lt_u32 s13, {args.early}")
            a(f"s_cselect_b32 s4, {args.early_code}, 0")
            a("s_max_u32 s64, s64, s4")
        order = list(range(len(LV)))
        for n, code in enumerate(order):
            N = LV[code]
            if n < len(order) - 1:
                a(f"s_cmp_lg_u32 s64, {code}")
                a(f"s_cbranch_scc1 LL_lv{n+1}")
            a(f"s_sub_u32 s4, s13, {(N + 7)//8}")
            a("s_max_i32 s9, s9, s4")
            a("v_mov_b32 v6, s9")
            a(f"s_waitcnt vmcnt({N})")
            if n < len(order) - 1:
                a("s_branch LL_pub")
                a.label(f"LL_lv{n+1}")
        a.label("LL_pub")
        a("s_waitcnt lgkmcnt(0)")
        a("v_readfirstlane_b32 s64, v8")
    else:
        if INF2 != INF:
            a("s_cmp_ge_u32 s13, s11")
            a("s_cbranch_scc1 LL_deep")
        a(f"s_sub_u32 s4, s13, {INF//8 - 1}")
        a("s_max_i32 s9, s9, s4")
        a("v_mov_b32 v6, s9")
        a("ds_read_b32 v7, v5")
        a(f"s_waitcnt vmcnt({INF-8})")
        if INF2 != INF:
            a("s_branch LL_pub")
            a.label("LL_deep")
            a(f"s_sub_u32 s4, s13, {INF2//8 - 1}")
            a("s_max_i32 s9, s9, s4")
            a("v_mov_b32 v6, s9")
            a("ds_read_b32 v7, v5")
            a(f"s_waitcnt vmcnt({INF2-8})")
            a.label("LL_pub")
    a("ds_write_b32 v4, v6")
    a("s_cmp_ge_u32 s13, s79")
    a("s_cbranch_scc1 LL_fin")
    a("s_cmp_lt_u32 s13, s15")
    a("s_cbranch_scc1 LL_loop")
    a("s_lshr_b32 s14, s14, 3")
    if not args.mon:
        a("s_waitcnt lgkmcnt(0)")
    a("v_readfirstlane_b32 s4, v7")
    a("s_cmp_gt_u32 s4, s14")
    a("s_cbranch_scc1 LL_loop")
    a("s_mov_b32 s9, s13")
    a("v_mov_b32 v6, s13")
    a("s_waitcnt vmcnt(0)")
    a("ds_write_b32 v4, v6")
    a.label("LL_spin")
    a("s_sleep 1")
    a("ds_read_b32 v7, v5")
    a("s_waitcnt lgkmcnt(0)")
    a("v_readfirstlane_b32 s4, v7")
    a("s_cmp_gt_u32 s4, s14")
    a("s_cbranch_scc1 LL_loop")
    a("s_branch LL_spin")
    a.label("LL_fin")
    for k in range(((max(LV) + 7) // 8 - 1) if args.mon else (INF2 // 8 - 2), -1, -1):
        a(f"s_sub_u32 s4, s79, {k}")
        a("s_max_i32 s9, s9, s4")
        a("v_mov_b32 v6, s9")
        a(f"s_waitcnt vmcnt({8*k})")
        a("ds_write_b32 v4, v6")
    stamp(5)
    a("s_branch LA_end2")
    if args.tk == 2:
        a.label("LL_resolve")
        a("s_cmp_lt_i32 s13, s76")
        a("s_cbranch_scc1 LL_loop")
        a(f"v_mov_b32 v11, {C_TK}")
        a("s_mov_b32 s77, 1")
        a("s_movk_i32 s76, -1")
        a(f"s_waitcnt vmcnt({8*args.nspec})")
        a("v_readfirstlane_b32 s4, v10")
        a("s_and_b32 s4, s4, s74")
        a("s_cbranch_scc1 LL_lost")
        a("v_mov_b32 v10, s2")
        a("ds_write_b32 v11, v10")
        a("s_waitcnt lgkmcnt(0)")
        a("s_barrier")
        a("s_mov_b32 s64, 0")
        a("s_branch LL_resolved")
        a.label("LL_lost")
        a("s_mov_b64 exec, 1")
        a("s_mov_b32 s9, 0")
        a(f"s_sleep {args.lost_sleep}")
        a.label("LL_try")
        a("s_lshl_b32 s4, s72, 5")
        a("v_mov_b32 v9, s4")
        a("v_mov_b32 v10, 0")
        a("buffer_atomic_or v10, v9, s[60:63], 0 offen sc0")
        a("s_waitcnt vmcnt(0)")
        a("v_readfirstlane_b32 s4, v10")
        a("s_not_b32 s4, s4")
        a("s_cbranch_scc0 LL_nextx")
        a("s_lshl_b32 s5, 0xff, s73")
        a("s_and_b32 s5, s5, s4")
        a("s_cselect_b32 s4, s5, s4")
        a("s_ff1_i32_b32 s5, s4")
        a("s_lshl_b32 s74, 1, s5")
        a("v_mov_b32 v10, s74")
        a("buffer_atomic_or v10, v9, s[60:63], 0 offen sc0")
        a("s_waitcnt vmcnt(0)")
        a("v_readfirstlane_b32 s4, v10")
        a("s_and_b32 s4, s4, s74")
        a("s_cbranch_scc1 LL_try")
        vid("s2", "s72", "s5", "s4")
        a("s_branch LL_got")
        a.label("LL_nextx")
        a("s_add_u32 s72, s72, 1")
        a("s_and_b32 s72, s72, 7")
        a("s_add_u32 s9, s9, 1")
        a("s_cmp_lt_u32 s9, 8")
        a("s_cbranch_scc1 LL_try")
        a("s_movk_i32 s2, 256")
        a.label("LL_got")
        a("v_mov_b32 v10, s2")
        a("ds_write_b32 v11, v10")
        a("s_mov_b64 exec, -1")
        a("s_waitcnt lgkmcnt(0)")
        a("s_barrier")
        a("s_branch LA_tk_done")

    a.label("LA_cons")
    a("s_mov_b32 s42, 0xffff0000")
    a(f"s_mov_b32 s69, {LOG2E:#x}")
    a("s_mov_b32 s55, 0x20000")
    a("s_mov_b32 s59, 0x20000")
    a("s_mov_b32 s63, 0x20000")
    a("s_cmp_eq_u32 s3, 9")
    a("s_cbranch_scc1 LA_ffn")
    if args.mon:
        a("s_cmp_eq_u32 s3, 10")
        a("s_cbranch_scc1 LA_mon")
    a("s_sub_u32 s9, s3, 1")
    a("v_lshrrev_b32 v20, 4, v0")
    a("v_and_b32 v21, 15, v0")
    a("v_lshlrev_b32 v2, 14, v20")
    a("v_lshl_add_u32 v2, v21, 4, v2")
    a("v_lshlrev_b32 v3, 2, v20")
    a("v_lshl_add_u32 v3, v21, 4, v3")
    a("s_lshl_b32 s4, s7, 10")
    a("s_lshl_b32 s5, s9, 7")
    a("s_add_u32 s4, s4, s5")
    a("s_lshl_b32 s11, s9, 19")
    a("s_lshl_b32 s12, s6, 8")
    a("s_add_u32 s11, s11, s12")
    a("s_mov_b32 s48, s22")
    a("s_mov_b32 s49, s23")
    a("s_mov_b32 s50, 0x00400000")
    a("s_mov_b32 s56, s16")
    a("s_mov_b32 s57, s17")
    a("s_mov_b32 s58, 4096")
    a(f"buffer_load_dword v{P}, v3, s[56:59], s4 offen")
    if args.coop:
        a("v_lshrrev_b32 v22, 3, v0")
        a("v_lshlrev_b32 v22, 13, v22")
        a("v_and_b32 v23, 7, v0")
        a("v_lshl_add_u32 v22, v23, 5, v22")
        a("s_lshr_b32 s4, s2, 5")
        a("s_lshl_b32 s4, s4, 19")
        a("s_lshl_b32 s5, s9, 16")
        a("s_add_u32 s4, s4, s5")
        a("s_add_u32 s4, s4, s12")
        a(f"buffer_load_dword v38, v22, s[48:51], s4 offen{cnt}")
        a("s_waitcnt vmcnt(0)")
        if args.coop > 1:
            a(f"s_sleep {args.coop}")
    for k in range(8):
        a(f"buffer_load_dwordx4 {Wr(2*k)}, v2, s[48:51], s11 offen{wnt}")
        a("s_add_u32 s12, s11, 8192")
        a(f"buffer_load_dwordx4 {Wr(2*k+1)}, v2, s[48:51], s12 offen{wnt}")
        if k < 7:
            a("s_add_u32 s11, s11, 65536")
    a(f"s_mov_b32 s68, {SCALE:#x}")
    a("s_mov_b32 s70, 0x05040100")
    a("s_mov_b32 s71, 0x07060302")
    a("s_mov_b32 s52, s24")
    a("s_mov_b32 s53, s25")
    a("s_mov_b32 s54, 0x00400000")
    a("s_mov_b32 s60, s40")
    a("s_mov_b32 s61, s41")
    a(f"s_mov_b32 s62, {WS_STATS + 2048}")
    a("v_and_b32 v22, 1, v20")
    a("v_lshlrev_b32 v22, 1, v22")
    a("v_lshrrev_b32 v23, 1, v20")
    a("v_or_b32 v22, v22, v23")
    a("v_lshl_add_u32 v22, v21, 3, v22")
    a("v_lshlrev_b32 v22, 2, v22")
    a("s_lshl_b32 s4, s9, 9")
    a(f"s_add_u32 s4, s4, {L_QP}")
    a(f"v_add_u32 v{VRED}, s4, v22")
    a(f"v_mov_b32 v{VZ}, {RING}")
    a(f"v_mov_b32 v{VCNT}, 1")
    a("s_lshl_b32 s4, s9, 13")
    a(f"v_add_u32 v{VBASE}, s4, v1")
    a("s_lshl_b32 s4, s9, 2")
    a(f"s_add_u32 s4, s4, {C_DONE}")
    a(f"v_mov_b32 v{VDONE}, s4")
    for j in range(8):
        a(f"v_mov_b32 v{ACC+j}, 0")
    if args.tk == 2:
        sync("c")
    for k in range(8):
        tb = T0 + 8 * (k & 1)
        a(f"s_waitcnt vmcnt({14 - 2*k})")
        if k == 0:
            stamp(3, 2)
        for d in range(4):
            A_, B_ = W0 + 8 * k + d, W0 + 8 * k + 4 + d
            a(f"v_perm_b32 v{tb+2*d}, v{B_}, v{A_}, s70")
            a(f"v_perm_b32 v{tb+2*d+1}, v{B_}, v{A_}, s71")
        for e in range(8):
            a(f"v_dot2c_f32_bf16_dpp v{ACC+e}, v{P}, v{tb+e} row_newbcast:{k} row_mask:0xf bank_mask:0xf")

    def cross_row_reduce8(base):
        for k in range(4):
            a(f"v_permlane32_swap_b32 v{base+2*k}, v{base+2*k+1}")
        for k in range(4):
            a(f"v_add_f32 v{base+2*k}, v{base+2*k}, v{base+2*k+1}")
        a(f"v_permlane16_swap_b32 v{base}, v{base+2}")
        a(f"v_permlane16_swap_b32 v{base+4}, v{base+6}")
        a(f"v_add_f32 v{base}, v{base}, v{base+2}")
        a(f"v_add_f32 v{base+4}, v{base+4}, v{base+6}")

    cross_row_reduce8(ACC)
    a(f"ds_write_b32 v{VRED}, v{ACC}")
    a(f"ds_write_b32 v{VRED}, v{ACC+4} offset:16")
    a("v_lshlrev_b32 v20, 3, v0")
    a(f"v_add_u32 v20, {L_QP}, v20")
    stamp(4, 2)
    lds_barrier(0, "q")
    for w in range(8):
        a(f"ds_read_b64 v[{T0+2*w}:{T0+2*w+1}], v20 offset:{512*w}")
    a("s_lshl_b32 s4, s9, 8")
    a(f"s_add_u32 s4, s4, {L_QQ}")
    a("v_lshlrev_b32 v21, 2, v0")
    a("v_add_u32 v21, s4, v21")
    a("v_and_b32 v22, 15, v0")
    a("v_lshlrev_b32 v22, 4, v22")
    a("v_add_u32 v22, s4, v22")
    a("s_waitcnt lgkmcnt(0)")
    for st in (1, 2, 4):
        for w in range(0, 8, 2 * st):
            a(f"v_add_f32 v{T0+2*w}, v{T0+2*w}, v{T0+2*(w+st)}")
            a(f"v_add_f32 v{T0+2*w+1}, v{T0+2*w+1}, v{T0+2*(w+st)+1}")
    a(f"v_cvt_pk_bf16_f32 v23, v{T0}, v{T0+1}")
    a("ds_write_b32 v21, v23")
    a("s_waitcnt lgkmcnt(0)")
    a(f"ds_read_b128 v[{Q}:{Q+3}], v22")
    for j in range(8):
        a(f"v_mov_b32 v{ACC+j}, 0")
    a(f"v_mov_b32 v{M}, 0xff800000")
    a(f"v_mov_b32 v{L}, 0")
    if args.coop:
        a("s_lshl_b32 s4, s6, 17")
        a("s_lshr_b32 s5, s2, 5")
        a("s_lshl_b32 s5, s5, 14")
        a("s_add_u32 s4, s4, s5")
        a("s_lshl_b32 s5, s9, 11")
        a("s_add_u32 s4, s4, s5")
        a("v_lshlrev_b32 v22, 5, v0")
        a(f"buffer_load_dword v141, v22, s[52:55], s4 offen{cnt}")
    a("s_lshl_b32 s43, s6, 17")
    a(f"s_lshl_b32 s5, s9, {7 if args.tail2 else 14}")
    a("s_add_u32 s43, s43, s5")
    if args.tail2:
        a("v_lshrrev_b32 v22, 4, v0")
        a("v_and_b32 v23, 15, v0")
        a("v_lshlrev_b32 v142, 15, v22")
        a("v_lshl_add_u32 v142, v23, 3, v142")
        a("v_and_b32 v143, 1, v22")
        a("v_lshlrev_b32 v143, 1, v143")
        a("v_lshrrev_b32 v22, 1, v22")
        a("v_or_b32 v143, v143, v22")
        a("v_lshl_add_u32 v143, v23, 2, v143")
        a("v_lshlrev_b32 v143, 2, v143")
        a("s_lshl_b32 s5, s7, 6")
        a("s_lshl_b32 s12, s6, 1")
        a("s_add_u32 s5, s5, s12")
        a("s_add_u32 s5, s5, s8")
        a("s_lshl_b32 s65, s5, 3")
        a(f"s_add_u32 s65, s65, {WS_STATS}")
        a("s_lshl_b32 s64, s5, 11")
        a("s_lshl_b32 s5, s9, 8")
        a("s_add_u32 s64, s64, s5")
    a("s_mov_b32 s13, s9")
    a("s_mov_b32 s15, 0")
    a(f"v_mov_b32 v{VCNT+1}, 0")
    stamp(1)
    a.label("LC_poll")
    a(f"ds_read_b32 v20, v{VZ}")
    a("s_waitcnt lgkmcnt(0)")
    a("v_readfirstlane_b32 s14, v20")
    a("s_cmp_gt_u32 s14, s13")
    a("s_cbranch_scc1 LC_go")
    a("s_sleep 1")
    a("s_branch LC_poll")
    a.label("LC_go")
    for i in range(4):
        a(f"ds_read_b128 v[{KB+4*i}:{KB+4*i+3}], v{VBASE} offset:{1024*i}")
    for i in range(4):
        a(f"ds_read_b128 v[{VB+4*i}:{VB+4*i+3}], v{VBASE} offset:{4096+1024*i}")
    a("s_add_u32 s15, s15, 1")
    a("s_add_u32 s13, s13, 8")
    a(f"v_add_u32 v{VCNT+1}, 1, v{VCNT+1}")
    if NS == 16:
        a(f"v_xor_b32 v{VBASE}, 0x10000, v{VBASE}")
    else:
        a(f"v_add_u32 v{VBASE}, 0x10000, v{VBASE}")
        a(f"v_subrev_u32 v21, {RING}, v{VBASE}")
        a(f"v_min_u32 v{VBASE}, v21, v{VBASE}")
    a("s_waitcnt lgkmcnt(4)")
    for d in range(4):
        for i in range(4):
            t = f"v{T0+i}"
            c = "0" if d == 0 else t
            a(f"v_dot2_f32_bf16 {t}, v{KB+4*i+d}, v{Q+d}, {c}")
    a("s_waitcnt lgkmcnt(0)")
    a(f"ds_write_b32 v{VDONE}, v{VCNT+1}")
    for i in range(2):
        a(f"v_add_f32_dpp v{T0+i}, v{T0+i}, v{T0+i} row_ror:8 row_mask:0xf bank_mask:0x3")
        a(f"v_add_f32_dpp v{T0+i}, v{T0+i+2}, v{T0+i+2} row_ror:8 row_mask:0xf bank_mask:0xc")
    PV1, PV2 = T0 + 8, KB
    for d in range(2):
        a(f"v_perm_b32 v{PV1+2*d}, v{VB+4+d}, v{VB+d}, s70")
        a(f"v_perm_b32 v{PV1+2*d+1}, v{VB+4+d}, v{VB+d}, s71")
    a(f"v_add_f32_dpp v{T0}, v{T0}, v{T0} row_half_mirror row_mask:0xf bank_mask:0x5")
    a(f"v_add_f32_dpp v{T0}, v{T0+1}, v{T0+1} row_half_mirror row_mask:0xf bank_mask:0xa")
    for d in range(2, 4):
        a(f"v_perm_b32 v{PV1+2*d}, v{VB+4+d}, v{VB+d}, s70")
        a(f"v_perm_b32 v{PV1+2*d+1}, v{VB+4+d}, v{VB+d}, s71")
    S = f"v{T0}"
    a(f"v_add_f32_dpp {S}, {S}, {S} quad_perm:[1,0,3,2] row_mask:0xf bank_mask:0xf")
    a(f"v_perm_b32 v{PV2}, v{VB+12}, v{VB+8}, s70")
    a(f"v_perm_b32 v{PV2+1}, v{VB+12}, v{VB+8}, s71")
    a(f"v_add_f32_dpp {S}, {S}, {S} quad_perm:[2,3,0,1] row_mask:0xf bank_mask:0xf")
    round_bf16(a, S)
    a(f"v_mul_f32 {S}, s68, {S}")
    round_bf16(a, S)
    MX = f"v{T0+1}"
    a(f"v_perm_b32 v{PV2+2}, v{VB+13}, v{VB+9}, s70")
    a(f"v_perm_b32 v{PV2+3}, v{VB+13}, v{VB+9}, s71")
    a(f"v_max_f32_dpp {MX}, {S}, {S} row_ror:8 row_mask:0xf bank_mask:0xf")
    a(f"v_perm_b32 v{PV2+4}, v{VB+14}, v{VB+10}, s70")
    a(f"v_perm_b32 v{PV2+5}, v{VB+14}, v{VB+10}, s71")
    a(f"v_max_f32_dpp {MX}, {MX}, {MX} row_ror:4 row_mask:0xf bank_mask:0xf")
    a(f"v_perm_b32 v{PV2+6}, v{VB+15}, v{VB+11}, s70")
    a(f"v_perm_b32 v{PV2+7}, v{VB+15}, v{VB+11}, s71")
    a(f"v_max_f32 {MX}, {MX}, v{M}")
    AL = f"v{T0+2}"
    a(f"v_sub_f32 {AL}, v{M}, {MX}")
    a(f"v_sub_f32 v{P}, {S}, {MX}")
    a(f"v_mul_f32 {AL}, s69, {AL}")
    a(f"v_mul_f32 v{P}, s69, v{P}")
    a(f"v_exp_f32 {AL}, {AL}")
    a(f"v_exp_f32 v{P}, v{P}")
    a(f"v_mov_b32 v{M}, {MX}")
    a(f"v_fma_f32 v{L}, v{L}, {AL}, v{P}")
    a(f"v_mul_f32 v{ACC}, {AL}, v{ACC}")
    a(f"v_mov_b32_dpp v{T0+3}, v{P} row_shl:4 row_mask:0xf bank_mask:0xf")
    for j in range(1, 8):
        a(f"v_mul_f32 v{ACC+j}, {AL}, v{ACC+j}")
        if j == 1:
            a(f"v_cvt_pk_bf16_f32 v{P}, v{P}, v{T0+3}")
    for e in range(8):
        a(f"v_dot2c_f32_bf16_dpp v{ACC+e}, v{P}, v{PV1+e} row_newbcast:0 row_mask:0xf bank_mask:0xf")
    for e in range(8):
        a(f"v_dot2c_f32_bf16_dpp v{ACC+e}, v{P}, v{PV2+e} row_newbcast:8 row_mask:0xf bank_mask:0xf")
    NPJ = args.wo_npj
    NB = 16 // NPJ
    a(f"s_cmp_le_u32 s15, {args.wo_at + NB - 1}")
    a("s_cbranch_scc1 LC_wo")
    a(f"s_cmp_eq_u32 s15, {args.prep_at}")
    a("s_cbranch_scc1 LC_prep")
    a("s_cmp_lt_u32 s13, s79")
    a("s_cbranch_scc1 LC_poll")
    a("s_branch LA_tail")
    a.label("LC_wo")
    for k in range(NB):
        a(f"s_cmp_lg_u32 s15, {args.wo_at + k}")
        a(f"s_cbranch_scc1 {'LC_wo%d' % (k+1) if k < NB-1 else 'LC_poll'}")
        if args.tail2:
            for i in range(2 * NPJ * k, 2 * NPJ * (k + 1)):
                if i % 4 == 0 or i == 2 * NPJ * k:
                    a(f"s_add_u32 s4, s43, {(i >> 2) * 4096}")
                a(f"buffer_load_dwordx2 v[{W0+2*i}:{W0+2*i+1}], v142, s[52:55], s4 offen offset:{(i & 3) * 1024}{wnt}")
        else:
          for i in range(NPJ * k, NPJ * (k + 1)):
            if i % 4 == 0 or i == NPJ * k:
                a(f"s_add_u32 s4, s43, {(i >> 2) * 4096}")
            a(f"buffer_load_dwordx4 {Wr(i)}, v1, s[52:55], s4 offen offset:{(i & 3) * 1024}{wnt}")
        a("s_branch LC_poll")
        if k < NB - 1:
            a.label(f"LC_wo{k+1}")

    a.label("LC_prep")
    a("s_waitcnt vmcnt(0)")
    LOr = {}
    HIr = {}
    prev = 141
    for j in range(16 if args.tail2 else 8):
        for t in range(2 if args.tail2 else 4):
            if args.tail2:
                A_, B_ = W0 + 4 * j + t, W0 + 4 * j + 2 + t
            else:
                A_, B_ = W0 + 8 * j + t, W0 + 8 * j + 4 + t
            a(f"v_perm_b32 v{prev}, v{B_}, v{A_}, s70")
            a(f"v_perm_b32 v{B_}, v{B_}, v{A_}, s71")
            LOr[(j, t)] = prev
            HIr[(j, t)] = B_
            prev = A_
    if args.warm:
        a("s_mov_b64 exec, 0")
        a("s_branch LW_0")
        a.label("LC_warmret")
        a("s_mov_b64 exec, -1")
    a("s_branch LC_poll")

    a.label("LA_tail")
    if args.warm:
        a.hop_begin("LW", args.warm)
    a.nop(3)
    stamp(3)
    for r in (8, 4):
        a(f"v_add_f32_dpp v{L}, v{L}, v{L} row_ror:{r} row_mask:0xf bank_mask:0xf")
    for g in range(4):
        a(f"v_readlane_b32 s{80+g}, v{M}, {16*g}")
    a("v_mov_b32 v20, s80")
    a("v_max_f32 v20, s81, v20")
    a("v_max_f32 v20, s82, v20")
    a("v_max_f32 v20, s83, v20")
    a(f"v_sub_f32 v22, v{M}, v20")
    a("v_mul_f32 v22, s69, v22")
    a("v_exp_f32 v22, v22")
    a(f"v_mul_f32 v{L}, v22, v{L}")
    for j in range(8):
        a(f"v_mul_f32 v{ACC+j}, v22, v{ACC+j}")
    for g in range(4):
        a(f"v_readlane_b32 s{80+g}, v{L}, {16*g}")
    cross_row_reduce8(ACC)
    a("v_mov_b32 v21, s80")
    a("v_add_f32 v21, s81, v21")
    a("v_add_f32 v21, s82, v21")
    a("v_add_f32 v21, s83, v21")
    a(f"ds_write_b32 v{VRED}, v{ACC} offset:{L_OP - L_QP}")
    a(f"ds_write_b32 v{VRED}, v{ACC+4} offset:{L_OP - L_QP + 16}")
    a("s_lshl_b32 s4, s9, 3")
    a(f"s_add_u32 s4, s4, {L_ST}")
    a("v_mov_b32 v22, s4")
    a("ds_write_b64 v22, v[20:21]")
    a("v_lshlrev_b32 v20, 3, v0")
    a(f"v_add_u32 v20, {L_OP}, v20")
    a(f"v_mov_b32 v21, {L_ST}")
    lds_barrier(1, "t1", 9 if args.fuse else 8)
    stamp(4)
    SB = 104
    for k in range(4):
        a(f"ds_read_b128 v[{SB+4*k}:{SB+4*k+3}], v21 offset:{16*k}")
    for w in range(8):
        a(f"ds_read_b64 v[{T0+2*w}:{T0+2*w+1}], v20 offset:{512*w}")
    a("s_lshl_b32 s4, s9, 3")
    if args.tail2:
        for j in range(8):
            a(f"v_mov_b32 v{ACC+j}, 0")
        a("v_mov_b32 v3, 0")
        a("s_cmp_eq_u32 s9, 0")
        a("s_cselect_b32 s66, 1, 0")
        a("s_mov_b32 s67, 0")
    a("s_waitcnt lgkmcnt(8)")
    a(f"v_max3_f32 v20, v{SB}, v{SB+2}, v{SB+4}")
    a(f"v_max3_f32 v20, v20, v{SB+6}, v{SB+8}")
    a(f"v_max3_f32 v20, v20, v{SB+10}, v{SB+12}")
    a(f"v_max_f32 v20, v20, v{SB+14}")
    for w in range(8):
        a(f"v_sub_f32 v{SB+2*w}, v{SB+2*w}, v20")
    for w in range(8):
        a(f"v_mul_f32 v{SB+2*w}, s69, v{SB+2*w}")
    for w in range(8):
        a(f"v_exp_f32 v{SB+2*w}, v{SB+2*w}")
    a(f"v_mul_f32 v21, v{SB}, v{SB+1}")
    for w in range(1, 8):
        a(f"v_fmac_f32 v21, v{SB+2*w}, v{SB+2*w+1}")
    a("v_rcp_f32 v22, v21")
    if args.tail2:
        a("s_mov_b64 exec, s[66:67]")
        a(f"buffer_store_dwordx2 v[20:21], v3, s[60:63], s65 offen{' sc1' if args.fuse else ''}")
        a("s_mov_b64 exec, -1")
    a("s_waitcnt lgkmcnt(0)")
    a(f"v_mul_f32 v2, v{SB}, v{T0}")
    a(f"v_mul_f32 v3, v{SB}, v{T0+1}")
    for w in range(1, 8):
        a(f"v_fmac_f32 v2, v{SB+2*w}, v{T0+2*w}")
        a(f"v_fmac_f32 v3, v{SB+2*w}, v{T0+2*w+1}")
    a("v_mul_f32 v2, v22, v2")
    a("v_mul_f32 v3, v22, v3")
    a("v_cvt_pk_bf16_f32 v2, v2, v3")
    ysc = " sc1" if args.fuse else ""
    if args.tail2:
        for j in range(16):
            o = ACC + 4 * (j & 1)
            for t in range(2):
                a(f"v_dot2c_f32_bf16_dpp v{o+2*t}, v2, v{LOr[(j, t)]} row_newbcast:{j} row_mask:0xf bank_mask:0xf")
                a(f"v_dot2c_f32_bf16_dpp v{o+2*t+1}, v2, v{HIr[(j, t)]} row_newbcast:{j} row_mask:0xf bank_mask:0xf")
        for k in range(4):
            a(f"v_add_f32 v{ACC+k}, v{ACC+k}, v{ACC+4+k}")
        a(f"v_permlane32_swap_b32 v{ACC}, v{ACC+1}")
        a(f"v_permlane32_swap_b32 v{ACC+2}, v{ACC+3}")
        a(f"v_add_f32 v{ACC}, v{ACC}, v{ACC+1}")
        a(f"v_add_f32 v{ACC+2}, v{ACC+2}, v{ACC+3}")
        a(f"v_permlane16_swap_b32 v{ACC}, v{ACC+2}")
        a(f"v_add_f32 v{ACC}, v{ACC}, v{ACC+2}")
        if args.yx4:
            z = ACC
            a(f"v_mov_b32 v{z+4}, v{z}")
            a(f"v_mov_b32 v{z+5}, v{z}")
            a(f"v_mov_b32 v{z+1}, v{z}")
            a(f"v_permlane32_swap_b32 v{z+4}, v{z+1}")
            a(f"v_permlane16_swap_b32 v{z+5}, v{z+2}")
            a(f"v_mov_b32 v{z+6}, v{z+1}")
            a(f"v_permlane16_swap_b32 v{z+6}, v{z+3}")
            a("s_mov_b64 exec, 0xffff")
            a(f"buffer_store_dwordx4 v[{z}:{z+3}], v1, s[60:63], s64 offen{ysc}")
            a("s_mov_b64 exec, -1")
        else:
            a(f"buffer_store_dword v{ACC}, v143, s[60:63], s64 offen{ysc}")
        stamp(5)
    else:
        for j in range(8):
            a(f"v_readlane_b32 s{72+j}, v2, s4")
            if j < 7:
                a("s_add_u32 s4, s4, 1")
        for j in range(8):
            for t in range(4):
                c = "0" if j == 0 else f"v{ACC+2*t}"
                a(f"v_dot2_f32_bf16 v{ACC+2*t}, v{LOr[(j, t)]}, s{72+j}, {c}")
                c = "0" if j == 0 else f"v{ACC+2*t+1}"
                a(f"v_dot2_f32_bf16 v{ACC+2*t+1}, v{W0+8*j+4+t}, s{72+j}, {c}")
        a("s_lshl_b32 s4, s9, 11")
        a("v_lshlrev_b32 v2, 5, v0")
        a("v_add_u32 v2, s4, v2")
        a(f"ds_write_b128 v2, v[{ACC}:{ACC+3}] offset:{L_Y}")
        a(f"ds_write_b128 v2, v[{ACC+4}:{ACC+7}] offset:{L_Y+16}")
        a("s_lshl_b32 s4, s9, 8")
        a("v_lshlrev_b32 v3, 2, v0")
        a("v_add_u32 v3, s4, v3")
        a("s_lshl_b32 s5, s7, 6")
        a("s_lshl_b32 s12, s6, 1")
        a("s_add_u32 s5, s5, s12")
        a("s_add_u32 s5, s5, s8")
        a("s_lshl_b32 s5, s5, 11")
        lds_barrier(2, "t2")
        for w in range(8):
            a(f"ds_read_b32 v{T0+w}, v3 offset:{L_Y + 2048*w}")
        a("s_waitcnt lgkmcnt(0)")
        for st in (1, 2, 4):
            for w in range(0, 8, 2 * st):
                a(f"v_add_f32 v{T0+w}, v{T0+w}, v{T0+w+st}")
        if args.warm:
            a.hop_end("LC_warmret")
        a(f"buffer_store_dword v{T0}, v3, s[60:63], s5 offen{ysc}")
        stamp(5)
        a("s_cmp_lg_u32 s9, 0")
        a("s_cbranch_scc1 LA_end2")
        a("s_lshl_b32 s5, s7, 5")
        a("s_add_u32 s5, s5, s6")
        a("s_lshl_b32 s5, s5, 4")
        a("s_lshl_b32 s12, s8, 3")
        a("s_add_u32 s5, s5, s12")
        a(f"s_add_u32 s5, s5, {WS_STATS}")
        a("v_mov_b32 v2, 0")
        a("s_mov_b64 exec, 1")
        a(f"buffer_store_dwordx2 v[20:21], v2, s[60:63], s5 offen{ysc}")
    a.label("LA_end2")
    stamp_store()
    a("s_endpgm")

    if args.mon:
        a.label("LA_mon")
        if args.tk == 2:
            sync("m")
        G = args.glob
        RATE = args.rate
        a("s_memrealtime s[66:67]")
        a("s_and_b32 s15, s2, 7")
        a(f"s_mul_i32 s4, s15, {args.bstride}")
        a(f"s_add_u32 s4, s4, {WS_BOARD}")
        a("s_add_u32 s60, s40, s4")
        a("s_addc_u32 s61, s41, 0")
        a(f"s_movk_i32 s62, {132 if G else 128}")
        a("s_lshr_b32 s12, s2, 3")
        a("s_lshl_b32 s12, s12, 2")
        a("v_lshlrev_b32 v5, 2, v0")
        a("v_mov_b32 v7, 0")
        a(f"v_mov_b32 v6, {C_LANDED}")
        a(f"s_sub_u32 s10, s79, {NJ}")
        a(f"s_sub_u32 s11, s79, {args.mon_stop}")
        if G:
            a(f"s_add_u32 s56, s40, {WS_BOARD + 8*args.bstride}")
            a("s_addc_u32 s57, s41, 0")
            a("s_mov_b32 s58, 32")
            a("s_lshl_b32 s15, s15, 2")
        if args.ts:
            for k in range(6):
                a(f"s_mov_b32 s{84+k}, 0")
        a("s_mov_b64 exec, 1")
        a("s_waitcnt lgkmcnt(0)")
        a(f"s_mul_i32 s4, s66, {RATE}")
        a("s_sub_u32 s4, 0, s4")
        a("v_mov_b32 v4, s4")
        a("buffer_store_dword v4, v7, s[60:63], s12 offen")
        if args.fuse:
            a("s_mov_b32 s56, s40")
            a("s_mov_b32 s57, s41")
            a(f"s_mov_b32 s58, {WS_STATS + 2048}")
            a("s_mov_b32 s52, s38")
            a("s_mov_b32 s53, s39")
            a("s_movk_i32 s54, 256")
            a("s_lshl_b32 s4, s7, 6")
            a("s_lshl_b32 s5, s6, 1")
            a("s_add_u32 s4, s4, s5")
            a("s_add_u32 s4, s4, s8")
            a("s_lshl_b32 s5, s4, 3")
            a(f"s_add_u32 s5, s5, {WS_STATS}")
            a("s_lshl_b32 s4, s4, 11")
            a("s_mov_b64 exec, -1")
            for k in range(4):
                a(f"v_mov_b32 v{8+k}, -1")
            if not args.dbg & 1:
                a("buffer_store_dwordx4 v[8:11], v1, s[56:59], s4 offen sc1")
                a("buffer_store_dwordx4 v[8:11], v1, s[56:59], s4 offen offset:1024 sc1")
            a("s_mov_b64 exec, 1")
            if not args.dbg & 1:
                a("buffer_store_dwordx2 v[8:9], v7, s[56:59], s5 offen sc1")
            a("v_mov_b32 v12, 1")
            a("s_lshl_b32 s4, s15, 5")
            a("s_waitcnt vmcnt(0)")
            a(f"ds_add_u32 v6, v12 offset:{C_BAR + 4 - C_LANDED}")
            a("buffer_atomic_add v12, v7, s[52:55], s4 offen offset:8")
        if G:
            a("s_cmp_lg_u32 s12, 0")
            a("s_cbranch_scc1 LM_loop")
            a("s_lshl_b32 s4, s4, 5")
            a("v_mov_b32 v8, s4")
            a("buffer_store_dword v7, v7, s[60:63], 0 offen offset:128")
            a("buffer_store_dword v8, v7, s[56:59], s15 offen sc1")
        a.label("LM_loop")
        a(f"s_sleep {args.mon}")
        a("ds_read_b32 v4, v6")
        a("s_memrealtime s[66:67]")
        a("s_waitcnt lgkmcnt(0)")
        a("v_readfirstlane_b32 s14, v4")
        a("s_cmp_ge_u32 s14, s11")
        a("s_cbranch_scc1 LM_last")
        a("s_sub_u32 s4, s14, s10")
        a("s_lshl_b32 s4, s4, 10")
        a(f"s_mul_i32 s5, s66, {RATE}")
        a("s_sub_u32 s13, s4, s5")
        a("v_mov_b32 v4, s13")
        a("buffer_store_dword v4, v7, s[60:63], s12 offen")
        a("s_cmp_lt_u32 s14, 8")
        a("s_cbranch_scc1 LM_loop")
        a("s_mov_b64 exec, -1")
        a(f"buffer_load_dword v8, v5, s[60:63], 0 offen {args.monld}")
        if G:
            a("s_cmp_lg_u32 s12, 0")
            a("s_cbranch_scc1 LM_nl1")
            a("buffer_load_dword v9, v5, s[56:59], 0 offen sc1")
            a.label("LM_nl1")
        a("s_lshl_b32 s13, s13, 5")
        a("s_waitcnt vmcnt(0)")
        for r in (1, 2, 4, 8):
            a(f"v_add_u32_dpp v8, v8, v8 row_ror:{r} row_mask:0xf bank_mask:0xf")
            if G:
                a(f"v_add_u32_dpp v9, v9, v9 row_ror:{r} row_mask:0xf bank_mask:0xf")
        a("v_readlane_b32 s4, v8, 0")
        a("v_readlane_b32 s5, v8, 16")
        if G:
            a("v_readlane_b32 s65, v8, 32")
            a("v_readlane_b32 s66, v9, 0")
        a("s_mov_b64 exec, 1")
        a("s_add_u32 s4, s4, s5")
        a("s_sub_u32 s13, s4, s13")
        if G:
            a("s_cmp_lg_u32 s12, 0")
            a("s_cbranch_scc1 LM_nl2")
            a("v_mov_b32 v4, s4")
            a("buffer_store_dword v4, v7, s[56:59], s15 offen sc1")
            a("s_lshl_b32 s5, s4, 3")
            a("s_sub_u32 s65, s66, s5")
            a("s_ashr_i32 s65, s65, 3")
            a("v_mov_b32 v4, s65")
            a("buffer_store_dword v4, v7, s[60:63], 0 offen offset:128")
            a.label("LM_nl2")
            a(f"s_min_i32 s65, s65, {int(32768*G)}")
            a(f"s_max_i32 s65, s65, {-int(32768*G)}")
            a("s_add_u32 s13, s13, s65")
        a("s_mov_b32 s5, 0")
        for k, th in enumerate(TH):
            code = k + 1
            if LV[code] < LV[0]:
                a(f"s_cmp_lt_i32 s13, {int(round(th*32768))}")
            else:
                a(f"s_cmp_gt_i32 s13, {int(round(th*32768))}")
            a(f"s_cselect_b32 s5, {code}, s5")
        a("v_mov_b32 v4, s5")
        a(f"ds_write_b32 v6, v4 offset:{C_DEPTH - C_LANDED}")
        if args.ts:
            for k in range(len(LV)):
                a(f"s_cmp_eq_u32 s5, {k}")
                a(f"s_addc_u32 s{84+k}, s{84+k}, 0")
        a("s_branch LM_loop")
        a.label("LM_last")
        if args.warmfin:
            a(f"s_cmp_ge_u32 s12, {4*args.warmfin}")
            a("s_cbranch_scc1 LM_nowarm")
            a("s_mov_b64 exec, -1")
            a("s_getpc_b64 s[64:65]")
            a.label("LM_pc")
            a("s_add_u32 s64, s64, fin_kernel-LM_pc")
            a("s_addc_u32 s65, s65, 0")
            a("s_mov_b32 s66, LB_end-fin_kernel")
            a("s_mov_b32 s67, 0x20000")
            a("v_lshlrev_b32 v2, 6, v0")
            a("buffer_load_dword v10, v2, s[64:67], 0 offen")
            a("s_mov_b32 s56, s16")
            a("s_mov_b32 s57, s17")
            a("s_mov_b32 s58, 4096")
            a("buffer_load_dword v11, v2, s[56:59], 0 offen")
            a("s_mov_b32 s52, s34")
            a("s_mov_b32 s53, s35")
            a("s_mov_b32 s54, 1024")
            a("buffer_load_dword v12, v2, s[52:55], 0 offen")
            a("s_mov_b32 s44, s36")
            a("s_mov_b32 s45, s37")
            a("s_mov_b32 s46, 4096")
            a("buffer_load_dword v13, v2, s[44:47], 0 offen")
            a("s_mov_b64 exec, 1")
            a.label("LM_nowarm")
        if args.ts:
            a("s_lshl_b32 s4, s2, 5")
            a(f"s_add_u32 s60, s40, {(4<<20) + 163840}")
            a("s_addc_u32 s61, s41, 0")
            a("s_mov_b32 s62, 0x100000")
            a("v_mov_b32 v2, 0")
            for k in range(6):
                a(f"v_mov_b32 v4, s{84+k}")
                a(f"buffer_store_dword v4, v2, s[60:63], s4 offen offset:{4*k}")
        a("s_endpgm")

    a.label("LA_ffn")
    if args.tk == 2:
        sync("f")
    if args.fuse:
        a("s_cmp_ge_u32 s2, 192")
        a("s_cbranch_scc1 LA_red")
    a("s_mov_b32 s6, s5")
    a(f"s_cmp_ge_u32 s6, {NFFN}")
    a("s_cbranch_scc1 LA_end")
    a("s_cmp_lg_u32 s8, 0")
    a("s_cbranch_scc1 LA_end")
    if args.ffn_wait:
        a(f"v_mov_b32 v4, {C_DONE}")
        a.label("LF_wait")
        a("s_sleep 8")
        a("ds_read_b32 v5, v4")
        a("s_waitcnt lgkmcnt(0)")
        a("v_readfirstlane_b32 s4, v5")
        a(f"s_cmp_lt_u32 s4, {args.ffn_wait}")
        a("s_cbranch_scc1 LF_wait")
    FB = 104
    FA = 40
    FX = 72
    FU = 80
    FG = 88
    FH = 96
    def Fr(i): return f"v[{FB+4*i}:{FB+4*i+3}]"
    a("v_lshrrev_b32 v20, 1, v0")
    a("v_and_b32 v21, 1, v0")
    a("s_movk_i32 s4, 2752")
    a("v_mul_lo_u32 v2, v20, s4")
    a("v_lshl_add_u32 v2, v21, 4, v2")
    a("v_lshlrev_b32 v3, 4, v20")
    a(f"v_add_u32 v3, {L_XT}, v3")
    a("s_mov_b32 s46, 1409024")
    a("s_mov_b32 s50, 1409024")
    a("s_mov_b32 s58, 4096")
    a(f"s_mov_b32 s62, {NFFN*8192}")
    a("s_lshl_b32 s10, s6, 5")
    a("s_mov_b32 s44, s28")
    a("s_mov_b32 s45, s29")
    a("s_mov_b32 s48, s30")
    a("s_mov_b32 s49, s31")
    a("s_mov_b32 s56, s16")
    a("s_mov_b32 s57, s17")
    a(f"s_add_u32 s60, s40, {WS_F}")
    a("s_addc_u32 s61, s41, 0")
    for b in range(4):
        a(f"buffer_load_dwordx4 v[{4+4*b}:{7+4*b}], v1, s[56:59], 0 offen offset:{1024*b}")
    FD = args.fd
    a("s_mov_b32 s11, s10")
    for i in range(FD):
        a(f"buffer_load_dwordx4 {Fr(i)}, v2, s[44:47], s11 offen{wnt}")
        a(f"s_add_u32 s11, s11, {32*2752}")
    a(f"s_waitcnt vmcnt({FD})")
    for e in range(8):
        for b in range(4):
            src = f"v{4+4*b+(e>>1)}"
            if e & 1:
                a(f"v_and_b32 v{FA+4*e+b}, s42, {src}")
            else:
                a(f"v_lshlrev_b32 v{FA+4*e+b}, 16, {src}")
    a("v_lshlrev_b32 v20, 7, v0")
    a(f"v_add_u32 v20, {L_XT}, v20")
    for e in range(8):
        a(f"ds_write_b128 v20, v[{FA+4*e}:{FA+4*e+3}] offset:{16*e}")
    a("s_waitcnt lgkmcnt(0)")
    a("s_mov_b32 s9, 0")
    a("v_mov_b32 v22, v2")
    a(f"s_mov_b32 s12, {32*2752}")
    a.label("LF_pass")
    for k in range(32):
        a(f"v_mov_b32 v{FA+k}, 0")
    a(f"ds_read_b128 v[{FX}:{FX+3}], v3")
    for i in range(16):
        xb = FX + 4 * (i & 1)
        if i < 15:
            nb = FX + 4 * ((i + 1) & 1)
            a(f"ds_read_b128 v[{nb}:{nb+3}], v3 offset:{512*(i+1)}")
        a(f"s_waitcnt vmcnt({FD-1})")
        for d in range(4):
            a(f"v_lshlrev_b32 v{FU+2*d}, 16, v{FB+4*i+d}")
            a(f"v_and_b32 v{FU+2*d+1}, s42, v{FB+4*i+d}")
        if i + FD < 16:
            a(f"buffer_load_dwordx4 {Fr(i+FD)}, v2, s[44:47], s11 offen{wnt}")
            a(f"s_add_u32 s11, s11, {32*2752}")
        else:
            if i + FD == 16:
                a("s_mov_b32 s11, s10")
            a(f"buffer_load_dwordx4 {Fr(i+FD-16)}, v22, s[48:51], s11 offen{wnt}")
            a("s_add_u32 s11, s11, s12")
        a(f"s_waitcnt lgkmcnt({1 if i < 15 else 0})")
        for b in range(4):
            for e in range(8):
                a(f"v_fmac_f32 v{FA+8*b+e}, v{xb+b}, v{FU+e}")
    for k in range(16):
        a(f"v_permlane32_swap_b32 v{FA+k}, v{FA+16+k}")
    for k in range(16):
        a(f"v_add_f32 v{FA+k}, v{FA+k}, v{FA+16+k}")
    for k in range(8):
        a(f"v_permlane16_swap_b32 v{FA+k}, v{FA+8+k}")
    for k in range(8):
        a(f"v_add_f32 v{FA+k}, v{FA+k}, v{FA+8+k}")
    for r in (2, 4, 8):
        for k in range(8):
            a(f"v_add_f32_dpp v{FA+k}, v{FA+k}, v{FA+k} row_ror:{r} row_mask:0xf bank_mask:0xf")
    for k in range(8):
        a(f"v_mov_b32 v{FG+k}, v{FH+k}")
        a(f"v_mov_b32 v{FH+k}, v{FA+k}")
    a("s_cmp_eq_u32 s9, 1")
    a("s_cbranch_scc1 LF_p2")
    a("s_mov_b32 s9, 1")
    a("s_mov_b32 s44, s48")
    a("s_mov_b32 s45, s49")
    a("s_mov_b32 s48, s32")
    a("s_mov_b32 s49, s33")
    if args.fuse == 2:
        a("s_mov_b32 s50, 0")
    a("v_mov_b32 v22, v1")
    a("s_movk_i32 s12, 1024")
    a("s_lshl_b32 s10, s6, 14")
    a("s_branch LF_pass")
    a.label("LF_p2")
    a.nop(2)
    for k in range(8):
        g, u = f"v{FG+k}", f"v{FH+k}"
        round_bf16(a, g)
        round_bf16(a, u)
        a(f"v_mul_f32 {g}, s69, {g}")
        a(f"v_exp_f32 {g}, -{g}")
        a(f"v_add_f32 {g}, 1.0, {g}")
        a(f"v_rcp_f32 {g}, {g}")
        round_bf16(a, g)
        a(f"v_mul_f32 {u}, {g}, {u}")
        round_bf16(a, u)
    if args.fuse == 2:
        for k in range(4):
            a(f"v_cvt_pk_bf16_f32 v{FA+k}, v{FH+2*k}, v{FH+2*k+1}")
        a("v_lshrrev_b32 v2, 4, v0")
        a("s_movk_i32 s4, 2752")
        a("v_mul_lo_u32 v2, v2, s4")
        a("v_and_b32 v3, 1, v0")
        a("v_lshl_add_u32 v2, v3, 4, v2")
        a("s_lshl_b32 s10, s6, 5")
        a(f"s_add_u32 s10, s10, {WS_H - WS_F}")
        a("s_mov_b32 s4, 0x00030003")
        a("s_mov_b32 s5, 0x00030003")
        a("s_mov_b64 exec, s[4:5]")
        a(f"buffer_store_dwordx4 v[{FA}:{FA+3}], v2, s[60:63], s10 offen sc1")
    else:
        for k in range(32):
            a(f"v_mov_b32 v{FA+k}, 0")
        for f in range(16):
            for b in range(4):
                a(f"v_readlane_b32 s{80+b}, v{FH+(f&7)}, {16*b + (f >> 3)}")
            a(f"s_waitcnt vmcnt({min(FD-1, 15-f)})")
            for d in range(4):
                a(f"v_lshlrev_b32 v{FU+2*d}, 16, v{FB+4*f+d}")
                a(f"v_and_b32 v{FU+2*d+1}, s42, v{FB+4*f+d}")
            if f + FD < 16:
                a(f"buffer_load_dwordx4 {Fr(f+FD)}, v22, s[48:51], s11 offen{wnt}")
                a("s_add_u32 s11, s11, s12")
            for b in range(4):
                for e in range(8):
                    a(f"v_fmac_f32 v{FA+8*b+e}, s{80+b}, v{FU+e}")
        a(f"v_lshlrev_b32 v2, {4 if args.flin else 5}, v0")
        a("s_lshl_b32 s10, s6, 13")
        fsc = "" if args.dbg & 2 else ysc
        for b in range(4):
            a(f"buffer_store_dwordx4 v[{FA+8*b}:{FA+8*b+3}], v2, s[60:63], s10 offen offset:{2048*(b&1)}{fsc}")
            a(f"buffer_store_dwordx4 v[{FA+8*b+4}:{FA+8*b+7}], v2, s[60:63], s10 offen offset:{2048*(b&1)+(1024 if args.flin else 16)}{fsc}")
            if b == 1:
                a("s_add_u32 s10, s10, 4096")
    if args.fuse:
        a("s_mov_b32 s52, s38")
        a("s_mov_b32 s53, s39")
        a("s_movk_i32 s54, 256")
        a("s_and_b32 s4, s2, 7")
        a("s_lshl_b32 s4, s4, 5")
        a(f"v_mov_b32 v4, {1 if args.fuse == 2 else 0x10000}")
        a("v_mov_b32 v5, 0")
        a("s_mov_b64 exec, 1")
        a("s_waitcnt vmcnt(0)")
        if args.fuse == 2:
            a("buffer_atomic_add v4, v5, s[52:55], 0 offen offset:16")
        else:
            a("buffer_atomic_add v4, v5, s[52:55], s4 offen offset:8")
    stamp(5)
    a("s_branch LA_end2")
    if args.fuse:
        reducer(a, args, C_LANDED, stamp)
    a.label("LA_end")
    a("s_endpgm")

    if args.fuse:
        a.label("LB_end")
        a("s_endpgm")
    else:
        fin_kernel(a, args)
    if args.probe == 1:
        probe_kernel(a, args)

    for name, vg in (("attn_kernel", 168),) + (() if args.fuse else (("fin_kernel", 48),)) + ((("probe_kernel", 16),) if args.probe == 1 else ()):
        a.raw(f""".section .rodata,"a"
.p2align 6
.amdhsa_kernel {name}
  .amdhsa_next_free_vgpr {vg}
  .amdhsa_next_free_sgpr 100
  .amdhsa_accum_offset {vg}
  .amdhsa_group_segment_fixed_size 0
  .amdhsa_kernarg_size 104
  .amdhsa_user_sgpr_count 2
  .amdhsa_user_sgpr_kernarg_segment_ptr 1
  .amdhsa_system_sgpr_workgroup_id_x 1
.end_amdhsa_kernel""")
    return a.text()


def reducer(a, args, C_LANDED, stamp):
    Y0 = 40
    F0 = 72
    WT = 120
    AC = 8
    a.label("LA_red")
    a("s_sub_u32 s4, s2, 192")
    a("s_lshr_b32 s7, s4, 4")
    a("s_and_b32 s8, s4, 15")
    a("s_mov_b32 s44, s40")
    a("s_mov_b32 s45, s41")
    a(f"s_mov_b32 s46, {WS_F + NFFN*8192}")
    a("s_mov_b32 s48, s38")
    a("s_mov_b32 s49, s39")
    a("s_movk_i32 s50, 256")
    a("s_mov_b32 s52, s16")
    a("s_mov_b32 s53, s17")
    a("s_movk_i32 s54, 4096")
    a("s_mov_b32 s56, s34")
    a("s_mov_b32 s57, s35")
    a("s_movk_i32 s58, 1024")
    a("s_mov_b32 s60, s36")
    a("s_mov_b32 s61, s37")
    a("s_movk_i32 s62, 4096")
    a("v_lshrrev_b32 v20, 3, v0")
    a("v_and_b32 v21, 7, v0")
    a("v_lshlrev_b32 v3, 11, v20")
    a("v_lshl_add_u32 v3, v21, 4, v3")
    a("v_lshlrev_b32 v5, 13, v20")
    if args.flin:
        a("v_lshrrev_b32 v22, 1, v21")
        a("v_lshl_add_u32 v5, v22, 4, v5")
        a("v_and_b32 v22, 1, v21")
        a("v_lshl_add_u32 v5, v22, 10, v5")
    else:
        a("v_lshl_add_u32 v5, v21, 4, v5")
    a("v_lshlrev_b32 v6, 2, v0")
    a("v_lshlrev_b32 v7, 3, v0")
    a("v_lshlrev_b32 v2, 2, v20")
    a("v_lshrrev_b32 v22, 4, v0")
    a("v_and_b32 v23, 1, v22")
    a("v_lshlrev_b32 v23, 1, v23")
    a("v_lshrrev_b32 v22, 1, v22")
    a("v_or_b32 v23, v23, v22")
    a("v_lshl_add_u32 v23, v21, 2, v23")
    a("v_lshlrev_b32 v4, 1, v23")
    a(f"v_mov_b32 v16, {C_LANDED}")
    a("s_lshl_b32 s4, s7, 17")
    a("s_lshl_b32 s5, s8, 7")
    a("s_add_u32 s70, s4, s5")
    for i in range(1, 8):
        a(f"s_add_u32 s{70+i}, s{69+i}, 16384")
    a("s_lshl_b32 s11, s7, 9")
    a(f"s_add_u32 s11, s11, {WS_STATS}")
    a("s_lshl_b32 s12, s7, 11")
    if args.flin:
        a("s_lshr_b32 s5, s5, 1")
    a("s_add_u32 s12, s12, s5")
    a(f"s_add_u32 s12, s12, {WS_F}")
    a("s_lshl_b32 s15, s7, 10")
    a("s_lshl_b32 s5, s8, 6")
    a("s_add_u32 s13, s15, s5")
    a("v_mov_b32 v18, 0")

    def count_wait(tag, mask, val, slp):
        a(f"s_mov_b32 s9, {args.red_tmo}")
        a(f"s_mov_b32 s16, {mask & 0xffffffff:#x}")
        a(f"s_mov_b32 s17, {mask >> 32:#x}")
        a("v_mov_b32 v18, 0")
        a.label(f"LR_c{tag}")
        a("s_mov_b64 exec, s[16:17]")
        a("buffer_load_dword v18, v6, s[48:51], 0 offen sc1")
        a("s_mov_b64 exec, -1")
        a("s_waitcnt vmcnt(0)")
        a("v_add_u32_dpp v19, v18, v18 row_ror:8 row_mask:0xf bank_mask:0xf")
        for rr in (4, 2, 1):
            a(f"v_add_u32_dpp v19, v19, v19 row_ror:{rr} row_mask:0xf bank_mask:0xf")
        for g in range(4):
            a(f"v_readlane_b32 s{20+g}, v19, {16*g}")
        a("s_add_u32 s20, s20, s21")
        a("s_add_u32 s22, s22, s23")
        a("s_add_u32 s20, s20, s22")
        a(f"s_cmp_eq_u32 s20, {val}")
        a(f"s_cbranch_scc1 LR_cok{tag}")
        a(f"s_sleep {slp}")
        a("s_sub_u32 s9, s9, 1")
        a("s_cmp_lg_u32 s9, 0")
        a(f"s_cbranch_scc1 LR_c{tag}")
        a.label(f"LR_cok{tag}")

    if args.fuse == 2:
        WD, HH, DA, PT = 24, 72, 120, 152
        a("s_sub_u32 s4, s2, 192")
        a("s_lshr_b32 s14, s4, 3")
        a("s_and_b32 s5, s4, 7")
        a("s_mul_i32 s64, s14, 196608")
        a("s_lshl_b32 s4, s5, 7")
        a("s_add_u32 s64, s64, s4")
        a("s_mul_i32 s65, s14, 384")
        a("s_lshl_b32 s66, s14, 13")
        a("s_lshl_b32 s4, s5, 8")
        a("s_add_u32 s66, s66, s4")
        a(f"s_add_u32 s66, s66, {WS_F}")
        a("s_mov_b32 s24, s32")
        a("s_mov_b32 s25, s33")
        a("s_mov_b32 s26, 1409024")
        a("s_mov_b32 s27, 0x20000")
        a(f"s_add_u32 s28, s40, {WS_H}")
        a("s_addc_u32 s29, s41, 0")
        a("s_movk_i32 s30, 11008")
        a("s_mov_b32 s31, 0x20000")
        a("s_mov_b32 s80, 0x05040100")
        a("s_mov_b32 s81, 0x07060302")
        a("v_mul_u32_u24 v160, 24576, v20")
        a("v_lshl_add_u32 v160, v21, 4, v160")
        a("v_mul_u32_u24 v161, 48, v20")
        a("v_lshrrev_b32 v22, 4, v0")
        a("v_lshlrev_b32 v162, 11, v22")
        a("v_lshl_add_u32 v162, v21, 5, v162")
        a("v_bfe_u32 v22, v0, 3, 1")
        a("v_lshl_add_u32 v162, v22, 4, v162")
        a.label("LR_w0")
        a("s_sleep 32")
        a("ds_read_b32 v17, v16")
        a("s_waitcnt lgkmcnt(0)")
        a("v_readfirstlane_b32 s4, v17")
        a(f"s_cmp_lt_u32 s4, {args.red_t0}")
        a("s_cbranch_scc1 LR_w0")

        def wload(i):
            if i % 4 == 0 and i:
                a("s_add_u32 s64, s64, 4096")
            sl = WD + 4 * (i % 12)
            a(f"buffer_load_dwordx4 v[{sl}:{sl+3}], v160, s[24:27], s64 offen offset:{1024*(i&3)}")
        for i in range(12):
            wload(i)
        count_wait("h", 1 << 4, NFFN, args.red_slp)
        for b in range(4):
            for t in range(3):
                a(f"buffer_load_dwordx4 v[{HH+12*b+4*t}:{HH+12*b+4*t+3}], v161, s[28:31], s65 offen offset:{2752*(b&1)+16*t} sc1")
            if b == 1:
                a("s_add_u32 s65, s65, 5504")
        a("s_waitcnt vmcnt(0)")
        for p in range(12):
            if p >= 6:
                a(f"s_waitcnt vmcnt({22 - 2*p})")
            A_, B_ = WD + 4 * ((2 * p) % 12), WD + 4 * ((2 * p + 1) % 12)
            for d in range(4):
                a(f"v_perm_b32 v{PT+2*d}, v{B_+d}, v{A_+d}, s80")
                a(f"v_perm_b32 v{PT+2*d+1}, v{B_+d}, v{A_+d}, s81")
            if p < 6:
                wload(2 * p + 12)
                wload(2 * p + 13)
            for b in range(4):
                for e in range(8):
                    c = "0" if p == 0 else f"v{DA+8*b+e}"
                    a(f"v_dot2_f32_bf16 v{DA+8*b+e}, v{PT+e}, v{HH+12*b+p}, {c}")
        for k in range(16):
            a(f"v_permlane32_swap_b32 v{DA+k}, v{DA+16+k}")
        for k in range(16):
            a(f"v_add_f32 v{DA+k}, v{DA+k}, v{DA+16+k}")
        for k in range(8):
            a(f"v_permlane16_swap_b32 v{DA+k}, v{DA+8+k}")
        for k in range(8):
            a(f"v_add_f32 v{DA+k}, v{DA+k}, v{DA+8+k}")
        for k in range(4):
            a(f"v_add_f32_dpp v{DA+8+k}, v{DA+k}, v{DA+k} row_ror:8 row_mask:0xf bank_mask:0x3")
            a(f"v_add_f32_dpp v{DA+8+k}, v{DA+4+k}, v{DA+4+k} row_ror:8 row_mask:0xf bank_mask:0xc")
        a(f"buffer_store_dwordx4 v[{DA+8}:{DA+11}], v162, s[44:47], s66 offen sc1")
        a("v_mov_b32 v22, 0x10000")
        a("v_mov_b32 v23, 0")
        a("s_mov_b64 exec, 1")
        a("s_waitcnt vmcnt(0)")
        a("buffer_atomic_add v22, v23, s[48:51], 0 offen offset:144")
        a("s_mov_b64 exec, -1")
    a(f"s_sub_u32 s10, s79, {args.red_t1}")
    a.label("LR_w1")
    a("s_sleep 32")
    a("ds_read_b32 v17, v16")
    a("s_waitcnt lgkmcnt(0)")
    a("v_readfirstlane_b32 s4, v17")
    a("s_cmp_lt_u32 s4, s10")
    a("s_cbranch_scc1 LR_w1")
    stamp(1)
    a("buffer_load_dwordx4 v[24:27], v1, s[52:55], s15 offen")
    a("buffer_load_dwordx4 v[28:31], v1, s[56:59], 0 offen")
    count_wait("a", 0x0404040404040404 | ((1 << 36) if args.fuse == 2 else 0), 256 + ((64 if args.fuse == 2 else NFFN) << 16), args.red_slp)
    NF = 1 if args.fuse == 2 else 11
    for i in range(0 if args.dbg & 4 else NF):
        a(f"buffer_load_dwordx4 v[{F0+4*i}:{F0+4*i+3}], v5, s[44:47], s12 offen sc1")
        if i < NF - 1:
            a("s_add_u32 s12, s12, 65536")
    for d in range(4):
        a(f"v_lshlrev_b32 v{32+2*d}, 16, v{24+d}")
        a(f"v_and_b32 v{33+2*d}, s42, v{24+d}")
        a(f"v_lshlrev_b32 v{AC+2*d}, 16, v{28+d}")
        a(f"v_and_b32 v{AC+2*d+1}, s42, v{28+d}")
    for e in range(8):
        a(f"v_mul_f32 v{32+e}, v{32+e}, v{AC+e}")
    for e in range(8):
        round_bf16(a, f"v{32+e}")
    for st in (1, 2, 4):
        for e in range(0, 8, 2 * st):
            a(f"v_add_f32 v{32+e}, v{32+e}, v{32+e+st}")
    for r in (1, 2, 4, 8):
        a(f"v_add_f32_dpp v32, v32, v32 row_ror:{r} row_mask:0xf bank_mask:0xf")
    for g in range(4):
        a(f"v_readlane_b32 s{20+g}, v32, {16*g}")
    a("v_mov_b32 v32, s20")
    a("v_add_f32 v32, s21, v32")
    a("v_add_f32 v32, s22, v32")
    a("v_add_f32 v32, s23, v32")
    round_bf16(a, "v32")
    a("v_mul_f32 v32, s69, v32")
    a("v_exp_f32 v32, -v32")
    a("v_add_f32 v32, 1.0, v32")
    a("v_rcp_f32 v32, v32")
    round_bf16(a, "v32")
    a("v_sub_f32 v33, 1.0, v32")
    round_bf16(a, "v33")

    def red4(b):
        a(f"v_permlane32_swap_b32 v{b}, v{b+1}")
        a(f"v_permlane32_swap_b32 v{b+2}, v{b+3}")
        a(f"v_add_f32 v{b}, v{b}, v{b+1}")
        a(f"v_add_f32 v{b+2}, v{b+2}, v{b+3}")
        a(f"v_permlane16_swap_b32 v{b}, v{b+2}")
        a(f"v_add_f32 v{b}, v{b}, v{b+2}")
        a(f"v_add_f32_dpp v{b}, v{b}, v{b} row_ror:8 row_mask:0xf bank_mask:0xf")

    for k in range(32):
        a(f"v_mov_b32 v{Y0+k}, -1")
    a("v_mov_b32 v36, -1")
    a("v_mov_b32 v37, -1")
    for i in range(8):
        a(f"s_mov_b64 s[{16+2*i}:{17+2*i}], -1")
    a("s_mov_b64 s[32:33], -1")
    a("s_mov_b32 s36, 0x00ff00ff")
    a("s_mov_b32 s37, 0x00ff00ff")
    a("s_waitcnt vmcnt(0)")
    for st in (1, 2, 4, 8):
        for i in range(0, NF, 2 * st):
            if i + st < NF:
                for c in range(4):
                    a(f"v_add_f32 v{F0+4*i+c}, v{F0+4*i+c}, v{F0+4*(i+st)+c}")
    red4(F0)
    round_bf16(a, f"v{F0}")
    a(f"v_mul_f32 v33, v33, v{F0}")
    round_bf16(a, "v33")
    stamp(2)
    a(f"s_sub_u32 s10, s79, {args.red_t2}")
    a.label("LR_w2")
    a("s_sleep 4")
    a("ds_read_b32 v17, v16")
    a("s_waitcnt lgkmcnt(0)")
    a("v_readfirstlane_b32 s4, v17")
    a("s_cmp_lt_u32 s4, s10")
    a("s_cbranch_scc1 LR_w2")
    a(f"s_mov_b32 s9, {args.red_tmo}")
    a(f"s_setprio {args.red_prio}")
    stamp(3)
    if args.red_a:
        a.label("LR_a")
        a("buffer_load_dwordx2 v[36:37], v7, s[44:47], s11 offen sc1")
        a("s_sub_u32 s9, s9, 1")
        a("s_waitcnt vmcnt(0)")
        a("v_max_u32 v38, v36, v37")
        a("v_cmp_eq_u32 s[32:33], -1, v38")
        a("s_cmp_eq_u32 s9, 0")
        a("s_cbranch_scc1 LR_ae")
        a("s_bcnt1_i32_b64 s4, s[32:33]")
        a(f"s_cmp_gt_u32 s4, {64 - args.red_a}")
        a("s_cbranch_scc1 LR_a")
        a.label("LR_ae")
        a(f"s_mov_b32 s9, {args.red_tmo}")
    stamp(4)
    a.label("LR_p")
    a("s_or_b64 exec, s[32:33], 1")
    a("buffer_load_dwordx2 v[36:37], v7, s[44:47], s11 offen sc1")
    for i in range(8):
        a(f"s_or_b64 exec, s[{16+2*i}:{17+2*i}], 1")
        a(f"buffer_load_dwordx4 v[{Y0+4*i}:{Y0+4*i+3}], v3, s[44:47], s{70+i} offen sc1")
    a("s_mov_b64 exec, -1")
    a("s_sub_u32 s9, s9, 1")
    a("s_waitcnt vmcnt(8)")
    a("v_max_u32 v38, v36, v37")
    a("v_mov_b32_dpp v39, v36 quad_perm:[1,0,3,2] row_mask:0xf bank_mask:0xf")
    a("v_cmp_eq_u32 s[32:33], -1, v38")
    a("v_max_f32 v39, v36, v39")
    a("v_sub_f32 v38, v36, v39")
    a("v_mul_f32 v38, s69, v38")
    a("v_exp_f32 v38, v38")
    a("v_mul_f32 v38, v38, v37")
    a("v_add_f32_dpp v39, v38, v38 quad_perm:[1,0,3,2] row_mask:0xf bank_mask:0xf")
    a("v_rcp_f32 v39, v39")
    a("v_mul_f32 v38, v38, v39")
    for i in range(8):
        a(f"ds_bpermute_b32 v{WT+i}, v2, v38 offset:{32*i}")
    a("s_mov_b64 s[34:35], s[32:33]")
    for i in range(8):
        y = Y0 + 4 * i
        a(f"s_waitcnt vmcnt({7-i})")
        a(f"v_max3_u32 v38, v{y}, v{y+1}, v{y+2}")
        a(f"v_max_u32 v38, v38, v{y+3}")
        a(f"v_cmp_eq_u32 s[{16+2*i}:{17+2*i}], -1, v38")
        if i == 0:
            a("s_waitcnt lgkmcnt(0)")
        o = AC + 4 * (i & 1)
        for c in range(4):
            if i < 2:
                a(f"v_mul_f32 v{o+c}, v{WT+i}, v{y+c}")
            else:
                a(f"v_fmac_f32 v{o+c}, v{WT+i}, v{y+c}")
        a(f"s_or_b64 s[34:35], s[34:35], s[{16+2*i}:{17+2*i}]")
    for c in range(4):
        a(f"v_add_f32 v{AC+c}, v{AC+c}, v{AC+4+c}")
    a("s_cmp_eq_u32 s9, 0")
    a("s_cselect_b64 s[34:35], 0, s[34:35]")
    red4(AC)
    a("s_cmp_eq_u64 s[34:35], 0")
    a("s_cselect_b64 s[38:39], s[36:37], 0")
    round_bf16(a, f"v{AC}")
    a(f"v_mul_f32 v{AC}, v32, v{AC}")
    round_bf16(a, f"v{AC}")
    a(f"v_add_f32 v{AC}, v{AC}, v33")
    a(f"v_cvt_pk_bf16_f32 v{AC}, v{AC}, v{AC}")
    a("s_mov_b64 exec, s[38:39]")
    a(f"buffer_store_short v{AC}, v4, s[60:63], s13 offen")
    a("s_cbranch_scc0 LR_p")
    a("s_mov_b64 exec, -1")
    stamp(5)
    a("s_branch LA_end2")


def probe_kernel(a, args):
    a.raw(".globl probe_kernel\n.p2align 8\n.type probe_kernel,@function")
    a.label("probe_kernel")
    a("s_cmp_ge_u32 s2, 1")
    a("s_cbranch_scc1 LP_end")
    a("s_load_dwordx16 s[16:31], s[0:1], 0")
    a("s_load_dwordx2 s[40:41], s[0:1], 96")
    a("s_mov_b32 s46, 0x08000000")
    a("s_mov_b32 s47, 0x20000")
    a("s_mov_b32 s62, 4096")
    a("s_mov_b32 s63, 0x20000")
    a("v_mov_b32 v1, 0")
    a("s_mov_b64 exec, 1")
    a("s_waitcnt lgkmcnt(0)")
    a(f"s_add_u32 s60, s40, {3<<20}")
    a("s_addc_u32 s61, s41, 0")
    n = 0
    for base in (18, 20):
        a(f"s_mov_b32 s44, s{base}")
        a(f"s_mov_b32 s45, s{base+1}")
        for i in range(8):
            off = i * (16 << 20) + (8 << 20) + 0x12300
            a(f"s_mov_b32 s10, {off}")
            a(f"buffer_load_dword v2, v1, s[44:47], s10 offen {args.probe_pol}")
            a("s_waitcnt vmcnt(0)")
            a("v_mov_b32 v3, 0")
            for r in range(4):
                a(f"s_add_u32 s10, s10, {0x4d00}")
                a("s_memtime s[12:13]")
                a("s_waitcnt lgkmcnt(0)")
                a(f"buffer_load_dword v2, v1, s[44:47], s10 offen {args.probe_pol}")
                a("s_waitcnt vmcnt(0)")
                a("s_memtime s[14:15]")
                a("s_waitcnt lgkmcnt(0)")
                a("s_sub_u32 s14, s14, s12")
                a("v_add_u32 v3, s14, v3")
            a(f"buffer_store_dword v3, v1, s[60:63], 0 offen offset:{4*n}")
            n += 1
    a.label("LP_end")
    a("s_endpgm")


def fin_kernel(a, args):
    a.raw(".globl fin_kernel\n.p2align 8\n.type fin_kernel,@function")
    a.label("fin_kernel")
    a("s_cmp_ge_u32 s2, 64")
    a("s_cbranch_scc1 LB_end")
    if args.probe == 2:
        a("s_cmp_lg_u32 s2, 0")
        a("s_cbranch_scc1 LB_nodiag")
        a("s_memrealtime s[20:21]")
        a("s_load_dwordx4 s[4:7], s[0:1], 88")
        a("s_mov_b32 s46, 0x100000")
        a("s_mov_b32 s47, 0x20000")
        a("s_mov_b32 s50, 64")
        a("s_mov_b32 s51, 0x20000")
        a("s_waitcnt lgkmcnt(0)")
        a(f"s_add_u32 s44, s6, {4<<20}")
        a("s_addc_u32 s45, s7, 0")
        a("s_mov_b32 s48, s4")
        a("s_mov_b32 s49, s5")
        a("v_mul_u32_u24 v1, 640, v0")
        a("v_mov_b32 v2, 0")
        a("buffer_load_dword v3, v2, s[44:47], 0 offen")
        for k in range(6):
            a(f"buffer_load_dword v{4+k}, v1, s[44:47], 0 offen offset:{8*k}")
        a("buffer_load_dword v10, v1, s[44:47], 0 offen offset:104")
        a("s_waitcnt vmcnt(0)")
        a("v_mov_b32 v12, 0x10000")
        for k in range(7):
            a(f"v_sub_u32 v{4+k}, v{4+k}, v3")
            a(f"v_add_u32 v{4+k}, 1000, v{4+k}")
            a(f"buffer_atomic_umax v{4+k}, v2, s[48:51], 0 offen offset:{8*k}")
            a(f"v_sub_u32 v11, v12, v{4+k}")
            a(f"buffer_atomic_umax v11, v2, s[48:51], 0 offen offset:{8*k+4}")
        a("v_sub_u32 v4, s20, v3")
        a("v_add_u32 v4, 1000, v4")
        a("buffer_atomic_umax v4, v2, s[48:51], 0 offen offset:56")
        a("s_waitcnt vmcnt(0)")
        a.label("LB_nodiag")
    a("s_load_dwordx2 s[16:17], s[0:1], 0")
    a("s_load_dwordx4 s[32:35], s[0:1], 72")
    a("s_load_dwordx2 s[40:41], s[0:1], 96")
    a("s_lshr_b32 s7, s2, 4")
    a("s_and_b32 s8, s2, 15")
    a("s_mov_b32 s42, 0xffff0000")
    a(f"s_mov_b32 s69, {LOG2E:#x}")
    for r in (47, 51, 55, 59, 63):
        a(f"s_mov_b32 s{r}, 0x20000")
    a(f"s_mov_b32 s46, {WS_STATS + 2048}")
    a(f"s_mov_b32 s50, {NFFN*8192}")
    a("s_mov_b32 s54, 4096")
    a("s_mov_b32 s58, 1024")
    a("s_mov_b32 s62, 4096")
    a("v_lshrrev_b32 v1, 3, v0")
    a("v_and_b32 v2, 7, v0")
    a("v_lshlrev_b32 v3, 11, v1")
    a("v_lshl_add_u32 v3, v2, 4, v3")
    a("v_lshrrev_b32 v4, 1, v1")
    a("v_lshlrev_b32 v4, 4, v4")
    a("v_lshlrev_b32 v5, 13, v1")
    a("v_lshl_add_u32 v5, v2, 4, v5")
    a("v_lshlrev_b32 v6, 2, v0")
    a("s_lshl_b32 s4, s7, 17")
    a("s_lshl_b32 s5, s8, 7")
    a("s_add_u32 s4, s4, s5")
    a("s_add_u32 s10, s4, 65536")
    a("s_lshl_b32 s11, s7, 9")
    a(f"s_add_u32 s11, s11, {WS_STATS}")
    a("s_lshl_b32 s12, s7, 11")
    a("s_add_u32 s12, s12, s5")
    a("s_add_u32 s13, s12, 0x40000")
    a("s_add_u32 s14, s12, 0x80000")
    a("s_lshl_b32 s15, s7, 10")
    a("s_waitcnt lgkmcnt(0)")
    a("s_mov_b32 s44, s40")
    a("s_mov_b32 s45, s41")
    a(f"s_add_u32 s48, s40, {WS_F}")
    a("s_addc_u32 s49, s41, 0")
    a("s_mov_b32 s52, s16")
    a("s_mov_b32 s53, s17")
    a("s_mov_b32 s56, s32")
    a("s_mov_b32 s57, s33")
    a("s_mov_b32 s60, s34")
    a("s_mov_b32 s61, s35")
    a("buffer_load_dwordx4 v[8:11], v4, s[44:47], s11 offen")
    a("buffer_load_dwordx4 v[12:15], v4, s[44:47], s11 offen offset:256")
    a("buffer_load_dword v36, v6, s[52:55], s15 offen")
    a("buffer_load_dword v37, v6, s[56:59], 0 offen")
    a("buffer_load_dwordx4 v[16:19], v3, s[44:47], s4 offen")
    a("buffer_load_dwordx4 v[20:23], v3, s[44:47], s10 offen")
    a("buffer_load_dwordx4 v[24:27], v5, s[48:51], s12 offen")
    a("buffer_load_dwordx4 v[28:31], v5, s[48:51], s13 offen")
    a("buffer_load_dwordx4 v[32:35], v5, s[48:51], s14 offen")
    a("v_and_b32 v7, 1, v1")
    a("v_cmp_eq_u32 vcc, 1, v7")
    a("s_waitcnt vmcnt(7)")
    for k, sb in enumerate((8, 12)):
        w = f"v{38+k}"
        a(f"v_max_f32 v40, v{sb}, v{sb+2}")
        a(f"v_sub_f32 v{sb}, v{sb}, v40")
        a(f"v_sub_f32 v{sb+2}, v{sb+2}, v40")
        a(f"v_mul_f32 v{sb}, s69, v{sb}")
        a(f"v_mul_f32 v{sb+2}, s69, v{sb+2}")
        a(f"v_exp_f32 v{sb}, v{sb}")
        a(f"v_exp_f32 v{sb+2}, v{sb+2}")
        a(f"v_mul_f32 v{sb}, v{sb}, v{sb+1}")
        a(f"v_mul_f32 v{sb+2}, v{sb+2}, v{sb+3}")
        a(f"v_add_f32 v40, v{sb}, v{sb+2}")
        a("v_rcp_f32 v40, v40")
        a(f"v_cndmask_b32 {w}, v{sb}, v{sb+2}, vcc")
        a(f"v_mul_f32 {w}, {w}, v40")
    a("s_waitcnt vmcnt(5)")
    a("v_lshlrev_b32 v40, 16, v36")
    a("v_and_b32 v41, s42, v36")
    a("v_lshlrev_b32 v42, 16, v37")
    a("v_and_b32 v43, s42, v37")
    a("v_mul_f32 v40, v40, v42")
    a("v_mul_f32 v41, v41, v43")
    round_bf16(a, "v40")
    round_bf16(a, "v41")
    a("v_add_f32 v40, v40, v41")
    for r in (1, 2, 4, 8):
        a(f"v_add_f32_dpp v40, v40, v40 row_ror:{r} row_mask:0xf bank_mask:0xf")
    for g in range(4):
        a(f"v_readlane_b32 s{80+g}, v40, {16*g}")
    a("v_mov_b32 v40, s80")
    a("v_add_f32 v40, s81, v40")
    a("v_add_f32 v40, s82, v40")
    a("v_add_f32 v40, s83, v40")
    a("v_lshrrev_b32 v41, 6, v0")
    a("v_lshlrev_b32 v42, 2, v41")
    a("ds_write_b32 v42, v40 offset:1024")
    a("s_waitcnt vmcnt(3)")
    for k in range(4):
        a(f"v_mul_f32 v{16+k}, v38, v{16+k}")
        a(f"v_fmac_f32 v{16+k}, v39, v{20+k}")
    a("s_waitcnt vmcnt(0)")
    for k in range(4):
        a(f"v_add_f32 v{24+k}, v{24+k}, v{28+k}")
        a(f"v_add_f32 v{24+k}, v{24+k}, v{32+k}")
    for k in range(4):
        a(f"v_permlane32_swap_b32 v{16+k}, v{24+k}")
    for k in range(4):
        a(f"v_add_f32 v{16+k}, v{16+k}, v{24+k}")
    a("v_permlane16_swap_b32 v16, v17")
    a("v_permlane16_swap_b32 v18, v19")
    a("v_add_f32 v16, v16, v17")
    a("v_add_f32 v18, v18, v19")
    a("v_add_f32_dpp v16, v16, v16 row_ror:8 row_mask:0xf bank_mask:0xf")
    a("v_add_f32_dpp v18, v18, v18 row_ror:8 row_mask:0xf bank_mask:0xf")
    a("v_bfe_u32 v43, v0, 5, 1")
    a("v_lshlrev_b32 v43, 7, v43")
    a("v_lshl_add_u32 v43, v41, 8, v43")
    a("v_lshl_add_u32 v43, v2, 4, v43")
    a("v_bfe_u32 v44, v0, 4, 1")
    a("v_lshl_add_u32 v43, v44, 2, v43")
    a("ds_write_b32 v43, v16")
    a("ds_write_b32 v43, v18 offset:8")
    a("s_waitcnt lgkmcnt(0)")
    a("s_barrier")
    a("v_cmp_gt_u32 vcc, 32, v0")
    a("s_and_saveexec_b64 s[84:85], vcc")
    a("s_cbranch_execz LB_end")
    a("v_mov_b32 v1, 0")
    for w in range(4):
        a(f"ds_read_b32 v{8+w}, v6 offset:{256*w}")
        a(f"ds_read_b32 v{12+w}, v6 offset:{256*w+128}")
    a("ds_read_b128 v[16:19], v1 offset:1024")
    a("s_waitcnt lgkmcnt(0)")
    a("v_add_f32 v8, v8, v9")
    a("v_add_f32 v10, v10, v11")
    a("v_add_f32 v12, v12, v13")
    a("v_add_f32 v14, v14, v15")
    a("v_add_f32 v16, v16, v17")
    a("v_add_f32 v18, v18, v19")
    a("v_add_f32 v8, v8, v10")
    a("v_add_f32 v12, v12, v14")
    a("v_add_f32 v16, v16, v18")
    round_bf16(a, "v8")
    round_bf16(a, "v12")
    round_bf16(a, "v16")
    a("v_mul_f32 v16, s69, v16")
    a("v_exp_f32 v16, -v16")
    a("v_add_f32 v16, 1.0, v16")
    a("v_rcp_f32 v16, v16")
    round_bf16(a, "v16")
    a("v_sub_f32 v17, 1.0, v16")
    round_bf16(a, "v17")
    a("v_mul_f32 v8, v16, v8")
    a("v_mul_f32 v12, v17, v12")
    round_bf16(a, "v8")
    round_bf16(a, "v12")
    a("v_add_f32 v8, v8, v12")
    a("v_cvt_pk_bf16_f32 v8, v8, v8")
    a("v_lshlrev_b32 v1, 1, v0")
    a("s_lshl_b32 s4, s7, 10")
    a("s_lshl_b32 s5, s8, 6")
    a("s_add_u32 s4, s4, s5")
    a("buffer_store_short v8, v1, s[60:63], s4 offen")
    if args.probe == 1:
        a("s_cmp_lg_u32 s2, 0")
        a("s_cbranch_scc1 LB_end")
        a("s_load_dwordx2 s[4:5], s[0:1], 88")
        a(f"s_add_u32 s44, s40, {3<<20}")
        a("s_addc_u32 s45, s41, 0")
        a("s_mov_b32 s46, 64")
        a("s_mov_b32 s50, 64")
        a("buffer_load_dword v8, v6, s[44:47], 0 offen")
        a("s_waitcnt vmcnt(0) lgkmcnt(0)")
        a("s_mov_b32 s48, s4")
        a("s_mov_b32 s49, s5")
        a("buffer_store_dword v8, v6, s[48:51], 0 offen")
    a.label("LB_end")
    a("s_endpgm")


if __name__ == "__main__":
    ap = argparse.ArgumentParser()
    ap.add_argument("-o", default="v2.s")
    ap.add_argument("--ts", type=int, default=0)
    ap.add_argument("--slots", type=int, default=16)
    ap.add_argument("--inflight", type=int, default=24)
    ap.add_argument("--wo_at", type=int, default=1)
    ap.add_argument("--wo_npj", type=int, default=2)
    ap.add_argument("--fd", type=int, default=2)
    ap.add_argument("--pf", type=int, default=1)
    ap.add_argument("--coop", type=int, default=0)
    ap.add_argument("--wnt", type=int, default=1)
    ap.add_argument("--cnt", type=int, default=1)
    ap.add_argument("--dshift", type=int, default=4)
    ap.add_argument("--prep_at", type=int, default=11)
    ap.add_argument("--warm", type=int, default=12)
    ap.add_argument("--map", default="xcd")
    ap.add_argument("--ffn_wait", type=int, default=1)
    ap.add_argument("--tk", type=int, default=1)
    ap.add_argument("--warmfin", type=int, default=0)
    ap.add_argument("--early", type=int, default=0)
    ap.add_argument("--early_code", type=int, default=1)
    ap.add_argument("--nspec", type=int, default=3)
    ap.add_argument("--lost_sleep", type=int, default=12)
    ap.add_argument("--probe", type=int, default=0)
    ap.add_argument("--probe_pol", default="nt")
    ap.add_argument("--kp", default="nt")
    ap.add_argument("--vp", default="nt")
    ap.add_argument("--rate", type=int, default=33)
    ap.add_argument("--glob", type=float, default=0)
    ap.add_argument("--xbias", type=float, default=0)
    ap.add_argument("--monx", type=int, default=0)
    ap.add_argument("--bstride", type=int, default=4352)
    ap.add_argument("--monld", default="sc1")
    ap.add_argument("--shard", default="xcd")
    ap.add_argument("--mon", type=int, default=0)
    ap.add_argument("--mon_stop", type=int, default=6)
    ap.add_argument("--lv", default="16,12,22,30,40")
    ap.add_argument("--th", default="-4,0,2,4")
    ap.add_argument("--end_code", type=int, default=0)
    ap.add_argument("--deepcls", type=int, default=0)
    ap.add_argument("--inf2", type=int, default=0)
    ap.add_argument("--deep_at", type=int, default=24)
    ap.add_argument("--tkmap", type=int, default=0)
    ap.add_argument("--fuse", type=int, default=0)
    ap.add_argument("--tail2", type=int, default=0)
    ap.add_argument("--yx4", type=int, default=0)
    ap.add_argument("--flin", type=int, default=0)
    ap.add_argument("--dbg", type=int, default=0)
    ap.add_argument("--red_t0", type=int, default=40)
    ap.add_argument("--red_slp", type=int, default=64)
    ap.add_argument("--red_t1", type=int, default=24)
    ap.add_argument("--red_t2", type=int, default=6)
    ap.add_argument("--red_a", type=int, default=24)
    ap.add_argument("--red_prio", type=int, default=2)
    ap.add_argument("--red_tmo", type=int, default=2000)
    args = ap.parse_args()
    open(args.o, "w").write(gen(args))
```

```python
import sys, argparse
sys.path.insert(0, "work")
from asmlib import Asm

HEADER = open("gated_mix__gqa_block_cached__glu_gated_glu__decode.s.ref").read().split("; Override launch")[0]

WS_Y = 0
WS_STATS = 512 * 1024
WS_F = 1024 * 1024
NFFN = 86
WS_BOARD = 2 * 1024 * 1024
WS_H4 = WS_F + 98304
WS_H = WS_F + 65536

LOG2E = 0x3FB8AA3B
SCALE = 0x3DB504F3


def round_bf16(a, v):
    a(f"v_cvt_pk_bf16_f32 {v}, {v}, {v}")
    a(f"v_and_b32 {v}, s42, {v}")


def gen(args):
    a = Asm()
    NS = args.slots
    NJ = 128
    wnt = " nt" if args.wnt else ""
    cnt = " nt" if args.cnt else ""
    DS = args.dshift
    INF = args.inflight
    INF2 = args.inf2 or INF
    RING = NS * 8192
    WSH = WS_H4 if args.fuse == 4 else WS_H
    LV = [int(x) for x in args.lv.split(",")]
    TH = [float(x) for x in args.th.split(",")]
    C_LANDED = RING
    C_DONE = RING + 4
    C_BAR = RING + 64
    C_DEPTH = RING + 128
    L_QP = RING + 256
    L_OP = L_QP
    L_ST = L_OP + 4096
    C_TK = L_ST + 128
    L_QQ = L_ST + 256
    L_XT = L_QQ + 2048
    LDS_A = L_XT + 8192
    L_Y = 0
    assert LDS_A <= 163840
    W0, KB, VB, T0 = 40, 104, 120, 24
    ACC, Q = 8, 4
    P, M, L = 16, 17, 18
    VRED = 19
    VZ = 136
    VBASE = 137
    VDONE = 138
    VCNT = 139

    def Wr(i): return f"v[{W0+4*i}:{W0+4*i+3}]"

    def stamp(k, mode=1):
        if args.ts and (mode == args.ts or k in (0, 1, 5)):
            a(f"s_memrealtime s[{84+2*k}:{85+2*k}]")

    def stamp_store():
        if args.ts:
            a("s_mov_b64 exec, 1")
            a("s_mul_i32 s4, s2, 10")
            a("s_add_u32 s4, s4, s3")
            a("s_lshl_b32 s4, s4, 6")
            a(f"s_add_u32 s60, s40, {4<<20}")
            a("s_addc_u32 s61, s41, 0")
            a("s_mov_b32 s62, 0x100000")
            a("s_mov_b32 s63, 0x20000")
            a("v_mov_b32 v2, 0")
            a("s_getreg_b32 s96, hwreg(HW_REG_XCC_ID)")
            a("s_getreg_b32 s97, hwreg(HW_REG_HW_ID)")
            a("s_waitcnt lgkmcnt(0)")
            for k in range(7):
                a(f"v_mov_b32 v4, s{84+2*k}")
                a(f"v_mov_b32 v5, s{85+2*k}")
                a(f"buffer_store_dwordx2 v[4:5], v2, s[60:63], s4 offen offset:{8*k}")
                a.nop(2)

    def lds_barrier(k, tag, cnt=8):
        a("s_waitcnt lgkmcnt(0)")
        a("s_mov_b64 exec, 1")
        a(f"ds_add_u32 v{VZ}, v{VCNT} offset:{C_BAR - RING + 4*k}")
        a("s_mov_b64 exec, -1")
        a.label(f"LB_spin{tag}")
        a(f"ds_read_b32 v23, v{VZ} offset:{C_BAR - RING + 4*k}")
        a("s_waitcnt lgkmcnt(0)")
        a("v_readfirstlane_b32 s14, v23")
        a(f"s_cmp_lt_u32 s14, {cnt}")
        a(f"s_cbranch_scc1 LB_spin{tag}")

    a.raw(HEADER.rstrip("\n"))
    if args.probe == 1:
        a.raw("; @launch kernel=probe_kernel grid=(1,1,1) block=(64,1,1) lds=0")
    a.raw(f"; @launch kernel=attn_kernel grid=(256,1,1) block=({704 if args.mon else 640},1,1) lds={LDS_A}")
    if not args.fuse:
        a.raw("; @launch kernel=fin_kernel grid=(64,1,1) block=(256,1,1) lds=2048")
    a.raw('.amdgcn_target "amdgcn-amd-amdhsa--gfx950"')
    a.raw(".text")
    a.raw(".globl attn_kernel\n.p2align 8\n.type attn_kernel,@function")
    a.label("attn_kernel")
    a("s_cmp_ge_u32 s2, 256")
    a("s_cbranch_scc1 LA_end")
    a("s_load_dwordx16 s[16:31], s[0:1], 0")
    a("s_load_dwordx8 s[32:39], s[0:1], 64")
    a("s_load_dwordx2 s[40:41], s[0:1], 96")
    stamp(0)
    a("v_lshrrev_b32 v1, 6, v0")
    a("v_readfirstlane_b32 s3, v1")
    def vid(dst, x, t, tmp):
        a(f"s_bfe_u32 {dst}, {t}, 0x20001")
        a(f"s_lshl_b32 {dst}, {dst}, 3")
        a(f"s_or_b32 {dst}, {dst}, {x}")
        a(f"s_and_b32 {tmp}, {t}, 1")
        a(f"s_lshl_b32 {tmp}, {tmp}, 5")
        a(f"s_or_b32 {dst}, {dst}, {tmp}")
        a(f"s_lshr_b32 {tmp}, {t}, 3")
        a(f"s_lshl_b32 {tmp}, {tmp}, 6")
        a(f"s_or_b32 {dst}, {dst}, {tmp}")

    def sync(tag):
        a("s_cmp_lg_u32 s77, 0")
        a(f"s_cbranch_scc1 LA_synced{tag}")
        a(f"v_mov_b32 v4, {C_TK}")
        a("s_barrier")
        a("ds_read_b32 v5, v4")
        a("s_mov_b32 s77, 1")
        a("s_waitcnt lgkmcnt(0)")
        a("v_readfirstlane_b32 s4, v5")
        a("s_cmp_eq_u32 s4, s2")
        a(f"s_cbranch_scc1 LA_synced{tag}")
        a("s_mov_b32 s2, s4")
        a("s_branch LA_tk_done")
        a.label(f"LA_synced{tag}")

    if args.tk == 2:
        a("s_getreg_b32 s72, hwreg(HW_REG_XCC_ID)")
        a("s_getreg_b32 s4, hwreg(HW_REG_HW_ID)")
        a("s_and_b32 s72, s72, 7")
        a("s_bfe_u32 s73, s4, 0x2000d")
        a("s_lshl_b32 s73, s73, 3")
        a("s_bfe_u32 s4, s4, 0x30008")
        a("s_add_u32 s4, s4, s73")
        a("s_lshl_b32 s74, 1, s4")
        vid("s2", "s72", "s4", "s5")
        a("s_mov_b32 s77, 0")
        a("s_cmp_eq_u32 s3, 0")
        a("s_cbranch_scc1 LA_tk_done")
    elif args.tk:
        a("s_cmp_eq_u32 s3, 0")
        a("s_cbranch_scc1 LA_tk")
    if args.pf:
        a("s_getpc_b64 s[64:65]")
        a.label("LA_pc")
        a("s_mov_b32 s66, LB_end-LA_pc")
        a("s_mov_b32 s67, 0x20000")
        a("v_lshlrev_b32 v2, 6, v0")
        a("buffer_load_dword v39, v2, s[64:67], 0 offen")
    a("v_and_b32 v0, 63, v0")
    a("v_lshlrev_b32 v3, 2, v0")
    a("v_mov_b32 v2, 0")
    a(f"v_add_u32 v3, {RING}, v3")
    a("ds_write_b32 v3, v2")
    if args.tk == 2:
        a.label("LA_tk_done")
        a("s_cmp_ge_u32 s2, 256")
        a("s_cbranch_scc1 LA_end")
    elif args.tk:
        a(f"v_mov_b32 v4, {C_TK}")
        a("s_waitcnt lgkmcnt(0)")
        a("s_barrier")
        a("ds_read_b32 v5, v4")
        a("s_waitcnt lgkmcnt(0)")
        a("v_readfirstlane_b32 s2, v5")
        a("s_branch LA_tk_done")
        a.label("LA_tk")
        a("s_getreg_b32 s4, hwreg(HW_REG_XCC_ID)")
        a("s_and_b32 s4, s4, 7")
        a("s_movk_i32 s62, 256")
        a("s_mov_b32 s63, 0x20000")
        a("s_mov_b32 s9, 0")
        a(f"v_mov_b32 v6, {C_TK}")
        a("s_mov_b64 exec, 1")
        a("s_waitcnt lgkmcnt(0)")
        a("s_mov_b32 s60, s38")
        a("s_mov_b32 s61, s39")
        a.label("LA_tk_loop")
        a("s_lshl_b32 s5, s4, 5")
        a("v_mov_b32 v4, 1")
        a("v_mov_b32 v5, s5")
        a("buffer_atomic_add v4, v5, s[60:63], 0 offen sc0")
        a("s_waitcnt vmcnt(0)")
        a("v_readfirstlane_b32 s5, v4")
        a("s_cmp_lt_u32 s5, 32")
        a("s_cbranch_scc1 LA_tk_got")
        a("s_add_u32 s4, s4, 1")
        a("s_and_b32 s4, s4, 7")
        a("s_add_u32 s9, s9, 1")
        a("s_cmp_lt_u32 s9, 8")
        a("s_cbranch_scc1 LA_tk_loop")
        a("s_movk_i32 s5, 64")
        a.label("LA_tk_got")
        a("s_and_b32 s2, s5, 3")
        a(f"s_lshl_b32 s2, s2, {6 if args.tkmap else 3}")
        a("s_or_b32 s2, s2, s4")
        a("s_bfe_u32 s4, s5, 0x10004")
        a("s_lshl_b32 s4, s4, 5")
        a("s_or_b32 s2, s2, s4")
        a("s_bfe_u32 s4, s5, 0x20002")
        a(f"s_lshl_b32 s4, s4, {3 if args.tkmap else 6}")
        a("s_or_b32 s2, s2, s4")
        a("s_and_b32 s4, s5, 64")
        a("s_lshl_b32 s4, s4, 2")
        a("s_or_b32 s2, s2, s4")
        a("v_mov_b32 v4, s2")
        a("ds_write_b32 v6, v4")
        a("s_mov_b64 exec, -1")
        a("s_waitcnt lgkmcnt(0)")
        a("s_barrier")
        a.label("LA_tk_done")
        a("s_cmp_ge_u32 s2, 256")
        a("s_cbranch_scc1 LA_end")
    if args.map == "pair":
        a("s_lshr_b32 s4, s2, 1")
        a("s_and_b32 s5, s4, 3")
        a("s_lshl_b32 s5, s5, 3")
        a("s_bfe_u32 s6, s4, 0x30002")
        a("s_add_u32 s6, s6, s5")
        a("s_lshr_b32 s7, s4, 5")
        a("s_and_b32 s8, s2, 1")
    else:
        a("s_and_b32 s4, s2, 7")
        a("s_bfe_u32 s6, s2, 0x20003")
        a("s_lshl_b32 s4, s4, 2")
        a("s_add_u32 s6, s6, s4")
        a("s_lshr_b32 s7, s2, 6")
        a("s_bfe_u32 s8, s2, 0x10005")
    a("s_lshl_b32 s5, s7, 5")
    a("s_add_u32 s5, s5, s6")
    a(f"s_cmp_lt_u32 s5, {NFFN}")
    a(f"s_cselect_b32 s4, {DS}, 0")
    if args.fuse == 4 and args.dshift_a != DS:
        a("s_cmp_lt_u32 s5, 64")
        a(f"s_cselect_b32 s4, {args.dshift_a}, s4")
    a(f"s_sub_u32 s78, {NJ}, s4")
    a(f"s_add_u32 s79, s4, {NJ}")
    a("s_cmp_eq_u32 s8, 0")
    a("s_cselect_b32 s79, s78, s79")
    a("s_cselect_b32 s78, 0, s78")
    a("v_lshlrev_b32 v1, 4, v0")
    a("s_mov_b32 s47, 0x20000")
    a("s_mov_b32 s51, 0x20000")
    if not args.tk:
        a("s_waitcnt lgkmcnt(0)")
        a("s_barrier")
    if args.tk == 2:
        a("s_waitcnt lgkmcnt(0)")
    stamp(2, 2)
    a("s_cmp_lg_u32 s3, 0")
    a("s_cbranch_scc1 LA_cons")
    a("s_setprio 3")
    if args.tk == 2:
        a("s_mov_b32 s60, s38")
        a("s_mov_b32 s61, s39")
        a("s_movk_i32 s62, 256")
        a("s_mov_b32 s63, 0x20000")
        a("s_movk_i32 s76, -1")
        a("s_cmp_lg_u32 s77, 0")
        a("s_cbranch_scc1 LL_noclaim")
        a("s_lshl_b32 s4, s72, 5")
        a("v_mov_b32 v9, s4")
        a("v_mov_b32 v10, s74")
        a("s_mov_b64 exec, 1")
        a("buffer_atomic_or v10, v9, s[60:63], 0 offen sc0")
        a("s_mov_b64 exec, -1")
        a(f"s_mov_b32 s76, {args.nspec}")
        a.label("LL_noclaim")
    a("s_lshl_b32 s10, s5, 20")
    a("s_lshl_b32 s4, s78, 12")
    a("s_add_u32 s10, s10, s4")
    a("s_mov_b32 s44, s18")
    a("s_mov_b32 s45, s19")
    a("s_mov_b32 s46, 0x08000000")
    a("s_mov_b32 s48, s20")
    a("s_mov_b32 s49, s21")
    a("s_mov_b32 s50, 0x08000000")
    a("s_mov_b32 s12, 0")
    a("s_mov_b32 s13, 0")
    a("s_mov_b32 s9, 0")
    a(f"v_mov_b32 v4, {C_LANDED}")
    a(f"s_movk_i32 s15, {NS}")
    a(f"s_sub_u32 s11, s79, {args.deep_at}")
    a("s_mov_b32 s64, 0")
    if args.deepcls:
        a("s_bfe_u32 s4, s2, 0x20003")
        a("s_cmp_eq_u32 s4, 1")
        a("s_cselect_b32 s11, 0, s11")
    a.label("LL_loop")
    a("s_mov_b32 m0, s12")
    a("s_add_u32 s14, s12, 4096")
    for i in range(4):
        a(f"buffer_load_dwordx4 v1, s[44:47], s10 offen offset:{1024*i} {args.kp} lds")
    a("s_mov_b32 m0, s14")
    a("s_add_u32 s12, s12, 8192")
    for i in range(4):
        a(f"buffer_load_dwordx4 v1, s[48:51], s10 offen offset:{1024*i} {args.vp} lds")
    a(f"s_cmp_eq_u32 s12, {RING}")
    a("s_cselect_b32 s12, 0, s12")
    a("s_add_u32 s10, s10, 4096")
    a("s_add_u32 s13, s13, 1")
    if args.tk == 2:
        a("s_cmp_le_i32 s13, s76")
        a("s_cbranch_scc1 LL_resolve")
        a.label("LL_resolved")
    if args.ts == 3:
        for k, x in ((1, 16), (2, 32), (3, 64), (4, 96)):
            a(f"s_cmp_lg_u32 s13, {x}")
            a(f"s_cbranch_scc1 LL_ns{k}")
            a(f"s_memrealtime s[{84+2*k}:{85+2*k}]")
            a.label(f"LL_ns{k}")
    a(f"s_sub_u32 s14, s13, {NS}")
    a("s_and_b32 s5, s14, 7")
    a("s_lshl_b32 s5, s5, 2")
    a(f"s_add_u32 s5, s5, {C_DONE}")
    a("v_mov_b32 v5, s5")
    if args.mon:
        a("ds_read_b32 v7, v5")
        a(f"ds_read_b32 v8, v4 offset:{C_DEPTH - C_LANDED}")
        if args.deep_at:
            a("s_cmp_ge_u32 s13, s11")
            a(f"s_cselect_b32 s4, {args.end_code}, 0")
            a("s_max_u32 s64, s64, s4")
        if args.early:
            a(f"s_cmp_lt_u32 s13, {args.early}")
            a(f"s_cselect_b32 s4, {args.early_code}, 0")
            a("s_max_u32 s64, s64, s4")
        order = list(range(len(LV)))
        for n, code in enumerate(order):
            N = LV[code]
            if n < len(order) - 1:
                a(f"s_cmp_lg_u32 s64, {code}")
                a(f"s_cbranch_scc1 LL_lv{n+1}")
            a(f"s_sub_u32 s4, s13, {(N + 7)//8}")
            a("s_max_i32 s9, s9, s4")
            a("v_mov_b32 v6, s9")
            a(f"s_waitcnt vmcnt({N})")
            if n < len(order) - 1:
                a("s_branch LL_pub")
                a.label(f"LL_lv{n+1}")
        a.label("LL_pub")
        a("s_waitcnt lgkmcnt(0)")
        a("v_readfirstlane_b32 s64, v8")
    else:
        if INF2 != INF:
            a("s_cmp_ge_u32 s13, s11")
            a("s_cbranch_scc1 LL_deep")
        a(f"s_sub_u32 s4, s13, {INF//8 - 1}")
        a("s_max_i32 s9, s9, s4")
        a("v_mov_b32 v6, s9")
        a("ds_read_b32 v7, v5")
        a(f"s_waitcnt vmcnt({INF-8})")
        if INF2 != INF:
            a("s_branch LL_pub")
            a.label("LL_deep")
            a(f"s_sub_u32 s4, s13, {INF2//8 - 1}")
            a("s_max_i32 s9, s9, s4")
            a("v_mov_b32 v6, s9")
            a("ds_read_b32 v7, v5")
            a(f"s_waitcnt vmcnt({INF2-8})")
            a.label("LL_pub")
    a("ds_write_b32 v4, v6")
    a("s_cmp_ge_u32 s13, s79")
    a("s_cbranch_scc1 LL_fin")
    a("s_cmp_lt_u32 s13, s15")
    a("s_cbranch_scc1 LL_loop")
    a("s_lshr_b32 s14, s14, 3")
    if not args.mon:
        a("s_waitcnt lgkmcnt(0)")
    a("v_readfirstlane_b32 s4, v7")
    a("s_cmp_gt_u32 s4, s14")
    a("s_cbranch_scc1 LL_loop")
    a("s_mov_b32 s9, s13")
    a("v_mov_b32 v6, s13")
    a("s_waitcnt vmcnt(0)")
    a("ds_write_b32 v4, v6")
    a.label("LL_spin")
    a("s_sleep 1")
    a("ds_read_b32 v7, v5")
    a("s_waitcnt lgkmcnt(0)")
    a("v_readfirstlane_b32 s4, v7")
    a("s_cmp_gt_u32 s4, s14")
    a("s_cbranch_scc1 LL_loop")
    a("s_branch LL_spin")
    a.label("LL_fin")
    for k in range(((max(LV) + 7) // 8 - 1) if args.mon else (INF2 // 8 - 2), -1, -1):
        a(f"s_sub_u32 s4, s79, {k}")
        a("s_max_i32 s9, s9, s4")
        a("v_mov_b32 v6, s9")
        a(f"s_waitcnt vmcnt({8*k})")
        a("ds_write_b32 v4, v6")
    stamp(5)
    a("s_branch LA_end2")
    if args.tk == 2:
        a.label("LL_resolve")
        a("s_cmp_lt_i32 s13, s76")
        a("s_cbranch_scc1 LL_loop")
        a(f"v_mov_b32 v11, {C_TK}")
        a("s_mov_b32 s77, 1")
        a("s_movk_i32 s76, -1")
        a(f"s_waitcnt vmcnt({8*args.nspec})")
        a("v_readfirstlane_b32 s4, v10")
        a("s_and_b32 s4, s4, s74")
        a("s_cbranch_scc1 LL_lost")
        a("v_mov_b32 v10, s2")
        a("ds_write_b32 v11, v10")
        a("s_waitcnt lgkmcnt(0)")
        a("s_barrier")
        a("s_mov_b32 s64, 0")
        a("s_branch LL_resolved")
        a.label("LL_lost")
        a("s_mov_b64 exec, 1")
        a("s_mov_b32 s9, 0")
        a(f"s_sleep {args.lost_sleep}")
        a.label("LL_try")
        a("s_lshl_b32 s4, s72, 5")
        a("v_mov_b32 v9, s4")
        a("v_mov_b32 v10, 0")
        a("buffer_atomic_or v10, v9, s[60:63], 0 offen sc0")
        a("s_waitcnt vmcnt(0)")
        a("v_readfirstlane_b32 s4, v10")
        a("s_not_b32 s4, s4")
        a("s_cbranch_scc0 LL_nextx")
        a("s_lshl_b32 s5, 0xff, s73")
        a("s_and_b32 s5, s5, s4")
        a("s_cselect_b32 s4, s5, s4")
        a("s_ff1_i32_b32 s5, s4")
        a("s_lshl_b32 s74, 1, s5")
        a("v_mov_b32 v10, s74")
        a("buffer_atomic_or v10, v9, s[60:63], 0 offen sc0")
        a("s_waitcnt vmcnt(0)")
        a("v_readfirstlane_b32 s4, v10")
        a("s_and_b32 s4, s4, s74")
        a("s_cbranch_scc1 LL_try")
        vid("s2", "s72", "s5", "s4")
        a("s_branch LL_got")
        a.label("LL_nextx")
        a("s_add_u32 s72, s72, 1")
        a("s_and_b32 s72, s72, 7")
        a("s_add_u32 s9, s9, 1")
        a("s_cmp_lt_u32 s9, 8")
        a("s_cbranch_scc1 LL_try")
        a("s_movk_i32 s2, 256")
        a.label("LL_got")
        a("v_mov_b32 v10, s2")
        a("ds_write_b32 v11, v10")
        a("s_mov_b64 exec, -1")
        a("s_waitcnt lgkmcnt(0)")
        a("s_barrier")
        a("s_branch LA_tk_done")

    a.label("LA_cons")
    a("s_mov_b32 s42, 0xffff0000")
    a(f"s_mov_b32 s69, {LOG2E:#x}")
    a("s_mov_b32 s55, 0x20000")
    a("s_mov_b32 s59, 0x20000")
    a("s_mov_b32 s63, 0x20000")
    if args.fuse == 4:
        a("s_cmp_lt_u32 s5, 64")
        a("s_cselect_b32 s75, 2, 0")
        a("s_cmp_eq_u32 s8, 0")
        a("s_cselect_b32 s75, 1, s75")
        a(f"s_cmp_ge_u32 s5, {NFFN}")
        a("s_cselect_b32 s75, 0, s75")
        a("s_cmp_ge_u32 s5, 88")
        a("s_cselect_b32 s75, 3, s75")
        a("s_and_b32 s76, s2, 7")
        a("s_cmp_lt_u32 s5, 96")
        a("s_cselect_b32 s4, 2, 0")
        a("s_add_u32 s76, s76, s4")
        a("s_and_b32 s77, s6, 3")
        a("s_lshl_b32 s77, s77, 1")
        a("s_add_u32 s77, s77, s8")
    a("s_cmp_eq_u32 s3, 9")
    a("s_cbranch_scc1 LA_ffn")
    if args.mon:
        a("s_cmp_eq_u32 s3, 10")
        a("s_cbranch_scc1 LA_mon")
    a("s_sub_u32 s9, s3, 1")
    a("v_lshrrev_b32 v20, 4, v0")
    a("v_and_b32 v21, 15, v0")
    a("v_lshlrev_b32 v2, 14, v20")
    a("v_lshl_add_u32 v2, v21, 4, v2")
    a("v_lshlrev_b32 v3, 2, v20")
    a("v_lshl_add_u32 v3, v21, 4, v3")
    a("s_lshl_b32 s4, s7, 10")
    a("s_lshl_b32 s5, s9, 7")
    a("s_add_u32 s4, s4, s5")
    a("s_lshl_b32 s11, s9, 19")
    a("s_lshl_b32 s12, s6, 8")
    a("s_add_u32 s11, s11, s12")
    a("s_mov_b32 s48, s22")
    a("s_mov_b32 s49, s23")
    a("s_mov_b32 s50, 0x00400000")
    a("s_mov_b32 s56, s16")
    a("s_mov_b32 s57, s17")
    a("s_mov_b32 s58, 4096")
    a(f"buffer_load_dword v{P}, v3, s[56:59], s4 offen")
    if args.coop:
        a("v_lshrrev_b32 v22, 3, v0")
        a("v_lshlrev_b32 v22, 13, v22")
        a("v_and_b32 v23, 7, v0")
        a("v_lshl_add_u32 v22, v23, 5, v22")
        a("s_lshr_b32 s4, s2, 5")
        a("s_lshl_b32 s4, s4, 19")
        a("s_lshl_b32 s5, s9, 16")
        a("s_add_u32 s4, s4, s5")
        a("s_add_u32 s4, s4, s12")
        a(f"buffer_load_dword v38, v22, s[48:51], s4 offen{cnt}")
        a("s_waitcnt vmcnt(0)")
        if args.coop > 1:
            a(f"s_sleep {args.coop}")
    for k in range(8):
        a(f"buffer_load_dwordx4 {Wr(2*k)}, v2, s[48:51], s11 offen{wnt}")
        a("s_add_u32 s12, s11, 8192")
        a(f"buffer_load_dwordx4 {Wr(2*k+1)}, v2, s[48:51], s12 offen{wnt}")
        if k < 7:
            a("s_add_u32 s11, s11, 65536")
    a(f"s_mov_b32 s68, {SCALE:#x}")
    a("s_mov_b32 s70, 0x05040100")
    a("s_mov_b32 s71, 0x07060302")
    a("s_mov_b32 s52, s24")
    a("s_mov_b32 s53, s25")
    a("s_mov_b32 s54, 0x00400000")
    a("s_mov_b32 s60, s40")
    a("s_mov_b32 s61, s41")
    a(f"s_mov_b32 s62, {WS_STATS + 2048}")
    a("v_and_b32 v22, 1, v20")
    a("v_lshlrev_b32 v22, 1, v22")
    a("v_lshrrev_b32 v23, 1, v20")
    a("v_or_b32 v22, v22, v23")
    a("v_lshl_add_u32 v22, v21, 3, v22")
    a("v_lshlrev_b32 v22, 2, v22")
    a("s_lshl_b32 s4, s9, 9")
    a(f"s_add_u32 s4, s4, {L_QP}")
    a(f"v_add_u32 v{VRED}, s4, v22")
    a(f"v_mov_b32 v{VZ}, {RING}")
    a(f"v_mov_b32 v{VCNT}, 1")
    a("s_lshl_b32 s4, s9, 13")
    a(f"v_add_u32 v{VBASE}, s4, v1")
    a("s_lshl_b32 s4, s9, 2")
    a(f"s_add_u32 s4, s4, {C_DONE}")
    a(f"v_mov_b32 v{VDONE}, s4")
    for j in range(8):
        a(f"v_mov_b32 v{ACC+j}, 0")
    if args.tk == 2:
        sync("c")
    for k in range(8):
        tb = T0 + 8 * (k & 1)
        a(f"s_waitcnt vmcnt({14 - 2*k})")
        if k == 0:
            stamp(3, 2)
        for d in range(4):
            A_, B_ = W0 + 8 * k + d, W0 + 8 * k + 4 + d
            a(f"v_perm_b32 v{tb+2*d}, v{B_}, v{A_}, s70")
            a(f"v_perm_b32 v{tb+2*d+1}, v{B_}, v{A_}, s71")
        for e in range(8):
            a(f"v_dot2c_f32_bf16_dpp v{ACC+e}, v{P}, v{tb+e} row_newbcast:{k} row_mask:0xf bank_mask:0xf")

    def cross_row_reduce8(base):
        for k in range(4):
            a(f"v_permlane32_swap_b32 v{base+2*k}, v{base+2*k+1}")
        for k in range(4):
            a(f"v_add_f32 v{base+2*k}, v{base+2*k}, v{base+2*k+1}")
        a(f"v_permlane16_swap_b32 v{base}, v{base+2}")
        a(f"v_permlane16_swap_b32 v{base+4}, v{base+6}")
        a(f"v_add_f32 v{base}, v{base}, v{base+2}")
        a(f"v_add_f32 v{base+4}, v{base+4}, v{base+6}")

    cross_row_reduce8(ACC)
    a(f"ds_write_b32 v{VRED}, v{ACC}")
    a(f"ds_write_b32 v{VRED}, v{ACC+4} offset:16")
    a("v_lshlrev_b32 v20, 3, v0")
    a(f"v_add_u32 v20, {L_QP}, v20")
    stamp(4, 2)
    lds_barrier(0, "q")
    for w in range(8):
        a(f"ds_read_b64 v[{T0+2*w}:{T0+2*w+1}], v20 offset:{512*w}")
    a("s_lshl_b32 s4, s9, 8")
    a(f"s_add_u32 s4, s4, {L_QQ}")
    a("v_lshlrev_b32 v21, 2, v0")
    a("v_add_u32 v21, s4, v21")
    a("v_and_b32 v22, 15, v0")
    a("v_lshlrev_b32 v22, 4, v22")
    a("v_add_u32 v22, s4, v22")
    a("s_waitcnt lgkmcnt(0)")
    for st in (1, 2, 4):
        for w in range(0, 8, 2 * st):
            a(f"v_add_f32 v{T0+2*w}, v{T0+2*w}, v{T0+2*(w+st)}")
            a(f"v_add_f32 v{T0+2*w+1}, v{T0+2*w+1}, v{T0+2*(w+st)+1}")
    a(f"v_cvt_pk_bf16_f32 v23, v{T0}, v{T0+1}")
    a("ds_write_b32 v21, v23")
    a("s_waitcnt lgkmcnt(0)")
    a(f"ds_read_b128 v[{Q}:{Q+3}], v22")
    for j in range(8):
        a(f"v_mov_b32 v{ACC+j}, 0")
    a(f"v_mov_b32 v{M}, 0xff800000")
    a(f"v_mov_b32 v{L}, 0")
    if args.coop:
        a("s_lshl_b32 s4, s6, 17")
        a("s_lshr_b32 s5, s2, 5")
        a("s_lshl_b32 s5, s5, 14")
        a("s_add_u32 s4, s4, s5")
        a("s_lshl_b32 s5, s9, 11")
        a("s_add_u32 s4, s4, s5")
        a("v_lshlrev_b32 v22, 5, v0")
        a(f"buffer_load_dword v141, v22, s[52:55], s4 offen{cnt}")
    a("s_lshl_b32 s43, s6, 17")
    a(f"s_lshl_b32 s5, s9, {7 if args.tail2 else 14}")
    a("s_add_u32 s43, s43, s5")
    if args.tail2:
        a("v_lshrrev_b32 v22, 4, v0")
        a("v_and_b32 v23, 15, v0")
        a("v_lshlrev_b32 v142, 15, v22")
        a("v_lshl_add_u32 v142, v23, 3, v142")
        a("v_and_b32 v143, 1, v22")
        a("v_lshlrev_b32 v143, 1, v143")
        a("v_lshrrev_b32 v22, 1, v22")
        a("v_or_b32 v143, v143, v22")
        a("v_lshl_add_u32 v143, v23, 2, v143")
        a("v_lshlrev_b32 v143, 2, v143")
        if args.fuse >= 3:
            a("v_and_b32 v144, 12, v143")
            a("v_lshlrev_b32 v144, 1, v144")
            a("s_movk_i32 s67, 0xff")
        a("s_lshl_b32 s5, s7, 6")
        a("s_lshl_b32 s12, s6, 1")
        a("s_add_u32 s5, s5, s12")
        a("s_add_u32 s5, s5, s8")
        a("s_lshl_b32 s65, s5, 3")
        a(f"s_add_u32 s65, s65, {WS_STATS}")
        a("s_lshl_b32 s64, s5, 11")
        a("s_lshl_b32 s5, s9, 8")
        a("s_add_u32 s64, s64, s5")
    a("s_mov_b32 s13, s9")
    a("s_mov_b32 s15, 0")
    a(f"v_mov_b32 v{VCNT+1}, 0")
    stamp(1)
    a.label("LC_poll")
    a(f"ds_read_b32 v20, v{VZ}")
    a("s_waitcnt lgkmcnt(0)")
    a("v_readfirstlane_b32 s14, v20")
    a("s_cmp_gt_u32 s14, s13")
    a("s_cbranch_scc1 LC_go")
    a("s_sleep 1")
    a("s_branch LC_poll")
    a.label("LC_go")
    for i in range(4):
        a(f"ds_read_b128 v[{KB+4*i}:{KB+4*i+3}], v{VBASE} offset:{1024*i}")
    for i in range(4):
        a(f"ds_read_b128 v[{VB+4*i}:{VB+4*i+3}], v{VBASE} offset:{4096+1024*i}")
    a("s_add_u32 s15, s15, 1")
    a("s_add_u32 s13, s13, 8")
    a(f"v_add_u32 v{VCNT+1}, 1, v{VCNT+1}")
    if NS == 16:
        a(f"v_xor_b32 v{VBASE}, 0x10000, v{VBASE}")
    else:
        a(f"v_add_u32 v{VBASE}, 0x10000, v{VBASE}")
        a(f"v_subrev_u32 v21, {RING}, v{VBASE}")
        a(f"v_min_u32 v{VBASE}, v21, v{VBASE}")
    a("s_waitcnt lgkmcnt(4)")
    for d in range(4):
        for i in range(4):
            t = f"v{T0+i}"
            c = "0" if d == 0 else t
            a(f"v_dot2_f32_bf16 {t}, v{KB+4*i+d}, v{Q+d}, {c}")
    a("s_waitcnt lgkmcnt(0)")
    a(f"ds_write_b32 v{VDONE}, v{VCNT+1}")
    for i in range(2):
        a(f"v_add_f32_dpp v{T0+i}, v{T0+i}, v{T0+i} row_ror:8 row_mask:0xf bank_mask:0x3")
        a(f"v_add_f32_dpp v{T0+i}, v{T0+i+2}, v{T0+i+2} row_ror:8 row_mask:0xf bank_mask:0xc")
    PV1, PV2 = T0 + 8, KB
    for d in range(2):
        a(f"v_perm_b32 v{PV1+2*d}, v{VB+4+d}, v{VB+d}, s70")
        a(f"v_perm_b32 v{PV1+2*d+1}, v{VB+4+d}, v{VB+d}, s71")
    a(f"v_add_f32_dpp v{T0}, v{T0}, v{T0} row_half_mirror row_mask:0xf bank_mask:0x5")
    a(f"v_add_f32_dpp v{T0}, v{T0+1}, v{T0+1} row_half_mirror row_mask:0xf bank_mask:0xa")
    for d in range(2, 4):
        a(f"v_perm_b32 v{PV1+2*d}, v{VB+4+d}, v{VB+d}, s70")
        a(f"v_perm_b32 v{PV1+2*d+1}, v{VB+4+d}, v{VB+d}, s71")
    S = f"v{T0}"
    a(f"v_add_f32_dpp {S}, {S}, {S} quad_perm:[1,0,3,2] row_mask:0xf bank_mask:0xf")
    a(f"v_perm_b32 v{PV2}, v{VB+12}, v{VB+8}, s70")
    a(f"v_perm_b32 v{PV2+1}, v{VB+12}, v{VB+8}, s71")
    a(f"v_add_f32_dpp {S}, {S}, {S} quad_perm:[2,3,0,1] row_mask:0xf bank_mask:0xf")
    round_bf16(a, S)
    a(f"v_mul_f32 {S}, s68, {S}")
    round_bf16(a, S)
    MX = f"v{T0+1}"
    a(f"v_perm_b32 v{PV2+2}, v{VB+13}, v{VB+9}, s70")
    a(f"v_perm_b32 v{PV2+3}, v{VB+13}, v{VB+9}, s71")
    a(f"v_max_f32_dpp {MX}, {S}, {S} row_ror:8 row_mask:0xf bank_mask:0xf")
    a(f"v_perm_b32 v{PV2+4}, v{VB+14}, v{VB+10}, s70")
    a(f"v_perm_b32 v{PV2+5}, v{VB+14}, v{VB+10}, s71")
    a(f"v_max_f32_dpp {MX}, {MX}, {MX} row_ror:4 row_mask:0xf bank_mask:0xf")
    a(f"v_perm_b32 v{PV2+6}, v{VB+15}, v{VB+11}, s70")
    a(f"v_perm_b32 v{PV2+7}, v{VB+15}, v{VB+11}, s71")
    a(f"v_max_f32 {MX}, {MX}, v{M}")
    AL = f"v{T0+2}"
    a(f"v_sub_f32 {AL}, v{M}, {MX}")
    a(f"v_sub_f32 v{P}, {S}, {MX}")
    a(f"v_mul_f32 {AL}, s69, {AL}")
    a(f"v_mul_f32 v{P}, s69, v{P}")
    a(f"v_exp_f32 {AL}, {AL}")
    a(f"v_exp_f32 v{P}, v{P}")
    a(f"v_mov_b32 v{M}, {MX}")
    a(f"v_fma_f32 v{L}, v{L}, {AL}, v{P}")
    a(f"v_mul_f32 v{ACC}, {AL}, v{ACC}")
    a(f"v_mov_b32_dpp v{T0+3}, v{P} row_shl:4 row_mask:0xf bank_mask:0xf")
    for j in range(1, 8):
        a(f"v_mul_f32 v{ACC+j}, {AL}, v{ACC+j}")
        if j == 1:
            a(f"v_cvt_pk_bf16_f32 v{P}, v{P}, v{T0+3}")
    for e in range(8):
        a(f"v_dot2c_f32_bf16_dpp v{ACC+e}, v{P}, v{PV1+e} row_newbcast:0 row_mask:0xf bank_mask:0xf")
    for e in range(8):
        a(f"v_dot2c_f32_bf16_dpp v{ACC+e}, v{P}, v{PV2+e} row_newbcast:8 row_mask:0xf bank_mask:0xf")
    NPJ = args.wo_npj
    NB = 16 // NPJ
    a(f"s_cmp_le_u32 s15, {args.wo_at + NB - 1}")
    a("s_cbranch_scc1 LC_wo")
    a(f"s_cmp_eq_u32 s15, {args.prep_at}")
    a("s_cbranch_scc1 LC_prep")
    a("s_cmp_lt_u32 s13, s79")
    a("s_cbranch_scc1 LC_poll")
    a("s_branch LA_tail")
    a.label("LC_wo")
    for k in range(NB):
        a(f"s_cmp_lg_u32 s15, {args.wo_at + k}")
        a(f"s_cbranch_scc1 {'LC_wo%d' % (k+1) if k < NB-1 else 'LC_poll'}")
        if args.tail2:
            for i in range(2 * NPJ * k, 2 * NPJ * (k + 1)):
                if i % 4 == 0 or i == 2 * NPJ * k:
                    a(f"s_add_u32 s4, s43, {(i >> 2) * 4096}")
                a(f"buffer_load_dwordx2 v[{W0+2*i}:{W0+2*i+1}], v142, s[52:55], s4 offen offset:{(i & 3) * 1024}{wnt}")
        else:
          for i in range(NPJ * k, NPJ * (k + 1)):
            if i % 4 == 0 or i == NPJ * k:
                a(f"s_add_u32 s4, s43, {(i >> 2) * 4096}")
            a(f"buffer_load_dwordx4 {Wr(i)}, v1, s[52:55], s4 offen offset:{(i & 3) * 1024}{wnt}")
        a("s_branch LC_poll")
        if k < NB - 1:
            a.label(f"LC_wo{k+1}")

    a.label("LC_prep")
    a("s_waitcnt vmcnt(0)")
    LOr = {}
    HIr = {}
    prev = 141
    for j in range(16 if args.tail2 else 8):
        for t in range(2 if args.tail2 else 4):
            if args.tail2:
                A_, B_ = W0 + 4 * j + t, W0 + 4 * j + 2 + t
            else:
                A_, B_ = W0 + 8 * j + t, W0 + 8 * j + 4 + t
            a(f"v_perm_b32 v{prev}, v{B_}, v{A_}, s70")
            a(f"v_perm_b32 v{B_}, v{B_}, v{A_}, s71")
            LOr[(j, t)] = prev
            HIr[(j, t)] = B_
            prev = A_
    if args.warm:
        a("s_mov_b64 exec, 0")
        a("s_branch LW_0")
        a.label("LC_warmret")
        a("s_mov_b64 exec, -1")
    a("s_branch LC_poll")

    a.label("LA_tail")
    if args.warm:
        a.hop_begin("LW", args.warm)
    a.nop(3)
    stamp(3)
    for r in (8, 4):
        a(f"v_add_f32_dpp v{L}, v{L}, v{L} row_ror:{r} row_mask:0xf bank_mask:0xf")
    for g in range(4):
        a(f"v_readlane_b32 s{80+g}, v{M}, {16*g}")
    a("v_mov_b32 v20, s80")
    a("v_max_f32 v20, s81, v20")
    a("v_max_f32 v20, s82, v20")
    a("v_max_f32 v20, s83, v20")
    a(f"v_sub_f32 v22, v{M}, v20")
    a("v_mul_f32 v22, s69, v22")
    a("v_exp_f32 v22, v22")
    a(f"v_mul_f32 v{L}, v22, v{L}")
    for j in range(8):
        a(f"v_mul_f32 v{ACC+j}, v22, v{ACC+j}")
    for g in range(4):
        a(f"v_readlane_b32 s{80+g}, v{L}, {16*g}")
    cross_row_reduce8(ACC)
    a("v_mov_b32 v21, s80")
    a("v_add_f32 v21, s81, v21")
    a("v_add_f32 v21, s82, v21")
    a("v_add_f32 v21, s83, v21")
    a(f"ds_write_b32 v{VRED}, v{ACC} offset:{L_OP - L_QP}")
    a(f"ds_write_b32 v{VRED}, v{ACC+4} offset:{L_OP - L_QP + 16}")
    a("s_lshl_b32 s4, s9, 3")
    a(f"s_add_u32 s4, s4, {L_ST}")
    a("v_mov_b32 v22, s4")
    a("ds_write_b64 v22, v[20:21]")
    a("v_lshlrev_b32 v20, 3, v0")
    a(f"v_add_u32 v20, {L_OP}, v20")
    a(f"v_mov_b32 v21, {L_ST}")
    lds_barrier(1, "t1", 9 if args.fuse else 8)
    stamp(4)
    SB = 104
    for k in range(4):
        a(f"ds_read_b128 v[{SB+4*k}:{SB+4*k+3}], v21 offset:{16*k}")
    for w in range(8):
        a(f"ds_read_b64 v[{T0+2*w}:{T0+2*w+1}], v20 offset:{512*w}")
    a("s_lshl_b32 s4, s9, 3")
    if args.tail2:
        for j in range(8):
            a(f"v_mov_b32 v{ACC+j}, 0")
        if args.fuse < 3:
            a("v_mov_b32 v3, 0")
            a("s_cmp_eq_u32 s9, 0")
            a("s_cselect_b32 s66, 1, 0")
            a("s_mov_b32 s67, 0")
    a("s_waitcnt lgkmcnt(8)")
    a(f"v_max3_f32 v20, v{SB}, v{SB+2}, v{SB+4}")
    a(f"v_max3_f32 v20, v20, v{SB+6}, v{SB+8}")
    a(f"v_max3_f32 v20, v20, v{SB+10}, v{SB+12}")
    a(f"v_max_f32 v20, v20, v{SB+14}")
    for w in range(8):
        a(f"v_sub_f32 v{SB+2*w}, v{SB+2*w}, v20")
    for w in range(8):
        a(f"v_mul_f32 v{SB+2*w}, s69, v{SB+2*w}")
    for w in range(8):
        a(f"v_exp_f32 v{SB+2*w}, v{SB+2*w}")
    a(f"v_mul_f32 v21, v{SB}, v{SB+1}")
    for w in range(1, 8):
        a(f"v_fmac_f32 v21, v{SB+2*w}, v{SB+2*w+1}")
    a("v_rcp_f32 v22, v21")
    if args.fuse >= 3:
        a("v_log_f32 v21, v21")
        a("v_fmac_f32 v21, s69, v20")
        a("v_lshrrev_b32 v21, v144, v21")
    elif args.tail2:
        a("s_mov_b64 exec, s[66:67]")
        a(f"buffer_store_dwordx2 v[20:21], v3, s[60:63], s65 offen{' sc1' if args.fuse else ''}")
        a("s_mov_b64 exec, -1")
    a("s_waitcnt lgkmcnt(0)")
    a(f"v_mul_f32 v2, v{SB}, v{T0}")
    a(f"v_mul_f32 v3, v{SB}, v{T0+1}")
    for w in range(1, 8):
        a(f"v_fmac_f32 v2, v{SB+2*w}, v{T0+2*w}")
        a(f"v_fmac_f32 v3, v{SB+2*w}, v{T0+2*w+1}")
    a("v_mul_f32 v2, v22, v2")
    a("v_mul_f32 v3, v22, v3")
    a("v_cvt_pk_bf16_f32 v2, v2, v3")
    ysc = " sc1" if args.fuse else ""
    if args.tail2:
        for j in range(16):
            o = ACC + 4 * (j & 1)
            for t in range(2):
                a(f"v_dot2c_f32_bf16_dpp v{o+2*t}, v2, v{LOr[(j, t)]} row_newbcast:{j} row_mask:0xf bank_mask:0xf")
                a(f"v_dot2c_f32_bf16_dpp v{o+2*t+1}, v2, v{HIr[(j, t)]} row_newbcast:{j} row_mask:0xf bank_mask:0xf")
        for k in range(4):
            a(f"v_add_f32 v{ACC+k}, v{ACC+k}, v{ACC+4+k}")
        a(f"v_permlane32_swap_b32 v{ACC}, v{ACC+1}")
        a(f"v_permlane32_swap_b32 v{ACC+2}, v{ACC+3}")
        a(f"v_add_f32 v{ACC}, v{ACC}, v{ACC+1}")
        a(f"v_add_f32 v{ACC+2}, v{ACC+2}, v{ACC+3}")
        a(f"v_permlane16_swap_b32 v{ACC}, v{ACC+2}")
        a(f"v_add_f32 v{ACC}, v{ACC}, v{ACC+2}")
        if args.yx4:
            z = ACC
            if args.fuse >= 3:
                a(f"v_bfi_b32 v{z}, s67, v21, v{z}")
            a(f"v_mov_b32 v{z+4}, v{z}")
            a(f"v_mov_b32 v{z+5}, v{z}")
            a(f"v_mov_b32 v{z+1}, v{z}")
            a(f"v_permlane32_swap_b32 v{z+4}, v{z+1}")
            a(f"v_permlane16_swap_b32 v{z+5}, v{z+2}")
            a(f"v_mov_b32 v{z+6}, v{z+1}")
            a(f"v_permlane16_swap_b32 v{z+6}, v{z+3}")
            a("s_mov_b64 exec, 0xffff")
            a(f"buffer_store_dwordx4 v[{z}:{z+3}], v1, s[60:63], s64 offen{ysc}")
            a("s_mov_b64 exec, -1")
        else:
            a(f"buffer_store_dword v{ACC}, v143, s[60:63], s64 offen{ysc}")
        stamp(5)
    else:
        for j in range(8):
            a(f"v_readlane_b32 s{72+j}, v2, s4")
            if j < 7:
                a("s_add_u32 s4, s4, 1")
        for j in range(8):
            for t in range(4):
                c = "0" if j == 0 else f"v{ACC+2*t}"
                a(f"v_dot2_f32_bf16 v{ACC+2*t}, v{LOr[(j, t)]}, s{72+j}, {c}")
                c = "0" if j == 0 else f"v{ACC+2*t+1}"
                a(f"v_dot2_f32_bf16 v{ACC+2*t+1}, v{W0+8*j+4+t}, s{72+j}, {c}")
        a("s_lshl_b32 s4, s9, 11")
        a("v_lshlrev_b32 v2, 5, v0")
        a("v_add_u32 v2, s4, v2")
        a(f"ds_write_b128 v2, v[{ACC}:{ACC+3}] offset:{L_Y}")
        a(f"ds_write_b128 v2, v[{ACC+4}:{ACC+7}] offset:{L_Y+16}")
        a("s_lshl_b32 s4, s9, 8")
        a("v_lshlrev_b32 v3, 2, v0")
        a("v_add_u32 v3, s4, v3")
        a("s_lshl_b32 s5, s7, 6")
        a("s_lshl_b32 s12, s6, 1")
        a("s_add_u32 s5, s5, s12")
        a("s_add_u32 s5, s5, s8")
        a("s_lshl_b32 s5, s5, 11")
        lds_barrier(2, "t2")
        for w in range(8):
            a(f"ds_read_b32 v{T0+w}, v3 offset:{L_Y + 2048*w}")
        a("s_waitcnt lgkmcnt(0)")
        for st in (1, 2, 4):
            for w in range(0, 8, 2 * st):
                a(f"v_add_f32 v{T0+w}, v{T0+w}, v{T0+w+st}")
        if args.warm:
            a.hop_end("LC_warmret")
        a(f"buffer_store_dword v{T0}, v3, s[60:63], s5 offen{ysc}")
        stamp(5)
        a("s_cmp_lg_u32 s9, 0")
        a("s_cbranch_scc1 LA_end2")
        a("s_lshl_b32 s5, s7, 5")
        a("s_add_u32 s5, s5, s6")
        a("s_lshl_b32 s5, s5, 4")
        a("s_lshl_b32 s12, s8, 3")
        a("s_add_u32 s5, s5, s12")
        a(f"s_add_u32 s5, s5, {WS_STATS}")
        a("v_mov_b32 v2, 0")
        a("s_mov_b64 exec, 1")
        a(f"buffer_store_dwordx2 v[20:21], v2, s[60:63], s5 offen{ysc}")
    a.label("LA_end2")
    stamp_store()
    a("s_endpgm")

    if args.mon:
        a.label("LA_mon")
        if args.tk == 2:
            sync("m")
        G = args.glob
        RATE = args.rate
        a("s_memrealtime s[66:67]")
        a("s_and_b32 s15, s2, 7")
        a(f"s_mul_i32 s4, s15, {args.bstride}")
        a(f"s_add_u32 s4, s4, {WS_BOARD}")
        a("s_add_u32 s60, s40, s4")
        a("s_addc_u32 s61, s41, 0")
        a(f"s_movk_i32 s62, {132 if G else 128}")
        a("s_lshr_b32 s12, s2, 3")
        a("s_lshl_b32 s12, s12, 2")
        a("v_lshlrev_b32 v5, 2, v0")
        a("v_mov_b32 v7, 0")
        a(f"v_mov_b32 v6, {C_LANDED}")
        a(f"s_sub_u32 s10, s79, {NJ}")
        a(f"s_sub_u32 s11, s79, {args.mon_stop}")
        if G:
            a(f"s_add_u32 s56, s40, {WS_BOARD + 8*args.bstride}")
            a("s_addc_u32 s57, s41, 0")
            a("s_mov_b32 s58, 32")
            a("s_lshl_b32 s15, s15, 2")
        if args.ts:
            for k in range(6):
                a(f"s_mov_b32 s{84+k}, 0")
        a("s_mov_b64 exec, 1")
        a("s_waitcnt lgkmcnt(0)")
        a(f"s_mul_i32 s4, s66, {RATE}")
        a("s_sub_u32 s4, 0, s4")
        a("v_mov_b32 v4, s4")
        a("buffer_store_dword v4, v7, s[60:63], s12 offen")
        if args.fuse:
            a("s_mov_b32 s56, s40")
            a("s_mov_b32 s57, s41")
            a(f"s_mov_b32 s58, {WSH + 11008 if args.fuse >= 3 else WS_STATS + 2048}")
            a("s_mov_b32 s52, s38")
            a("s_mov_b32 s53, s39")
            a("s_movk_i32 s54, 256")
            a("s_lshl_b32 s4, s7, 6")
            a("s_lshl_b32 s5, s6, 1")
            a("s_add_u32 s4, s4, s5")
            a("s_add_u32 s4, s4, s8")
            a("s_lshl_b32 s5, s4, 3")
            a(f"s_add_u32 s5, s5, {WS_STATS}")
            a("s_lshl_b32 s4, s4, 11")
            a("s_mov_b64 exec, -1")
            for k in range(4):
                a(f"v_mov_b32 v{8+k}, -1")
            if not args.dbg & 1:
                a("buffer_store_dwordx4 v[8:11], v1, s[56:59], s4 offen sc1")
                a("buffer_store_dwordx4 v[8:11], v1, s[56:59], s4 offen offset:1024 sc1")
            if args.fuse >= 3:
                if args.fuse == 4:
                    a("s_cmp_lg_u32 s75, 3")
                else:
                    a("s_cmp_lt_u32 s2, 192")
                a("s_cbranch_scc1 LM_pz1")
                a("v_lshrrev_b32 v12, 4, v0")
                a("v_lshlrev_b32 v12, 11, v12")
                a("v_and_b32 v13, 7, v0")
                a("v_lshl_add_u32 v12, v13, 5, v12")
                a("v_bfe_u32 v13, v0, 3, 1")
                a("v_lshl_add_u32 v12, v13, 4, v12")
                if args.fuse == 4:
                    a("s_lshl_b32 s4, s76, 13")
                    a("s_lshl_b32 s5, s77, 8")
                else:
                    a("s_lshl_b32 s4, s15, 13")
                    a("s_bfe_u32 s5, s2, 0x30003")
                    a("s_lshl_b32 s5, s5, 8")
                a("s_add_u32 s4, s4, s5")
                a(f"s_add_u32 s4, s4, {WS_F}")
                a("buffer_store_dwordx4 v[8:11], v12, s[56:59], s4 offen sc1")
                a("s_branch LM_pz2")
                a.label("LM_pz1")
                a("s_lshl_b32 s4, s7, 5")
                a("s_add_u32 s4, s4, s6")
                a(f"s_cmp_ge_u32 s4, {NFFN}")
                a("s_cbranch_scc1 LM_pz2")
                a("s_cmp_lg_u32 s8, 0")
                a("s_cbranch_scc1 LM_pz2")
                a("v_lshrrev_b32 v12, 4, v0")
                a("v_mul_u32_u24 v12, 2752, v12")
                a("v_and_b32 v13, 1, v0")
                a("v_lshl_add_u32 v12, v13, 4, v12")
                a("s_lshl_b32 s4, s4, 5")
                a(f"s_add_u32 s4, s4, {WSH}")
                a("s_mov_b32 s64, 0x00030003")
                a("s_mov_b32 s65, 0x00030003")
                a("s_mov_b64 exec, s[64:65]")
                a("buffer_store_dwordx4 v[8:11], v12, s[56:59], s4 offen sc1")
                a.label("LM_pz2")
            a("s_mov_b64 exec, 1")
            if not args.dbg & 1 and args.fuse < 3:
                a("buffer_store_dwordx2 v[8:9], v7, s[56:59], s5 offen sc1")
            a("v_mov_b32 v12, 1")
            a("s_lshl_b32 s4, s15, 5")
            a("s_waitcnt vmcnt(0)")
            a(f"ds_add_u32 v6, v12 offset:{C_BAR + 4 - C_LANDED}")
            if args.fuse >= 3:
                a(f"ds_write_b32 v6, v12 offset:{C_BAR + 8 - C_LANDED}")
            a("buffer_atomic_add v12, v7, s[52:55], s4 offen offset:8")
        if G:
            a("s_cmp_lg_u32 s12, 0")
            a("s_cbranch_scc1 LM_loop")
            a("s_lshl_b32 s4, s4, 5")
            a("v_mov_b32 v8, s4")
            a("buffer_store_dword v7, v7, s[60:63], 0 offen offset:128")
            a("buffer_store_dword v8, v7, s[56:59], s15 offen sc1")
        a.label("LM_loop")
        a(f"s_sleep {args.mon}")
        a("ds_read_b32 v4, v6")
        a("s_memrealtime s[66:67]")
        a("s_waitcnt lgkmcnt(0)")
        a("v_readfirstlane_b32 s14, v4")
        a("s_cmp_ge_u32 s14, s11")
        a("s_cbranch_scc1 LM_last")
        a("s_sub_u32 s4, s14, s10")
        a("s_lshl_b32 s4, s4, 10")
        a(f"s_mul_i32 s5, s66, {RATE}")
        a("s_sub_u32 s13, s4, s5")
        a("v_mov_b32 v4, s13")
        a("buffer_store_dword v4, v7, s[60:63], s12 offen")
        a("s_cmp_lt_u32 s14, 8")
        a("s_cbranch_scc1 LM_loop")
        a("s_mov_b64 exec, -1")
        a(f"buffer_load_dword v8, v5, s[60:63], 0 offen {args.monld}")
        if G:
            a("s_cmp_lg_u32 s12, 0")
            a("s_cbranch_scc1 LM_nl1")
            a("buffer_load_dword v9, v5, s[56:59], 0 offen sc1")
            a.label("LM_nl1")
        a("s_lshl_b32 s13, s13, 5")
        a("s_waitcnt vmcnt(0)")
        for r in (1, 2, 4, 8):
            a(f"v_add_u32_dpp v8, v8, v8 row_ror:{r} row_mask:0xf bank_mask:0xf")
            if G:
                a(f"v_add_u32_dpp v9, v9, v9 row_ror:{r} row_mask:0xf bank_mask:0xf")
        a("v_readlane_b32 s4, v8, 0")
        a("v_readlane_b32 s5, v8, 16")
        if G:
            a("v_readlane_b32 s65, v8, 32")
            a("v_readlane_b32 s66, v9, 0")
        a("s_mov_b64 exec, 1")
        a("s_add_u32 s4, s4, s5")
        a("s_sub_u32 s13, s4, s13")
        if G:
            a("s_cmp_lg_u32 s12, 0")
            a("s_cbranch_scc1 LM_nl2")
            a("v_mov_b32 v4, s4")
            a("buffer_store_dword v4, v7, s[56:59], s15 offen sc1")
            a("s_lshl_b32 s5, s4, 3")
            a("s_sub_u32 s65, s66, s5")
            a("s_ashr_i32 s65, s65, 3")
            a("v_mov_b32 v4, s65")
            a("buffer_store_dword v4, v7, s[60:63], 0 offen offset:128")
            a.label("LM_nl2")
            a(f"s_min_i32 s65, s65, {int(32768*G)}")
            a(f"s_max_i32 s65, s65, {-int(32768*G)}")
            a("s_add_u32 s13, s13, s65")
        a("s_mov_b32 s5, 0")
        for k, th in enumerate(TH):
            code = k + 1
            if LV[code] < LV[0]:
                a(f"s_cmp_lt_i32 s13, {int(round(th*32768))}")
            else:
                a(f"s_cmp_gt_i32 s13, {int(round(th*32768))}")
            a(f"s_cselect_b32 s5, {code}, s5")
        a("v_mov_b32 v4, s5")
        a(f"ds_write_b32 v6, v4 offset:{C_DEPTH - C_LANDED}")
        if args.ts:
            for k in range(len(LV)):
                a(f"s_cmp_eq_u32 s5, {k}")
                a(f"s_addc_u32 s{84+k}, s{84+k}, 0")
        a("s_branch LM_loop")
        a.label("LM_last")
        if args.warmfin:
            a(f"s_cmp_ge_u32 s12, {4*args.warmfin}")
            a("s_cbranch_scc1 LM_nowarm")
            a("s_mov_b64 exec, -1")
            a("s_getpc_b64 s[64:65]")
            a.label("LM_pc")
            a("s_add_u32 s64, s64, fin_kernel-LM_pc")
            a("s_addc_u32 s65, s65, 0")
            a("s_mov_b32 s66, LB_end-fin_kernel")
            a("s_mov_b32 s67, 0x20000")
            a("v_lshlrev_b32 v2, 6, v0")
            a("buffer_load_dword v10, v2, s[64:67], 0 offen")
            a("s_mov_b32 s56, s16")
            a("s_mov_b32 s57, s17")
            a("s_mov_b32 s58, 4096")
            a("buffer_load_dword v11, v2, s[56:59], 0 offen")
            a("s_mov_b32 s52, s34")
            a("s_mov_b32 s53, s35")
            a("s_mov_b32 s54, 1024")
            a("buffer_load_dword v12, v2, s[52:55], 0 offen")
            a("s_mov_b32 s44, s36")
            a("s_mov_b32 s45, s37")
            a("s_mov_b32 s46, 4096")
            a("buffer_load_dword v13, v2, s[44:47], 0 offen")
            a("s_mov_b64 exec, 1")
            a.label("LM_nowarm")
        if args.ts:
            a("s_lshl_b32 s4, s2, 5")
            a(f"s_add_u32 s60, s40, {(4<<20) + 163840}")
            a("s_addc_u32 s61, s41, 0")
            a("s_mov_b32 s62, 0x100000")
            a("v_mov_b32 v2, 0")
            for k in range(6):
                a(f"v_mov_b32 v4, s{84+k}")
                a(f"buffer_store_dword v4, v2, s[60:63], s4 offen offset:{4*k}")
        a("s_endpgm")

    a.label("LA_ffn")
    if args.tk == 2:
        sync("f")
    if args.fuse == 4:
        a("s_cmp_eq_u32 s75, 2")
        a("s_cbranch_scc1 LA_red")
        a("s_cmp_eq_u32 s75, 3")
        a("s_cbranch_scc1 LA_st2")
    elif args.fuse:
        a("s_cmp_ge_u32 s2, 192")
        a("s_cbranch_scc1 LA_red")
    if args.exp:
        ex = dict(kv.split("=") for kv in args.exp.split(","))
        a("s_cmp_lt_u32 s2, 192")
        a("s_cbranch_scc1 LX_skip")
        if ex.get("mem", "dbg") == "dbg":
            a("s_mov_b32 s48, s38")
            a("s_mov_b32 s49, s39")
        else:
            a(f"s_add_u32 s48, s40, {3<<20}")
            a("s_addc_u32 s49, s41, 0")
        a("s_movk_i32 s50, 256")
        a(f"v_mov_b32 v16, {C_LANDED}")
        a("v_mov_b32 v6, 0")
        a("v_mov_b32 v8, 1")
        a(f"s_sub_u32 s10, s79, {ex.get('stop', 8)}")
        a("s_mov_b64 exec, 1")
        a.label("LX_w0")
        a("s_sleep 8")
        a("ds_read_b32 v17, v16")
        a("s_waitcnt lgkmcnt(0)")
        a("v_readfirstlane_b32 s4, v17")
        a(f"s_cmp_lt_u32 s4, {ex.get('start', 8)}")
        a("s_cbranch_scc1 LX_w0")
        nwr = int(ex.get("nwr", 0))
        a("s_sub_u32 s5, s2, 192")
        a(f"s_cmp_lt_u32 s5, {nwr}")
        a("s_cbranch_scc1 LX_wr")
        if int(ex.get("poll", 1)):
            a.label("LX_p")
            a(f"buffer_load_dword v7, v6, s[48:51], 0 offen offset:{ex.get('poff', 16)} {ex.get('pol', 'sc1')}")
            a("ds_read_b32 v17, v16")
            a("s_waitcnt vmcnt(0) lgkmcnt(0)")
            a(f"s_sleep {ex.get('ps', 32)}")
            a("v_readfirstlane_b32 s4, v17")
            a("s_cmp_lt_u32 s4, s10")
            a("s_cbranch_scc1 LX_p")
        a("s_endpgm")
        a.label("LX_wr")
        if ex.get("wk", "atom") == "atom":
            a(f"buffer_atomic_add v8, v6, s[48:51], 0 offen offset:{ex.get('woff', 16)}")
        else:
            a(f"buffer_store_dword v8, v6, s[48:51], 0 offen offset:{ex.get('woff', 16)} sc1")
        a("ds_read_b32 v17, v16")
        a("s_waitcnt vmcnt(0) lgkmcnt(0)")
        a(f"s_sleep {ex.get('ws', 127)}")
        a("v_readfirstlane_b32 s4, v17")
        a("s_cmp_lt_u32 s4, s10")
        a("s_cbranch_scc1 LX_wr")
        a("s_endpgm")
        a.label("LX_skip")
    a("s_mov_b32 s6, s5")
    a(f"s_cmp_ge_u32 s6, {NFFN}")
    a("s_cbranch_scc1 LA_end")
    a("s_cmp_lg_u32 s8, 0")
    a("s_cbranch_scc1 LA_end")
    if args.ffn_wait:
        a(f"v_mov_b32 v4, {C_DONE}")
        a.label("LF_wait")
        a("s_sleep 8")
        a("ds_read_b32 v5, v4")
        a("s_waitcnt lgkmcnt(0)")
        a("v_readfirstlane_b32 s4, v5")
        a(f"s_cmp_lt_u32 s4, {args.ffn_wait}")
        a("s_cbranch_scc1 LF_wait")
    FB = 104
    FA = 40
    FX = 72
    FU = 80
    FG = 88
    FH = 96
    def Fr(i): return f"v[{FB+4*i}:{FB+4*i+3}]"
    a("v_lshrrev_b32 v20, 1, v0")
    a("v_and_b32 v21, 1, v0")
    a("s_movk_i32 s4, 2752")
    a("v_mul_lo_u32 v2, v20, s4")
    a("v_lshl_add_u32 v2, v21, 4, v2")
    a("v_lshlrev_b32 v3, 4, v20")
    a(f"v_add_u32 v3, {L_XT}, v3")
    a("s_mov_b32 s46, 1409024")
    a("s_mov_b32 s50, 1409024")
    a("s_mov_b32 s58, 4096")
    a(f"s_mov_b32 s62, {NFFN*8192}")
    a("s_lshl_b32 s10, s6, 5")
    a("s_mov_b32 s44, s28")
    a("s_mov_b32 s45, s29")
    a("s_mov_b32 s48, s30")
    a("s_mov_b32 s49, s31")
    a("s_mov_b32 s56, s16")
    a("s_mov_b32 s57, s17")
    a(f"s_add_u32 s60, s40, {WS_F}")
    a("s_addc_u32 s61, s41, 0")
    for b in range(4):
        a(f"buffer_load_dwordx4 v[{4+4*b}:{7+4*b}], v1, s[56:59], 0 offen offset:{1024*b}")
    FD = args.fd
    a("s_mov_b32 s11, s10")
    for i in range(FD):
        a(f"buffer_load_dwordx4 {Fr(i)}, v2, s[44:47], s11 offen{wnt}")
        a(f"s_add_u32 s11, s11, {32*2752}")
    a(f"s_waitcnt vmcnt({FD})")
    for e in range(8):
        for b in range(4):
            src = f"v{4+4*b+(e>>1)}"
            if e & 1:
                a(f"v_and_b32 v{FA+4*e+b}, s42, {src}")
            else:
                a(f"v_lshlrev_b32 v{FA+4*e+b}, 16, {src}")
    a("v_lshlrev_b32 v20, 7, v0")
    a(f"v_add_u32 v20, {L_XT}, v20")
    for e in range(8):
        a(f"ds_write_b128 v20, v[{FA+4*e}:{FA+4*e+3}] offset:{16*e}")
    a("s_waitcnt lgkmcnt(0)")
    a("s_mov_b32 s9, 0")
    a("v_mov_b32 v22, v2")
    a(f"s_mov_b32 s12, {32*2752}")
    a.label("LF_pass")
    for k in range(32):
        a(f"v_mov_b32 v{FA+k}, 0")
    a(f"ds_read_b128 v[{FX}:{FX+3}], v3")
    for i in range(16):
        xb = FX + 4 * (i & 1)
        if i < 15:
            nb = FX + 4 * ((i + 1) & 1)
            a(f"ds_read_b128 v[{nb}:{nb+3}], v3 offset:{512*(i+1)}")
        a(f"s_waitcnt vmcnt({FD-1})")
        for d in range(4):
            a(f"v_lshlrev_b32 v{FU+2*d}, 16, v{FB+4*i+d}")
            a(f"v_and_b32 v{FU+2*d+1}, s42, v{FB+4*i+d}")
        if i + FD < 16:
            a(f"buffer_load_dwordx4 {Fr(i+FD)}, v2, s[44:47], s11 offen{wnt}")
            a(f"s_add_u32 s11, s11, {32*2752}")
        else:
            if i + FD == 16:
                a("s_mov_b32 s11, s10")
            a(f"buffer_load_dwordx4 {Fr(i+FD-16)}, v22, s[48:51], s11 offen{wnt}")
            a("s_add_u32 s11, s11, s12")
        a(f"s_waitcnt lgkmcnt({1 if i < 15 else 0})")
        for b in range(4):
            for e in range(8):
                a(f"v_fmac_f32 v{FA+8*b+e}, v{xb+b}, v{FU+e}")
    for k in range(16):
        a(f"v_permlane32_swap_b32 v{FA+k}, v{FA+16+k}")
    for k in range(16):
        a(f"v_add_f32 v{FA+k}, v{FA+k}, v{FA+16+k}")
    for k in range(8):
        a(f"v_permlane16_swap_b32 v{FA+k}, v{FA+8+k}")
    for k in range(8):
        a(f"v_add_f32 v{FA+k}, v{FA+k}, v{FA+8+k}")
    for r in (2, 4, 8):
        for k in range(8):
            a(f"v_add_f32_dpp v{FA+k}, v{FA+k}, v{FA+k} row_ror:{r} row_mask:0xf bank_mask:0xf")
    for k in range(8):
        a(f"v_mov_b32 v{FG+k}, v{FH+k}")
        a(f"v_mov_b32 v{FH+k}, v{FA+k}")
    a("s_cmp_eq_u32 s9, 1")
    a("s_cbranch_scc1 LF_p2")
    a("s_mov_b32 s9, 1")
    a("s_mov_b32 s44, s48")
    a("s_mov_b32 s45, s49")
    a("s_mov_b32 s48, s32")
    a("s_mov_b32 s49, s33")
    if args.fuse >= 2:
        a("s_mov_b32 s50, 0")
    a("v_mov_b32 v22, v1")
    a("s_movk_i32 s12, 1024")
    a("s_lshl_b32 s10, s6, 14")
    a("s_branch LF_pass")
    a.label("LF_p2")
    a.nop(2)
    for k in range(8):
        g, u = f"v{FG+k}", f"v{FH+k}"
        round_bf16(a, g)
        round_bf16(a, u)
        a(f"v_mul_f32 {g}, s69, {g}")
        a(f"v_exp_f32 {g}, -{g}")
        a(f"v_add_f32 {g}, 1.0, {g}")
        a(f"v_rcp_f32 {g}, {g}")
        round_bf16(a, g)
        a(f"v_mul_f32 {u}, {g}, {u}")
        round_bf16(a, u)
    if args.fuse >= 2:
        for k in range(4):
            a(f"v_cvt_pk_bf16_f32 v{FA+k}, v{FH+2*k}, v{FH+2*k+1}")
        a("v_lshrrev_b32 v2, 4, v0")
        a("s_movk_i32 s4, 2752")
        a("v_mul_lo_u32 v2, v2, s4")
        a("v_and_b32 v3, 1, v0")
        a("v_lshl_add_u32 v2, v3, 4, v2")
        a("s_lshl_b32 s10, s6, 5")
        a(f"s_add_u32 s10, s10, {WSH - WS_F}")
        if args.fuse >= 3:
            a(f"v_mov_b32 v4, {C_BAR + 8}")
            a.label("LF_pz")
            a("ds_read_b32 v5, v4")
            a("s_waitcnt lgkmcnt(0)")
            a("v_readfirstlane_b32 s4, v5")
            a("s_cmp_eq_u32 s4, 0")
            a("s_cbranch_scc1 LF_pz")
        a("s_mov_b32 s4, 0x00030003")
        a("s_mov_b32 s5, 0x00030003")
        a("s_mov_b64 exec, s[4:5]")
        a(f"buffer_store_dwordx4 v[{FA}:{FA+3}], v2, s[60:63], s10 offen sc1")
    else:
        for k in range(32):
            a(f"v_mov_b32 v{FA+k}, 0")
        for f in range(16):
            for b in range(4):
                a(f"v_readlane_b32 s{80+b}, v{FH+(f&7)}, {16*b + (f >> 3)}")
            a(f"s_waitcnt vmcnt({min(FD-1, 15-f)})")
            for d in range(4):
                a(f"v_lshlrev_b32 v{FU+2*d}, 16, v{FB+4*f+d}")
                a(f"v_and_b32 v{FU+2*d+1}, s42, v{FB+4*f+d}")
            if f + FD < 16:
                a(f"buffer_load_dwordx4 {Fr(f+FD)}, v22, s[48:51], s11 offen{wnt}")
                a("s_add_u32 s11, s11, s12")
            for b in range(4):
                for e in range(8):
                    a(f"v_fmac_f32 v{FA+8*b+e}, s{80+b}, v{FU+e}")
        a(f"v_lshlrev_b32 v2, {4 if args.flin else 5}, v0")
        a("s_lshl_b32 s10, s6, 13")
        fsc = "" if args.dbg & 2 else ysc
        for b in range(4):
            a(f"buffer_store_dwordx4 v[{FA+8*b}:{FA+8*b+3}], v2, s[60:63], s10 offen offset:{2048*(b&1)}{fsc}")
            a(f"buffer_store_dwordx4 v[{FA+8*b+4}:{FA+8*b+7}], v2, s[60:63], s10 offen offset:{2048*(b&1)+(1024 if args.flin else 16)}{fsc}")
            if b == 1:
                a("s_add_u32 s10, s10, 4096")
    if args.fuse in (1, 2):
        a("s_mov_b32 s52, s38")
        a("s_mov_b32 s53, s39")
        a("s_movk_i32 s54, 256")
        a("s_and_b32 s4, s2, 7")
        a("s_lshl_b32 s4, s4, 5")
        a(f"v_mov_b32 v4, {1 if args.fuse == 2 else 0x10000}")
        a("v_mov_b32 v5, 0")
        a("s_mov_b64 exec, 1")
        a("s_waitcnt vmcnt(0)")
        if args.fuse == 2:
            a("buffer_atomic_add v4, v5, s[52:55], 0 offen offset:16")
        else:
            a("buffer_atomic_add v4, v5, s[52:55], s4 offen offset:8")
    stamp(5)
    a("s_branch LA_end2")
    if args.fuse:
        if args.fuse == 4:
            fuse4(a, args, C_LANDED, stamp, C_BAR + 8 - C_LANDED)
        else:
            reducer(a, args, C_LANDED, stamp, C_BAR + 8 - C_LANDED)
    a.label("LA_end")
    a("s_endpgm")

    if args.fuse:
        a.label("LB_end")
        a("s_endpgm")
    else:
        fin_kernel(a, args)
    if args.probe == 1:
        probe_kernel(a, args)

    for name, vg in (("attn_kernel", 168),) + (() if args.fuse else (("fin_kernel", 48),)) + ((("probe_kernel", 16),) if args.probe == 1 else ()):
        a.raw(f""".section .rodata,"a"
.p2align 6
.amdhsa_kernel {name}
  .amdhsa_next_free_vgpr {vg}
  .amdhsa_next_free_sgpr 100
  .amdhsa_accum_offset {vg}
  .amdhsa_group_segment_fixed_size 0
  .amdhsa_kernarg_size 104
  .amdhsa_user_sgpr_count 2
  .amdhsa_user_sgpr_kernarg_segment_ptr 1
  .amdhsa_system_sgpr_workgroup_id_x 1
.end_amdhsa_kernel""")
    return a.text()


def reducer(a, args, C_LANDED, stamp, C_PZ):
    Y0 = 40
    F0 = 72
    WT = 120
    AC = 8
    a.label("LA_red")
    a("s_sub_u32 s4, s2, 192")
    a("s_lshr_b32 s7, s4, 4")
    a("s_and_b32 s8, s4, 15")
    a("s_mov_b32 s44, s40")
    a("s_mov_b32 s45, s41")
    a(f"s_mov_b32 s46, {WS_F + NFFN*8192}")
    a("s_mov_b32 s48, s38")
    a("s_mov_b32 s49, s39")
    a("s_movk_i32 s50, 256")
    a("s_mov_b32 s52, s16")
    a("s_mov_b32 s53, s17")
    a("s_movk_i32 s54, 4096")
    a("s_mov_b32 s56, s34")
    a("s_mov_b32 s57, s35")
    a("s_movk_i32 s58, 1024")
    a("s_mov_b32 s60, s36")
    a("s_mov_b32 s61, s37")
    a("s_movk_i32 s62, 4096")
    a("v_lshrrev_b32 v20, 3, v0")
    a("v_and_b32 v21, 7, v0")
    a("v_lshlrev_b32 v3, 11, v20")
    a("v_lshl_add_u32 v3, v21, 4, v3")
    a("v_lshlrev_b32 v5, 13, v20")
    if args.flin:
        a("v_lshrrev_b32 v22, 1, v21")
        a("v_lshl_add_u32 v5, v22, 4, v5")
        a("v_and_b32 v22, 1, v21")
        a("v_lshl_add_u32 v5, v22, 10, v5")
    else:
        a("v_lshl_add_u32 v5, v21, 4, v5")
    a("v_lshlrev_b32 v6, 2, v0")
    a("v_lshlrev_b32 v7, 3, v0")
    a("v_lshlrev_b32 v2, 2, v20")
    a("v_lshrrev_b32 v22, 4, v0")
    a("v_and_b32 v23, 1, v22")
    a("v_lshlrev_b32 v23, 1, v23")
    a("v_lshrrev_b32 v22, 1, v22")
    a("v_or_b32 v23, v23, v22")
    a("v_lshl_add_u32 v23, v21, 2, v23")
    a("v_lshlrev_b32 v4, 1, v23")
    a(f"v_mov_b32 v16, {C_LANDED}")
    a("s_lshl_b32 s4, s7, 17")
    a("s_lshl_b32 s5, s8, 7")
    a("s_add_u32 s70, s4, s5")
    for i in range(1, 8):
        a(f"s_add_u32 s{70+i}, s{69+i}, 16384")
    a("s_lshl_b32 s11, s7, 9")
    a(f"s_add_u32 s11, s11, {WS_STATS}")
    a("s_lshl_b32 s12, s7, 11")
    if args.flin:
        a("s_lshr_b32 s5, s5, 1")
    a("s_add_u32 s12, s12, s5")
    a(f"s_add_u32 s12, s12, {WS_F}")
    a("s_lshl_b32 s15, s7, 10")
    a("s_lshl_b32 s5, s8, 6")
    a("s_add_u32 s13, s15, s5")
    a("v_mov_b32 v18, 0")

    def count_wait(tag, mask, val, slp):
        a(f"s_mov_b32 s9, {args.red_tmo}")
        a(f"s_mov_b32 s16, {mask & 0xffffffff:#x}")
        a(f"s_mov_b32 s17, {mask >> 32:#x}")
        a("v_mov_b32 v18, 0")
        a.label(f"LR_c{tag}")
        a("s_mov_b64 exec, s[16:17]")
        a("buffer_load_dword v18, v6, s[48:51], 0 offen sc1")
        a("s_mov_b64 exec, -1")
        a("s_waitcnt vmcnt(0)")
        a("v_add_u32_dpp v19, v18, v18 row_ror:8 row_mask:0xf bank_mask:0xf")
        for rr in (4, 2, 1):
            a(f"v_add_u32_dpp v19, v19, v19 row_ror:{rr} row_mask:0xf bank_mask:0xf")
        for g in range(4):
            a(f"v_readlane_b32 s{20+g}, v19, {16*g}")
        a("s_add_u32 s20, s20, s21")
        a("s_add_u32 s22, s22, s23")
        a("s_add_u32 s20, s20, s22")
        a(f"s_cmp_eq_u32 s20, {val}")
        a(f"s_cbranch_scc1 LR_cok{tag}")
        a(f"s_sleep {slp}")
        a("s_sub_u32 s9, s9, 1")
        a("s_cmp_lg_u32 s9, 0")
        a(f"s_cbranch_scc1 LR_c{tag}")
        a.label(f"LR_cok{tag}")

    if args.fuse >= 2:
        WD, HH, DA, PT = 24, 72, 120, 152
        a("s_sub_u32 s4, s2, 192")
        if args.fuse == 3:
            a("s_and_b32 s14, s4, 7")
            a("s_lshr_b32 s5, s4, 3")
        else:
            a("s_lshr_b32 s14, s4, 3")
            a("s_and_b32 s5, s4, 7")
        a("s_mul_i32 s64, s14, 196608")
        a("s_lshl_b32 s4, s5, 7")
        a("s_add_u32 s64, s64, s4")
        a("s_mul_i32 s65, s14, 384")
        a("s_lshl_b32 s66, s14, 13")
        a("s_lshl_b32 s4, s5, 8")
        a("s_add_u32 s66, s66, s4")
        a(f"s_add_u32 s66, s66, {WS_F}")
        a("s_mov_b32 s24, s32")
        a("s_mov_b32 s25, s33")
        a("s_mov_b32 s26, 1409024")
        a("s_mov_b32 s27, 0x20000")
        a(f"s_add_u32 s28, s40, {WS_H}")
        a("s_addc_u32 s29, s41, 0")
        a("s_movk_i32 s30, 11008")
        a("s_mov_b32 s31, 0x20000")
        a("s_mov_b32 s80, 0x05040100")
        a("s_mov_b32 s81, 0x07060302")
        a("v_mul_u32_u24 v160, 24576, v20")
        a("v_lshl_add_u32 v160, v21, 4, v160")
        a("v_mul_u32_u24 v161, 48, v20")
        a("v_lshrrev_b32 v22, 4, v0")
        a("v_lshlrev_b32 v162, 11, v22")
        a("v_lshl_add_u32 v162, v21, 5, v162")
        a("v_bfe_u32 v22, v0, 3, 1")
        a("v_lshl_add_u32 v162, v22, 4, v162")
        a.label("LR_w0")
        a("s_sleep 32")
        a("ds_read_b32 v17, v16")
        a("s_waitcnt lgkmcnt(0)")
        a("v_readfirstlane_b32 s4, v17")
        a(f"s_cmp_lt_u32 s4, {args.red_t0}")
        a("s_cbranch_scc1 LR_w0")

        def wload(i):
            if i % 4 == 0 and i:
                a("s_add_u32 s64, s64, 4096")
            sl = WD + 4 * (i % 12)
            a(f"buffer_load_dwordx4 v[{sl}:{sl+3}], v160, s[24:27], s64 offen offset:{1024*(i&3)}")
        for i in range(12):
            wload(i)
        if args.fuse == 3:
            count_wait("z", 0x0404040404040404, 256, args.red_slp)
            a(f"s_mov_b32 s9, {args.red_tmo}")
            a("s_add_u32 s67, s65, 5504")
            a.label("LR_h")
            for b in range(4):
                for t in range(3):
                    a(f"buffer_load_dwordx4 v[{HH+12*b+4*t}:{HH+12*b+4*t+3}], v161, s[28:31], s{65 if b < 2 else 67} offen offset:{2752*(b&1)+16*t} sc1")
            a("s_sub_u32 s9, s9, 1")
            a("s_waitcnt vmcnt(0)")
            a(f"v_max3_u32 v22, v{HH}, v{HH+1}, v{HH+2}")
            a(f"v_max3_u32 v23, v{HH+3}, v{HH+4}, v{HH+5}")
            for k in range(6, 46, 4):
                a(f"v_max3_u32 v22, v22, v{HH+k}, v{HH+k+1}")
                a(f"v_max3_u32 v23, v23, v{HH+k+2}, v{HH+k+3}")
            a(f"v_max3_u32 v22, v22, v{HH+46}, v{HH+47}")
            a("v_max_u32 v22, v22, v23")
            a("v_cmp_eq_u32 vcc, -1, v22")
            a("s_cmp_eq_u32 s9, 0")
            a("s_cbranch_scc1 LR_hok")
            a("s_cbranch_vccz LR_hok")
            a(f"s_sleep {args.red_hs}")
            a("s_branch LR_h")
            a.label("LR_hok")
        else:
            count_wait("h", 1 << 4, NFFN, args.red_slp)
            for b in range(4):
                for t in range(3):
                    a(f"buffer_load_dwordx4 v[{HH+12*b+4*t}:{HH+12*b+4*t+3}], v161, s[28:31], s65 offen offset:{2752*(b&1)+16*t} sc1")
                if b == 1:
                    a("s_add_u32 s65, s65, 5504")
            a("s_waitcnt vmcnt(0)")
        for p in range(12):
            if p >= 6:
                a(f"s_waitcnt vmcnt({22 - 2*p})")
            A_, B_ = WD + 4 * ((2 * p) % 12), WD + 4 * ((2 * p + 1) % 12)
            for d in range(4):
                a(f"v_perm_b32 v{PT+2*d}, v{B_+d}, v{A_+d}, s80")
                a(f"v_perm_b32 v{PT+2*d+1}, v{B_+d}, v{A_+d}, s81")
            if p < 6:
                wload(2 * p + 12)
                wload(2 * p + 13)
            for b in range(4):
                for e in range(8):
                    c = "0" if p == 0 else f"v{DA+8*b+e}"
                    a(f"v_dot2_f32_bf16 v{DA+8*b+e}, v{PT+e}, v{HH+12*b+p}, {c}")
        for k in range(16):
            a(f"v_permlane32_swap_b32 v{DA+k}, v{DA+16+k}")
        for k in range(16):
            a(f"v_add_f32 v{DA+k}, v{DA+k}, v{DA+16+k}")
        for k in range(8):
            a(f"v_permlane16_swap_b32 v{DA+k}, v{DA+8+k}")
        for k in range(8):
            a(f"v_add_f32 v{DA+k}, v{DA+k}, v{DA+8+k}")
        for k in range(4):
            a(f"v_add_f32_dpp v{DA+8+k}, v{DA+k}, v{DA+k} row_ror:8 row_mask:0xf bank_mask:0x3")
            a(f"v_add_f32_dpp v{DA+8+k}, v{DA+4+k}, v{DA+4+k} row_ror:8 row_mask:0xf bank_mask:0xc")
        if args.fuse == 3:
            a.label("LR_pz")
            a(f"ds_read_b32 v17, v16 offset:{C_PZ}")
            a("s_waitcnt lgkmcnt(0)")
            a("v_readfirstlane_b32 s4, v17")
            a("s_cmp_eq_u32 s4, 0")
            a("s_cbranch_scc1 LR_pz")
            a(f"buffer_store_dwordx4 v[{DA+8}:{DA+11}], v162, s[44:47], s66 offen sc1")
        else:
            a(f"buffer_store_dwordx4 v[{DA+8}:{DA+11}], v162, s[44:47], s66 offen sc1")
            a("v_mov_b32 v22, 0x10000")
            a("v_mov_b32 v23, 0")
            a("s_mov_b64 exec, 1")
            a("s_waitcnt vmcnt(0)")
            a("buffer_atomic_add v22, v23, s[48:51], 0 offen offset:144")
            a("s_mov_b64 exec, -1")
    a(f"s_sub_u32 s10, s79, {args.red_t1}")
    a.label("LR_w1")
    a("s_sleep 32")
    a("ds_read_b32 v17, v16")
    a("s_waitcnt lgkmcnt(0)")
    a("v_readfirstlane_b32 s4, v17")
    a("s_cmp_lt_u32 s4, s10")
    a("s_cbranch_scc1 LR_w1")
    stamp(1)
    a("buffer_load_dwordx4 v[24:27], v1, s[52:55], s15 offen")
    a("buffer_load_dwordx4 v[28:31], v1, s[56:59], 0 offen")
    NF = 1 if args.fuse >= 2 else 11
    if args.fuse == 3:
        a(f"s_mov_b32 s9, {args.red_tmo}")
        a.label("LR_s")
        a(f"buffer_load_dwordx4 v[{F0}:{F0+3}], v5, s[44:47], s12 offen sc1")
        a("s_sub_u32 s9, s9, 1")
        a("s_waitcnt vmcnt(0)")
        a(f"v_max3_u32 v22, v{F0}, v{F0+1}, v{F0+2}")
        a(f"v_max_u32 v22, v22, v{F0+3}")
        a("v_cmp_eq_u32 vcc, -1, v22")
        a("s_cmp_eq_u32 s9, 0")
        a("s_cbranch_scc1 LR_sok")
        a("s_cbranch_vccz LR_sok")
        a(f"s_sleep {args.red_hs}")
        a("s_branch LR_s")
        a.label("LR_sok")
    else:
        count_wait("a", 0x0404040404040404 | ((1 << 36) if args.fuse == 2 else 0), 256 + ((64 if args.fuse == 2 else NFFN) << 16), args.red_slp)
        for i in range(0 if args.dbg & 4 else NF):
            a(f"buffer_load_dwordx4 v[{F0+4*i}:{F0+4*i+3}], v5, s[44:47], s12 offen sc1")
            if i < NF - 1:
                a("s_add_u32 s12, s12, 65536")
    for d in range(4):
        a(f"v_lshlrev_b32 v{32+2*d}, 16, v{24+d}")
        a(f"v_and_b32 v{33+2*d}, s42, v{24+d}")
        a(f"v_lshlrev_b32 v{AC+2*d}, 16, v{28+d}")
        a(f"v_and_b32 v{AC+2*d+1}, s42, v{28+d}")
    for e in range(8):
        a(f"v_mul_f32 v{32+e}, v{32+e}, v{AC+e}")
    for e in range(8):
        round_bf16(a, f"v{32+e}")
    for st in (1, 2, 4):
        for e in range(0, 8, 2 * st):
            a(f"v_add_f32 v{32+e}, v{32+e}, v{32+e+st}")
    for r in (1, 2, 4, 8):
        a(f"v_add_f32_dpp v32, v32, v32 row_ror:{r} row_mask:0xf bank_mask:0xf")
    for g in range(4):
        a(f"v_readlane_b32 s{20+g}, v32, {16*g}")
    a("v_mov_b32 v32, s20")
    a("v_add_f32 v32, s21, v32")
    a("v_add_f32 v32, s22, v32")
    a("v_add_f32 v32, s23, v32")
    round_bf16(a, "v32")
    a("v_mul_f32 v32, s69, v32")
    a("v_exp_f32 v32, -v32")
    a("v_add_f32 v32, 1.0, v32")
    a("v_rcp_f32 v32, v32")
    round_bf16(a, "v32")
    a("v_sub_f32 v33, 1.0, v32")
    round_bf16(a, "v33")

    def red4(b):
        a(f"v_permlane32_swap_b32 v{b}, v{b+1}")
        a(f"v_permlane32_swap_b32 v{b+2}, v{b+3}")
        a(f"v_add_f32 v{b}, v{b}, v{b+1}")
        a(f"v_add_f32 v{b+2}, v{b+2}, v{b+3}")
        a(f"v_permlane16_swap_b32 v{b}, v{b+2}")
        a(f"v_add_f32 v{b}, v{b}, v{b+2}")
        a(f"v_add_f32_dpp v{b}, v{b}, v{b} row_ror:8 row_mask:0xf bank_mask:0xf")

    for k in range(32):
        a(f"v_mov_b32 v{Y0+k}, -1")
    a("v_mov_b32 v36, -1")
    a("v_mov_b32 v37, -1")
    for i in range(8):
        a(f"s_mov_b64 s[{16+2*i}:{17+2*i}], -1")
    a("s_mov_b64 s[32:33], -1")
    a("s_mov_b32 s36, 0x00ff00ff")
    a("s_mov_b32 s37, 0x00ff00ff")
    a("s_waitcnt vmcnt(0)")
    for st in (1, 2, 4, 8):
        for i in range(0, NF, 2 * st):
            if i + st < NF:
                for c in range(4):
                    a(f"v_add_f32 v{F0+4*i+c}, v{F0+4*i+c}, v{F0+4*(i+st)+c}")
    red4(F0)
    round_bf16(a, f"v{F0}")
    a(f"v_mul_f32 v33, v33, v{F0}")
    round_bf16(a, "v33")
    stamp(2)
    a(f"s_sub_u32 s10, s79, {args.red_t2}")
    a.label("LR_w2")
    a("s_sleep 4")
    a("ds_read_b32 v17, v16")
    a("s_waitcnt lgkmcnt(0)")
    a("v_readfirstlane_b32 s4, v17")
    a("s_cmp_lt_u32 s4, s10")
    a("s_cbranch_scc1 LR_w2")
    a(f"s_mov_b32 s9, {args.red_tmo}")
    a(f"s_setprio {args.red_prio}")
    stamp(3)
    if args.fuse == 3:
        a("s_mov_b32 s80, 0x0c0c0400")
        a("s_mov_b32 s81, 0x04000c0c")
        a.label("LR_p")
        for i in range(8):
            a(f"s_or_b64 exec, s[{16+2*i}:{17+2*i}], 1")
            a(f"buffer_load_dwordx4 v[{Y0+4*i}:{Y0+4*i+3}], v3, s[44:47], s{70+i} offen sc1")
        a("s_mov_b64 exec, -1")
        a("s_sub_u32 s9, s9, 1")
        a("s_mov_b64 s[34:35], 0")
        for i0_ in range(0, 8, 2):
            pr = (i0_, i0_ + 1)
            a(f"s_waitcnt vmcnt({6-i0_})")
            for i in pr:
                y = Y0 + 4 * i
                a(f"v_perm_b32 v{WT+i}, v{y+1}, v{y}, s80")
                a(f"v_perm_b32 v{WT+8+i}, v{y+3}, v{y+2}, s81")
            for i in pr:
                a(f"v_or_b32 v{WT+i}, v{WT+i}, v{WT+8+i}")
            for i in pr:
                y = Y0 + 4 * i
                a(f"v_max3_u32 v{38+(i&1)}, v{y}, v{y+1}, v{y+2}")
            for i in pr:
                a(f"v_sub_f32_dpp v{WT+8+i}, v{WT+i}, v{WT+i} row_ror:8 row_mask:0xf bank_mask:0xf")
            for i in pr:
                y = Y0 + 4 * i
                a(f"v_max_u32 v{38+(i&1)}, v{38+(i&1)}, v{y+3}")
            for i in pr:
                a(f"v_exp_f32 v{WT+8+i}, v{WT+8+i}")
            for i in pr:
                a(f"v_cmp_eq_u32 s[{16+2*i}:{17+2*i}], -1, v{38+(i&1)}")
            for i in pr:
                a(f"v_add_f32 v{WT+8+i}, 1.0, v{WT+8+i}")
            for i in pr:
                a(f"v_rcp_f32 v{WT+8+i}, v{WT+8+i}")
            for i in pr:
                a(f"s_or_b64 s[34:35], s[34:35], s[{16+2*i}:{17+2*i}]")
            for i in pr:
                y = Y0 + 4 * i
                o = AC + 4 * (i & 1)
                for c in range(4):
                    if i < 2:
                        a(f"v_mul_f32 v{o+c}, v{WT+8+i}, v{y+c}")
                    else:
                        a(f"v_fmac_f32 v{o+c}, v{WT+8+i}, v{y+c}")
    else:
        if args.red_a:
            a.label("LR_a")
            a("buffer_load_dwordx2 v[36:37], v7, s[44:47], s11 offen sc1")
            a("s_sub_u32 s9, s9, 1")
            a("s_waitcnt vmcnt(0)")
            a("v_max_u32 v38, v36, v37")
            a("v_cmp_eq_u32 s[32:33], -1, v38")
            a("s_cmp_eq_u32 s9, 0")
            a("s_cbranch_scc1 LR_ae")
            a("s_bcnt1_i32_b64 s4, s[32:33]")
            a(f"s_cmp_gt_u32 s4, {64 - args.red_a}")
            a("s_cbranch_scc1 LR_a")
            a.label("LR_ae")
            a(f"s_mov_b32 s9, {args.red_tmo}")
        stamp(4)
        a.label("LR_p")
        a("s_or_b64 exec, s[32:33], 1")
        a("buffer_load_dwordx2 v[36:37], v7, s[44:47], s11 offen sc1")
        for i in range(8):
            a(f"s_or_b64 exec, s[{16+2*i}:{17+2*i}], 1")
            a(f"buffer_load_dwordx4 v[{Y0+4*i}:{Y0+4*i+3}], v3, s[44:47], s{70+i} offen sc1")
        a("s_mov_b64 exec, -1")
        a("s_sub_u32 s9, s9, 1")
        a("s_waitcnt vmcnt(8)")
        a("v_max_u32 v38, v36, v37")
        a("v_mov_b32_dpp v39, v36 quad_perm:[1,0,3,2] row_mask:0xf bank_mask:0xf")
        a("v_cmp_eq_u32 s[32:33], -1, v38")
        a("v_max_f32 v39, v36, v39")
        a("v_sub_f32 v38, v36, v39")
        a("v_mul_f32 v38, s69, v38")
        a("v_exp_f32 v38, v38")
        a("v_mul_f32 v38, v38, v37")
        a("v_add_f32_dpp v39, v38, v38 quad_perm:[1,0,3,2] row_mask:0xf bank_mask:0xf")
        a("v_rcp_f32 v39, v39")
        a("v_mul_f32 v38, v38, v39")
        for i in range(8):
            a(f"ds_bpermute_b32 v{WT+i}, v2, v38 offset:{32*i}")
        a("s_mov_b64 s[34:35], s[32:33]")
        for i in range(8):
            y = Y0 + 4 * i
            a(f"s_waitcnt vmcnt({7-i})")
            a(f"v_max3_u32 v38, v{y}, v{y+1}, v{y+2}")
            a(f"v_max_u32 v38, v38, v{y+3}")
            a(f"v_cmp_eq_u32 s[{16+2*i}:{17+2*i}], -1, v38")
            if i == 0:
                a("s_waitcnt lgkmcnt(0)")
            o = AC + 4 * (i & 1)
            for c in range(4):
                if i < 2:
                    a(f"v_mul_f32 v{o+c}, v{WT+i}, v{y+c}")
                else:
                    a(f"v_fmac_f32 v{o+c}, v{WT+i}, v{y+c}")
            a(f"s_or_b64 s[34:35], s[34:35], s[{16+2*i}:{17+2*i}]")
    for c in range(4):
        a(f"v_add_f32 v{AC+c}, v{AC+c}, v{AC+4+c}")
    a("s_cmp_eq_u32 s9, 0")
    a("s_cselect_b64 s[34:35], 0, s[34:35]")
    red4(AC)
    a("s_cmp_eq_u64 s[34:35], 0")
    a("s_cselect_b64 s[38:39], s[36:37], 0")
    round_bf16(a, f"v{AC}")
    a(f"v_mul_f32 v{AC}, v32, v{AC}")
    round_bf16(a, f"v{AC}")
    a(f"v_add_f32 v{AC}, v{AC}, v33")
    a(f"v_cvt_pk_bf16_f32 v{AC}, v{AC}, v{AC}")
    a("s_mov_b64 exec, s[38:39]")
    a(f"buffer_store_short v{AC}, v4, s[60:63], s13 offen")
    a("s_cbranch_scc0 LR_p")
    a("s_mov_b64 exec, -1")
    stamp(5)
    a("s_branch LA_end2")


def fuse4(a, args, C_LANDED, stamp, C_PZ):
    def lds_wait(tag, sreg_or_imm, slp):
        a.label(f"LR_w{tag}")
        a(f"s_sleep {slp}")
        a("ds_read_b32 v17, v16")
        a("s_waitcnt lgkmcnt(0)")
        a("v_readfirstlane_b32 s4, v17")
        a(f"s_cmp_lt_u32 s4, {sreg_or_imm}")
        a(f"s_cbranch_scc1 LR_w{tag}")

    def marked_wait(tag):
        a("s_mov_b32 s48, s38")
        a("s_mov_b32 s49, s39")
        a("s_movk_i32 s50, 256")
        a("v_lshlrev_b32 v6, 2, v0")
        a(f"s_mov_b32 s9, {args.red_tmo}")
        a("s_mov_b32 s14, 0x04040404")
        a("s_mov_b32 s15, 0x04040404")
        a("v_mov_b32 v18, 0")
        a.label(f"LR_c{tag}")
        a("s_mov_b64 exec, s[14:15]")
        a("buffer_load_dword v18, v6, s[48:51], 0 offen sc1")
        a("s_mov_b64 exec, -1")
        a("s_waitcnt vmcnt(0)")
        a("v_add_u32_dpp v19, v18, v18 row_ror:8 row_mask:0xf bank_mask:0xf")
        for g in range(4):
            a(f"v_readlane_b32 s{80+g}, v19, {16*g+2}")
        a("s_add_u32 s80, s80, s81")
        a("s_add_u32 s82, s82, s83")
        a("s_add_u32 s80, s80, s82")
        a("s_cmp_eq_u32 s80, 256")
        a(f"s_cbranch_scc1 LR_cok{tag}")
        a(f"s_sleep {args.red_slp}")
        a("s_sub_u32 s9, s9, 1")
        a("s_cmp_lg_u32 s9, 0")
        a(f"s_cbranch_scc1 LR_c{tag}")
        a.label(f"LR_cok{tag}")

    def retry(tag, slp):
        a("v_cmp_eq_u32 vcc, -1, v22")
        a("s_cmp_eq_u32 s9, 0")
        a(f"s_cbranch_scc1 LR_{tag}ok")
        a(f"s_cbranch_vccz LR_{tag}ok")
        a(f"s_sleep {slp}")
        a(f"s_branch LR_{tag}")
        a.label(f"LR_{tag}ok")

    WD, HH, DA, PT = 24, 96, 136, 8
    a.label("LA_st2")
    a("s_mul_i32 s64, s76, 147456")
    a("s_lshl_b32 s4, s77, 7")
    a("s_add_u32 s64, s64, s4")
    a("s_mul_i32 s65, s76, 288")
    a("s_add_u32 s67, s65, 5504")
    a("s_lshl_b32 s66, s76, 13")
    a("s_lshl_b32 s4, s77, 8")
    a("s_add_u32 s66, s66, s4")
    a("s_mov_b32 s44, s32")
    a("s_mov_b32 s45, s33")
    a("s_mov_b32 s46, 1409024")
    a(f"s_add_u32 s52, s40, {WS_H4}")
    a("s_addc_u32 s53, s41, 0")
    a("s_movk_i32 s54, 11008")
    a(f"s_add_u32 s56, s40, {WS_F}")
    a("s_addc_u32 s57, s41, 0")
    a("s_mov_b32 s58, 81920")
    a("s_mov_b32 s70, 0x05040100")
    a("s_mov_b32 s71, 0x07060302")
    a("v_lshrrev_b32 v20, 3, v0")
    a("v_and_b32 v21, 7, v0")
    a("v_mul_u32_u24 v2, 18432, v20")
    a("v_lshl_add_u32 v2, v21, 4, v2")
    a("v_mul_u32_u24 v3, 36, v20")
    a("v_lshrrev_b32 v22, 4, v0")
    a("v_lshlrev_b32 v4, 11, v22")
    a("v_lshl_add_u32 v4, v21, 5, v4")
    a("v_bfe_u32 v22, v0, 3, 1")
    a("v_lshl_add_u32 v4, v22, 4, v4")
    a(f"v_mov_b32 v16, {C_LANDED}")
    lds_wait("0", args.red_t0, 32)
    stamp(1)
    for i in range(18):
        if i % 4 == 0 and i:
            a("s_add_u32 s64, s64, 4096")
        a(f"buffer_load_dwordx4 v[{WD+4*i}:{WD+4*i+3}], v2, s[44:47], s64 offen offset:{1024*(i&3)}")
    marked_wait("z")
    LO, HI = {}, {}
    prev = PT
    for p in range(9):
        for d in range(4):
            A_, B_ = WD + 8 * p + d, WD + 8 * p + 4 + d
            a(f"v_perm_b32 v{prev}, v{B_}, v{A_}, s70")
            a(f"v_perm_b32 v{B_}, v{B_}, v{A_}, s71")
            LO[(p, d)] = prev
            HI[(p, d)] = B_
            prev = A_
    a(f"s_mov_b32 s9, {args.red_tmo}")
    a.label("LR_h")
    for b in range(4):
        so = f"s{65 if b < 2 else 67}"
        o = 2752 * (b & 1)
        a(f"buffer_load_dwordx4 v[{HH+10*b}:{HH+10*b+3}], v3, s[52:55], {so} offen offset:{o} sc1")
        a(f"buffer_load_dwordx4 v[{HH+10*b+4}:{HH+10*b+7}], v3, s[52:55], {so} offen offset:{o+16} sc1")
        a(f"buffer_load_dword v{HH+10*b+8}, v3, s[52:55], {so} offen offset:{o+32} sc1")
    a("s_sub_u32 s9, s9, 1")
    a("s_waitcnt vmcnt(0)")
    hr = [HH + 10 * b + k for b in range(4) for k in range(9)]
    a(f"v_max3_u32 v22, v{hr[0]}, v{hr[1]}, v{hr[2]}")
    a(f"v_max3_u32 v23, v{hr[3]}, v{hr[4]}, v{hr[5]}")
    for k in range(6, 34, 4):
        a(f"v_max3_u32 v22, v22, v{hr[k]}, v{hr[k+1]}")
        a(f"v_max3_u32 v23, v23, v{hr[k+2]}, v{hr[k+3]}")
    a(f"v_max3_u32 v22, v22, v{hr[34]}, v{hr[35]}")
    a("v_max_u32 v22, v22, v23")
    retry("h", args.red_hs)
    stamp(2)
    for p in range(9):
        for b in range(4):
            for e in range(8):
                w = (HI if e & 1 else LO)[(p, e >> 1)]
                c = "0" if p == 0 else f"v{DA+8*b+e}"
                a(f"v_dot2_f32_bf16 v{DA+8*b+e}, v{w}, v{HH+10*b+p}, {c}")
    for k in range(16):
        a(f"v_permlane32_swap_b32 v{DA+k}, v{DA+16+k}")
    for k in range(16):
        a(f"v_add_f32 v{DA+k}, v{DA+k}, v{DA+16+k}")
    for k in range(8):
        a(f"v_permlane16_swap_b32 v{DA+k}, v{DA+8+k}")
    for k in range(8):
        a(f"v_add_f32 v{DA+k}, v{DA+k}, v{DA+8+k}")
    for k in range(4):
        a(f"v_add_f32_dpp v{DA+8+k}, v{DA+k}, v{DA+k} row_ror:8 row_mask:0xf bank_mask:0x3")
        a(f"v_add_f32_dpp v{DA+8+k}, v{DA+4+k}, v{DA+4+k} row_ror:8 row_mask:0xf bank_mask:0xc")
    a.label("LR_pz")
    a(f"ds_read_b32 v17, v16 offset:{C_PZ}")
    a("s_waitcnt lgkmcnt(0)")
    a("v_readfirstlane_b32 s4, v17")
    a("s_cmp_eq_u32 s4, 0")
    a("s_cbranch_scc1 LR_pz")
    a(f"buffer_store_dwordx4 v[{DA+8}:{DA+11}], v4, s[56:59], s66 offen sc1")
    stamp(5)
    a("s_branch LA_end2")

    Y0, F0, WT, AC = 40, 72, 120, 8
    a.label("LA_red")
    a("s_lshr_b32 s7, s5, 4")
    a("s_and_b32 s8, s5, 15")
    a("s_mov_b32 s44, s40")
    a("s_mov_b32 s45, s41")
    a(f"s_mov_b32 s46, {WS_F + 81920}")
    a("s_mov_b32 s52, s16")
    a("s_mov_b32 s53, s17")
    a("s_movk_i32 s54, 4096")
    a("s_mov_b32 s56, s34")
    a("s_mov_b32 s57, s35")
    a("s_movk_i32 s58, 1024")
    a("s_mov_b32 s60, s36")
    a("s_mov_b32 s61, s37")
    a("s_movk_i32 s62, 4096")
    a("v_lshrrev_b32 v20, 3, v0")
    a("v_and_b32 v21, 7, v0")
    a("v_lshlrev_b32 v3, 11, v20")
    a("v_lshl_add_u32 v3, v21, 4, v3")
    a("v_lshlrev_b32 v5, 13, v20")
    a("v_lshl_add_u32 v5, v21, 4, v5")
    a("v_lshrrev_b32 v22, 4, v0")
    a("v_and_b32 v23, 1, v22")
    a("v_lshlrev_b32 v23, 1, v23")
    a("v_lshrrev_b32 v22, 1, v22")
    a("v_or_b32 v23, v23, v22")
    a("v_lshl_add_u32 v23, v21, 2, v23")
    a("v_lshlrev_b32 v4, 1, v23")
    a(f"v_mov_b32 v16, {C_LANDED}")
    a("s_lshl_b32 s4, s7, 17")
    a("s_lshl_b32 s5, s8, 7")
    a("s_add_u32 s64, s4, s5")
    YS = [64, 65, 66, 67, 70, 71, 72, 73]
    for i in range(1, 8):
        a(f"s_add_u32 s{YS[i]}, s{YS[i-1]}, 16384")
    a("s_lshl_b32 s12, s7, 11")
    a("s_add_u32 s12, s12, s5")
    a(f"s_add_u32 s12, s12, {WS_F}")
    a("s_add_u32 s11, s12, 65536")
    a("s_lshl_b32 s74, s7, 10")
    a("s_lshl_b32 s5, s8, 6")
    a("s_add_u32 s13, s74, s5")
    a(f"s_sub_u32 s10, s79, {args.red_t1}")
    lds_wait("1", "s10", 32)
    stamp(1)
    a("buffer_load_dwordx4 v[24:27], v1, s[52:55], s74 offen")
    a("buffer_load_dwordx4 v[28:31], v1, s[56:59], 0 offen")
    marked_wait("a")
    a(f"s_mov_b32 s9, {args.red_tmo}")
    a.label("LR_s")
    a(f"buffer_load_dwordx4 v[{F0}:{F0+3}], v5, s[44:47], s12 offen sc1")
    a(f"buffer_load_dwordx4 v[{F0+4}:{F0+7}], v5, s[44:47], s11 offen sc1")
    a("s_sub_u32 s9, s9, 1")
    a("s_waitcnt vmcnt(0)")
    a(f"v_max3_u32 v22, v{F0}, v{F0+1}, v{F0+2}")
    a(f"v_max3_u32 v23, v{F0+3}, v{F0+4}, v{F0+5}")
    a(f"v_max3_u32 v22, v22, v{F0+6}, v{F0+7}")
    a("v_max_u32 v22, v22, v23")
    retry("s", args.red_hs)
    for d in range(4):
        a(f"v_lshlrev_b32 v{32+2*d}, 16, v{24+d}")
        a(f"v_and_b32 v{33+2*d}, s42, v{24+d}")
        a(f"v_lshlrev_b32 v{AC+2*d}, 16, v{28+d}")
        a(f"v_and_b32 v{AC+2*d+1}, s42, v{28+d}")
    for e in range(8):
        a(f"v_mul_f32 v{32+e}, v{32+e}, v{AC+e}")
    for e in range(8):
        round_bf16(a, f"v{32+e}")
    for st in (1, 2, 4):
        for e in range(0, 8, 2 * st):
            a(f"v_add_f32 v{32+e}, v{32+e}, v{32+e+st}")
    for r in (1, 2, 4, 8):
        a(f"v_add_f32_dpp v32, v32, v32 row_ror:{r} row_mask:0xf bank_mask:0xf")
    for g in range(4):
        a(f"v_readlane_b32 s{80+g}, v32, {16*g}")
    a("v_mov_b32 v32, s80")
    a("v_add_f32 v32, s81, v32")
    a("v_add_f32 v32, s82, v32")
    a("v_add_f32 v32, s83, v32")
    round_bf16(a, "v32")
    a("v_mul_f32 v32, s69, v32")
    a("v_exp_f32 v32, -v32")
    a("v_add_f32 v32, 1.0, v32")
    a("v_rcp_f32 v32, v32")
    round_bf16(a, "v32")
    a("v_sub_f32 v33, 1.0, v32")
    round_bf16(a, "v33")

    def red4(b):
        a(f"v_permlane32_swap_b32 v{b}, v{b+1}")
        a(f"v_permlane32_swap_b32 v{b+2}, v{b+3}")
        a(f"v_add_f32 v{b}, v{b}, v{b+1}")
        a(f"v_add_f32 v{b+2}, v{b+2}, v{b+3}")
        a(f"v_permlane16_swap_b32 v{b}, v{b+2}")
        a(f"v_add_f32 v{b}, v{b}, v{b+2}")
        a(f"v_add_f32_dpp v{b}, v{b}, v{b} row_ror:8 row_mask:0xf bank_mask:0xf")

    for c in range(4):
        a(f"v_add_f32 v{F0+c}, v{F0+c}, v{F0+4+c}")
    for k in range(32):
        a(f"v_mov_b32 v{Y0+k}, -1")
    for i in range(8):
        a(f"s_mov_b64 s[{16+2*i}:{17+2*i}], -1")
    a("s_mov_b32 s36, 0x00ff00ff")
    a("s_mov_b32 s37, 0x00ff00ff")
    red4(F0)
    round_bf16(a, f"v{F0}")
    a(f"v_mul_f32 v33, v33, v{F0}")
    round_bf16(a, "v33")
    stamp(2)
    a(f"s_sub_u32 s10, s79, {args.red_t2}")
    a("s_mov_b32 s80, 0x0c0c0400")
    a("s_mov_b32 s81, 0x04000c0c")
    lds_wait("2", "s10", 4)
    a(f"s_mov_b32 s9, {args.red_tmo}")
    if args.red_prio:
        a(f"s_setprio {args.red_prio}")
    stamp(3)
    a.label("LR_p")
    for i in range(8):
        a(f"s_or_b64 exec, s[{16+2*i}:{17+2*i}], 1")
        a(f"buffer_load_dwordx4 v[{Y0+4*i}:{Y0+4*i+3}], v3, s[44:47], s{YS[i]} offen sc1")
    a("s_mov_b64 exec, -1")
    a("s_sub_u32 s9, s9, 1")
    a("s_mov_b64 s[34:35], 0")
    for i0_ in range(0, 8, 2):
        pr = (i0_, i0_ + 1)
        a(f"s_waitcnt vmcnt({6-i0_})")
        for i in pr:
            y = Y0 + 4 * i
            a(f"v_perm_b32 v{WT+i}, v{y+1}, v{y}, s80")
            a(f"v_perm_b32 v{WT+8+i}, v{y+3}, v{y+2}, s81")
        for i in pr:
            a(f"v_or_b32 v{WT+i}, v{WT+i}, v{WT+8+i}")
        for i in pr:
            y = Y0 + 4 * i
            a(f"v_max3_u32 v{38+(i&1)}, v{y}, v{y+1}, v{y+2}")
        for i in pr:
            a(f"v_sub_f32_dpp v{WT+8+i}, v{WT+i}, v{WT+i} row_ror:8 row_mask:0xf bank_mask:0xf")
        for i in pr:
            y = Y0 + 4 * i
            a(f"v_max_u32 v{38+(i&1)}, v{38+(i&1)}, v{y+3}")
        for i in pr:
            a(f"v_exp_f32 v{WT+8+i}, v{WT+8+i}")
        for i in pr:
            a(f"v_cmp_eq_u32 s[{16+2*i}:{17+2*i}], -1, v{38+(i&1)}")
        for i in pr:
            a(f"v_add_f32 v{WT+8+i}, 1.0, v{WT+8+i}")
        for i in pr:
            a(f"v_rcp_f32 v{WT+8+i}, v{WT+8+i}")
        for i in pr:
            a(f"s_or_b64 s[34:35], s[34:35], s[{16+2*i}:{17+2*i}]")
        for i in pr:
            y = Y0 + 4 * i
            o = AC + 4 * (i & 1)
            for c in range(4):
                if i < 2:
                    a(f"v_mul_f32 v{o+c}, v{WT+8+i}, v{y+c}")
                else:
                    a(f"v_fmac_f32 v{o+c}, v{WT+8+i}, v{y+c}")
    for c in range(4):
        a(f"v_add_f32 v{AC+c}, v{AC+c}, v{AC+4+c}")
    a("s_cmp_eq_u32 s9, 0")
    a("s_cselect_b64 s[34:35], 0, s[34:35]")
    red4(AC)
    a("s_cmp_eq_u64 s[34:35], 0")
    a("s_cselect_b64 s[38:39], s[36:37], 0")
    round_bf16(a, f"v{AC}")
    a(f"v_mul_f32 v{AC}, v32, v{AC}")
    round_bf16(a, f"v{AC}")
    a(f"v_add_f32 v{AC}, v{AC}, v33")
    a(f"v_cvt_pk_bf16_f32 v{AC}, v{AC}, v{AC}")
    a("s_mov_b64 exec, s[38:39]")
    a(f"buffer_store_short v{AC}, v4, s[60:63], s13 offen")
    a("s_cbranch_scc0 LR_p")
    a("s_mov_b64 exec, -1")
    stamp(5)
    a("s_branch LA_end2")


def probe_kernel(a, args):
    a.raw(".globl probe_kernel\n.p2align 8\n.type probe_kernel,@function")
    a.label("probe_kernel")
    a("s_cmp_ge_u32 s2, 1")
    a("s_cbranch_scc1 LP_end")
    a("s_load_dwordx16 s[16:31], s[0:1], 0")
    a("s_load_dwordx2 s[40:41], s[0:1], 96")
    a("s_mov_b32 s46, 0x08000000")
    a("s_mov_b32 s47, 0x20000")
    a("s_mov_b32 s62, 4096")
    a("s_mov_b32 s63, 0x20000")
    a("v_mov_b32 v1, 0")
    a("s_mov_b64 exec, 1")
    a("s_waitcnt lgkmcnt(0)")
    a(f"s_add_u32 s60, s40, {3<<20}")
    a("s_addc_u32 s61, s41, 0")
    n = 0
    for base in (18, 20):
        a(f"s_mov_b32 s44, s{base}")
        a(f"s_mov_b32 s45, s{base+1}")
        for i in range(8):
            off = i * (16 << 20) + (8 << 20) + 0x12300
            a(f"s_mov_b32 s10, {off}")
            a(f"buffer_load_dword v2, v1, s[44:47], s10 offen {args.probe_pol}")
            a("s_waitcnt vmcnt(0)")
            a("v_mov_b32 v3, 0")
            for r in range(4):
                a(f"s_add_u32 s10, s10, {0x4d00}")
                a("s_memtime s[12:13]")
                a("s_waitcnt lgkmcnt(0)")
                a(f"buffer_load_dword v2, v1, s[44:47], s10 offen {args.probe_pol}")
                a("s_waitcnt vmcnt(0)")
                a("s_memtime s[14:15]")
                a("s_waitcnt lgkmcnt(0)")
                a("s_sub_u32 s14, s14, s12")
                a("v_add_u32 v3, s14, v3")
            a(f"buffer_store_dword v3, v1, s[60:63], 0 offen offset:{4*n}")
            n += 1
    a.label("LP_end")
    a("s_endpgm")


def fin_kernel(a, args):
    a.raw(".globl fin_kernel\n.p2align 8\n.type fin_kernel,@function")
    a.label("fin_kernel")
    a("s_cmp_ge_u32 s2, 64")
    a("s_cbranch_scc1 LB_end")
    if args.probe == 2:
        a("s_cmp_lg_u32 s2, 0")
        a("s_cbranch_scc1 LB_nodiag")
        a("s_memrealtime s[20:21]")
        a("s_load_dwordx4 s[4:7], s[0:1], 88")
        a("s_mov_b32 s46, 0x100000")
        a("s_mov_b32 s47, 0x20000")
        a("s_mov_b32 s50, 64")
        a("s_mov_b32 s51, 0x20000")
        a("s_waitcnt lgkmcnt(0)")
        a(f"s_add_u32 s44, s6, {4<<20}")
        a("s_addc_u32 s45, s7, 0")
        a("s_mov_b32 s48, s4")
        a("s_mov_b32 s49, s5")
        a("v_mul_u32_u24 v1, 640, v0")
        a("v_mov_b32 v2, 0")
        a("buffer_load_dword v3, v2, s[44:47], 0 offen")
        for k in range(6):
            a(f"buffer_load_dword v{4+k}, v1, s[44:47], 0 offen offset:{8*k}")
        a("buffer_load_dword v10, v1, s[44:47], 0 offen offset:104")
        a("s_waitcnt vmcnt(0)")
        a("v_mov_b32 v12, 0x10000")
        for k in range(7):
            a(f"v_sub_u32 v{4+k}, v{4+k}, v3")
            a(f"v_add_u32 v{4+k}, 1000, v{4+k}")
            a(f"buffer_atomic_umax v{4+k}, v2, s[48:51], 0 offen offset:{8*k}")
            a(f"v_sub_u32 v11, v12, v{4+k}")
            a(f"buffer_atomic_umax v11, v2, s[48:51], 0 offen offset:{8*k+4}")
        a("v_sub_u32 v4, s20, v3")
        a("v_add_u32 v4, 1000, v4")
        a("buffer_atomic_umax v4, v2, s[48:51], 0 offen offset:56")
        a("s_waitcnt vmcnt(0)")
        a.label("LB_nodiag")
    a("s_load_dwordx2 s[16:17], s[0:1], 0")
    a("s_load_dwordx4 s[32:35], s[0:1], 72")
    a("s_load_dwordx2 s[40:41], s[0:1], 96")
    a("s_lshr_b32 s7, s2, 4")
    a("s_and_b32 s8, s2, 15")
    a("s_mov_b32 s42, 0xffff0000")
    a(f"s_mov_b32 s69, {LOG2E:#x}")
    for r in (47, 51, 55, 59, 63):
        a(f"s_mov_b32 s{r}, 0x20000")
    a(f"s_mov_b32 s46, {WS_STATS + 2048}")
    a(f"s_mov_b32 s50, {NFFN*8192}")
    a("s_mov_b32 s54, 4096")
    a("s_mov_b32 s58, 1024")
    a("s_mov_b32 s62, 4096")
    a("v_lshrrev_b32 v1, 3, v0")
    a("v_and_b32 v2, 7, v0")
    a("v_lshlrev_b32 v3, 11, v1")
    a("v_lshl_add_u32 v3, v2, 4, v3")
    a("v_lshrrev_b32 v4, 1, v1")
    a("v_lshlrev_b32 v4, 4, v4")
    a("v_lshlrev_b32 v5, 13, v1")
    a("v_lshl_add_u32 v5, v2, 4, v5")
    a("v_lshlrev_b32 v6, 2, v0")
    a("s_lshl_b32 s4, s7, 17")
    a("s_lshl_b32 s5, s8, 7")
    a("s_add_u32 s4, s4, s5")
    a("s_add_u32 s10, s4, 65536")
    a("s_lshl_b32 s11, s7, 9")
    a(f"s_add_u32 s11, s11, {WS_STATS}")
    a("s_lshl_b32 s12, s7, 11")
    a("s_add_u32 s12, s12, s5")
    a("s_add_u32 s13, s12, 0x40000")
    a("s_add_u32 s14, s12, 0x80000")
    a("s_lshl_b32 s15, s7, 10")
    a("s_waitcnt lgkmcnt(0)")
    a("s_mov_b32 s44, s40")
    a("s_mov_b32 s45, s41")
    a(f"s_add_u32 s48, s40, {WS_F}")
    a("s_addc_u32 s49, s41, 0")
    a("s_mov_b32 s52, s16")
    a("s_mov_b32 s53, s17")
    a("s_mov_b32 s56, s32")
    a("s_mov_b32 s57, s33")
    a("s_mov_b32 s60, s34")
    a("s_mov_b32 s61, s35")
    a("buffer_load_dwordx4 v[8:11], v4, s[44:47], s11 offen")
    a("buffer_load_dwordx4 v[12:15], v4, s[44:47], s11 offen offset:256")
    a("buffer_load_dword v36, v6, s[52:55], s15 offen")
    a("buffer_load_dword v37, v6, s[56:59], 0 offen")
    a("buffer_load_dwordx4 v[16:19], v3, s[44:47], s4 offen")
    a("buffer_load_dwordx4 v[20:23], v3, s[44:47], s10 offen")
    a("buffer_load_dwordx4 v[24:27], v5, s[48:51], s12 offen")
    a("buffer_load_dwordx4 v[28:31], v5, s[48:51], s13 offen")
    a("buffer_load_dwordx4 v[32:35], v5, s[48:51], s14 offen")
    a("v_and_b32 v7, 1, v1")
    a("v_cmp_eq_u32 vcc, 1, v7")
    a("s_waitcnt vmcnt(7)")
    for k, sb in enumerate((8, 12)):
        w = f"v{38+k}"
        a(f"v_max_f32 v40, v{sb}, v{sb+2}")
        a(f"v_sub_f32 v{sb}, v{sb}, v40")
        a(f"v_sub_f32 v{sb+2}, v{sb+2}, v40")
        a(f"v_mul_f32 v{sb}, s69, v{sb}")
        a(f"v_mul_f32 v{sb+2}, s69, v{sb+2}")
        a(f"v_exp_f32 v{sb}, v{sb}")
        a(f"v_exp_f32 v{sb+2}, v{sb+2}")
        a(f"v_mul_f32 v{sb}, v{sb}, v{sb+1}")
        a(f"v_mul_f32 v{sb+2}, v{sb+2}, v{sb+3}")
        a(f"v_add_f32 v40, v{sb}, v{sb+2}")
        a("v_rcp_f32 v40, v40")
        a(f"v_cndmask_b32 {w}, v{sb}, v{sb+2}, vcc")
        a(f"v_mul_f32 {w}, {w}, v40")
    a("s_waitcnt vmcnt(5)")
    a("v_lshlrev_b32 v40, 16, v36")
    a("v_and_b32 v41, s42, v36")
    a("v_lshlrev_b32 v42, 16, v37")
    a("v_and_b32 v43, s42, v37")
    a("v_mul_f32 v40, v40, v42")
    a("v_mul_f32 v41, v41, v43")
    round_bf16(a, "v40")
    round_bf16(a, "v41")
    a("v_add_f32 v40, v40, v41")
    for r in (1, 2, 4, 8):
        a(f"v_add_f32_dpp v40, v40, v40 row_ror:{r} row_mask:0xf bank_mask:0xf")
    for g in range(4):
        a(f"v_readlane_b32 s{80+g}, v40, {16*g}")
    a("v_mov_b32 v40, s80")
    a("v_add_f32 v40, s81, v40")
    a("v_add_f32 v40, s82, v40")
    a("v_add_f32 v40, s83, v40")
    a("v_lshrrev_b32 v41, 6, v0")
    a("v_lshlrev_b32 v42, 2, v41")
    a("ds_write_b32 v42, v40 offset:1024")
    a("s_waitcnt vmcnt(3)")
    for k in range(4):
        a(f"v_mul_f32 v{16+k}, v38, v{16+k}")
        a(f"v_fmac_f32 v{16+k}, v39, v{20+k}")
    a("s_waitcnt vmcnt(0)")
    for k in range(4):
        a(f"v_add_f32 v{24+k}, v{24+k}, v{28+k}")
        a(f"v_add_f32 v{24+k}, v{24+k}, v{32+k}")
    for k in range(4):
        a(f"v_permlane32_swap_b32 v{16+k}, v{24+k}")
    for k in range(4):
        a(f"v_add_f32 v{16+k}, v{16+k}, v{24+k}")
    a("v_permlane16_swap_b32 v16, v17")
    a("v_permlane16_swap_b32 v18, v19")
    a("v_add_f32 v16, v16, v17")
    a("v_add_f32 v18, v18, v19")
    a("v_add_f32_dpp v16, v16, v16 row_ror:8 row_mask:0xf bank_mask:0xf")
    a("v_add_f32_dpp v18, v18, v18 row_ror:8 row_mask:0xf bank_mask:0xf")
    a("v_bfe_u32 v43, v0, 5, 1")
    a("v_lshlrev_b32 v43, 7, v43")
    a("v_lshl_add_u32 v43, v41, 8, v43")
    a("v_lshl_add_u32 v43, v2, 4, v43")
    a("v_bfe_u32 v44, v0, 4, 1")
    a("v_lshl_add_u32 v43, v44, 2, v43")
    a("ds_write_b32 v43, v16")
    a("ds_write_b32 v43, v18 offset:8")
    a("s_waitcnt lgkmcnt(0)")
    a("s_barrier")
    a("v_cmp_gt_u32 vcc, 32, v0")
    a("s_and_saveexec_b64 s[84:85], vcc")
    a("s_cbranch_execz LB_end")
    a("v_mov_b32 v1, 0")
    for w in range(4):
        a(f"ds_read_b32 v{8+w}, v6 offset:{256*w}")
        a(f"ds_read_b32 v{12+w}, v6 offset:{256*w+128}")
    a("ds_read_b128 v[16:19], v1 offset:1024")
    a("s_waitcnt lgkmcnt(0)")
    a("v_add_f32 v8, v8, v9")
    a("v_add_f32 v10, v10, v11")
    a("v_add_f32 v12, v12, v13")
    a("v_add_f32 v14, v14, v15")
    a("v_add_f32 v16, v16, v17")
    a("v_add_f32 v18, v18, v19")
    a("v_add_f32 v8, v8, v10")
    a("v_add_f32 v12, v12, v14")
    a("v_add_f32 v16, v16, v18")
    round_bf16(a, "v8")
    round_bf16(a, "v12")
    round_bf16(a, "v16")
    a("v_mul_f32 v16, s69, v16")
    a("v_exp_f32 v16, -v16")
    a("v_add_f32 v16, 1.0, v16")
    a("v_rcp_f32 v16, v16")
    round_bf16(a, "v16")
    a("v_sub_f32 v17, 1.0, v16")
    round_bf16(a, "v17")
    a("v_mul_f32 v8, v16, v8")
    a("v_mul_f32 v12, v17, v12")
    round_bf16(a, "v8")
    round_bf16(a, "v12")
    a("v_add_f32 v8, v8, v12")
    a("v_cvt_pk_bf16_f32 v8, v8, v8")
    a("v_lshlrev_b32 v1, 1, v0")
    a("s_lshl_b32 s4, s7, 10")
    a("s_lshl_b32 s5, s8, 6")
    a("s_add_u32 s4, s4, s5")
    a("buffer_store_short v8, v1, s[60:63], s4 offen")
    if args.probe == 1:
        a("s_cmp_lg_u32 s2, 0")
        a("s_cbranch_scc1 LB_end")
        a("s_load_dwordx2 s[4:5], s[0:1], 88")
        a(f"s_add_u32 s44, s40, {3<<20}")
        a("s_addc_u32 s45, s41, 0")
        a("s_mov_b32 s46, 64")
        a("s_mov_b32 s50, 64")
        a("buffer_load_dword v8, v6, s[44:47], 0 offen")
        a("s_waitcnt vmcnt(0) lgkmcnt(0)")
        a("s_mov_b32 s48, s4")
        a("s_mov_b32 s49, s5")
        a("buffer_store_dword v8, v6, s[48:51], 0 offen")
    a.label("LB_end")
    a("s_endpgm")


if __name__ == "__main__":
    ap = argparse.ArgumentParser()
    ap.add_argument("-o", default="v2.s")
    ap.add_argument("--ts", type=int, default=0)
    ap.add_argument("--slots", type=int, default=16)
    ap.add_argument("--inflight", type=int, default=24)
    ap.add_argument("--wo_at", type=int, default=1)
    ap.add_argument("--wo_npj", type=int, default=2)
    ap.add_argument("--fd", type=int, default=2)
    ap.add_argument("--pf", type=int, default=1)
    ap.add_argument("--coop", type=int, default=0)
    ap.add_argument("--wnt", type=int, default=1)
    ap.add_argument("--cnt", type=int, default=1)
    ap.add_argument("--dshift", type=int, default=4)
    ap.add_argument("--dshift_a", type=int, default=2)
    ap.add_argument("--prep_at", type=int, default=11)
    ap.add_argument("--warm", type=int, default=12)
    ap.add_argument("--map", default="xcd")
    ap.add_argument("--ffn_wait", type=int, default=1)
    ap.add_argument("--tk", type=int, default=1)
    ap.add_argument("--warmfin", type=int, default=0)
    ap.add_argument("--early", type=int, default=0)
    ap.add_argument("--early_code", type=int, default=1)
    ap.add_argument("--nspec", type=int, default=3)
    ap.add_argument("--lost_sleep", type=int, default=12)
    ap.add_argument("--probe", type=int, default=0)
    ap.add_argument("--probe_pol", default="nt")
    ap.add_argument("--kp", default="nt")
    ap.add_argument("--vp", default="nt")
    ap.add_argument("--rate", type=int, default=33)
    ap.add_argument("--glob", type=float, default=0)
    ap.add_argument("--xbias", type=float, default=0)
    ap.add_argument("--monx", type=int, default=0)
    ap.add_argument("--bstride", type=int, default=4352)
    ap.add_argument("--monld", default="sc1")
    ap.add_argument("--shard", default="xcd")
    ap.add_argument("--mon", type=int, default=0)
    ap.add_argument("--mon_stop", type=int, default=6)
    ap.add_argument("--lv", default="16,12,22,30,40")
    ap.add_argument("--th", default="-4,0,2,4")
    ap.add_argument("--end_code", type=int, default=0)
    ap.add_argument("--deepcls", type=int, default=0)
    ap.add_argument("--inf2", type=int, default=0)
    ap.add_argument("--deep_at", type=int, default=24)
    ap.add_argument("--tkmap", type=int, default=0)
    ap.add_argument("--fuse", type=int, default=0)
    ap.add_argument("--tail2", type=int, default=0)
    ap.add_argument("--yx4", type=int, default=0)
    ap.add_argument("--flin", type=int, default=0)
    ap.add_argument("--dbg", type=int, default=0)
    ap.add_argument("--exp", default="")
    ap.add_argument("--red_t0", type=int, default=40)
    ap.add_argument("--red_slp", type=int, default=64)
    ap.add_argument("--red_hs", type=int, default=32)
    ap.add_argument("--red_t1", type=int, default=24)
    ap.add_argument("--red_t2", type=int, default=6)
    ap.add_argument("--red_a", type=int, default=24)
    ap.add_argument("--red_prio", type=int, default=2)
    ap.add_argument("--red_tmo", type=int, default=2000)
    args = ap.parse_args()
    open(args.o, "w").write(gen(args))
```

```python
import sys, argparse
sys.path.insert(0, "work")
from asmlib import Asm

HEADER = open("gated_mix__gqa_block_cached__glu_gated_glu__decode.s.ref").read().split("; Override launch")[0]

WS_Y = 0
WS_STATS = 512 * 1024
WS_F = 1024 * 1024
NFFN = 86
WS_BOARD = 2 * 1024 * 1024
WS_H4 = WS_F + 98304
WS_H = WS_F + 65536

LOG2E = 0x3FB8AA3B
SCALE = 0x3DB504F3


def round_bf16(a, v):
    a(f"v_cvt_pk_bf16_f32 {v}, {v}, {v}")
    a(f"v_and_b32 {v}, s42, {v}")


def gen(args):
    a = Asm()
    NS = args.slots
    NJ = 128
    wnt = " nt" if args.wnt else ""
    cnt = " nt" if args.cnt else ""
    DS = args.dshift
    INF = args.inflight
    INF2 = args.inf2 or INF
    RING = NS * 8192
    WSH = WS_H4 if args.fuse == 4 else WS_H
    LV = [int(x) for x in args.lv.split(",")]
    TH = [float(x) for x in args.th.split(",")]
    C_LANDED = RING
    C_DONE = RING + 4
    C_BAR = RING + 64
    C_DEPTH = RING + 128
    L_QP = RING + 256
    L_OP = L_QP
    L_ST = L_OP + 4096
    C_TK = L_ST + 128
    L_QQ = L_ST + 256
    L_XT = L_QQ + 2048
    LDS_A = L_XT + 8192
    L_Y = 0
    assert LDS_A <= 163840
    W0, KB, VB, T0 = 40, 104, 120, 24
    ACC, Q = 8, 4
    P, M, L = 16, 17, 18
    VRED = 19
    VZ = 136
    VBASE = 137
    VDONE = 138
    VCNT = 139

    def Wr(i): return f"v[{W0+4*i}:{W0+4*i+3}]"

    def stamp(k, mode=1):
        if args.ts and (mode == args.ts or k in (0, 1, 5)):
            a(f"s_memrealtime s[{84+2*k}:{85+2*k}]")

    def stamp_store():
        if args.ts:
            a("s_mov_b64 exec, 1")
            a("s_mul_i32 s4, s2, 10")
            a("s_add_u32 s4, s4, s3")
            a("s_lshl_b32 s4, s4, 6")
            a(f"s_add_u32 s60, s40, {4<<20}")
            a("s_addc_u32 s61, s41, 0")
            a("s_mov_b32 s62, 0x100000")
            a("s_mov_b32 s63, 0x20000")
            a("v_mov_b32 v2, 0")
            a("s_getreg_b32 s96, hwreg(HW_REG_XCC_ID)")
            a("s_getreg_b32 s97, hwreg(HW_REG_HW_ID)")
            a("s_waitcnt lgkmcnt(0)")
            for k in range(7):
                a(f"v_mov_b32 v4, s{84+2*k}")
                a(f"v_mov_b32 v5, s{85+2*k}")
                a(f"buffer_store_dwordx2 v[4:5], v2, s[60:63], s4 offen offset:{8*k}")
                a.nop(2)

    def lds_barrier(k, tag, cnt=8):
        a("s_waitcnt lgkmcnt(0)")
        a("s_mov_b64 exec, 1")
        a(f"ds_add_u32 v{VZ}, v{VCNT} offset:{C_BAR - RING + 4*k}")
        a("s_mov_b64 exec, -1")
        a.label(f"LB_spin{tag}")
        a(f"ds_read_b32 v23, v{VZ} offset:{C_BAR - RING + 4*k}")
        a("s_waitcnt lgkmcnt(0)")
        a("v_readfirstlane_b32 s14, v23")
        a(f"s_cmp_lt_u32 s14, {cnt}")
        a(f"s_cbranch_scc1 LB_spin{tag}")

    a.raw(HEADER.rstrip("\n"))
    if args.probe == 1:
        a.raw("; @launch kernel=probe_kernel grid=(1,1,1) block=(64,1,1) lds=0")
    a.raw(f"; @launch kernel=attn_kernel grid=(256,1,1) block=({704 if args.mon else 640},1,1) lds={LDS_A}")
    if not args.fuse:
        a.raw("; @launch kernel=fin_kernel grid=(64,1,1) block=(256,1,1) lds=2048")
    a.raw('.amdgcn_target "amdgcn-amd-amdhsa--gfx950"')
    a.raw(".text")
    a.raw(".globl attn_kernel\n.p2align 8\n.type attn_kernel,@function")
    a.label("attn_kernel")
    a("s_cmp_ge_u32 s2, 256")
    a("s_cbranch_scc1 LA_end")
    a("s_load_dwordx16 s[16:31], s[0:1], 0")
    a("s_load_dwordx8 s[32:39], s[0:1], 64")
    a("s_load_dwordx2 s[40:41], s[0:1], 96")
    stamp(0)
    a("v_lshrrev_b32 v1, 6, v0")
    a("v_readfirstlane_b32 s3, v1")
    def vid(dst, x, t, tmp):
        a(f"s_bfe_u32 {dst}, {t}, 0x20001")
        a(f"s_lshl_b32 {dst}, {dst}, 3")
        a(f"s_or_b32 {dst}, {dst}, {x}")
        a(f"s_and_b32 {tmp}, {t}, 1")
        a(f"s_lshl_b32 {tmp}, {tmp}, 5")
        a(f"s_or_b32 {dst}, {dst}, {tmp}")
        a(f"s_lshr_b32 {tmp}, {t}, 3")
        a(f"s_lshl_b32 {tmp}, {tmp}, 6")
        a(f"s_or_b32 {dst}, {dst}, {tmp}")

    def sync(tag):
        a("s_cmp_lg_u32 s77, 0")
        a(f"s_cbranch_scc1 LA_synced{tag}")
        a(f"v_mov_b32 v4, {C_TK}")
        a("s_barrier")
        a("ds_read_b32 v5, v4")
        a("s_mov_b32 s77, 1")
        a("s_waitcnt lgkmcnt(0)")
        a("v_readfirstlane_b32 s4, v5")
        a("s_cmp_eq_u32 s4, s2")
        a(f"s_cbranch_scc1 LA_synced{tag}")
        a("s_mov_b32 s2, s4")
        a("s_branch LA_tk_done")
        a.label(f"LA_synced{tag}")

    if args.tk == 2:
        a("s_getreg_b32 s72, hwreg(HW_REG_XCC_ID)")
        a("s_getreg_b32 s4, hwreg(HW_REG_HW_ID)")
        a("s_and_b32 s72, s72, 7")
        a("s_bfe_u32 s73, s4, 0x2000d")
        a("s_lshl_b32 s73, s73, 3")
        a("s_bfe_u32 s4, s4, 0x30008")
        a("s_add_u32 s4, s4, s73")
        a("s_lshl_b32 s74, 1, s4")
        vid("s2", "s72", "s4", "s5")
        a("s_mov_b32 s77, 0")
        a("s_cmp_eq_u32 s3, 0")
        a("s_cbranch_scc1 LA_tk_done")
    elif args.tk:
        a("s_cmp_eq_u32 s3, 0")
        a("s_cbranch_scc1 LA_tk")
    if args.pf:
        a("s_getpc_b64 s[64:65]")
        a.label("LA_pc")
        a("s_mov_b32 s66, LB_end-LA_pc")
        a("s_mov_b32 s67, 0x20000")
        a("v_lshlrev_b32 v2, 6, v0")
        a("buffer_load_dword v39, v2, s[64:67], 0 offen")
    a("v_and_b32 v0, 63, v0")
    a("v_lshlrev_b32 v3, 2, v0")
    a("v_mov_b32 v2, 0")
    a(f"v_add_u32 v3, {RING}, v3")
    a("ds_write_b32 v3, v2")
    if args.tk == 2:
        a.label("LA_tk_done")
        a("s_cmp_ge_u32 s2, 256")
        a("s_cbranch_scc1 LA_end")
    elif args.tk:
        a(f"v_mov_b32 v4, {C_TK}")
        a("s_waitcnt lgkmcnt(0)")
        a("s_barrier")
        a("ds_read_b32 v5, v4")
        a("s_waitcnt lgkmcnt(0)")
        a("v_readfirstlane_b32 s2, v5")
        a("s_branch LA_tk_done")
        a.label("LA_tk")
        a("s_getreg_b32 s4, hwreg(HW_REG_XCC_ID)")
        a("s_and_b32 s4, s4, 7")
        a("s_movk_i32 s62, 256")
        a("s_mov_b32 s63, 0x20000")
        a("s_mov_b32 s9, 0")
        a(f"v_mov_b32 v6, {C_TK}")
        a("s_mov_b64 exec, 1")
        a("s_waitcnt lgkmcnt(0)")
        a("s_mov_b32 s60, s38")
        a("s_mov_b32 s61, s39")
        a.label("LA_tk_loop")
        a("s_lshl_b32 s5, s4, 5")
        a("v_mov_b32 v4, 1")
        a("v_mov_b32 v5, s5")
        a("buffer_atomic_add v4, v5, s[60:63], 0 offen sc0")
        a("s_waitcnt vmcnt(0)")
        a("v_readfirstlane_b32 s5, v4")
        a("s_cmp_lt_u32 s5, 32")
        a("s_cbranch_scc1 LA_tk_got")
        a("s_add_u32 s4, s4, 1")
        a("s_and_b32 s4, s4, 7")
        a("s_add_u32 s9, s9, 1")
        a("s_cmp_lt_u32 s9, 8")
        a("s_cbranch_scc1 LA_tk_loop")
        a("s_movk_i32 s5, 64")
        a.label("LA_tk_got")
        a("s_and_b32 s2, s5, 3")
        a(f"s_lshl_b32 s2, s2, {6 if args.tkmap else 3}")
        a("s_or_b32 s2, s2, s4")
        a("s_bfe_u32 s4, s5, 0x10004")
        a("s_lshl_b32 s4, s4, 5")
        a("s_or_b32 s2, s2, s4")
        a("s_bfe_u32 s4, s5, 0x20002")
        a(f"s_lshl_b32 s4, s4, {3 if args.tkmap else 6}")
        a("s_or_b32 s2, s2, s4")
        a("s_and_b32 s4, s5, 64")
        a("s_lshl_b32 s4, s4, 2")
        a("s_or_b32 s2, s2, s4")
        a("v_mov_b32 v4, s2")
        a("ds_write_b32 v6, v4")
        a("s_mov_b64 exec, -1")
        a("s_waitcnt lgkmcnt(0)")
        a("s_barrier")
        a.label("LA_tk_done")
        a("s_cmp_ge_u32 s2, 256")
        a("s_cbranch_scc1 LA_end")
    if args.map == "pair":
        a("s_lshr_b32 s4, s2, 1")
        a("s_and_b32 s5, s4, 3")
        a("s_lshl_b32 s5, s5, 3")
        a("s_bfe_u32 s6, s4, 0x30002")
        a("s_add_u32 s6, s6, s5")
        a("s_lshr_b32 s7, s4, 5")
        a("s_and_b32 s8, s2, 1")
    else:
        a("s_and_b32 s4, s2, 7")
        a("s_bfe_u32 s6, s2, 0x20003")
        a("s_lshl_b32 s4, s4, 2")
        a("s_add_u32 s6, s6, s4")
        a("s_lshr_b32 s7, s2, 6")
        a("s_bfe_u32 s8, s2, 0x10005")
    a("s_lshl_b32 s5, s7, 5")
    a("s_add_u32 s5, s5, s6")
    a(f"s_cmp_lt_u32 s5, {NFFN}")
    a(f"s_cselect_b32 s4, {DS}, 0")
    if args.fuse == 4 and args.dshift_a != DS:
        a("s_cmp_lt_u32 s5, 64")
        a(f"s_cselect_b32 s4, {args.dshift_a}, s4")
    a(f"s_sub_u32 s78, {NJ}, s4")
    a(f"s_add_u32 s79, s4, {NJ}")
    a("s_cmp_eq_u32 s8, 0")
    a("s_cselect_b32 s79, s78, s79")
    a("s_cselect_b32 s78, 0, s78")
    a("v_lshlrev_b32 v1, 4, v0")
    a("s_mov_b32 s47, 0x20000")
    a("s_mov_b32 s51, 0x20000")
    if not args.tk:
        a("s_waitcnt lgkmcnt(0)")
        a("s_barrier")
    if args.tk == 2:
        a("s_waitcnt lgkmcnt(0)")
    stamp(2, 2)
    a("s_cmp_lg_u32 s3, 0")
    a("s_cbranch_scc1 LA_cons")
    a("s_setprio 3")
    if args.tk == 2:
        a("s_mov_b32 s60, s38")
        a("s_mov_b32 s61, s39")
        a("s_movk_i32 s62, 256")
        a("s_mov_b32 s63, 0x20000")
        a("s_movk_i32 s76, -1")
        a("s_cmp_lg_u32 s77, 0")
        a("s_cbranch_scc1 LL_noclaim")
        a("s_lshl_b32 s4, s72, 5")
        a("v_mov_b32 v9, s4")
        a("v_mov_b32 v10, s74")
        a("s_mov_b64 exec, 1")
        a("buffer_atomic_or v10, v9, s[60:63], 0 offen sc0")
        a("s_mov_b64 exec, -1")
        a(f"s_mov_b32 s76, {args.nspec}")
        a.label("LL_noclaim")
    a("s_lshl_b32 s10, s5, 20")
    a("s_lshl_b32 s4, s78, 12")
    a("s_add_u32 s10, s10, s4")
    a("s_mov_b32 s44, s18")
    a("s_mov_b32 s45, s19")
    a("s_mov_b32 s46, 0x08000000")
    a("s_mov_b32 s48, s20")
    a("s_mov_b32 s49, s21")
    a("s_mov_b32 s50, 0x08000000")
    a("s_mov_b32 s12, 0")
    a("s_mov_b32 s13, 0")
    a("s_mov_b32 s9, 0")
    a(f"v_mov_b32 v4, {C_LANDED}")
    a(f"s_movk_i32 s15, {NS}")
    a(f"s_sub_u32 s11, s79, {args.deep_at}")
    a("s_mov_b32 s64, 0")
    if args.deepcls:
        a("s_bfe_u32 s4, s2, 0x20003")
        a("s_cmp_eq_u32 s4, 1")
        a("s_cselect_b32 s11, 0, s11")
    a.label("LL_loop")
    a("s_mov_b32 m0, s12")
    a("s_add_u32 s14, s12, 4096")
    for i in range(4):
        a(f"buffer_load_dwordx4 v1, s[44:47], s10 offen offset:{1024*i} {args.kp} lds")
    a("s_mov_b32 m0, s14")
    a("s_add_u32 s12, s12, 8192")
    for i in range(4):
        a(f"buffer_load_dwordx4 v1, s[48:51], s10 offen offset:{1024*i} {args.vp} lds")
    a(f"s_cmp_eq_u32 s12, {RING}")
    a("s_cselect_b32 s12, 0, s12")
    a("s_add_u32 s10, s10, 4096")
    a("s_add_u32 s13, s13, 1")
    if args.tk == 2:
        a("s_cmp_le_i32 s13, s76")
        a("s_cbranch_scc1 LL_resolve")
        a.label("LL_resolved")
    if args.ts == 3:
        for k, x in ((1, 16), (2, 32), (3, 64), (4, 96)):
            a(f"s_cmp_lg_u32 s13, {x}")
            a(f"s_cbranch_scc1 LL_ns{k}")
            a(f"s_memrealtime s[{84+2*k}:{85+2*k}]")
            a.label(f"LL_ns{k}")
    a(f"s_sub_u32 s14, s13, {NS}")
    a("s_and_b32 s5, s14, 7")
    a("s_lshl_b32 s5, s5, 2")
    a(f"s_add_u32 s5, s5, {C_DONE}")
    a("v_mov_b32 v5, s5")
    if args.mon:
        a("ds_read_b32 v7, v5")
        a(f"ds_read_b32 v8, v4 offset:{C_DEPTH - C_LANDED}")
        if args.deep_at:
            a("s_cmp_ge_u32 s13, s11")
            a(f"s_cselect_b32 s4, {args.end_code}, 0")
            a("s_max_u32 s64, s64, s4")
        if args.early:
            a(f"s_cmp_lt_u32 s13, {args.early}")
            a(f"s_cselect_b32 s4, {args.early_code}, 0")
            a("s_max_u32 s64, s64, s4")
        order = list(range(len(LV)))
        for n, code in enumerate(order):
            N = LV[code]
            if n < len(order) - 1:
                a(f"s_cmp_lg_u32 s64, {code}")
                a(f"s_cbranch_scc1 LL_lv{n+1}")
            a(f"s_sub_u32 s4, s13, {(N + 7)//8}")
            a("s_max_i32 s9, s9, s4")
            a("v_mov_b32 v6, s9")
            a(f"s_waitcnt vmcnt({N})")
            if n < len(order) - 1:
                a("s_branch LL_pub")
                a.label(f"LL_lv{n+1}")
        a.label("LL_pub")
        a("s_waitcnt lgkmcnt(0)")
        a("v_readfirstlane_b32 s64, v8")
    else:
        if INF2 != INF:
            a("s_cmp_ge_u32 s13, s11")
            a("s_cbranch_scc1 LL_deep")
        a(f"s_sub_u32 s4, s13, {INF//8 - 1}")
        a("s_max_i32 s9, s9, s4")
        a("v_mov_b32 v6, s9")
        a("ds_read_b32 v7, v5")
        a(f"s_waitcnt vmcnt({INF-8})")
        if INF2 != INF:
            a("s_branch LL_pub")
            a.label("LL_deep")
            a(f"s_sub_u32 s4, s13, {INF2//8 - 1}")
            a("s_max_i32 s9, s9, s4")
            a("v_mov_b32 v6, s9")
            a("ds_read_b32 v7, v5")
            a(f"s_waitcnt vmcnt({INF2-8})")
            a.label("LL_pub")
    a("ds_write_b32 v4, v6")
    a("s_cmp_ge_u32 s13, s79")
    a("s_cbranch_scc1 LL_fin")
    a("s_cmp_lt_u32 s13, s15")
    a("s_cbranch_scc1 LL_loop")
    a("s_lshr_b32 s14, s14, 3")
    if not args.mon:
        a("s_waitcnt lgkmcnt(0)")
    a("v_readfirstlane_b32 s4, v7")
    a("s_cmp_gt_u32 s4, s14")
    a("s_cbranch_scc1 LL_loop")
    a("s_mov_b32 s9, s13")
    a("v_mov_b32 v6, s13")
    a("s_waitcnt vmcnt(0)")
    a("ds_write_b32 v4, v6")
    a.label("LL_spin")
    a("s_sleep 1")
    a("ds_read_b32 v7, v5")
    a("s_waitcnt lgkmcnt(0)")
    a("v_readfirstlane_b32 s4, v7")
    a("s_cmp_gt_u32 s4, s14")
    a("s_cbranch_scc1 LL_loop")
    a("s_branch LL_spin")
    a.label("LL_fin")
    for k in range(((max(LV) + 7) // 8 - 1) if args.mon else (INF2 // 8 - 2), -1, -1):
        a(f"s_sub_u32 s4, s79, {k}")
        a("s_max_i32 s9, s9, s4")
        a("v_mov_b32 v6, s9")
        a(f"s_waitcnt vmcnt({8*k})")
        a("ds_write_b32 v4, v6")
    stamp(5)
    a("s_branch LA_end2")
    if args.tk == 2:
        a.label("LL_resolve")
        a("s_cmp_lt_i32 s13, s76")
        a("s_cbranch_scc1 LL_loop")
        a(f"v_mov_b32 v11, {C_TK}")
        a("s_mov_b32 s77, 1")
        a("s_movk_i32 s76, -1")
        a(f"s_waitcnt vmcnt({8*args.nspec})")
        a("v_readfirstlane_b32 s4, v10")
        a("s_and_b32 s4, s4, s74")
        a("s_cbranch_scc1 LL_lost")
        a("v_mov_b32 v10, s2")
        a("ds_write_b32 v11, v10")
        a("s_waitcnt lgkmcnt(0)")
        a("s_barrier")
        a("s_mov_b32 s64, 0")
        a("s_branch LL_resolved")
        a.label("LL_lost")
        a("s_mov_b64 exec, 1")
        a("s_mov_b32 s9, 0")
        a(f"s_sleep {args.lost_sleep}")
        a.label("LL_try")
        a("s_lshl_b32 s4, s72, 5")
        a("v_mov_b32 v9, s4")
        a("v_mov_b32 v10, 0")
        a("buffer_atomic_or v10, v9, s[60:63], 0 offen sc0")
        a("s_waitcnt vmcnt(0)")
        a("v_readfirstlane_b32 s4, v10")
        a("s_not_b32 s4, s4")
        a("s_cbranch_scc0 LL_nextx")
        a("s_lshl_b32 s5, 0xff, s73")
        a("s_and_b32 s5, s5, s4")
        a("s_cselect_b32 s4, s5, s4")
        a("s_ff1_i32_b32 s5, s4")
        a("s_lshl_b32 s74, 1, s5")
        a("v_mov_b32 v10, s74")
        a("buffer_atomic_or v10, v9, s[60:63], 0 offen sc0")
        a("s_waitcnt vmcnt(0)")
        a("v_readfirstlane_b32 s4, v10")
        a("s_and_b32 s4, s4, s74")
        a("s_cbranch_scc1 LL_try")
        vid("s2", "s72", "s5", "s4")
        a("s_branch LL_got")
        a.label("LL_nextx")
        a("s_add_u32 s72, s72, 1")
        a("s_and_b32 s72, s72, 7")
        a("s_add_u32 s9, s9, 1")
        a("s_cmp_lt_u32 s9, 8")
        a("s_cbranch_scc1 LL_try")
        a("s_movk_i32 s2, 256")
        a.label("LL_got")
        a("v_mov_b32 v10, s2")
        a("ds_write_b32 v11, v10")
        a("s_mov_b64 exec, -1")
        a("s_waitcnt lgkmcnt(0)")
        a("s_barrier")
        a("s_branch LA_tk_done")

    a.label("LA_cons")
    a("s_mov_b32 s42, 0xffff0000")
    a(f"s_mov_b32 s69, {LOG2E:#x}")
    a("s_mov_b32 s55, 0x20000")
    a("s_mov_b32 s59, 0x20000")
    a("s_mov_b32 s63, 0x20000")
    if args.fuse == 4:
        a("s_cmp_lt_u32 s5, 64")
        a("s_cselect_b32 s75, 2, 0")
        a("s_cmp_eq_u32 s8, 0")
        a("s_cselect_b32 s75, 1, s75")
        a(f"s_cmp_ge_u32 s5, {NFFN}")
        a("s_cselect_b32 s75, 0, s75")
        a("s_cmp_ge_u32 s5, 88")
        a("s_cselect_b32 s75, 3, s75")
        a("s_and_b32 s76, s2, 7")
        a("s_cmp_lt_u32 s5, 96")
        a("s_cselect_b32 s4, 2, 0")
        a("s_add_u32 s76, s76, s4")
        a("s_and_b32 s77, s6, 3")
        a("s_lshl_b32 s77, s77, 1")
        a("s_add_u32 s77, s77, s8")
    a("s_cmp_eq_u32 s3, 9")
    a("s_cbranch_scc1 LA_ffn")
    if args.mon:
        a("s_cmp_eq_u32 s3, 10")
        a("s_cbranch_scc1 LA_mon")
    a("s_sub_u32 s9, s3, 1")
    a("v_lshrrev_b32 v20, 4, v0")
    a("v_and_b32 v21, 15, v0")
    a("v_lshlrev_b32 v2, 14, v20")
    a("v_lshl_add_u32 v2, v21, 4, v2")
    a("v_lshlrev_b32 v3, 2, v20")
    a("v_lshl_add_u32 v3, v21, 4, v3")
    a("s_lshl_b32 s4, s7, 10")
    a("s_lshl_b32 s5, s9, 7")
    a("s_add_u32 s4, s4, s5")
    a("s_lshl_b32 s11, s9, 19")
    a("s_lshl_b32 s12, s6, 8")
    a("s_add_u32 s11, s11, s12")
    a("s_mov_b32 s48, s22")
    a("s_mov_b32 s49, s23")
    a("s_mov_b32 s50, 0x00400000")
    a("s_mov_b32 s56, s16")
    a("s_mov_b32 s57, s17")
    a("s_mov_b32 s58, 4096")
    a(f"buffer_load_dword v{P}, v3, s[56:59], s4 offen")
    if args.coop:
        a("v_lshrrev_b32 v22, 3, v0")
        a("v_lshlrev_b32 v22, 13, v22")
        a("v_and_b32 v23, 7, v0")
        a("v_lshl_add_u32 v22, v23, 5, v22")
        a("s_lshr_b32 s4, s2, 5")
        a("s_lshl_b32 s4, s4, 19")
        a("s_lshl_b32 s5, s9, 16")
        a("s_add_u32 s4, s4, s5")
        a("s_add_u32 s4, s4, s12")
        a(f"buffer_load_dword v38, v22, s[48:51], s4 offen{cnt}")
        a("s_waitcnt vmcnt(0)")
        if args.coop > 1:
            a(f"s_sleep {args.coop}")
    for k in range(8):
        a(f"buffer_load_dwordx4 {Wr(2*k)}, v2, s[48:51], s11 offen{wnt}")
        a("s_add_u32 s12, s11, 8192")
        a(f"buffer_load_dwordx4 {Wr(2*k+1)}, v2, s[48:51], s12 offen{wnt}")
        if k < 7:
            a("s_add_u32 s11, s11, 65536")
    a(f"s_mov_b32 s68, {SCALE:#x}")
    a("s_mov_b32 s70, 0x05040100")
    a("s_mov_b32 s71, 0x07060302")
    a("s_mov_b32 s52, s24")
    a("s_mov_b32 s53, s25")
    a("s_mov_b32 s54, 0x00400000")
    a("s_mov_b32 s60, s40")
    a("s_mov_b32 s61, s41")
    a(f"s_mov_b32 s62, {WS_STATS + 2048}")
    a("v_and_b32 v22, 1, v20")
    a("v_lshlrev_b32 v22, 1, v22")
    a("v_lshrrev_b32 v23, 1, v20")
    a("v_or_b32 v22, v22, v23")
    a("v_lshl_add_u32 v22, v21, 3, v22")
    a("v_lshlrev_b32 v22, 2, v22")
    a("s_lshl_b32 s4, s9, 9")
    a(f"s_add_u32 s4, s4, {L_QP}")
    a(f"v_add_u32 v{VRED}, s4, v22")
    a(f"v_mov_b32 v{VZ}, {RING}")
    a(f"v_mov_b32 v{VCNT}, 1")
    a("s_lshl_b32 s4, s9, 13")
    a(f"v_add_u32 v{VBASE}, s4, v1")
    a("s_lshl_b32 s4, s9, 2")
    a(f"s_add_u32 s4, s4, {C_DONE}")
    a(f"v_mov_b32 v{VDONE}, s4")
    for j in range(8):
        a(f"v_mov_b32 v{ACC+j}, 0")
    if args.tk == 2:
        sync("c")
    for k in range(8):
        tb = T0 + 8 * (k & 1)
        a(f"s_waitcnt vmcnt({14 - 2*k})")
        if k == 0:
            stamp(3, 2)
        for d in range(4):
            A_, B_ = W0 + 8 * k + d, W0 + 8 * k + 4 + d
            a(f"v_perm_b32 v{tb+2*d}, v{B_}, v{A_}, s70")
            a(f"v_perm_b32 v{tb+2*d+1}, v{B_}, v{A_}, s71")
        for e in range(8):
            a(f"v_dot2c_f32_bf16_dpp v{ACC+e}, v{P}, v{tb+e} row_newbcast:{k} row_mask:0xf bank_mask:0xf")

    def cross_row_reduce8(base):
        for k in range(4):
            a(f"v_permlane32_swap_b32 v{base+2*k}, v{base+2*k+1}")
        for k in range(4):
            a(f"v_add_f32 v{base+2*k}, v{base+2*k}, v{base+2*k+1}")
        a(f"v_permlane16_swap_b32 v{base}, v{base+2}")
        a(f"v_permlane16_swap_b32 v{base+4}, v{base+6}")
        a(f"v_add_f32 v{base}, v{base}, v{base+2}")
        a(f"v_add_f32 v{base+4}, v{base+4}, v{base+6}")

    cross_row_reduce8(ACC)
    a(f"ds_write_b32 v{VRED}, v{ACC}")
    a(f"ds_write_b32 v{VRED}, v{ACC+4} offset:16")
    a("v_lshlrev_b32 v20, 3, v0")
    a(f"v_add_u32 v20, {L_QP}, v20")
    stamp(4, 2)
    lds_barrier(0, "q")
    for w in range(8):
        a(f"ds_read_b64 v[{T0+2*w}:{T0+2*w+1}], v20 offset:{512*w}")
    a("s_lshl_b32 s4, s9, 8")
    a(f"s_add_u32 s4, s4, {L_QQ}")
    a("v_lshlrev_b32 v21, 2, v0")
    a("v_add_u32 v21, s4, v21")
    a("v_and_b32 v22, 15, v0")
    a("v_lshlrev_b32 v22, 4, v22")
    a("v_add_u32 v22, s4, v22")
    a("s_waitcnt lgkmcnt(0)")
    for st in (1, 2, 4):
        for w in range(0, 8, 2 * st):
            a(f"v_add_f32 v{T0+2*w}, v{T0+2*w}, v{T0+2*(w+st)}")
            a(f"v_add_f32 v{T0+2*w+1}, v{T0+2*w+1}, v{T0+2*(w+st)+1}")
    a(f"v_cvt_pk_bf16_f32 v23, v{T0}, v{T0+1}")
    a("ds_write_b32 v21, v23")
    a("s_waitcnt lgkmcnt(0)")
    a(f"ds_read_b128 v[{Q}:{Q+3}], v22")
    for j in range(8):
        a(f"v_mov_b32 v{ACC+j}, 0")
    a(f"v_mov_b32 v{M}, 0xff800000")
    a(f"v_mov_b32 v{L}, 0")
    if args.coop:
        a("s_lshl_b32 s4, s6, 17")
        a("s_lshr_b32 s5, s2, 5")
        a("s_lshl_b32 s5, s5, 14")
        a("s_add_u32 s4, s4, s5")
        a("s_lshl_b32 s5, s9, 11")
        a("s_add_u32 s4, s4, s5")
        a("v_lshlrev_b32 v22, 5, v0")
        a(f"buffer_load_dword v141, v22, s[52:55], s4 offen{cnt}")
    a("s_lshl_b32 s43, s6, 17")
    a(f"s_lshl_b32 s5, s9, {7 if args.tail2 else 14}")
    a("s_add_u32 s43, s43, s5")
    if args.tail2:
        a("v_lshrrev_b32 v22, 4, v0")
        a("v_and_b32 v23, 15, v0")
        a("v_lshlrev_b32 v142, 15, v22")
        a("v_lshl_add_u32 v142, v23, 3, v142")
        a("v_and_b32 v143, 1, v22")
        a("v_lshlrev_b32 v143, 1, v143")
        a("v_lshrrev_b32 v22, 1, v22")
        a("v_or_b32 v143, v143, v22")
        a("v_lshl_add_u32 v143, v23, 2, v143")
        a("v_lshlrev_b32 v143, 2, v143")
        if args.fuse >= 3:
            a("v_and_b32 v144, 12, v143")
            a("v_lshlrev_b32 v144, 1, v144")
            a("s_movk_i32 s67, 0xff")
        a("s_lshl_b32 s5, s7, 6")
        a("s_lshl_b32 s12, s6, 1")
        a("s_add_u32 s5, s5, s12")
        a("s_add_u32 s5, s5, s8")
        a("s_lshl_b32 s65, s5, 3")
        a(f"s_add_u32 s65, s65, {WS_STATS}")
        a("s_lshl_b32 s64, s5, 11")
        a("s_lshl_b32 s5, s9, 8")
        a("s_add_u32 s64, s64, s5")
    a("s_mov_b32 s13, s9")
    a("s_mov_b32 s15, 0")
    a(f"v_mov_b32 v{VCNT+1}, 0")
    stamp(1)
    a.label("LC_poll")
    a(f"ds_read_b32 v20, v{VZ}")
    a("s_waitcnt lgkmcnt(0)")
    a("v_readfirstlane_b32 s14, v20")
    a("s_cmp_gt_u32 s14, s13")
    a("s_cbranch_scc1 LC_go")
    a("s_sleep 1")
    a("s_branch LC_poll")
    a.label("LC_go")
    for i in range(4):
        a(f"ds_read_b128 v[{KB+4*i}:{KB+4*i+3}], v{VBASE} offset:{1024*i}")
    for i in range(4):
        a(f"ds_read_b128 v[{VB+4*i}:{VB+4*i+3}], v{VBASE} offset:{4096+1024*i}")
    a("s_add_u32 s15, s15, 1")
    a("s_add_u32 s13, s13, 8")
    a(f"v_add_u32 v{VCNT+1}, 1, v{VCNT+1}")
    if NS == 16:
        a(f"v_xor_b32 v{VBASE}, 0x10000, v{VBASE}")
    else:
        a(f"v_add_u32 v{VBASE}, 0x10000, v{VBASE}")
        a(f"v_subrev_u32 v21, {RING}, v{VBASE}")
        a(f"v_min_u32 v{VBASE}, v21, v{VBASE}")
    a("s_waitcnt lgkmcnt(4)")
    for d in range(4):
        for i in range(4):
            t = f"v{T0+i}"
            c = "0" if d == 0 else t
            a(f"v_dot2_f32_bf16 {t}, v{KB+4*i+d}, v{Q+d}, {c}")
    a("s_waitcnt lgkmcnt(0)")
    a(f"ds_write_b32 v{VDONE}, v{VCNT+1}")
    for i in range(2):
        a(f"v_add_f32_dpp v{T0+i}, v{T0+i}, v{T0+i} row_ror:8 row_mask:0xf bank_mask:0x3")
        a(f"v_add_f32_dpp v{T0+i}, v{T0+i+2}, v{T0+i+2} row_ror:8 row_mask:0xf bank_mask:0xc")
    PV1, PV2 = T0 + 8, KB
    for d in range(2):
        a(f"v_perm_b32 v{PV1+2*d}, v{VB+4+d}, v{VB+d}, s70")
        a(f"v_perm_b32 v{PV1+2*d+1}, v{VB+4+d}, v{VB+d}, s71")
    a(f"v_add_f32_dpp v{T0}, v{T0}, v{T0} row_half_mirror row_mask:0xf bank_mask:0x5")
    a(f"v_add_f32_dpp v{T0}, v{T0+1}, v{T0+1} row_half_mirror row_mask:0xf bank_mask:0xa")
    for d in range(2, 4):
        a(f"v_perm_b32 v{PV1+2*d}, v{VB+4+d}, v{VB+d}, s70")
        a(f"v_perm_b32 v{PV1+2*d+1}, v{VB+4+d}, v{VB+d}, s71")
    S = f"v{T0}"
    a(f"v_add_f32_dpp {S}, {S}, {S} quad_perm:[1,0,3,2] row_mask:0xf bank_mask:0xf")
    a(f"v_perm_b32 v{PV2}, v{VB+12}, v{VB+8}, s70")
    a(f"v_perm_b32 v{PV2+1}, v{VB+12}, v{VB+8}, s71")
    a(f"v_add_f32_dpp {S}, {S}, {S} quad_perm:[2,3,0,1] row_mask:0xf bank_mask:0xf")
    round_bf16(a, S)
    a(f"v_mul_f32 {S}, s68, {S}")
    round_bf16(a, S)
    MX = f"v{T0+1}"
    a(f"v_perm_b32 v{PV2+2}, v{VB+13}, v{VB+9}, s70")
    a(f"v_perm_b32 v{PV2+3}, v{VB+13}, v{VB+9}, s71")
    a(f"v_max_f32_dpp {MX}, {S}, {S} row_ror:8 row_mask:0xf bank_mask:0xf")
    a(f"v_perm_b32 v{PV2+4}, v{VB+14}, v{VB+10}, s70")
    a(f"v_perm_b32 v{PV2+5}, v{VB+14}, v{VB+10}, s71")
    a(f"v_max_f32_dpp {MX}, {MX}, {MX} row_ror:4 row_mask:0xf bank_mask:0xf")
    a(f"v_perm_b32 v{PV2+6}, v{VB+15}, v{VB+11}, s70")
    a(f"v_perm_b32 v{PV2+7}, v{VB+15}, v{VB+11}, s71")
    a(f"v_max_f32 {MX}, {MX}, v{M}")
    AL = f"v{T0+2}"
    a(f"v_sub_f32 {AL}, v{M}, {MX}")
    a(f"v_sub_f32 v{P}, {S}, {MX}")
    a(f"v_mul_f32 {AL}, s69, {AL}")
    a(f"v_mul_f32 v{P}, s69, v{P}")
    a(f"v_exp_f32 {AL}, {AL}")
    a(f"v_exp_f32 v{P}, v{P}")
    a(f"v_mov_b32 v{M}, {MX}")
    a(f"v_fma_f32 v{L}, v{L}, {AL}, v{P}")
    a(f"v_mul_f32 v{ACC}, {AL}, v{ACC}")
    a(f"v_mov_b32_dpp v{T0+3}, v{P} row_shl:4 row_mask:0xf bank_mask:0xf")
    for j in range(1, 8):
        a(f"v_mul_f32 v{ACC+j}, {AL}, v{ACC+j}")
        if j == 1:
            a(f"v_cvt_pk_bf16_f32 v{P}, v{P}, v{T0+3}")
    for e in range(8):
        a(f"v_dot2c_f32_bf16_dpp v{ACC+e}, v{P}, v{PV1+e} row_newbcast:0 row_mask:0xf bank_mask:0xf")
    for e in range(8):
        a(f"v_dot2c_f32_bf16_dpp v{ACC+e}, v{P}, v{PV2+e} row_newbcast:8 row_mask:0xf bank_mask:0xf")
    NPJ = args.wo_npj
    NB = 16 // NPJ
    a(f"s_cmp_le_u32 s15, {args.wo_at + NB - 1}")
    a("s_cbranch_scc1 LC_wo")
    a(f"s_cmp_eq_u32 s15, {args.prep_at}")
    a("s_cbranch_scc1 LC_prep")
    a("s_cmp_lt_u32 s13, s79")
    a("s_cbranch_scc1 LC_poll")
    a("s_branch LA_tail")
    a.label("LC_wo")
    for k in range(NB):
        a(f"s_cmp_lg_u32 s15, {args.wo_at + k}")
        a(f"s_cbranch_scc1 {'LC_wo%d' % (k+1) if k < NB-1 else 'LC_poll'}")
        if args.tail2:
            for i in range(2 * NPJ * k, 2 * NPJ * (k + 1)):
                if i % 4 == 0 or i == 2 * NPJ * k:
                    a(f"s_add_u32 s4, s43, {(i >> 2) * 4096}")
                a(f"buffer_load_dwordx2 v[{W0+2*i}:{W0+2*i+1}], v142, s[52:55], s4 offen offset:{(i & 3) * 1024}{wnt}")
        else:
          for i in range(NPJ * k, NPJ * (k + 1)):
            if i % 4 == 0 or i == NPJ * k:
                a(f"s_add_u32 s4, s43, {(i >> 2) * 4096}")
            a(f"buffer_load_dwordx4 {Wr(i)}, v1, s[52:55], s4 offen offset:{(i & 3) * 1024}{wnt}")
        a("s_branch LC_poll")
        if k < NB - 1:
            a.label(f"LC_wo{k+1}")

    a.label("LC_prep")
    a("s_waitcnt vmcnt(0)")
    LOr = {}
    HIr = {}
    prev = 141
    for j in range(16 if args.tail2 else 8):
        for t in range(2 if args.tail2 else 4):
            if args.tail2:
                A_, B_ = W0 + 4 * j + t, W0 + 4 * j + 2 + t
            else:
                A_, B_ = W0 + 8 * j + t, W0 + 8 * j + 4 + t
            a(f"v_perm_b32 v{prev}, v{B_}, v{A_}, s70")
            a(f"v_perm_b32 v{B_}, v{B_}, v{A_}, s71")
            LOr[(j, t)] = prev
            HIr[(j, t)] = B_
            prev = A_
    if args.warm:
        a("s_mov_b64 exec, 0")
        a("s_branch LW_0")
        a.label("LC_warmret")
        a("s_mov_b64 exec, -1")
    a("s_branch LC_poll")

    a.label("LA_tail")
    if args.warm:
        a.hop_begin("LW", args.warm)
    a.nop(3)
    stamp(3)
    for r in (8, 4):
        a(f"v_add_f32_dpp v{L}, v{L}, v{L} row_ror:{r} row_mask:0xf bank_mask:0xf")
    for g in range(4):
        a(f"v_readlane_b32 s{80+g}, v{M}, {16*g}")
    a("v_mov_b32 v20, s80")
    a("v_max_f32 v20, s81, v20")
    a("v_max_f32 v20, s82, v20")
    a("v_max_f32 v20, s83, v20")
    a(f"v_sub_f32 v22, v{M}, v20")
    a("v_mul_f32 v22, s69, v22")
    a("v_exp_f32 v22, v22")
    a(f"v_mul_f32 v{L}, v22, v{L}")
    for j in range(8):
        a(f"v_mul_f32 v{ACC+j}, v22, v{ACC+j}")
    for g in range(4):
        a(f"v_readlane_b32 s{80+g}, v{L}, {16*g}")
    cross_row_reduce8(ACC)
    a("v_mov_b32 v21, s80")
    a("v_add_f32 v21, s81, v21")
    a("v_add_f32 v21, s82, v21")
    a("v_add_f32 v21, s83, v21")
    a(f"ds_write_b32 v{VRED}, v{ACC} offset:{L_OP - L_QP}")
    a(f"ds_write_b32 v{VRED}, v{ACC+4} offset:{L_OP - L_QP + 16}")
    a("s_lshl_b32 s4, s9, 3")
    a(f"s_add_u32 s4, s4, {L_ST}")
    a("v_mov_b32 v22, s4")
    a("ds_write_b64 v22, v[20:21]")
    a("v_lshlrev_b32 v20, 3, v0")
    a(f"v_add_u32 v20, {L_OP}, v20")
    a(f"v_mov_b32 v21, {L_ST}")
    lds_barrier(1, "t1", 9 if args.fuse else 8)
    stamp(4)
    SB = 104
    for k in range(4):
        a(f"ds_read_b128 v[{SB+4*k}:{SB+4*k+3}], v21 offset:{16*k}")
    for w in range(8):
        a(f"ds_read_b64 v[{T0+2*w}:{T0+2*w+1}], v20 offset:{512*w}")
    a("s_lshl_b32 s4, s9, 3")
    if args.tail2:
        for j in range(8):
            a(f"v_mov_b32 v{ACC+j}, 0")
        if args.fuse < 3:
            a("v_mov_b32 v3, 0")
            a("s_cmp_eq_u32 s9, 0")
            a("s_cselect_b32 s66, 1, 0")
            a("s_mov_b32 s67, 0")
    a("s_waitcnt lgkmcnt(8)")
    a(f"v_max3_f32 v20, v{SB}, v{SB+2}, v{SB+4}")
    a(f"v_max3_f32 v20, v20, v{SB+6}, v{SB+8}")
    a(f"v_max3_f32 v20, v20, v{SB+10}, v{SB+12}")
    a(f"v_max_f32 v20, v20, v{SB+14}")
    for w in range(8):
        a(f"v_sub_f32 v{SB+2*w}, v{SB+2*w}, v20")
    for w in range(8):
        a(f"v_mul_f32 v{SB+2*w}, s69, v{SB+2*w}")
    for w in range(8):
        a(f"v_exp_f32 v{SB+2*w}, v{SB+2*w}")
    a(f"v_mul_f32 v21, v{SB}, v{SB+1}")
    for w in range(1, 8):
        a(f"v_fmac_f32 v21, v{SB+2*w}, v{SB+2*w+1}")
    a("v_rcp_f32 v22, v21")
    if args.fuse >= 3:
        a("v_log_f32 v21, v21")
        a("v_fmac_f32 v21, s69, v20")
        a("v_lshrrev_b32 v21, v144, v21")
    elif args.tail2:
        a("s_mov_b64 exec, s[66:67]")
        a(f"buffer_store_dwordx2 v[20:21], v3, s[60:63], s65 offen{' sc1' if args.fuse else ''}")
        a("s_mov_b64 exec, -1")
    a("s_waitcnt lgkmcnt(0)")
    a(f"v_mul_f32 v2, v{SB}, v{T0}")
    a(f"v_mul_f32 v3, v{SB}, v{T0+1}")
    for w in range(1, 8):
        a(f"v_fmac_f32 v2, v{SB+2*w}, v{T0+2*w}")
        a(f"v_fmac_f32 v3, v{SB+2*w}, v{T0+2*w+1}")
    a("v_mul_f32 v2, v22, v2")
    a("v_mul_f32 v3, v22, v3")
    a("v_cvt_pk_bf16_f32 v2, v2, v3")
    ysc = " sc1" if args.fuse else ""
    if args.tail2:
        for j in range(16):
            o = ACC + 4 * (j & 1)
            for t in range(2):
                a(f"v_dot2c_f32_bf16_dpp v{o+2*t}, v2, v{LOr[(j, t)]} row_newbcast:{j} row_mask:0xf bank_mask:0xf")
                a(f"v_dot2c_f32_bf16_dpp v{o+2*t+1}, v2, v{HIr[(j, t)]} row_newbcast:{j} row_mask:0xf bank_mask:0xf")
        for k in range(4):
            a(f"v_add_f32 v{ACC+k}, v{ACC+k}, v{ACC+4+k}")
        a(f"v_permlane32_swap_b32 v{ACC}, v{ACC+1}")
        a(f"v_permlane32_swap_b32 v{ACC+2}, v{ACC+3}")
        a(f"v_add_f32 v{ACC}, v{ACC}, v{ACC+1}")
        a(f"v_add_f32 v{ACC+2}, v{ACC+2}, v{ACC+3}")
        a(f"v_permlane16_swap_b32 v{ACC}, v{ACC+2}")
        a(f"v_add_f32 v{ACC}, v{ACC}, v{ACC+2}")
        if args.yx4:
            z = ACC
            if args.fuse >= 3:
                a(f"v_bfi_b32 v{z}, s67, v21, v{z}")
            a(f"v_mov_b32 v{z+4}, v{z}")
            a(f"v_mov_b32 v{z+5}, v{z}")
            a(f"v_mov_b32 v{z+1}, v{z}")
            a(f"v_permlane32_swap_b32 v{z+4}, v{z+1}")
            a(f"v_permlane16_swap_b32 v{z+5}, v{z+2}")
            a(f"v_mov_b32 v{z+6}, v{z+1}")
            a(f"v_permlane16_swap_b32 v{z+6}, v{z+3}")
            a("s_mov_b64 exec, 0xffff")
            a(f"buffer_store_dwordx4 v[{z}:{z+3}], v1, s[60:63], s64 offen{ysc}")
            a("s_mov_b64 exec, -1")
        else:
            a(f"buffer_store_dword v{ACC}, v143, s[60:63], s64 offen{ysc}")
        stamp(5)
    else:
        for j in range(8):
            a(f"v_readlane_b32 s{72+j}, v2, s4")
            if j < 7:
                a("s_add_u32 s4, s4, 1")
        for j in range(8):
            for t in range(4):
                c = "0" if j == 0 else f"v{ACC+2*t}"
                a(f"v_dot2_f32_bf16 v{ACC+2*t}, v{LOr[(j, t)]}, s{72+j}, {c}")
                c = "0" if j == 0 else f"v{ACC+2*t+1}"
                a(f"v_dot2_f32_bf16 v{ACC+2*t+1}, v{W0+8*j+4+t}, s{72+j}, {c}")
        a("s_lshl_b32 s4, s9, 11")
        a("v_lshlrev_b32 v2, 5, v0")
        a("v_add_u32 v2, s4, v2")
        a(f"ds_write_b128 v2, v[{ACC}:{ACC+3}] offset:{L_Y}")
        a(f"ds_write_b128 v2, v[{ACC+4}:{ACC+7}] offset:{L_Y+16}")
        a("s_lshl_b32 s4, s9, 8")
        a("v_lshlrev_b32 v3, 2, v0")
        a("v_add_u32 v3, s4, v3")
        a("s_lshl_b32 s5, s7, 6")
        a("s_lshl_b32 s12, s6, 1")
        a("s_add_u32 s5, s5, s12")
        a("s_add_u32 s5, s5, s8")
        a("s_lshl_b32 s5, s5, 11")
        lds_barrier(2, "t2")
        for w in range(8):
            a(f"ds_read_b32 v{T0+w}, v3 offset:{L_Y + 2048*w}")
        a("s_waitcnt lgkmcnt(0)")
        for st in (1, 2, 4):
            for w in range(0, 8, 2 * st):
                a(f"v_add_f32 v{T0+w}, v{T0+w}, v{T0+w+st}")
        if args.warm:
            a.hop_end("LC_warmret")
        a(f"buffer_store_dword v{T0}, v3, s[60:63], s5 offen{ysc}")
        stamp(5)
        a("s_cmp_lg_u32 s9, 0")
        a("s_cbranch_scc1 LA_end2")
        a("s_lshl_b32 s5, s7, 5")
        a("s_add_u32 s5, s5, s6")
        a("s_lshl_b32 s5, s5, 4")
        a("s_lshl_b32 s12, s8, 3")
        a("s_add_u32 s5, s5, s12")
        a(f"s_add_u32 s5, s5, {WS_STATS}")
        a("v_mov_b32 v2, 0")
        a("s_mov_b64 exec, 1")
        a(f"buffer_store_dwordx2 v[20:21], v2, s[60:63], s5 offen{ysc}")
    a.label("LA_end2")
    stamp_store()
    a("s_endpgm")

    if args.mon:
        a.label("LA_mon")
        if args.tk == 2:
            sync("m")
        G = args.glob
        RATE = args.rate
        a("s_memrealtime s[66:67]")
        a("s_and_b32 s15, s2, 7")
        a(f"s_mul_i32 s4, s15, {args.bstride}")
        a(f"s_add_u32 s4, s4, {WS_BOARD}")
        a("s_add_u32 s60, s40, s4")
        a("s_addc_u32 s61, s41, 0")
        a(f"s_movk_i32 s62, {132 if G else 128}")
        a("s_lshr_b32 s12, s2, 3")
        a("s_lshl_b32 s12, s12, 2")
        a("v_lshlrev_b32 v5, 2, v0")
        a("v_mov_b32 v7, 0")
        a(f"v_mov_b32 v6, {C_LANDED}")
        a(f"s_sub_u32 s10, s79, {NJ}")
        a(f"s_sub_u32 s11, s79, {args.mon_stop}")
        if G:
            a(f"s_add_u32 s56, s40, {WS_BOARD + 8*args.bstride}")
            a("s_addc_u32 s57, s41, 0")
            a("s_mov_b32 s58, 32")
            a("s_lshl_b32 s15, s15, 2")
        if args.ts:
            for k in range(6):
                a(f"s_mov_b32 s{84+k}, 0")
        a("s_mov_b64 exec, 1")
        a("s_waitcnt lgkmcnt(0)")
        a(f"s_mul_i32 s4, s66, {RATE}")
        a("s_sub_u32 s4, 0, s4")
        a("v_mov_b32 v4, s4")
        a("buffer_store_dword v4, v7, s[60:63], s12 offen")
        if args.fuse:
            a("s_mov_b32 s56, s40")
            a("s_mov_b32 s57, s41")
            a(f"s_mov_b32 s58, {WSH + 11008 if args.fuse >= 3 else WS_STATS + 2048}")
            a("s_mov_b32 s52, s38")
            a("s_mov_b32 s53, s39")
            a("s_movk_i32 s54, 256")
            a("s_lshl_b32 s4, s7, 6")
            a("s_lshl_b32 s5, s6, 1")
            a("s_add_u32 s4, s4, s5")
            a("s_add_u32 s4, s4, s8")
            a("s_lshl_b32 s5, s4, 3")
            a(f"s_add_u32 s5, s5, {WS_STATS}")
            a("s_lshl_b32 s4, s4, 11")
            a("s_mov_b64 exec, -1")
            for k in range(4):
                a(f"v_mov_b32 v{8+k}, -1")
            if not args.dbg & 1:
                a("buffer_store_dwordx4 v[8:11], v1, s[56:59], s4 offen sc1")
                a("buffer_store_dwordx4 v[8:11], v1, s[56:59], s4 offen offset:1024 sc1")
            if args.fuse >= 3:
                if args.fuse == 4:
                    a("s_cmp_lg_u32 s75, 3")
                else:
                    a("s_cmp_lt_u32 s2, 192")
                a("s_cbranch_scc1 LM_pz1")
                a("v_lshrrev_b32 v12, 4, v0")
                a("v_lshlrev_b32 v12, 11, v12")
                a("v_and_b32 v13, 7, v0")
                a("v_lshl_add_u32 v12, v13, 5, v12")
                a("v_bfe_u32 v13, v0, 3, 1")
                a("v_lshl_add_u32 v12, v13, 4, v12")
                if args.fuse == 4:
                    a("s_lshl_b32 s4, s76, 13")
                    a("s_lshl_b32 s5, s77, 8")
                else:
                    a("s_lshl_b32 s4, s15, 13")
                    a("s_bfe_u32 s5, s2, 0x30003")
                    a("s_lshl_b32 s5, s5, 8")
                a("s_add_u32 s4, s4, s5")
                a(f"s_add_u32 s4, s4, {WS_F}")
                a("buffer_store_dwordx4 v[8:11], v12, s[56:59], s4 offen sc1")
                a("s_branch LM_pz2")
                a.label("LM_pz1")
                a("s_lshl_b32 s4, s7, 5")
                a("s_add_u32 s4, s4, s6")
                a(f"s_cmp_ge_u32 s4, {NFFN}")
                a("s_cbranch_scc1 LM_pz2")
                a("s_cmp_lg_u32 s8, 0")
                a("s_cbranch_scc1 LM_pz2")
                a("v_lshrrev_b32 v12, 4, v0")
                a("v_mul_u32_u24 v12, 2752, v12")
                a("v_and_b32 v13, 1, v0")
                a("v_lshl_add_u32 v12, v13, 4, v12")
                a("s_lshl_b32 s4, s4, 5")
                a(f"s_add_u32 s4, s4, {WSH}")
                a("s_mov_b32 s64, 0x00030003")
                a("s_mov_b32 s65, 0x00030003")
                a("s_mov_b64 exec, s[64:65]")
                a("buffer_store_dwordx4 v[8:11], v12, s[56:59], s4 offen sc1")
                a.label("LM_pz2")
            a("s_mov_b64 exec, 1")
            if not args.dbg & 1 and args.fuse < 3:
                a("buffer_store_dwordx2 v[8:9], v7, s[56:59], s5 offen sc1")
            a("v_mov_b32 v12, 1")
            a("s_lshl_b32 s4, s15, 5")
            a("s_waitcnt vmcnt(0)")
            a(f"ds_add_u32 v6, v12 offset:{C_BAR + 4 - C_LANDED}")
            if args.fuse >= 3:
                a(f"ds_write_b32 v6, v12 offset:{C_BAR + 8 - C_LANDED}")
            a("buffer_atomic_add v12, v7, s[52:55], s4 offen offset:8")
        if G:
            a("s_cmp_lg_u32 s12, 0")
            a("s_cbranch_scc1 LM_loop")
            a("s_lshl_b32 s4, s4, 5")
            a("v_mov_b32 v8, s4")
            a("buffer_store_dword v7, v7, s[60:63], 0 offen offset:128")
            a("buffer_store_dword v8, v7, s[56:59], s15 offen sc1")
        a.label("LM_loop")
        a(f"s_sleep {args.mon}")
        a("ds_read_b32 v4, v6")
        a("s_memrealtime s[66:67]")
        a("s_waitcnt lgkmcnt(0)")
        a("v_readfirstlane_b32 s14, v4")
        a("s_cmp_ge_u32 s14, s11")
        a("s_cbranch_scc1 LM_last")
        a("s_sub_u32 s4, s14, s10")
        a("s_lshl_b32 s4, s4, 10")
        a(f"s_mul_i32 s5, s66, {RATE}")
        a("s_sub_u32 s13, s4, s5")
        a("v_mov_b32 v4, s13")
        a("buffer_store_dword v4, v7, s[60:63], s12 offen")
        a("s_cmp_lt_u32 s14, 8")
        a("s_cbranch_scc1 LM_loop")
        a("s_mov_b64 exec, -1")
        a(f"buffer_load_dword v8, v5, s[60:63], 0 offen {args.monld}")
        if G:
            a("s_cmp_lg_u32 s12, 0")
            a("s_cbranch_scc1 LM_nl1")
            a("buffer_load_dword v9, v5, s[56:59], 0 offen sc1")
            a.label("LM_nl1")
        a("s_lshl_b32 s13, s13, 5")
        a("s_waitcnt vmcnt(0)")
        for r in (1, 2, 4, 8):
            a(f"v_add_u32_dpp v8, v8, v8 row_ror:{r} row_mask:0xf bank_mask:0xf")
            if G:
                a(f"v_add_u32_dpp v9, v9, v9 row_ror:{r} row_mask:0xf bank_mask:0xf")
        a("v_readlane_b32 s4, v8, 0")
        a("v_readlane_b32 s5, v8, 16")
        if G:
            a("v_readlane_b32 s65, v8, 32")
            a("v_readlane_b32 s66, v9, 0")
        a("s_mov_b64 exec, 1")
        a("s_add_u32 s4, s4, s5")
        a("s_sub_u32 s13, s4, s13")
        if G:
            a("s_cmp_lg_u32 s12, 0")
            a("s_cbranch_scc1 LM_nl2")
            a("v_mov_b32 v4, s4")
            a("buffer_store_dword v4, v7, s[56:59], s15 offen sc1")
            a("s_lshl_b32 s5, s4, 3")
            a("s_sub_u32 s65, s66, s5")
            a("s_ashr_i32 s65, s65, 3")
            a("v_mov_b32 v4, s65")
            a("buffer_store_dword v4, v7, s[60:63], 0 offen offset:128")
            a.label("LM_nl2")
            a(f"s_min_i32 s65, s65, {int(32768*G)}")
            a(f"s_max_i32 s65, s65, {-int(32768*G)}")
            a("s_add_u32 s13, s13, s65")
        a("s_mov_b32 s5, 0")
        for k, th in enumerate(TH):
            code = k + 1
            if LV[code] < LV[0]:
                a(f"s_cmp_lt_i32 s13, {int(round(th*32768))}")
            else:
                a(f"s_cmp_gt_i32 s13, {int(round(th*32768))}")
            a(f"s_cselect_b32 s5, {code}, s5")
        a("v_mov_b32 v4, s5")
        a(f"ds_write_b32 v6, v4 offset:{C_DEPTH - C_LANDED}")
        if args.ts:
            for k in range(len(LV)):
                a(f"s_cmp_eq_u32 s5, {k}")
                a(f"s_addc_u32 s{84+k}, s{84+k}, 0")
        a("s_branch LM_loop")
        a.label("LM_last")
        if args.warmfin:
            a(f"s_cmp_ge_u32 s12, {4*args.warmfin}")
            a("s_cbranch_scc1 LM_nowarm")
            a("s_mov_b64 exec, -1")
            a("s_getpc_b64 s[64:65]")
            a.label("LM_pc")
            a("s_add_u32 s64, s64, fin_kernel-LM_pc")
            a("s_addc_u32 s65, s65, 0")
            a("s_mov_b32 s66, LB_end-fin_kernel")
            a("s_mov_b32 s67, 0x20000")
            a("v_lshlrev_b32 v2, 6, v0")
            a("buffer_load_dword v10, v2, s[64:67], 0 offen")
            a("s_mov_b32 s56, s16")
            a("s_mov_b32 s57, s17")
            a("s_mov_b32 s58, 4096")
            a("buffer_load_dword v11, v2, s[56:59], 0 offen")
            a("s_mov_b32 s52, s34")
            a("s_mov_b32 s53, s35")
            a("s_mov_b32 s54, 1024")
            a("buffer_load_dword v12, v2, s[52:55], 0 offen")
            a("s_mov_b32 s44, s36")
            a("s_mov_b32 s45, s37")
            a("s_mov_b32 s46, 4096")
            a("buffer_load_dword v13, v2, s[44:47], 0 offen")
            a("s_mov_b64 exec, 1")
            a.label("LM_nowarm")
        if args.ts:
            a("s_lshl_b32 s4, s2, 5")
            a(f"s_add_u32 s60, s40, {(4<<20) + 163840}")
            a("s_addc_u32 s61, s41, 0")
            a("s_mov_b32 s62, 0x100000")
            a("v_mov_b32 v2, 0")
            for k in range(6):
                a(f"v_mov_b32 v4, s{84+k}")
                a(f"buffer_store_dword v4, v2, s[60:63], s4 offen offset:{4*k}")
        a("s_endpgm")

    a.label("LA_ffn")
    if args.tk == 2:
        sync("f")
    if args.fuse == 4:
        a("s_cmp_eq_u32 s75, 2")
        a("s_cbranch_scc1 LA_red")
        a("s_cmp_eq_u32 s75, 3")
        a("s_cbranch_scc1 LA_st2")
    elif args.fuse:
        a("s_cmp_ge_u32 s2, 192")
        a("s_cbranch_scc1 LA_red")
    if args.exp:
        ex = dict(kv.split("=") for kv in args.exp.split(","))
        a("s_cmp_lt_u32 s2, 192")
        a("s_cbranch_scc1 LX_skip")
        if ex.get("mem", "dbg") == "dbg":
            a("s_mov_b32 s48, s38")
            a("s_mov_b32 s49, s39")
        else:
            a(f"s_add_u32 s48, s40, {3<<20}")
            a("s_addc_u32 s49, s41, 0")
        a("s_movk_i32 s50, 256")
        a(f"v_mov_b32 v16, {C_LANDED}")
        a("v_mov_b32 v6, 0")
        a("v_mov_b32 v8, 1")
        a(f"s_sub_u32 s10, s79, {ex.get('stop', 8)}")
        a("s_mov_b64 exec, 1")
        a.label("LX_w0")
        a("s_sleep 8")
        a("ds_read_b32 v17, v16")
        a("s_waitcnt lgkmcnt(0)")
        a("v_readfirstlane_b32 s4, v17")
        a(f"s_cmp_lt_u32 s4, {ex.get('start', 8)}")
        a("s_cbranch_scc1 LX_w0")
        if int(ex.get("glob", 0)):
            a("s_sub_u32 s5, s2, 192")
            a(f"s_cmp_ge_u32 s5, {ex.get('ng', 8)}")
            a("s_cbranch_scc1 LA_end")
            a("s_movk_i32 s50, 4096")
            a("s_and_b32 s5, s5, 7")
            a(f"s_lshl_b32 s5, s5, {ex.get('gsh', 8)}")
            a(f"v_lshlrev_b32 v9, {ex.get('gsh', 8)}, v0")
            a.label("LX_g")
            a("s_mov_b64 exec, 1")
            a("buffer_store_dword v8, v6, s[48:51], s5 offen sc1")
            a("s_mov_b64 exec, 0xff")
            a("buffer_load_dword v7, v9, s[48:51], 0 offen sc1")
            a("ds_read_b32 v17, v16")
            a("s_waitcnt vmcnt(0) lgkmcnt(0)")
            a(f"s_sleep {ex.get('ps', 32)}")
            a("v_readfirstlane_b32 s4, v17")
            a("s_cmp_lt_u32 s4, s10")
            a("s_cbranch_scc1 LX_g")
            a("s_endpgm")
        nwr = int(ex.get("nwr", 0))
        a("s_sub_u32 s5, s2, 192")
        a(f"s_cmp_lt_u32 s5, {nwr}")
        a("s_cbranch_scc1 LX_wr")
        if int(ex.get("poll", 1)):
            a.label("LX_p")
            a(f"buffer_load_dword v7, v6, s[48:51], 0 offen offset:{ex.get('poff', 16)} {ex.get('pol', 'sc1')}")
            a("ds_read_b32 v17, v16")
            a("s_waitcnt vmcnt(0) lgkmcnt(0)")
            a(f"s_sleep {ex.get('ps', 32)}")
            a("v_readfirstlane_b32 s4, v17")
            a("s_cmp_lt_u32 s4, s10")
            a("s_cbranch_scc1 LX_p")
        a("s_endpgm")
        a.label("LX_wr")
        if ex.get("wk", "atom") == "atom":
            a(f"buffer_atomic_add v8, v6, s[48:51], 0 offen offset:{ex.get('woff', 16)}")
        else:
            a(f"buffer_store_dword v8, v6, s[48:51], 0 offen offset:{ex.get('woff', 16)} sc1")
        a("ds_read_b32 v17, v16")
        a("s_waitcnt vmcnt(0) lgkmcnt(0)")
        a(f"s_sleep {ex.get('ws', 127)}")
        a("v_readfirstlane_b32 s4, v17")
        a("s_cmp_lt_u32 s4, s10")
        a("s_cbranch_scc1 LX_wr")
        a("s_endpgm")
        a.label("LX_skip")
    a("s_mov_b32 s6, s5")
    a(f"s_cmp_ge_u32 s6, {NFFN}")
    a("s_cbranch_scc1 LA_end")
    a("s_cmp_lg_u32 s8, 0")
    a("s_cbranch_scc1 LA_end")
    if args.ffn_wait:
        a(f"v_mov_b32 v4, {C_DONE}")
        a.label("LF_wait")
        a("s_sleep 8")
        a("ds_read_b32 v5, v4")
        a("s_waitcnt lgkmcnt(0)")
        a("v_readfirstlane_b32 s4, v5")
        a(f"s_cmp_lt_u32 s4, {args.ffn_wait}")
        a("s_cbranch_scc1 LF_wait")
    FB = 104
    FA = 40
    FX = 72
    FU = 80
    FG = 88
    FH = 96
    def Fr(i): return f"v[{FB+4*i}:{FB+4*i+3}]"
    a("v_lshrrev_b32 v20, 1, v0")
    a("v_and_b32 v21, 1, v0")
    a("s_movk_i32 s4, 2752")
    a("v_mul_lo_u32 v2, v20, s4")
    a("v_lshl_add_u32 v2, v21, 4, v2")
    a("v_lshlrev_b32 v3, 4, v20")
    a(f"v_add_u32 v3, {L_XT}, v3")
    a("s_mov_b32 s46, 1409024")
    a("s_mov_b32 s50, 1409024")
    a("s_mov_b32 s58, 4096")
    a(f"s_mov_b32 s62, {NFFN*8192}")
    a("s_lshl_b32 s10, s6, 5")
    a("s_mov_b32 s44, s28")
    a("s_mov_b32 s45, s29")
    a("s_mov_b32 s48, s30")
    a("s_mov_b32 s49, s31")
    a("s_mov_b32 s56, s16")
    a("s_mov_b32 s57, s17")
    a(f"s_add_u32 s60, s40, {WS_F}")
    a("s_addc_u32 s61, s41, 0")
    for b in range(4):
        a(f"buffer_load_dwordx4 v[{4+4*b}:{7+4*b}], v1, s[56:59], 0 offen offset:{1024*b}")
    FD = args.fd
    a("s_mov_b32 s11, s10")
    for i in range(FD):
        a(f"buffer_load_dwordx4 {Fr(i)}, v2, s[44:47], s11 offen{wnt}")
        a(f"s_add_u32 s11, s11, {32*2752}")
    a(f"s_waitcnt vmcnt({FD})")
    for e in range(8):
        for b in range(4):
            src = f"v{4+4*b+(e>>1)}"
            if e & 1:
                a(f"v_and_b32 v{FA+4*e+b}, s42, {src}")
            else:
                a(f"v_lshlrev_b32 v{FA+4*e+b}, 16, {src}")
    a("v_lshlrev_b32 v20, 7, v0")
    a(f"v_add_u32 v20, {L_XT}, v20")
    for e in range(8):
        a(f"ds_write_b128 v20, v[{FA+4*e}:{FA+4*e+3}] offset:{16*e}")
    a("s_waitcnt lgkmcnt(0)")
    a("s_mov_b32 s9, 0")
    a("v_mov_b32 v22, v2")
    a(f"s_mov_b32 s12, {32*2752}")
    a.label("LF_pass")
    for k in range(32):
        a(f"v_mov_b32 v{FA+k}, 0")
    a(f"ds_read_b128 v[{FX}:{FX+3}], v3")
    for i in range(16):
        xb = FX + 4 * (i & 1)
        if i < 15:
            nb = FX + 4 * ((i + 1) & 1)
            a(f"ds_read_b128 v[{nb}:{nb+3}], v3 offset:{512*(i+1)}")
        a(f"s_waitcnt vmcnt({FD-1})")
        for d in range(4):
            a(f"v_lshlrev_b32 v{FU+2*d}, 16, v{FB+4*i+d}")
            a(f"v_and_b32 v{FU+2*d+1}, s42, v{FB+4*i+d}")
        if i + FD < 16:
            a(f"buffer_load_dwordx4 {Fr(i+FD)}, v2, s[44:47], s11 offen{wnt}")
            a(f"s_add_u32 s11, s11, {32*2752}")
        else:
            if i + FD == 16:
                a("s_mov_b32 s11, s10")
            a(f"buffer_load_dwordx4 {Fr(i+FD-16)}, v22, s[48:51], s11 offen{wnt}")
            a("s_add_u32 s11, s11, s12")
        a(f"s_waitcnt lgkmcnt({1 if i < 15 else 0})")
        for b in range(4):
            for e in range(8):
                a(f"v_fmac_f32 v{FA+8*b+e}, v{xb+b}, v{FU+e}")
    for k in range(16):
        a(f"v_permlane32_swap_b32 v{FA+k}, v{FA+16+k}")
    for k in range(16):
        a(f"v_add_f32 v{FA+k}, v{FA+k}, v{FA+16+k}")
    for k in range(8):
        a(f"v_permlane16_swap_b32 v{FA+k}, v{FA+8+k}")
    for k in range(8):
        a(f"v_add_f32 v{FA+k}, v{FA+k}, v{FA+8+k}")
    for r in (2, 4, 8):
        for k in range(8):
            a(f"v_add_f32_dpp v{FA+k}, v{FA+k}, v{FA+k} row_ror:{r} row_mask:0xf bank_mask:0xf")
    for k in range(8):
        a(f"v_mov_b32 v{FG+k}, v{FH+k}")
        a(f"v_mov_b32 v{FH+k}, v{FA+k}")
    a("s_cmp_eq_u32 s9, 1")
    a("s_cbranch_scc1 LF_p2")
    a("s_mov_b32 s9, 1")
    a("s_mov_b32 s44, s48")
    a("s_mov_b32 s45, s49")
    a("s_mov_b32 s48, s32")
    a("s_mov_b32 s49, s33")
    if args.fuse >= 2:
        a("s_mov_b32 s50, 0")
    a("v_mov_b32 v22, v1")
    a("s_movk_i32 s12, 1024")
    a("s_lshl_b32 s10, s6, 14")
    a("s_branch LF_pass")
    a.label("LF_p2")
    a.nop(2)
    for k in range(8):
        g, u = f"v{FG+k}", f"v{FH+k}"
        round_bf16(a, g)
        round_bf16(a, u)
        a(f"v_mul_f32 {g}, s69, {g}")
        a(f"v_exp_f32 {g}, -{g}")
        a(f"v_add_f32 {g}, 1.0, {g}")
        a(f"v_rcp_f32 {g}, {g}")
        round_bf16(a, g)
        a(f"v_mul_f32 {u}, {g}, {u}")
        round_bf16(a, u)
    if args.fuse >= 2:
        for k in range(4):
            a(f"v_cvt_pk_bf16_f32 v{FA+k}, v{FH+2*k}, v{FH+2*k+1}")
        a("v_lshrrev_b32 v2, 4, v0")
        a("s_movk_i32 s4, 2752")
        a("v_mul_lo_u32 v2, v2, s4")
        a("v_and_b32 v3, 1, v0")
        a("v_lshl_add_u32 v2, v3, 4, v2")
        a("s_lshl_b32 s10, s6, 5")
        a(f"s_add_u32 s10, s10, {WSH - WS_F}")
        if args.fuse >= 3:
            a(f"v_mov_b32 v4, {C_BAR + 8}")
            a.label("LF_pz")
            a("ds_read_b32 v5, v4")
            a("s_waitcnt lgkmcnt(0)")
            a("v_readfirstlane_b32 s4, v5")
            a("s_cmp_eq_u32 s4, 0")
            a("s_cbranch_scc1 LF_pz")
        a("s_mov_b32 s4, 0x00030003")
        a("s_mov_b32 s5, 0x00030003")
        a("s_mov_b64 exec, s[4:5]")
        a(f"buffer_store_dwordx4 v[{FA}:{FA+3}], v2, s[60:63], s10 offen sc1")
    else:
        for k in range(32):
            a(f"v_mov_b32 v{FA+k}, 0")
        for f in range(16):
            for b in range(4):
                a(f"v_readlane_b32 s{80+b}, v{FH+(f&7)}, {16*b + (f >> 3)}")
            a(f"s_waitcnt vmcnt({min(FD-1, 15-f)})")
            for d in range(4):
                a(f"v_lshlrev_b32 v{FU+2*d}, 16, v{FB+4*f+d}")
                a(f"v_and_b32 v{FU+2*d+1}, s42, v{FB+4*f+d}")
            if f + FD < 16:
                a(f"buffer_load_dwordx4 {Fr(f+FD)}, v22, s[48:51], s11 offen{wnt}")
                a("s_add_u32 s11, s11, s12")
            for b in range(4):
                for e in range(8):
                    a(f"v_fmac_f32 v{FA+8*b+e}, s{80+b}, v{FU+e}")
        a(f"v_lshlrev_b32 v2, {4 if args.flin else 5}, v0")
        a("s_lshl_b32 s10, s6, 13")
        fsc = "" if args.dbg & 2 else ysc
        for b in range(4):
            a(f"buffer_store_dwordx4 v[{FA+8*b}:{FA+8*b+3}], v2, s[60:63], s10 offen offset:{2048*(b&1)}{fsc}")
            a(f"buffer_store_dwordx4 v[{FA+8*b+4}:{FA+8*b+7}], v2, s[60:63], s10 offen offset:{2048*(b&1)+(1024 if args.flin else 16)}{fsc}")
            if b == 1:
                a("s_add_u32 s10, s10, 4096")
    if args.fuse in (1, 2):
        a("s_mov_b32 s52, s38")
        a("s_mov_b32 s53, s39")
        a("s_movk_i32 s54, 256")
        a("s_and_b32 s4, s2, 7")
        a("s_lshl_b32 s4, s4, 5")
        a(f"v_mov_b32 v4, {1 if args.fuse == 2 else 0x10000}")
        a("v_mov_b32 v5, 0")
        a("s_mov_b64 exec, 1")
        a("s_waitcnt vmcnt(0)")
        if args.fuse == 2:
            a("buffer_atomic_add v4, v5, s[52:55], 0 offen offset:16")
        else:
            a("buffer_atomic_add v4, v5, s[52:55], s4 offen offset:8")
    stamp(5)
    a("s_branch LA_end2")
    if args.fuse:
        if args.fuse == 4:
            fuse4(a, args, C_LANDED, stamp, C_BAR + 8 - C_LANDED)
        else:
            reducer(a, args, C_LANDED, stamp, C_BAR + 8 - C_LANDED)
    a.label("LA_end")
    a("s_endpgm")

    if args.fuse:
        a.label("LB_end")
        a("s_endpgm")
    else:
        fin_kernel(a, args)
    if args.probe == 1:
        probe_kernel(a, args)

    for name, vg in (("attn_kernel", 168),) + (() if args.fuse else (("fin_kernel", 48),)) + ((("probe_kernel", 16),) if args.probe == 1 else ()):
        a.raw(f""".section .rodata,"a"
.p2align 6
.amdhsa_kernel {name}
  .amdhsa_next_free_vgpr {vg}
  .amdhsa_next_free_sgpr 100
  .amdhsa_accum_offset {vg}
  .amdhsa_group_segment_fixed_size 0
  .amdhsa_kernarg_size 104
  .amdhsa_user_sgpr_count 2
  .amdhsa_user_sgpr_kernarg_segment_ptr 1
  .amdhsa_system_sgpr_workgroup_id_x 1
.end_amdhsa_kernel""")
    return a.text()


def reducer(a, args, C_LANDED, stamp, C_PZ):
    Y0 = 40
    F0 = 72
    WT = 120
    AC = 8
    a.label("LA_red")
    a("s_sub_u32 s4, s2, 192")
    a("s_lshr_b32 s7, s4, 4")
    a("s_and_b32 s8, s4, 15")
    a("s_mov_b32 s44, s40")
    a("s_mov_b32 s45, s41")
    a(f"s_mov_b32 s46, {WS_F + NFFN*8192}")
    a("s_mov_b32 s48, s38")
    a("s_mov_b32 s49, s39")
    a("s_movk_i32 s50, 256")
    a("s_mov_b32 s52, s16")
    a("s_mov_b32 s53, s17")
    a("s_movk_i32 s54, 4096")
    a("s_mov_b32 s56, s34")
    a("s_mov_b32 s57, s35")
    a("s_movk_i32 s58, 1024")
    a("s_mov_b32 s60, s36")
    a("s_mov_b32 s61, s37")
    a("s_movk_i32 s62, 4096")
    a("v_lshrrev_b32 v20, 3, v0")
    a("v_and_b32 v21, 7, v0")
    a("v_lshlrev_b32 v3, 11, v20")
    a("v_lshl_add_u32 v3, v21, 4, v3")
    a("v_lshlrev_b32 v5, 13, v20")
    if args.flin:
        a("v_lshrrev_b32 v22, 1, v21")
        a("v_lshl_add_u32 v5, v22, 4, v5")
        a("v_and_b32 v22, 1, v21")
        a("v_lshl_add_u32 v5, v22, 10, v5")
    else:
        a("v_lshl_add_u32 v5, v21, 4, v5")
    a("v_lshlrev_b32 v6, 2, v0")
    a("v_lshlrev_b32 v7, 3, v0")
    a("v_lshlrev_b32 v2, 2, v20")
    a("v_lshrrev_b32 v22, 4, v0")
    a("v_and_b32 v23, 1, v22")
    a("v_lshlrev_b32 v23, 1, v23")
    a("v_lshrrev_b32 v22, 1, v22")
    a("v_or_b32 v23, v23, v22")
    a("v_lshl_add_u32 v23, v21, 2, v23")
    a("v_lshlrev_b32 v4, 1, v23")
    a(f"v_mov_b32 v16, {C_LANDED}")
    a("s_lshl_b32 s4, s7, 17")
    a("s_lshl_b32 s5, s8, 7")
    a("s_add_u32 s70, s4, s5")
    for i in range(1, 8):
        a(f"s_add_u32 s{70+i}, s{69+i}, 16384")
    a("s_lshl_b32 s11, s7, 9")
    a(f"s_add_u32 s11, s11, {WS_STATS}")
    a("s_lshl_b32 s12, s7, 11")
    if args.flin:
        a("s_lshr_b32 s5, s5, 1")
    a("s_add_u32 s12, s12, s5")
    a(f"s_add_u32 s12, s12, {WS_F}")
    a("s_lshl_b32 s15, s7, 10")
    a("s_lshl_b32 s5, s8, 6")
    a("s_add_u32 s13, s15, s5")
    a("v_mov_b32 v18, 0")

    def count_wait(tag, mask, val, slp):
        a(f"s_mov_b32 s9, {args.red_tmo}")
        a(f"s_mov_b32 s16, {mask & 0xffffffff:#x}")
        a(f"s_mov_b32 s17, {mask >> 32:#x}")
        a("v_mov_b32 v18, 0")
        a.label(f"LR_c{tag}")
        a("s_mov_b64 exec, s[16:17]")
        a("buffer_load_dword v18, v6, s[48:51], 0 offen sc1")
        a("s_mov_b64 exec, -1")
        a("s_waitcnt vmcnt(0)")
        a("v_add_u32_dpp v19, v18, v18 row_ror:8 row_mask:0xf bank_mask:0xf")
        for rr in (4, 2, 1):
            a(f"v_add_u32_dpp v19, v19, v19 row_ror:{rr} row_mask:0xf bank_mask:0xf")
        for g in range(4):
            a(f"v_readlane_b32 s{20+g}, v19, {16*g}")
        a("s_add_u32 s20, s20, s21")
        a("s_add_u32 s22, s22, s23")
        a("s_add_u32 s20, s20, s22")
        a(f"s_cmp_eq_u32 s20, {val}")
        a(f"s_cbranch_scc1 LR_cok{tag}")
        a(f"s_sleep {slp}")
        a("s_sub_u32 s9, s9, 1")
        a("s_cmp_lg_u32 s9, 0")
        a(f"s_cbranch_scc1 LR_c{tag}")
        a.label(f"LR_cok{tag}")

    if args.fuse >= 2:
        WD, HH, DA, PT = 24, 72, 120, 152
        a("s_sub_u32 s4, s2, 192")
        if args.fuse == 3:
            a("s_and_b32 s14, s4, 7")
            a("s_lshr_b32 s5, s4, 3")
        else:
            a("s_lshr_b32 s14, s4, 3")
            a("s_and_b32 s5, s4, 7")
        a("s_mul_i32 s64, s14, 196608")
        a("s_lshl_b32 s4, s5, 7")
        a("s_add_u32 s64, s64, s4")
        a("s_mul_i32 s65, s14, 384")
        a("s_lshl_b32 s66, s14, 13")
        a("s_lshl_b32 s4, s5, 8")
        a("s_add_u32 s66, s66, s4")
        a(f"s_add_u32 s66, s66, {WS_F}")
        a("s_mov_b32 s24, s32")
        a("s_mov_b32 s25, s33")
        a("s_mov_b32 s26, 1409024")
        a("s_mov_b32 s27, 0x20000")
        a(f"s_add_u32 s28, s40, {WS_H}")
        a("s_addc_u32 s29, s41, 0")
        a("s_movk_i32 s30, 11008")
        a("s_mov_b32 s31, 0x20000")
        a("s_mov_b32 s80, 0x05040100")
        a("s_mov_b32 s81, 0x07060302")
        a("v_mul_u32_u24 v160, 24576, v20")
        a("v_lshl_add_u32 v160, v21, 4, v160")
        a("v_mul_u32_u24 v161, 48, v20")
        a("v_lshrrev_b32 v22, 4, v0")
        a("v_lshlrev_b32 v162, 11, v22")
        a("v_lshl_add_u32 v162, v21, 5, v162")
        a("v_bfe_u32 v22, v0, 3, 1")
        a("v_lshl_add_u32 v162, v22, 4, v162")
        a.label("LR_w0")
        a("s_sleep 32")
        a("ds_read_b32 v17, v16")
        a("s_waitcnt lgkmcnt(0)")
        a("v_readfirstlane_b32 s4, v17")
        a(f"s_cmp_lt_u32 s4, {args.red_t0}")
        a("s_cbranch_scc1 LR_w0")

        def wload(i):
            if i % 4 == 0 and i:
                a("s_add_u32 s64, s64, 4096")
            sl = WD + 4 * (i % 12)
            a(f"buffer_load_dwordx4 v[{sl}:{sl+3}], v160, s[24:27], s64 offen offset:{1024*(i&3)}")
        for i in range(12):
            wload(i)
        if args.fuse == 3:
            count_wait("z", 0x0404040404040404, 256, args.red_slp)
            a(f"s_mov_b32 s9, {args.red_tmo}")
            a("s_add_u32 s67, s65, 5504")
            a.label("LR_h")
            for b in range(4):
                for t in range(3):
                    a(f"buffer_load_dwordx4 v[{HH+12*b+4*t}:{HH+12*b+4*t+3}], v161, s[28:31], s{65 if b < 2 else 67} offen offset:{2752*(b&1)+16*t} sc1")
            a("s_sub_u32 s9, s9, 1")
            a("s_waitcnt vmcnt(0)")
            a(f"v_max3_u32 v22, v{HH}, v{HH+1}, v{HH+2}")
            a(f"v_max3_u32 v23, v{HH+3}, v{HH+4}, v{HH+5}")
            for k in range(6, 46, 4):
                a(f"v_max3_u32 v22, v22, v{HH+k}, v{HH+k+1}")
                a(f"v_max3_u32 v23, v23, v{HH+k+2}, v{HH+k+3}")
            a(f"v_max3_u32 v22, v22, v{HH+46}, v{HH+47}")
            a("v_max_u32 v22, v22, v23")
            a("v_cmp_eq_u32 vcc, -1, v22")
            a("s_cmp_eq_u32 s9, 0")
            a("s_cbranch_scc1 LR_hok")
            a("s_cbranch_vccz LR_hok")
            a(f"s_sleep {args.red_hs}")
            a("s_branch LR_h")
            a.label("LR_hok")
        else:
            count_wait("h", 1 << 4, NFFN, args.red_slp)
            for b in range(4):
                for t in range(3):
                    a(f"buffer_load_dwordx4 v[{HH+12*b+4*t}:{HH+12*b+4*t+3}], v161, s[28:31], s65 offen offset:{2752*(b&1)+16*t} sc1")
                if b == 1:
                    a("s_add_u32 s65, s65, 5504")
            a("s_waitcnt vmcnt(0)")
        for p in range(12):
            if p >= 6:
                a(f"s_waitcnt vmcnt({22 - 2*p})")
            A_, B_ = WD + 4 * ((2 * p) % 12), WD + 4 * ((2 * p + 1) % 12)
            for d in range(4):
                a(f"v_perm_b32 v{PT+2*d}, v{B_+d}, v{A_+d}, s80")
                a(f"v_perm_b32 v{PT+2*d+1}, v{B_+d}, v{A_+d}, s81")
            if p < 6:
                wload(2 * p + 12)
                wload(2 * p + 13)
            for b in range(4):
                for e in range(8):
                    c = "0" if p == 0 else f"v{DA+8*b+e}"
                    a(f"v_dot2_f32_bf16 v{DA+8*b+e}, v{PT+e}, v{HH+12*b+p}, {c}")
        for k in range(16):
            a(f"v_permlane32_swap_b32 v{DA+k}, v{DA+16+k}")
        for k in range(16):
            a(f"v_add_f32 v{DA+k}, v{DA+k}, v{DA+16+k}")
        for k in range(8):
            a(f"v_permlane16_swap_b32 v{DA+k}, v{DA+8+k}")
        for k in range(8):
            a(f"v_add_f32 v{DA+k}, v{DA+k}, v{DA+8+k}")
        for k in range(4):
            a(f"v_add_f32_dpp v{DA+8+k}, v{DA+k}, v{DA+k} row_ror:8 row_mask:0xf bank_mask:0x3")
            a(f"v_add_f32_dpp v{DA+8+k}, v{DA+4+k}, v{DA+4+k} row_ror:8 row_mask:0xf bank_mask:0xc")
        if args.fuse == 3:
            a.label("LR_pz")
            a(f"ds_read_b32 v17, v16 offset:{C_PZ}")
            a("s_waitcnt lgkmcnt(0)")
            a("v_readfirstlane_b32 s4, v17")
            a("s_cmp_eq_u32 s4, 0")
            a("s_cbranch_scc1 LR_pz")
            a(f"buffer_store_dwordx4 v[{DA+8}:{DA+11}], v162, s[44:47], s66 offen sc1")
        else:
            a(f"buffer_store_dwordx4 v[{DA+8}:{DA+11}], v162, s[44:47], s66 offen sc1")
            a("v_mov_b32 v22, 0x10000")
            a("v_mov_b32 v23, 0")
            a("s_mov_b64 exec, 1")
            a("s_waitcnt vmcnt(0)")
            a("buffer_atomic_add v22, v23, s[48:51], 0 offen offset:144")
            a("s_mov_b64 exec, -1")
    a(f"s_sub_u32 s10, s79, {args.red_t1}")
    a.label("LR_w1")
    a("s_sleep 32")
    a("ds_read_b32 v17, v16")
    a("s_waitcnt lgkmcnt(0)")
    a("v_readfirstlane_b32 s4, v17")
    a("s_cmp_lt_u32 s4, s10")
    a("s_cbranch_scc1 LR_w1")
    stamp(1)
    a("buffer_load_dwordx4 v[24:27], v1, s[52:55], s15 offen")
    a("buffer_load_dwordx4 v[28:31], v1, s[56:59], 0 offen")
    NF = 1 if args.fuse >= 2 else 11
    if args.fuse == 3:
        a(f"s_mov_b32 s9, {args.red_tmo}")
        a.label("LR_s")
        a(f"buffer_load_dwordx4 v[{F0}:{F0+3}], v5, s[44:47], s12 offen sc1")
        a("s_sub_u32 s9, s9, 1")
        a("s_waitcnt vmcnt(0)")
        a(f"v_max3_u32 v22, v{F0}, v{F0+1}, v{F0+2}")
        a(f"v_max_u32 v22, v22, v{F0+3}")
        a("v_cmp_eq_u32 vcc, -1, v22")
        a("s_cmp_eq_u32 s9, 0")
        a("s_cbranch_scc1 LR_sok")
        a("s_cbranch_vccz LR_sok")
        a(f"s_sleep {args.red_hs}")
        a("s_branch LR_s")
        a.label("LR_sok")
    else:
        count_wait("a", 0x0404040404040404 | ((1 << 36) if args.fuse == 2 else 0), 256 + ((64 if args.fuse == 2 else NFFN) << 16), args.red_slp)
        for i in range(0 if args.dbg & 4 else NF):
            a(f"buffer_load_dwordx4 v[{F0+4*i}:{F0+4*i+3}], v5, s[44:47], s12 offen sc1")
            if i < NF - 1:
                a("s_add_u32 s12, s12, 65536")
    for d in range(4):
        a(f"v_lshlrev_b32 v{32+2*d}, 16, v{24+d}")
        a(f"v_and_b32 v{33+2*d}, s42, v{24+d}")
        a(f"v_lshlrev_b32 v{AC+2*d}, 16, v{28+d}")
        a(f"v_and_b32 v{AC+2*d+1}, s42, v{28+d}")
    for e in range(8):
        a(f"v_mul_f32 v{32+e}, v{32+e}, v{AC+e}")
    for e in range(8):
        round_bf16(a, f"v{32+e}")
    for st in (1, 2, 4):
        for e in range(0, 8, 2 * st):
            a(f"v_add_f32 v{32+e}, v{32+e}, v{32+e+st}")
    for r in (1, 2, 4, 8):
        a(f"v_add_f32_dpp v32, v32, v32 row_ror:{r} row_mask:0xf bank_mask:0xf")
    for g in range(4):
        a(f"v_readlane_b32 s{20+g}, v32, {16*g}")
    a("v_mov_b32 v32, s20")
    a("v_add_f32 v32, s21, v32")
    a("v_add_f32 v32, s22, v32")
    a("v_add_f32 v32, s23, v32")
    round_bf16(a, "v32")
    a("v_mul_f32 v32, s69, v32")
    a("v_exp_f32 v32, -v32")
    a("v_add_f32 v32, 1.0, v32")
    a("v_rcp_f32 v32, v32")
    round_bf16(a, "v32")
    a("v_sub_f32 v33, 1.0, v32")
    round_bf16(a, "v33")

    def red4(b):
        a(f"v_permlane32_swap_b32 v{b}, v{b+1}")
        a(f"v_permlane32_swap_b32 v{b+2}, v{b+3}")
        a(f"v_add_f32 v{b}, v{b}, v{b+1}")
        a(f"v_add_f32 v{b+2}, v{b+2}, v{b+3}")
        a(f"v_permlane16_swap_b32 v{b}, v{b+2}")
        a(f"v_add_f32 v{b}, v{b}, v{b+2}")
        a(f"v_add_f32_dpp v{b}, v{b}, v{b} row_ror:8 row_mask:0xf bank_mask:0xf")

    for k in range(32):
        a(f"v_mov_b32 v{Y0+k}, -1")
    a("v_mov_b32 v36, -1")
    a("v_mov_b32 v37, -1")
    for i in range(8):
        a(f"s_mov_b64 s[{16+2*i}:{17+2*i}], -1")
    a("s_mov_b64 s[32:33], -1")
    a("s_mov_b32 s36, 0x00ff00ff")
    a("s_mov_b32 s37, 0x00ff00ff")
    a("s_waitcnt vmcnt(0)")
    for st in (1, 2, 4, 8):
        for i in range(0, NF, 2 * st):
            if i + st < NF:
                for c in range(4):
                    a(f"v_add_f32 v{F0+4*i+c}, v{F0+4*i+c}, v{F0+4*(i+st)+c}")
    red4(F0)
    round_bf16(a, f"v{F0}")
    a(f"v_mul_f32 v33, v33, v{F0}")
    round_bf16(a, "v33")
    stamp(2)
    a(f"s_sub_u32 s10, s79, {args.red_t2}")
    a.label("LR_w2")
    a("s_sleep 4")
    a("ds_read_b32 v17, v16")
    a("s_waitcnt lgkmcnt(0)")
    a("v_readfirstlane_b32 s4, v17")
    a("s_cmp_lt_u32 s4, s10")
    a("s_cbranch_scc1 LR_w2")
    a(f"s_mov_b32 s9, {args.red_tmo}")
    a(f"s_setprio {args.red_prio}")
    stamp(3)
    if args.fuse == 3:
        a("s_mov_b32 s80, 0x0c0c0400")
        a("s_mov_b32 s81, 0x04000c0c")
        a.label("LR_p")
        for i in range(8):
            a(f"s_or_b64 exec, s[{16+2*i}:{17+2*i}], 1")
            a(f"buffer_load_dwordx4 v[{Y0+4*i}:{Y0+4*i+3}], v3, s[44:47], s{70+i} offen sc1")
        a("s_mov_b64 exec, -1")
        a("s_sub_u32 s9, s9, 1")
        a("s_mov_b64 s[34:35], 0")
        for i0_ in range(0, 8, 2):
            pr = (i0_, i0_ + 1)
            a(f"s_waitcnt vmcnt({6-i0_})")
            for i in pr:
                y = Y0 + 4 * i
                a(f"v_perm_b32 v{WT+i}, v{y+1}, v{y}, s80")
                a(f"v_perm_b32 v{WT+8+i}, v{y+3}, v{y+2}, s81")
            for i in pr:
                a(f"v_or_b32 v{WT+i}, v{WT+i}, v{WT+8+i}")
            for i in pr:
                y = Y0 + 4 * i
                a(f"v_max3_u32 v{38+(i&1)}, v{y}, v{y+1}, v{y+2}")
            for i in pr:
                a(f"v_sub_f32_dpp v{WT+8+i}, v{WT+i}, v{WT+i} row_ror:8 row_mask:0xf bank_mask:0xf")
            for i in pr:
                y = Y0 + 4 * i
                a(f"v_max_u32 v{38+(i&1)}, v{38+(i&1)}, v{y+3}")
            for i in pr:
                a(f"v_exp_f32 v{WT+8+i}, v{WT+8+i}")
            for i in pr:
                a(f"v_cmp_eq_u32 s[{16+2*i}:{17+2*i}], -1, v{38+(i&1)}")
            for i in pr:
                a(f"v_add_f32 v{WT+8+i}, 1.0, v{WT+8+i}")
            for i in pr:
                a(f"v_rcp_f32 v{WT+8+i}, v{WT+8+i}")
            for i in pr:
                a(f"s_or_b64 s[34:35], s[34:35], s[{16+2*i}:{17+2*i}]")
            for i in pr:
                y = Y0 + 4 * i
                o = AC + 4 * (i & 1)
                for c in range(4):
                    if i < 2:
                        a(f"v_mul_f32 v{o+c}, v{WT+8+i}, v{y+c}")
                    else:
                        a(f"v_fmac_f32 v{o+c}, v{WT+8+i}, v{y+c}")
    else:
        if args.red_a:
            a.label("LR_a")
            a("buffer_load_dwordx2 v[36:37], v7, s[44:47], s11 offen sc1")
            a("s_sub_u32 s9, s9, 1")
            a("s_waitcnt vmcnt(0)")
            a("v_max_u32 v38, v36, v37")
            a("v_cmp_eq_u32 s[32:33], -1, v38")
            a("s_cmp_eq_u32 s9, 0")
            a("s_cbranch_scc1 LR_ae")
            a("s_bcnt1_i32_b64 s4, s[32:33]")
            a(f"s_cmp_gt_u32 s4, {64 - args.red_a}")
            a("s_cbranch_scc1 LR_a")
            a.label("LR_ae")
            a(f"s_mov_b32 s9, {args.red_tmo}")
        stamp(4)
        a.label("LR_p")
        a("s_or_b64 exec, s[32:33], 1")
        a("buffer_load_dwordx2 v[36:37], v7, s[44:47], s11 offen sc1")
        for i in range(8):
            a(f"s_or_b64 exec, s[{16+2*i}:{17+2*i}], 1")
            a(f"buffer_load_dwordx4 v[{Y0+4*i}:{Y0+4*i+3}], v3, s[44:47], s{70+i} offen sc1")
        a("s_mov_b64 exec, -1")
        a("s_sub_u32 s9, s9, 1")
        a("s_waitcnt vmcnt(8)")
        a("v_max_u32 v38, v36, v37")
        a("v_mov_b32_dpp v39, v36 quad_perm:[1,0,3,2] row_mask:0xf bank_mask:0xf")
        a("v_cmp_eq_u32 s[32:33], -1, v38")
        a("v_max_f32 v39, v36, v39")
        a("v_sub_f32 v38, v36, v39")
        a("v_mul_f32 v38, s69, v38")
        a("v_exp_f32 v38, v38")
        a("v_mul_f32 v38, v38, v37")
        a("v_add_f32_dpp v39, v38, v38 quad_perm:[1,0,3,2] row_mask:0xf bank_mask:0xf")
        a("v_rcp_f32 v39, v39")
        a("v_mul_f32 v38, v38, v39")
        for i in range(8):
            a(f"ds_bpermute_b32 v{WT+i}, v2, v38 offset:{32*i}")
        a("s_mov_b64 s[34:35], s[32:33]")
        for i in range(8):
            y = Y0 + 4 * i
            a(f"s_waitcnt vmcnt({7-i})")
            a(f"v_max3_u32 v38, v{y}, v{y+1}, v{y+2}")
            a(f"v_max_u32 v38, v38, v{y+3}")
            a(f"v_cmp_eq_u32 s[{16+2*i}:{17+2*i}], -1, v38")
            if i == 0:
                a("s_waitcnt lgkmcnt(0)")
            o = AC + 4 * (i & 1)
            for c in range(4):
                if i < 2:
                    a(f"v_mul_f32 v{o+c}, v{WT+i}, v{y+c}")
                else:
                    a(f"v_fmac_f32 v{o+c}, v{WT+i}, v{y+c}")
            a(f"s_or_b64 s[34:35], s[34:35], s[{16+2*i}:{17+2*i}]")
    for c in range(4):
        a(f"v_add_f32 v{AC+c}, v{AC+c}, v{AC+4+c}")
    a("s_cmp_eq_u32 s9, 0")
    a("s_cselect_b64 s[34:35], 0, s[34:35]")
    red4(AC)
    a("s_cmp_eq_u64 s[34:35], 0")
    a("s_cselect_b64 s[38:39], s[36:37], 0")
    round_bf16(a, f"v{AC}")
    a(f"v_mul_f32 v{AC}, v32, v{AC}")
    round_bf16(a, f"v{AC}")
    a(f"v_add_f32 v{AC}, v{AC}, v33")
    a(f"v_cvt_pk_bf16_f32 v{AC}, v{AC}, v{AC}")
    a("s_mov_b64 exec, s[38:39]")
    a(f"buffer_store_short v{AC}, v4, s[60:63], s13 offen")
    a("s_cbranch_scc0 LR_p")
    a("s_mov_b64 exec, -1")
    stamp(5)
    a("s_branch LA_end2")


def fuse4(a, args, C_LANDED, stamp, C_PZ):
    def lds_wait(tag, sreg_or_imm, slp):
        a.label(f"LR_w{tag}")
        a(f"s_sleep {slp}")
        a("ds_read_b32 v17, v16")
        a("s_waitcnt lgkmcnt(0)")
        a("v_readfirstlane_b32 s4, v17")
        a(f"s_cmp_lt_u32 s4, {sreg_or_imm}")
        a(f"s_cbranch_scc1 LR_w{tag}")

    def marked_wait(tag):
        a("s_mov_b32 s48, s38")
        a("s_mov_b32 s49, s39")
        a("s_movk_i32 s50, 256")
        a("v_lshlrev_b32 v6, 2, v0")
        a(f"s_mov_b32 s9, {args.red_tmo}")
        a("s_mov_b32 s14, 0x04040404")
        a("s_mov_b32 s15, 0x04040404")
        a("v_mov_b32 v18, 0")
        a.label(f"LR_c{tag}")
        a("s_mov_b64 exec, s[14:15]")
        a("buffer_load_dword v18, v6, s[48:51], 0 offen sc1")
        a("s_mov_b64 exec, -1")
        a("s_waitcnt vmcnt(0)")
        a("v_add_u32_dpp v19, v18, v18 row_ror:8 row_mask:0xf bank_mask:0xf")
        for g in range(4):
            a(f"v_readlane_b32 s{80+g}, v19, {16*g+2}")
        a("s_add_u32 s80, s80, s81")
        a("s_add_u32 s82, s82, s83")
        a("s_add_u32 s80, s80, s82")
        a("s_cmp_eq_u32 s80, 256")
        a(f"s_cbranch_scc1 LR_cok{tag}")
        a(f"s_sleep {args.red_slp}")
        a("s_sub_u32 s9, s9, 1")
        a("s_cmp_lg_u32 s9, 0")
        a(f"s_cbranch_scc1 LR_c{tag}")
        a.label(f"LR_cok{tag}")

    def retry(tag, slp):
        a("v_cmp_eq_u32 vcc, -1, v22")
        a("s_cmp_eq_u32 s9, 0")
        a(f"s_cbranch_scc1 LR_{tag}ok")
        a(f"s_cbranch_vccz LR_{tag}ok")
        a(f"s_sleep {slp}")
        a(f"s_branch LR_{tag}")
        a.label(f"LR_{tag}ok")

    WD, HH, DA, PT = 24, 96, 136, 8
    a.label("LA_st2")
    a("s_mul_i32 s64, s76, 147456")
    a("s_lshl_b32 s4, s77, 7")
    a("s_add_u32 s64, s64, s4")
    a("s_mul_i32 s65, s76, 288")
    a("s_add_u32 s67, s65, 5504")
    a("s_lshl_b32 s66, s76, 13")
    a("s_lshl_b32 s4, s77, 8")
    a("s_add_u32 s66, s66, s4")
    a("s_mov_b32 s44, s32")
    a("s_mov_b32 s45, s33")
    a("s_mov_b32 s46, 1409024")
    a(f"s_add_u32 s52, s40, {WS_H4}")
    a("s_addc_u32 s53, s41, 0")
    a("s_movk_i32 s54, 11008")
    a(f"s_add_u32 s56, s40, {WS_F}")
    a("s_addc_u32 s57, s41, 0")
    a("s_mov_b32 s58, 81920")
    a("s_mov_b32 s70, 0x05040100")
    a("s_mov_b32 s71, 0x07060302")
    a("v_lshrrev_b32 v20, 3, v0")
    a("v_and_b32 v21, 7, v0")
    a("v_mul_u32_u24 v2, 18432, v20")
    a("v_lshl_add_u32 v2, v21, 4, v2")
    a("v_mul_u32_u24 v3, 36, v20")
    a("v_lshrrev_b32 v22, 4, v0")
    a("v_lshlrev_b32 v4, 11, v22")
    a("v_lshl_add_u32 v4, v21, 5, v4")
    a("v_bfe_u32 v22, v0, 3, 1")
    a("v_lshl_add_u32 v4, v22, 4, v4")
    a(f"v_mov_b32 v16, {C_LANDED}")
    lds_wait("0", args.red_t0, 32)
    stamp(1)
    for i in range(18):
        if i % 4 == 0 and i:
            a("s_add_u32 s64, s64, 4096")
        a(f"buffer_load_dwordx4 v[{WD+4*i}:{WD+4*i+3}], v2, s[44:47], s64 offen offset:{1024*(i&3)}")
    marked_wait("z")
    LO, HI = {}, {}
    prev = PT
    for p in range(9):
        for d in range(4):
            A_, B_ = WD + 8 * p + d, WD + 8 * p + 4 + d
            a(f"v_perm_b32 v{prev}, v{B_}, v{A_}, s70")
            a(f"v_perm_b32 v{B_}, v{B_}, v{A_}, s71")
            LO[(p, d)] = prev
            HI[(p, d)] = B_
            prev = A_
    a(f"s_mov_b32 s9, {args.red_tmo}")
    a.label("LR_h")
    for b in range(4):
        so = f"s{65 if b < 2 else 67}"
        o = 2752 * (b & 1)
        a(f"buffer_load_dwordx4 v[{HH+10*b}:{HH+10*b+3}], v3, s[52:55], {so} offen offset:{o} sc1")
        a(f"buffer_load_dwordx4 v[{HH+10*b+4}:{HH+10*b+7}], v3, s[52:55], {so} offen offset:{o+16} sc1")
        a(f"buffer_load_dword v{HH+10*b+8}, v3, s[52:55], {so} offen offset:{o+32} sc1")
    a("s_sub_u32 s9, s9, 1")
    a("s_waitcnt vmcnt(0)")
    hr = [HH + 10 * b + k for b in range(4) for k in range(9)]
    a(f"v_max3_u32 v22, v{hr[0]}, v{hr[1]}, v{hr[2]}")
    a(f"v_max3_u32 v23, v{hr[3]}, v{hr[4]}, v{hr[5]}")
    for k in range(6, 34, 4):
        a(f"v_max3_u32 v22, v22, v{hr[k]}, v{hr[k+1]}")
        a(f"v_max3_u32 v23, v23, v{hr[k+2]}, v{hr[k+3]}")
    a(f"v_max3_u32 v22, v22, v{hr[34]}, v{hr[35]}")
    a("v_max_u32 v22, v22, v23")
    retry("h", args.red_hs)
    stamp(2)
    for p in range(9):
        for b in range(4):
            for e in range(8):
                w = (HI if e & 1 else LO)[(p, e >> 1)]
                c = "0" if p == 0 else f"v{DA+8*b+e}"
                a(f"v_dot2_f32_bf16 v{DA+8*b+e}, v{w}, v{HH+10*b+p}, {c}")
    for k in range(16):
        a(f"v_permlane32_swap_b32 v{DA+k}, v{DA+16+k}")
    for k in range(16):
        a(f"v_add_f32 v{DA+k}, v{DA+k}, v{DA+16+k}")
    for k in range(8):
        a(f"v_permlane16_swap_b32 v{DA+k}, v{DA+8+k}")
    for k in range(8):
        a(f"v_add_f32 v{DA+k}, v{DA+k}, v{DA+8+k}")
    for k in range(4):
        a(f"v_add_f32_dpp v{DA+8+k}, v{DA+k}, v{DA+k} row_ror:8 row_mask:0xf bank_mask:0x3")
        a(f"v_add_f32_dpp v{DA+8+k}, v{DA+4+k}, v{DA+4+k} row_ror:8 row_mask:0xf bank_mask:0xc")
    a.label("LR_pz")
    a(f"ds_read_b32 v17, v16 offset:{C_PZ}")
    a("s_waitcnt lgkmcnt(0)")
    a("v_readfirstlane_b32 s4, v17")
    a("s_cmp_eq_u32 s4, 0")
    a("s_cbranch_scc1 LR_pz")
    a(f"buffer_store_dwordx4 v[{DA+8}:{DA+11}], v4, s[56:59], s66 offen sc1")
    stamp(5)
    a("s_branch LA_end2")

    Y0, F0, WT, AC = 40, 72, 120, 8
    a.label("LA_red")
    a("s_lshr_b32 s7, s5, 4")
    a("s_and_b32 s8, s5, 15")
    a("s_mov_b32 s44, s40")
    a("s_mov_b32 s45, s41")
    a(f"s_mov_b32 s46, {WS_F + 81920}")
    a("s_mov_b32 s52, s16")
    a("s_mov_b32 s53, s17")
    a("s_movk_i32 s54, 4096")
    a("s_mov_b32 s56, s34")
    a("s_mov_b32 s57, s35")
    a("s_movk_i32 s58, 1024")
    a("s_mov_b32 s60, s36")
    a("s_mov_b32 s61, s37")
    a("s_movk_i32 s62, 4096")
    a("v_lshrrev_b32 v20, 3, v0")
    a("v_and_b32 v21, 7, v0")
    a("v_lshlrev_b32 v3, 11, v20")
    a("v_lshl_add_u32 v3, v21, 4, v3")
    a("v_lshlrev_b32 v5, 13, v20")
    a("v_lshl_add_u32 v5, v21, 4, v5")
    a("v_lshrrev_b32 v22, 4, v0")
    a("v_and_b32 v23, 1, v22")
    a("v_lshlrev_b32 v23, 1, v23")
    a("v_lshrrev_b32 v22, 1, v22")
    a("v_or_b32 v23, v23, v22")
    a("v_lshl_add_u32 v23, v21, 2, v23")
    a("v_lshlrev_b32 v4, 1, v23")
    a(f"v_mov_b32 v16, {C_LANDED}")
    a("s_lshl_b32 s4, s7, 17")
    a("s_lshl_b32 s5, s8, 7")
    a("s_add_u32 s64, s4, s5")
    YS = [64, 65, 66, 67, 70, 71, 72, 73]
    for i in range(1, 8):
        a(f"s_add_u32 s{YS[i]}, s{YS[i-1]}, 16384")
    a("s_lshl_b32 s12, s7, 11")
    a("s_add_u32 s12, s12, s5")
    a(f"s_add_u32 s12, s12, {WS_F}")
    a("s_add_u32 s11, s12, 65536")
    a("s_lshl_b32 s74, s7, 10")
    a("s_lshl_b32 s5, s8, 6")
    a("s_add_u32 s13, s74, s5")
    a(f"s_sub_u32 s10, s79, {args.red_t1}")
    lds_wait("1", "s10", 32)
    stamp(1)
    a("buffer_load_dwordx4 v[24:27], v1, s[52:55], s74 offen")
    a("buffer_load_dwordx4 v[28:31], v1, s[56:59], 0 offen")
    marked_wait("a")
    a(f"s_mov_b32 s9, {args.red_tmo}")
    a.label("LR_s")
    a(f"buffer_load_dwordx4 v[{F0}:{F0+3}], v5, s[44:47], s12 offen sc1")
    a(f"buffer_load_dwordx4 v[{F0+4}:{F0+7}], v5, s[44:47], s11 offen sc1")
    a("s_sub_u32 s9, s9, 1")
    a("s_waitcnt vmcnt(0)")
    a(f"v_max3_u32 v22, v{F0}, v{F0+1}, v{F0+2}")
    a(f"v_max3_u32 v23, v{F0+3}, v{F0+4}, v{F0+5}")
    a(f"v_max3_u32 v22, v22, v{F0+6}, v{F0+7}")
    a("v_max_u32 v22, v22, v23")
    retry("s", args.red_hs)
    for d in range(4):
        a(f"v_lshlrev_b32 v{32+2*d}, 16, v{24+d}")
        a(f"v_and_b32 v{33+2*d}, s42, v{24+d}")
        a(f"v_lshlrev_b32 v{AC+2*d}, 16, v{28+d}")
        a(f"v_and_b32 v{AC+2*d+1}, s42, v{28+d}")
    for e in range(8):
        a(f"v_mul_f32 v{32+e}, v{32+e}, v{AC+e}")
    for e in range(8):
        round_bf16(a, f"v{32+e}")
    for st in (1, 2, 4):
        for e in range(0, 8, 2 * st):
            a(f"v_add_f32 v{32+e}, v{32+e}, v{32+e+st}")
    for r in (1, 2, 4, 8):
        a(f"v_add_f32_dpp v32, v32, v32 row_ror:{r} row_mask:0xf bank_mask:0xf")
    for g in range(4):
        a(f"v_readlane_b32 s{80+g}, v32, {16*g}")
    a("v_mov_b32 v32, s80")
    a("v_add_f32 v32, s81, v32")
    a("v_add_f32 v32, s82, v32")
    a("v_add_f32 v32, s83, v32")
    round_bf16(a, "v32")
    a("v_mul_f32 v32, s69, v32")
    a("v_exp_f32 v32, -v32")
    a("v_add_f32 v32, 1.0, v32")
    a("v_rcp_f32 v32, v32")
    round_bf16(a, "v32")
    a("v_sub_f32 v33, 1.0, v32")
    round_bf16(a, "v33")

    def red4(b):
        a(f"v_permlane32_swap_b32 v{b}, v{b+1}")
        a(f"v_permlane32_swap_b32 v{b+2}, v{b+3}")
        a(f"v_add_f32 v{b}, v{b}, v{b+1}")
        a(f"v_add_f32 v{b+2}, v{b+2}, v{b+3}")
        a(f"v_permlane16_swap_b32 v{b}, v{b+2}")
        a(f"v_add_f32 v{b}, v{b}, v{b+2}")
        a(f"v_add_f32_dpp v{b}, v{b}, v{b} row_ror:8 row_mask:0xf bank_mask:0xf")

    for c in range(4):
        a(f"v_add_f32 v{F0+c}, v{F0+c}, v{F0+4+c}")
    for k in range(32):
        a(f"v_mov_b32 v{Y0+k}, -1")
    for i in range(8):
        a(f"s_mov_b64 s[{16+2*i}:{17+2*i}], -1")
    a("s_mov_b32 s36, 0x00ff00ff")
    a("s_mov_b32 s37, 0x00ff00ff")
    red4(F0)
    round_bf16(a, f"v{F0}")
    a(f"v_mul_f32 v33, v33, v{F0}")
    round_bf16(a, "v33")
    stamp(2)
    a(f"s_sub_u32 s10, s79, {args.red_t2}")
    a("s_mov_b32 s80, 0x0c0c0400")
    a("s_mov_b32 s81, 0x04000c0c")
    lds_wait("2", "s10", 4)
    a(f"s_mov_b32 s9, {args.red_tmo}")
    if args.red_prio:
        a(f"s_setprio {args.red_prio}")
    stamp(3)
    if args.red_inc:
        for c in range(4):
            a(f"v_mov_b32 v{AC+c}, 0")
        a.label("LR_p")
        for i in range(8):
            a(f"s_mov_b64 exec, s[{16+2*i}:{17+2*i}]")
            a(f"buffer_load_dwordx4 v[{Y0+4*i}:{Y0+4*i+3}], v3, s[44:47], s{YS[i]} offen sc1")
        a("s_mov_b64 exec, -1")
        a("s_sub_u32 s9, s9, 1")
        a("s_mov_b64 s[34:35], 0")
        if args.red_ps:
            a(f"s_sleep {args.red_ps}")
        a("s_waitcnt vmcnt(0)")
        for i in range(8):
            y = Y0 + 4 * i
            m = f"s[{16+2*i}:{17+2*i}]"
            a(f"s_cmp_eq_u64 {m}, 0")
            a(f"s_cbranch_scc1 LR_q{i}")
            a(f"v_max3_u32 v38, v{y}, v{y+1}, v{y+2}")
            a(f"v_perm_b32 v{WT}, v{y+1}, v{y}, s80")
            a(f"v_max_u32 v38, v38, v{y+3}")
            a(f"v_perm_b32 v{WT+1}, v{y+3}, v{y+2}, s81")
            a(f"v_cmp_eq_u32 {m}, -1, v38")
            a(f"v_or_b32 v{WT}, v{WT}, v{WT+1}")
            a(f"s_or_b64 s[34:35], s[34:35], {m}")
            a(f"s_cmp_lg_u64 {m}, 0")
            a(f"s_cbranch_scc1 LR_q{i}")
            a(f"v_sub_f32_dpp v{WT+1}, v{WT}, v{WT} row_ror:8 row_mask:0xf bank_mask:0xf")
            a(f"v_exp_f32 v{WT+1}, v{WT+1}")
            a(f"v_add_f32 v{WT+1}, 1.0, v{WT+1}")
            a(f"v_rcp_f32 v{WT+1}, v{WT+1}")
            for c in range(4):
                a(f"v_fmac_f32 v{AC+c}, v{WT+1}, v{y+c}")
            a.label(f"LR_q{i}")
        E = AC + 4
        for c in range(4):
            a(f"v_mov_b32 v{E+c}, v{AC+c}")
        a("s_cmp_eq_u32 s9, 0")
        a("s_cselect_b64 s[34:35], 0, s[34:35]")
        red4(E)
        a("s_cmp_eq_u64 s[34:35], 0")
        a("s_cselect_b64 s[38:39], s[36:37], 0")
        round_bf16(a, f"v{E}")
        a(f"v_mul_f32 v{E}, v32, v{E}")
        round_bf16(a, f"v{E}")
        a(f"v_add_f32 v{E}, v{E}, v33")
        a(f"v_cvt_pk_bf16_f32 v{E}, v{E}, v{E}")
        a("s_mov_b64 exec, s[38:39]")
        a(f"buffer_store_short v{E}, v4, s[60:63], s13 offen")
        a("s_cbranch_scc0 LR_p")
    else:
        a.label("LR_p")
        for i in range(8):
            a(f"s_or_b64 exec, s[{16+2*i}:{17+2*i}], 1")
            a(f"buffer_load_dwordx4 v[{Y0+4*i}:{Y0+4*i+3}], v3, s[44:47], s{YS[i]} offen sc1")
        a("s_mov_b64 exec, -1")
        a("s_sub_u32 s9, s9, 1")
        a("s_mov_b64 s[34:35], 0")
        for i0_ in range(0, 8, 2):
            pr = (i0_, i0_ + 1)
            a(f"s_waitcnt vmcnt({6-i0_})")
            for i in pr:
                y = Y0 + 4 * i
                a(f"v_perm_b32 v{WT+i}, v{y+1}, v{y}, s80")
                a(f"v_perm_b32 v{WT+8+i}, v{y+3}, v{y+2}, s81")
            for i in pr:
                a(f"v_or_b32 v{WT+i}, v{WT+i}, v{WT+8+i}")
            for i in pr:
                y = Y0 + 4 * i
                a(f"v_max3_u32 v{38+(i&1)}, v{y}, v{y+1}, v{y+2}")
            for i in pr:
                a(f"v_sub_f32_dpp v{WT+8+i}, v{WT+i}, v{WT+i} row_ror:8 row_mask:0xf bank_mask:0xf")
            for i in pr:
                y = Y0 + 4 * i
                a(f"v_max_u32 v{38+(i&1)}, v{38+(i&1)}, v{y+3}")
            for i in pr:
                a(f"v_exp_f32 v{WT+8+i}, v{WT+8+i}")
            for i in pr:
                a(f"v_cmp_eq_u32 s[{16+2*i}:{17+2*i}], -1, v{38+(i&1)}")
            for i in pr:
                a(f"v_add_f32 v{WT+8+i}, 1.0, v{WT+8+i}")
            for i in pr:
                a(f"v_rcp_f32 v{WT+8+i}, v{WT+8+i}")
            for i in pr:
                a(f"s_or_b64 s[34:35], s[34:35], s[{16+2*i}:{17+2*i}]")
            for i in pr:
                y = Y0 + 4 * i
                o = AC + 4 * (i & 1)
                for c in range(4):
                    if i < 2:
                        a(f"v_mul_f32 v{o+c}, v{WT+8+i}, v{y+c}")
                    else:
                        a(f"v_fmac_f32 v{o+c}, v{WT+8+i}, v{y+c}")
        for c in range(4):
            a(f"v_add_f32 v{AC+c}, v{AC+c}, v{AC+4+c}")
        a("s_cmp_eq_u32 s9, 0")
        a("s_cselect_b64 s[34:35], 0, s[34:35]")
        red4(AC)
        a("s_cmp_eq_u64 s[34:35], 0")
        a("s_cselect_b64 s[38:39], s[36:37], 0")
        round_bf16(a, f"v{AC}")
        a(f"v_mul_f32 v{AC}, v32, v{AC}")
        round_bf16(a, f"v{AC}")
        a(f"v_add_f32 v{AC}, v{AC}, v33")
        a(f"v_cvt_pk_bf16_f32 v{AC}, v{AC}, v{AC}")
        a("s_mov_b64 exec, s[38:39]")
        a(f"buffer_store_short v{AC}, v4, s[60:63], s13 offen")
        a("s_cbranch_scc0 LR_p")
    a("s_mov_b64 exec, -1")
    stamp(5)
    a("s_branch LA_end2")


def probe_kernel(a, args):
    a.raw(".globl probe_kernel\n.p2align 8\n.type probe_kernel,@function")
    a.label("probe_kernel")
    a("s_cmp_ge_u32 s2, 1")
    a("s_cbranch_scc1 LP_end")
    a("s_load_dwordx16 s[16:31], s[0:1], 0")
    a("s_load_dwordx2 s[40:41], s[0:1], 96")
    a("s_mov_b32 s46, 0x08000000")
    a("s_mov_b32 s47, 0x20000")
    a("s_mov_b32 s62, 4096")
    a("s_mov_b32 s63, 0x20000")
    a("v_mov_b32 v1, 0")
    a("s_mov_b64 exec, 1")
    a("s_waitcnt lgkmcnt(0)")
    a(f"s_add_u32 s60, s40, {3<<20}")
    a("s_addc_u32 s61, s41, 0")
    n = 0
    for base in (18, 20):
        a(f"s_mov_b32 s44, s{base}")
        a(f"s_mov_b32 s45, s{base+1}")
        for i in range(8):
            off = i * (16 << 20) + (8 << 20) + 0x12300
            a(f"s_mov_b32 s10, {off}")
            a(f"buffer_load_dword v2, v1, s[44:47], s10 offen {args.probe_pol}")
            a("s_waitcnt vmcnt(0)")
            a("v_mov_b32 v3, 0")
            for r in range(4):
                a(f"s_add_u32 s10, s10, {0x4d00}")
                a("s_memtime s[12:13]")
                a("s_waitcnt lgkmcnt(0)")
                a(f"buffer_load_dword v2, v1, s[44:47], s10 offen {args.probe_pol}")
                a("s_waitcnt vmcnt(0)")
                a("s_memtime s[14:15]")
                a("s_waitcnt lgkmcnt(0)")
                a("s_sub_u32 s14, s14, s12")
                a("v_add_u32 v3, s14, v3")
            a(f"buffer_store_dword v3, v1, s[60:63], 0 offen offset:{4*n}")
            n += 1
    a.label("LP_end")
    a("s_endpgm")


def fin_kernel(a, args):
    a.raw(".globl fin_kernel\n.p2align 8\n.type fin_kernel,@function")
    a.label("fin_kernel")
    a("s_cmp_ge_u32 s2, 64")
    a("s_cbranch_scc1 LB_end")
    if args.probe == 2:
        a("s_cmp_lg_u32 s2, 0")
        a("s_cbranch_scc1 LB_nodiag")
        a("s_memrealtime s[20:21]")
        a("s_load_dwordx4 s[4:7], s[0:1], 88")
        a("s_mov_b32 s46, 0x100000")
        a("s_mov_b32 s47, 0x20000")
        a("s_mov_b32 s50, 64")
        a("s_mov_b32 s51, 0x20000")
        a("s_waitcnt lgkmcnt(0)")
        a(f"s_add_u32 s44, s6, {4<<20}")
        a("s_addc_u32 s45, s7, 0")
        a("s_mov_b32 s48, s4")
        a("s_mov_b32 s49, s5")
        a("v_mul_u32_u24 v1, 640, v0")
        a("v_mov_b32 v2, 0")
        a("buffer_load_dword v3, v2, s[44:47], 0 offen")
        for k in range(6):
            a(f"buffer_load_dword v{4+k}, v1, s[44:47], 0 offen offset:{8*k}")
        a("buffer_load_dword v10, v1, s[44:47], 0 offen offset:104")
        a("s_waitcnt vmcnt(0)")
        a("v_mov_b32 v12, 0x10000")
        for k in range(7):
            a(f"v_sub_u32 v{4+k}, v{4+k}, v3")
            a(f"v_add_u32 v{4+k}, 1000, v{4+k}")
            a(f"buffer_atomic_umax v{4+k}, v2, s[48:51], 0 offen offset:{8*k}")
            a(f"v_sub_u32 v11, v12, v{4+k}")
            a(f"buffer_atomic_umax v11, v2, s[48:51], 0 offen offset:{8*k+4}")
        a("v_sub_u32 v4, s20, v3")
        a("v_add_u32 v4, 1000, v4")
        a("buffer_atomic_umax v4, v2, s[48:51], 0 offen offset:56")
        a("s_waitcnt vmcnt(0)")
        a.label("LB_nodiag")
    a("s_load_dwordx2 s[16:17], s[0:1], 0")
    a("s_load_dwordx4 s[32:35], s[0:1], 72")
    a("s_load_dwordx2 s[40:41], s[0:1], 96")
    a("s_lshr_b32 s7, s2, 4")
    a("s_and_b32 s8, s2, 15")
    a("s_mov_b32 s42, 0xffff0000")
    a(f"s_mov_b32 s69, {LOG2E:#x}")
    for r in (47, 51, 55, 59, 63):
        a(f"s_mov_b32 s{r}, 0x20000")
    a(f"s_mov_b32 s46, {WS_STATS + 2048}")
    a(f"s_mov_b32 s50, {NFFN*8192}")
    a("s_mov_b32 s54, 4096")
    a("s_mov_b32 s58, 1024")
    a("s_mov_b32 s62, 4096")
    a("v_lshrrev_b32 v1, 3, v0")
    a("v_and_b32 v2, 7, v0")
    a("v_lshlrev_b32 v3, 11, v1")
    a("v_lshl_add_u32 v3, v2, 4, v3")
    a("v_lshrrev_b32 v4, 1, v1")
    a("v_lshlrev_b32 v4, 4, v4")
    a("v_lshlrev_b32 v5, 13, v1")
    a("v_lshl_add_u32 v5, v2, 4, v5")
    a("v_lshlrev_b32 v6, 2, v0")
    a("s_lshl_b32 s4, s7, 17")
    a("s_lshl_b32 s5, s8, 7")
    a("s_add_u32 s4, s4, s5")
    a("s_add_u32 s10, s4, 65536")
    a("s_lshl_b32 s11, s7, 9")
    a(f"s_add_u32 s11, s11, {WS_STATS}")
    a("s_lshl_b32 s12, s7, 11")
    a("s_add_u32 s12, s12, s5")
    a("s_add_u32 s13, s12, 0x40000")
    a("s_add_u32 s14, s12, 0x80000")
    a("s_lshl_b32 s15, s7, 10")
    a("s_waitcnt lgkmcnt(0)")
    a("s_mov_b32 s44, s40")
    a("s_mov_b32 s45, s41")
    a(f"s_add_u32 s48, s40, {WS_F}")
    a("s_addc_u32 s49, s41, 0")
    a("s_mov_b32 s52, s16")
    a("s_mov_b32 s53, s17")
    a("s_mov_b32 s56, s32")
    a("s_mov_b32 s57, s33")
    a("s_mov_b32 s60, s34")
    a("s_mov_b32 s61, s35")
    a("buffer_load_dwordx4 v[8:11], v4, s[44:47], s11 offen")
    a("buffer_load_dwordx4 v[12:15], v4, s[44:47], s11 offen offset:256")
    a("buffer_load_dword v36, v6, s[52:55], s15 offen")
    a("buffer_load_dword v37, v6, s[56:59], 0 offen")
    a("buffer_load_dwordx4 v[16:19], v3, s[44:47], s4 offen")
    a("buffer_load_dwordx4 v[20:23], v3, s[44:47], s10 offen")
    a("buffer_load_dwordx4 v[24:27], v5, s[48:51], s12 offen")
    a("buffer_load_dwordx4 v[28:31], v5, s[48:51], s13 offen")
    a("buffer_load_dwordx4 v[32:35], v5, s[48:51], s14 offen")
    a("v_and_b32 v7, 1, v1")
    a("v_cmp_eq_u32 vcc, 1, v7")
    a("s_waitcnt vmcnt(7)")
    for k, sb in enumerate((8, 12)):
        w = f"v{38+k}"
        a(f"v_max_f32 v40, v{sb}, v{sb+2}")
        a(f"v_sub_f32 v{sb}, v{sb}, v40")
        a(f"v_sub_f32 v{sb+2}, v{sb+2}, v40")
        a(f"v_mul_f32 v{sb}, s69, v{sb}")
        a(f"v_mul_f32 v{sb+2}, s69, v{sb+2}")
        a(f"v_exp_f32 v{sb}, v{sb}")
        a(f"v_exp_f32 v{sb+2}, v{sb+2}")
        a(f"v_mul_f32 v{sb}, v{sb}, v{sb+1}")
        a(f"v_mul_f32 v{sb+2}, v{sb+2}, v{sb+3}")
        a(f"v_add_f32 v40, v{sb}, v{sb+2}")
        a("v_rcp_f32 v40, v40")
        a(f"v_cndmask_b32 {w}, v{sb}, v{sb+2}, vcc")
        a(f"v_mul_f32 {w}, {w}, v40")
    a("s_waitcnt vmcnt(5)")
    a("v_lshlrev_b32 v40, 16, v36")
    a("v_and_b32 v41, s42, v36")
    a("v_lshlrev_b32 v42, 16, v37")
    a("v_and_b32 v43, s42, v37")
    a("v_mul_f32 v40, v40, v42")
    a("v_mul_f32 v41, v41, v43")
    round_bf16(a, "v40")
    round_bf16(a, "v41")
    a("v_add_f32 v40, v40, v41")
    for r in (1, 2, 4, 8):
        a(f"v_add_f32_dpp v40, v40, v40 row_ror:{r} row_mask:0xf bank_mask:0xf")
    for g in range(4):
        a(f"v_readlane_b32 s{80+g}, v40, {16*g}")
    a("v_mov_b32 v40, s80")
    a("v_add_f32 v40, s81, v40")
    a("v_add_f32 v40, s82, v40")
    a("v_add_f32 v40, s83, v40")
    a("v_lshrrev_b32 v41, 6, v0")
    a("v_lshlrev_b32 v42, 2, v41")
    a("ds_write_b32 v42, v40 offset:1024")
    a("s_waitcnt vmcnt(3)")
    for k in range(4):
        a(f"v_mul_f32 v{16+k}, v38, v{16+k}")
        a(f"v_fmac_f32 v{16+k}, v39, v{20+k}")
    a("s_waitcnt vmcnt(0)")
    for k in range(4):
        a(f"v_add_f32 v{24+k}, v{24+k}, v{28+k}")
        a(f"v_add_f32 v{24+k}, v{24+k}, v{32+k}")
    for k in range(4):
        a(f"v_permlane32_swap_b32 v{16+k}, v{24+k}")
    for k in range(4):
        a(f"v_add_f32 v{16+k}, v{16+k}, v{24+k}")
    a("v_permlane16_swap_b32 v16, v17")
    a("v_permlane16_swap_b32 v18, v19")
    a("v_add_f32 v16, v16, v17")
    a("v_add_f32 v18, v18, v19")
    a("v_add_f32_dpp v16, v16, v16 row_ror:8 row_mask:0xf bank_mask:0xf")
    a("v_add_f32_dpp v18, v18, v18 row_ror:8 row_mask:0xf bank_mask:0xf")
    a("v_bfe_u32 v43, v0, 5, 1")
    a("v_lshlrev_b32 v43, 7, v43")
    a("v_lshl_add_u32 v43, v41, 8, v43")
    a("v_lshl_add_u32 v43, v2, 4, v43")
    a("v_bfe_u32 v44, v0, 4, 1")
    a("v_lshl_add_u32 v43, v44, 2, v43")
    a("ds_write_b32 v43, v16")
    a("ds_write_b32 v43, v18 offset:8")
    a("s_waitcnt lgkmcnt(0)")
    a("s_barrier")
    a("v_cmp_gt_u32 vcc, 32, v0")
    a("s_and_saveexec_b64 s[84:85], vcc")
    a("s_cbranch_execz LB_end")
    a("v_mov_b32 v1, 0")
    for w in range(4):
        a(f"ds_read_b32 v{8+w}, v6 offset:{256*w}")
        a(f"ds_read_b32 v{12+w}, v6 offset:{256*w+128}")
    a("ds_read_b128 v[16:19], v1 offset:1024")
    a("s_waitcnt lgkmcnt(0)")
    a("v_add_f32 v8, v8, v9")
    a("v_add_f32 v10, v10, v11")
    a("v_add_f32 v12, v12, v13")
    a("v_add_f32 v14, v14, v15")
    a("v_add_f32 v16, v16, v17")
    a("v_add_f32 v18, v18, v19")
    a("v_add_f32 v8, v8, v10")
    a("v_add_f32 v12, v12, v14")
    a("v_add_f32 v16, v16, v18")
    round_bf16(a, "v8")
    round_bf16(a, "v12")
    round_bf16(a, "v16")
    a("v_mul_f32 v16, s69, v16")
    a("v_exp_f32 v16, -v16")
    a("v_add_f32 v16, 1.0, v16")
    a("v_rcp_f32 v16, v16")
    round_bf16(a, "v16")
    a("v_sub_f32 v17, 1.0, v16")
    round_bf16(a, "v17")
    a("v_mul_f32 v8, v16, v8")
    a("v_mul_f32 v12, v17, v12")
    round_bf16(a, "v8")
    round_bf16(a, "v12")
    a("v_add_f32 v8, v8, v12")
    a("v_cvt_pk_bf16_f32 v8, v8, v8")
    a("v_lshlrev_b32 v1, 1, v0")
    a("s_lshl_b32 s4, s7, 10")
    a("s_lshl_b32 s5, s8, 6")
    a("s_add_u32 s4, s4, s5")
    a("buffer_store_short v8, v1, s[60:63], s4 offen")
    if args.probe == 1:
        a("s_cmp_lg_u32 s2, 0")
        a("s_cbranch_scc1 LB_end")
        a("s_load_dwordx2 s[4:5], s[0:1], 88")
        a(f"s_add_u32 s44, s40, {3<<20}")
        a("s_addc_u32 s45, s41, 0")
        a("s_mov_b32 s46, 64")
        a("s_mov_b32 s50, 64")
        a("buffer_load_dword v8, v6, s[44:47], 0 offen")
        a("s_waitcnt vmcnt(0) lgkmcnt(0)")
        a("s_mov_b32 s48, s4")
        a("s_mov_b32 s49, s5")
        a("buffer_store_dword v8, v6, s[48:51], 0 offen")
    a.label("LB_end")
    a("s_endpgm")


if __name__ == "__main__":
    ap = argparse.ArgumentParser()
    ap.add_argument("-o", default="v2.s")
    ap.add_argument("--ts", type=int, default=0)
    ap.add_argument("--slots", type=int, default=16)
    ap.add_argument("--inflight", type=int, default=24)
    ap.add_argument("--wo_at", type=int, default=1)
    ap.add_argument("--wo_npj", type=int, default=2)
    ap.add_argument("--fd", type=int, default=2)
    ap.add_argument("--pf", type=int, default=1)
    ap.add_argument("--coop", type=int, default=0)
    ap.add_argument("--wnt", type=int, default=1)
    ap.add_argument("--cnt", type=int, default=1)
    ap.add_argument("--dshift", type=int, default=4)
    ap.add_argument("--dshift_a", type=int, default=2)
    ap.add_argument("--prep_at", type=int, default=11)
    ap.add_argument("--warm", type=int, default=12)
    ap.add_argument("--map", default="xcd")
    ap.add_argument("--ffn_wait", type=int, default=1)
    ap.add_argument("--tk", type=int, default=1)
    ap.add_argument("--warmfin", type=int, default=0)
    ap.add_argument("--early", type=int, default=0)
    ap.add_argument("--early_code", type=int, default=1)
    ap.add_argument("--nspec", type=int, default=3)
    ap.add_argument("--lost_sleep", type=int, default=12)
    ap.add_argument("--probe", type=int, default=0)
    ap.add_argument("--probe_pol", default="nt")
    ap.add_argument("--kp", default="nt")
    ap.add_argument("--vp", default="nt")
    ap.add_argument("--rate", type=int, default=33)
    ap.add_argument("--glob", type=float, default=0)
    ap.add_argument("--xbias", type=float, default=0)
    ap.add_argument("--monx", type=int, default=0)
    ap.add_argument("--bstride", type=int, default=4352)
    ap.add_argument("--monld", default="sc1")
    ap.add_argument("--shard", default="xcd")
    ap.add_argument("--mon", type=int, default=0)
    ap.add_argument("--mon_stop", type=int, default=6)
    ap.add_argument("--lv", default="16,12,22,30,40")
    ap.add_argument("--th", default="-4,0,2,4")
    ap.add_argument("--end_code", type=int, default=0)
    ap.add_argument("--deepcls", type=int, default=0)
    ap.add_argument("--inf2", type=int, default=0)
    ap.add_argument("--deep_at", type=int, default=24)
    ap.add_argument("--tkmap", type=int, default=0)
    ap.add_argument("--fuse", type=int, default=0)
    ap.add_argument("--tail2", type=int, default=0)
    ap.add_argument("--yx4", type=int, default=0)
    ap.add_argument("--flin", type=int, default=0)
    ap.add_argument("--dbg", type=int, default=0)
    ap.add_argument("--exp", default="")
    ap.add_argument("--red_t0", type=int, default=40)
    ap.add_argument("--red_slp", type=int, default=64)
    ap.add_argument("--red_hs", type=int, default=32)
    ap.add_argument("--red_inc", type=int, default=0)
    ap.add_argument("--red_ps", type=int, default=0)
    ap.add_argument("--red_t1", type=int, default=24)
    ap.add_argument("--red_t2", type=int, default=6)
    ap.add_argument("--red_a", type=int, default=24)
    ap.add_argument("--red_prio", type=int, default=2)
    ap.add_argument("--red_tmo", type=int, default=2000)
    args = ap.parse_args()
    open(args.o, "w").write(gen(args))
```
